```python
import torch

def _softmax(x, axis=-1):
    return torch.softmax(x, dim=axis)

def _gelu(x):
    return torch.nn.functional.gelu(x, approximate='tanh')

def _silu(x):
    return torch.nn.functional.silu(x)

def _sigmoid(x):
    return torch.sigmoid(x)

def _layernorm(x, axis=-1, eps=1e-05):
    m = x.mean(dim=axis, keepdim=True)
    v = x.var(dim=axis, keepdim=True, unbiased=False)
    return (x - m) / torch.sqrt(v + eps)

def _scatter_add(tgt, idx, src, axis=0):
    return tgt.clone().index_add_(axis, idx, src)

def _segment_sum(src, seg, n):
    out = torch.zeros((n,) + src.shape[1:], dtype=src.dtype)
    return out.index_add_(0, seg, src)

def _pad(x, pw):
    flat = tuple((v for pair in reversed(pw) for v in pair))
    return torch.nn.functional.pad(x, flat)
kernel_name = 'adaLN_cond__ssm_conv_h3__glu_gated_bilinear__prompt'

def setup_inputs():

    _w = lambda a: (lambda t: t.to(torch.bfloat16) if t.is_floating_point() else t)(torch.as_tensor(a))

    def _A_setup():
        B, S, D = (1, 2048, 640)
        ks = 4
        return {'q': _w((lambda *s: torch.randn(*s, dtype=torch.bfloat16) * 0.05)(B, S, D)), 'k': _w((lambda *s: torch.randn(*s, dtype=torch.bfloat16) * 1.6)(B, S, D)), 'v': _w((lambda *s: torch.randn(*s, dtype=torch.bfloat16) * 1.6)(B, S, D)), 'shift_k': _w((lambda *s: torch.randn(*s, dtype=torch.bfloat16) * 1.6)(D, ks) * 0.5), 'ssm_k': _w((lambda *s: torch.randn(*s, dtype=torch.bfloat16) * 1.6)(D, S) * (1.0 / S ** 0.5)), 'ssm_D': _w((lambda *s: torch.randn(*s, dtype=torch.bfloat16) * 1.6)(D))}
    _A_in = _A_setup()

    def _B_setup():
        B, S, D, F = (1, 2048, 640, 1536)
        return {'x': _w((lambda *s: torch.randn(*s, dtype=torch.bfloat16) * 0.05)(B, S, D)), 'w_gate': _w((lambda *s: torch.randn(*s, dtype=torch.bfloat16) * 3.2)(D, F) * D ** (-0.5)), 'w_up': _w((lambda *s: torch.randn(*s, dtype=torch.bfloat16) * 3.2)(D, F) * D ** (-0.5)), 'w_down': _w((lambda *s: torch.randn(*s, dtype=torch.bfloat16) * 3.2)(F, D) * F ** (-0.5))}
    _B_in = _B_setup()
    return {'A_q': _A_in['q'], 'A_k': _A_in['k'], 'A_v': _A_in['v'], 'A_shift_k': _A_in['shift_k'], 'A_ssm_k': _A_in['ssm_k'], 'A_ssm_D': _A_in['ssm_D'], 'B_x': _B_in['x'], 'B_w_gate': _B_in['w_gate'], 'B_w_up': _B_in['w_up'], 'B_w_down': _B_in['w_down'], 'c': _w((lambda *s: torch.randn(*s, dtype=torch.bfloat16) * 0.2)(1, 640) * 8.0), 'w_mod': _w((lambda *s: torch.randn(*s, dtype=torch.bfloat16) * 0.2)(640, 6 * 640) * 640 ** (-0.5) * 8.0)}

def reference(A_q, A_k, A_v, A_shift_k, A_ssm_k, A_ssm_D, B_x, B_w_gate, B_w_up, B_w_down, c, w_mod):

    def _A_ref(q, k, v, shift_k, ssm_k, ssm_D):
        B, S, D = q.shape
        ks = shift_k.shape[-1]
        k_pad = _pad(k, ((0, 0), (ks - 1, 0), (0, 0)))
        k_shift = torch.zeros_like(k)
        for t in range(ks):
            k_shift = k_shift + k_pad[:, t:t + S, :] * shift_k[:, ks - 1 - t][None, None, :]
        kv = k_shift * v
        L = 2 * S
        kv_pad = _pad(kv, ((0, 0), (0, S), (0, 0)))
        kf_pad = _pad(ssm_k, ((0, 0), (0, S)))
        kv_f = (lambda x, axes=(-2, -1): torch.fft.rfft2(x.float(), dim=axes))(kv_pad[:, None, :, :], axes=(1, 2))
        kf_f = (lambda x, axes=(-2, -1): torch.fft.rfft2(x.float(), dim=axes))(kf_pad[:, None, :], axes=(1, 2))
        kf_f = (lambda x, *d: x.permute(*d))(kf_f, 1, 2, 0)
        y_f = kv_f * kf_f[None, :, :, :]
        y = (lambda x, s, axes=(-2, -1): torch.fft.irfft2(x, s=s, dim=axes).to(torch.bfloat16))(y_f, (1, L), axes=(1, 2))[:, 0, :S, :]
        y = y + kv * ssm_D[None, None, :]
        return q * y

    def _B_ref(x, w_gate, w_up, w_down):
        g = torch.einsum('bsd,df->bsf', x, w_gate)
        u = torch.einsum('bsd,df->bsf', x, w_up)
        h = g * u
        return torch.einsum('bsf,fd->bsd', h, w_down)
    x = A_q
    mod = (_silu(c) @ w_mod).reshape(c.shape[0], 6, 1, -1)
    sa, ca, ga, sb, cb, gb = (mod[:, 0].clone(), mod[:, 1].clone(), mod[:, 2].clone(), mod[:, 3].clone(), mod[:, 4].clone(), mod[:, 5].clone())
    h = _layernorm(x, axis=-1) * (1 + ca) + sa
    x = x + ga * _A_ref(h, A_k, A_v, A_shift_k, A_ssm_k, A_ssm_D)
    h = _layernorm(x, axis=-1) * (1 + cb) + sb
    x = x + gb * _B_ref(h, B_w_gate, B_w_up, B_w_down)
    return x
```

```python
import re

REG = re.compile(r"\b([vas])(\d+)\b|\b([vas])\[(\d+):(\d+)\]|\b(vcc|exec|m0|scc|vcc_lo|vcc_hi|exec_lo|exec_hi)\b")

def regs_of(op):
    out = []
    for m in REG.finditer(op):
        if m.group(1):
            out.append((m.group(1), int(m.group(2))))
        elif m.group(3):
            out += [(m.group(3), i) for i in range(int(m.group(4)), int(m.group(5)) + 1)]
        else:
            n = m.group(6)
            if n.startswith("vcc"): out.append(("x", "vcc"))
            elif n.startswith("exec"): out.append(("x", "exec"))
            else: out.append(("x", n))
    return out

TRANS = ("v_exp_f32", "v_log_f32", "v_rcp_f32", "v_rsq_f32", "v_sqrt_f32", "v_sin_f32", "v_cos_f32", "v_rcp_iflag_f32")

class Ins:
    __slots__ = ("text", "mn", "defs", "uses", "kind", "passes", "srcc", "srcab", "wide_store_data", "dpp", "tag", "lds_dma", "nowait", "cond")
    def __init__(self, text):
        self.text = text
        body = text.split(";")[0].strip()
        parts = body.split(None, 1)
        mn = self.mn = parts[0]
        rest = parts[1] if len(parts) > 1 else ""
        ops = [o.strip() for o in re.split(r",(?![^\[]*\])", rest)] if rest else []
        self.dpp = ("_dpp" in mn) or bool(re.search(r"quad_perm|row_shr|row_shl|row_ror|row_bcast|row_mirror|row_half_mirror|row_newbcast|wave_", rest))
        self.defs, self.uses = [], []
        self.kind = "other"; self.passes = 0; self.srcc = []; self.srcab = []; self.wide_store_data = []
        self.lds_dma = False; self.tag = None; self.nowait = False; self.cond = False
        R = [regs_of(o.split(" ")[0] if not o.startswith("hwreg") else "") for o in ops]
        allr = [r for x in R for r in x]
        if mn.startswith("v_mfma"):
            self.kind = "mfma"
            self.passes = 8 if "32x32x16" in mn else 4
            self.defs = R[0]; self.srcab = R[1] + R[2]; self.srcc = R[3]; self.uses = R[1] + R[2] + R[3]
        elif mn.startswith(("global_store", "buffer_store", "global_atomic", "buffer_atomic")):
            self.kind = "vmem"; self.uses = allr
            ret = mn.count("atomic") and " sc0" in rest
            if ret:
                self.defs = R[0]; self.uses = [r for x in R[(1 if mn.startswith("global") else 0):] for r in x]
            if mn.endswith(("x3", "x4")):
                self.wide_store_data = R[1] if mn.startswith("global") else R[0]
        elif mn.startswith(("global_load_lds",)) or (mn.startswith("buffer_load") and re.search(r"\blds\b", rest)):
            self.kind = "vmem"; self.uses = allr + [("x", "m0")]; self.lds_dma = True
        elif mn.startswith(("global_load", "buffer_load")):
            self.kind = "vmem"; self.defs = R[0]; self.uses = [r for x in R[1:] for r in x]
            if "d16" in mn: self.uses = self.uses + R[0]
        elif mn.startswith(("buffer_inv", "buffer_wbl2")):
            self.kind = "vmem"
        elif mn.startswith("ds_write") or mn.startswith("ds_add"):
            self.kind = "ds"; self.uses = allr
        elif mn.startswith("ds_"):
            self.kind = "ds"; self.defs = R[0]; self.uses = [r for x in R[1:] for r in x]
        elif mn.startswith(("s_load", "s_memtime", "s_memrealtime", "s_buffer_load")):
            self.kind = "smem"; self.defs = R[0]; self.uses = [r for x in R[1:] for r in x]
        elif mn in ("s_waitcnt", "s_nop", "s_barrier", "s_endpgm", "s_sleep", "s_setprio", "s_branch") or mn.startswith("s_cbranch"):
            self.kind = "ctl"
            if "vcc" in mn: self.uses = [("x", "vcc")]
            if "exec" in mn: self.uses = [("x", "exec")]
        elif mn.startswith(("s_cmp", "s_bitcmp")):
            self.kind = "salu"; self.uses = allr
        elif mn.startswith("s_"):
            self.kind = "salu"; self.defs = R[0] if R else []; self.uses = [r for x in R[1:] for r in x]
            if "saveexec" in mn: self.defs = self.defs + [("x", "exec")]; self.uses += [("x", "exec")]
            if mn in ("s_addk_i32", "s_mulk_i32"): self.uses += R[0]
        elif mn.startswith("v_"):
            self.kind = "valu"
            if mn.startswith("v_cmp"):
                self.defs = R[0]; self.uses = [r for x in R[1:] for r in x]
                if mn.startswith("v_cmpx"): self.defs = self.defs + [("x", "exec")]
            elif mn.startswith(("v_add_co", "v_sub_co", "v_subrev_co", "v_addc_co", "v_subb_co")):
                self.defs = R[0] + R[1]; self.uses = [r for x in R[2:] for r in x]
            elif "permlane" in mn and "swap" in mn:
                self.defs = R[0] + R[1]; self.uses = R[0] + R[1]
            else:
                self.defs = R[0]; self.uses = [r for x in R[1:] for r in x]
                if mn.startswith(("v_fmac", "v_dot2c", "v_pk_fmac", "v_writelane")) or self.dpp or "sdwa" in mn:
                    self.uses = self.uses + R[0]
                if mn.startswith("v_cndmask") and len(ops) == 3: self.uses = self.uses + [("x", "vcc")]
        else:
            raise ValueError("unknown instruction: " + text)

class Asm:
    def __init__(self):
        self.items = []
    def __call__(self, text, tag=None, nowait=False, cond=False):
        for line in text.strip().split("\n"):
            line = line.strip()
            if not line or line.startswith(";"):
                if line: self.items.append(("raw", "    " + line))
                continue
            if line.endswith(":"):
                self.items.append(("label", line[:-1])); continue
            if line.startswith("."):
                self.items.append(("raw", line)); continue
            i = Ins(line); i.tag = tag; i.nowait = nowait; i.cond = cond
            self.items.append(("ins", i))
    def label(self, name): self.items.append(("label", name))
    def raw(self, text): self.items.append(("raw", text))
    def comment(self, text): self.items.append(("raw", "    ; " + text))
    def reset(self):
        self.items.append(("reset", None))
    def reset_v(self):
        self.items.append(("resetv", None))
    def waitv(self, tag):
        self.items.append(("waitv", tag))
    def waitl(self, tag):
        self.items.append(("waitl", tag))
    def wait_all(self): self("s_waitcnt vmcnt(0) lgkmcnt(0)")

    def finish(self):
        out = []
        vm = []
        lg = []
        hist = []
        pos = 0
        condtail = []
        def emit_wait(nv, nl):
            nonlocal vm, lg, pos
            p = []
            if nv is not None:
                nv = min(nv, 62); p.append(f"vmcnt({nv})"); vm = vm[len(vm) - nv:] if nv else []
            if nl is not None:
                nl = min(nl, 14); p.append(f"lgkmcnt({nl})"); lg = lg[len(lg) - nl:] if nl else []
            out.append("    s_waitcnt " + " ".join(p)); pos += 1
        def hoist_wait(nv, nl):
            k = len(out); dv = dl = 0
            while k > 0:
                t = out[k-1].strip()
                mn = t.split()[0] if t else ""
                if mn.startswith("v_mfma"): break
                if len(out) - k >= 3 or t.endswith(":") or mn.startswith(("s_barrier", "s_cbranch", "s_branch", "s_waitcnt", "s_load", "s_mem", ";", ".")): k = None; break
                if mn.startswith("ds_"): dl += 1
                if mn.startswith(("buffer_", "global_")): dv += 1
                k -= 1
            if not k or k == len(out) or (nv is not None and min(nv, 62) - dv < 0) or (nl is not None and min(nl, 14) - dl < 0) or (dv and any(c for c in condtail[-3:])):
                emit_wait(nv, nl); return
            emit_wait(nv, nl)
            out.pop()
            p = []
            if nv is not None: p.append(f"vmcnt({min(nv, 62) - dv})")
            if nl is not None: p.append(f"lgkmcnt({min(nl, 14) - dl})")
            out.insert(k, "    s_waitcnt " + " ".join(p))
            nonlocal pos
            pos -= 1
        def need_v(pred):
            idx = [k for k, o in enumerate(vm) if pred(o)]
            return None if not idx else len(vm) - 1 - max(idx)
        def need_l(pred):
            idx = [k for k, o in enumerate(lg) if pred(o)]
            if not idx: return None
            if any(o[2] for o in lg): return 0
            return len(lg) - 1 - max(idx)
        for item in self.items:
            kind, x = item[:2]
            if kind == "raw": out.append(x); continue
            if kind == "label": out.append(x + ":"); continue
            if kind == "reset": vm = []; lg = []; continue
            if kind == "resetv": vm = []; continue
            if kind == "vm": vm.append((set(regs_of(item[2])) if len(item) > 2 else set(), x)); continue
            if kind == "waitv":
                n = need_v(lambda o: o[1] == x)
                if n is not None: emit_wait(n, None)
                continue
            if kind == "waitl":
                n = need_l(lambda o: o[1] == x)
                if n is not None: emit_wait(None, n)
                continue
            i = x
            if i.mn == "s_waitcnt":
                m = re.search(r"vmcnt\((\d+)\)", i.text)
                if m:
                    n = int(m.group(1)); vm = vm[max(0, len(vm) - n):] if n else []
                m = re.search(r"lgkmcnt\((\d+)\)", i.text)
                if m:
                    n = int(m.group(1))
                    if n == 0: lg = []
                    elif not any(o[2] for o in lg): lg = lg[max(0, len(lg) - n):]
                out.append("    " + i.text); pos += 1; continue
            touched = set(i.defs) | set(i.uses)
            if not i.nowait:
                nv = need_v(lambda o: o[0] & touched)
                nl = need_l(lambda o: o[0] & touched)
                if nv is not None or nl is not None:
                    if i.kind == "mfma": hoist_wait(nv, nl)
                    else: emit_wait(nv, nl)
            need = 0
            D, U = set(i.defs), set(i.uses)
            for (p, ppos) in hist:
                dist = pos - ppos - 1
                PD = set(p.defs)
                req = 0
                if p.kind == "valu":
                    vregs = {r for r in PD if r[0] in "va"}
                    sregs = {r for r in PD if r[0] == "s" or r == ("x", "vcc")}
                    if i.kind == "mfma" and vregs & U: req = max(req, 2)
                    if i.kind == "valu" and (i.dpp or "permlane" in i.mn) and vregs & U: req = max(req, 2)
                    if i.mn.startswith(("v_readlane", "v_readfirstlane")) and vregs & U: req = max(req, 1)
                    if i.kind == "vmem" and sregs & U: req = max(req, 5)
                    if i.kind == "valu" and sregs & U: req = max(req, 4 if i.mn.startswith(("v_readlane", "v_writelane")) else 2)
                    if p.mn.startswith(TRANS) and i.kind in ("valu", "mfma") and vregs & U: req = max(req, 1)
                    if p.mn.startswith("v_dot2") and i.kind in ("valu", "mfma", "vmem", "ds") and vregs & (U | D) and not (i.mn == p.mn and not (vregs & set(regs_of(",".join(i.text.split(",")[1:3]))))): req = max(req, 3)
                    if "sdwa" in p.mn and i.kind == "valu" and vregs & (U | D): req = max(req, 1)
                    if ("x", "exec") in PD:
                        if i.kind == "mfma" or "permlane" in i.mn or i.mn.startswith(("v_readlane", "v_readfirstlane", "v_writelane")): req = max(req, 4)
                        if i.dpp: req = max(req, 5)
                    if ("x", "vcc") in PD and i.mn.startswith("s_cbranch_vcc"): req = max(req, 0)
                elif p.kind == "mfma":
                    big = p.passes == 8
                    if i.kind == "mfma":
                        if PD & set(i.srcab): req = max(req, 12 if big else 8)
                        if PD & set(i.srcc) and not (p.defs == i.srcc and p.passes == i.passes): req = max(req, 10 if big else 6)
                        if PD & D and not (p.defs == i.defs): req = max(req, 10 if big else 6)
                    elif i.kind in ("valu", "vmem", "ds"):
                        if PD & (U | D): req = max(req, 12 if big else 8)
                        if i.kind == "valu" and set(p.srcc) & D: req = max(req, 7 if big else 3)
                elif p.kind == "salu":
                    if ("x", "m0") in PD and i.lds_dma: req = max(req, 1)
                elif p.kind == "vmem":
                    if p.wide_store_data and set(p.wide_store_data) & D: req = max(req, 2 if i.kind == "valu" else 1)
                need = max(need, req - dist)
            while need > 0:
                k = min(need, 16); out.append(f"    s_nop {k-1}"); pos += k; need -= k
            out.append("    " + i.text)
            condtail.append(i.cond)
            hist.append((i, pos))
            if i.mn == "s_nop": pos += int(i.text.split()[1]) + 1
            else: pos += 1
            hist = [(p, pp) for (p, pp) in hist if pos - pp <= 20]
            if i.kind == "vmem" and i.cond:
                assert not i.defs
            elif i.kind == "vmem":
                vm.append((set(i.defs), i.tag))
                if len(vm) > 63 + 1: pass
            elif i.kind == "ds": lg.append((set(i.defs), i.tag, False))
            elif i.kind == "smem": lg.append((set(i.defs), i.tag, True))
        return "\n".join(out) + "\n"
```

```python
from phases import *
import phases

LO2 = [2, 3, 1, 4, 0, 5, 6, 7]
def c2_loads(part, c):
    L = []
    b = c & 1
    for u in (range(4) if part == 0 else LO2):
        L.append(f"ds_read_b128 {vr(FB[b]+4*u,4)}, v5 offset:{512*(7-u)+64*c}")
        L.append(f"ds_read_b64 {vr(AB[b]+4*u,2)}, v4 offset:{512*u+64*c}")
        L.append(f"ds_read_b64 {vr(AB[b]+4*u+2,2)}, v4 offset:{512*u+64*c+8}")
    return L
def c2_pairs(part):
    if part == 0: return sorted([(u, w) for u in range(4) for w in range(4 - u)], key=lambda p: (max(p), p[0] + p[1]))
    pos = {u: k for k, u in enumerate(LO2)}
    return sorted([(u, w) for u in range(8) for w in range(8 - u) if u + w >= 4], key=lambda p: (max(pos[p[0]], pos[p[1]]), min(pos[p[0]], pos[p[1]])))
def c2_list():
    M = []
    for part in range(2):
        for c in range(8):
            for (u, w) in c2_pairs(part):
                M.append((part, c, u, w, False))
                if c == 0 and u == 0: M.append((part, c, u, w, True))
    return M
C2M = c2_list()
def c2_start(part, c): return next(n for n, m in enumerate(C2M) if m[:2] == (part, c))
def c2_sched():
    sc = Sched(len(C2M))
    its = [(p, c) for p in range(2) for c in range(8)]
    for k in range(15):
        n0, n1 = c2_start(*its[k]), c2_start(*its[k + 1])
        L = c2_loads(*its[k + 1])
        gaps = list(range(n0, n1 - (1 if its[k][0] else 0)))
        extra = max(0, len(L) - len(gaps))
        pos = []
        for i, g in enumerate(gaps): pos += [g] * (2 if i < extra else 1)
        if len(pos) > len(L): pos = pos[len(pos) - len(L) - (1 if len(pos) > len(L) else 0):][:len(L)]
        while len(pos) < len(L): pos.append(n1 - 1)
        for g, l in zip(pos, L): sc.force(g, [l])
    return sc
def c2_main(a, sc):
    conv_addr(a)
    a.waitv("xdma")
    for l in c2_loads(0, 0): a(l)
    seen = set()
    for n, (part, c, u, w, dterm) in enumerate(C2M):
        t = u + w; b = c & 1
        cin = vr(ACC + 4*t, 4) if t in seen else "0"
        seen.add(t)
        A = vr(DFR, 4) if dterm else vr(AB[b] + 4*u, 4)
        a(f"v_mfma_f32_16x16x32_bf16 {vr(ACC+4*t,4)}, {A}, {vr(FB[b]+4*w,4)}, {cin}")
        sc.emit(a, n)
DFR = 244
def conv_addr(a):
    a(f"""
    v_and_b32 v2, 15, v1                ; r / a
    v_lshrrev_b32 v3, 4, v1             ; h
    v_add_u32 v4, 1, v2
    v_and_b32 v5, 3, v4                 ; copy j
    v_sub_u32 v4, v4, v5                ; r+1-j
    v_add_u32 v4, 24, v4                ; +8 +16
    v_lshlrev_b32 v4, 1, v4
    v_mul_u32_u24 v5, {KSTR}, v5
    v_add_u32 v4, v4, v5
    v_lshlrev_b32 v5, 4, v3
    v_sub_u32 v4, v4, v5
    s_mul_i32 s51, s3, {KCH}
    v_add_u32 v4, s51, v4               ; A address
    v_lshlrev_b32 v2, 5, v2
    v_add_u32 v2, v2, v5
    s_mul_i32 s52, s3, {XSTR}
    s_add_u32 s52, s52, {XOFF+2*(2056-1792)}
    v_sub_u32 v5, s52, v2               ; F address (w'=7, c=0)
    v_lshlrev_b32 v2, 3, v3
    v_and_b32 v3, 15, v1
    v_sub_u32 v2, v2, v3
    v_subrev_u32 v2, 9, v2              ; p = 8h - r - 9: position of filter tap 0 inside this lane's fragment
    v_and_b32 v3, 1, v2
    v_cmp_eq_u32 vcc, 1, v3
    v_lshrrev_b32 v3, 16, v250
    v_cndmask_b32 v3, v3, v250, vcc
    v_lshrrev_b32 v2, 1, v2
    """)
    for d in range(4):
        a(f"v_cmp_eq_u32 vcc, {d}, v2\nv_cndmask_b32 v{DFR+d}, 0, v3, vcc")
def c2_streads(half):
    L = []
    for t in range(4*half, 4*half + 4):
        L.append(f"ds_read_b128 {vr(SR+4*t,4)}, v7 offset:{1024*t}")
        L.append(f"ds_read_b128 {vr(SM+4*t,4)}, v7 offset:{8192+1024*t}")
    return L
def c2_epi(a, half, QF, XP):
    if half == 0: a("v_mul_f32 v251, v249, v255\nv_mul_f32 v252, v249, v254")
    for t in range(4*half, 4*half + 4):
        r, m, x = SR + 4*t, SM + 4*t, ACC + 4*t
        unpack(a, QF, QF + 1, QR + 2*t); unpack(a, QF + 2, QF + 3, QR + 2*t + 1)
        for p in (0, 2): a(f"v_pk_fma_f32 {vr(r+p,2)}, {vr(QF+p,2)}, {vr(r+p,2)}, {vr(m+p,2)}")
        for p in (0, 2): a(f"v_pk_fma_f32 {vr(r+p,2)}, {vr(r+p,2)}, v[250:251], v[252:253] op_sel:[0,1,0] op_sel_hi:[1,1,0]")
        for p in (0, 2): a(f"v_pk_fma_f32 {vr(x+p,2)}, {vr(x+p,2)}, {vr(r+p,2)}, {vr(QF+p,2)}")
        for p in (0, 2): a(f"v_pk_mul_f32 {vr(r+p,2)}, {vr(x+p,2)}, v[252:253] op_sel:[0,1] op_sel_hi:[1,1]")
        for p in range(2): a(f"v_cvt_pk_bf16_f32 v{m+p}, v{r+2*p}, v{r+2*p+1}")
        a(f"buffer_store_dwordx2 {vr(m,2)}, v6, {WSR}, s68 offen offset:{512*t}{SC}", tag=f"a1st{half}")
        d = x if XP is None else XP + 2*(t - 4*half)
        for p in range(2): a(f"v_cvt_pk_bf16_f32 v{d+p}, v{x+2*p}, v{x+2*p+1}")
def c2_x1stores(half):
    return [(f"buffer_store_dwordx2 {vr(ACC+4*t,2)}, v6, {WSR}, s59 offen offset:{512*t}{SC}", f"a1st{half}") for t in range(4*half, 4*half + 4)]

HACC, HX, HWD, HAD, HDA, HOF, HOM, HSO, HCW, HSW, HST = (8, 56), (104, 120), 136, 168, 172, 173, 174, 175, 176, 188, 200
IMG = 81920
TAB = list(range(10, 16)) + list(range(18, 28)) + list(range(44, 48))
S_STL, S_STW, S_H, S_BI = 6, 7, 8, 9
def h1_ssetup(a, si, sj):
    a(f"""
    s_movk_i32 s4, 4096
    s_movk_i32 s5, 8192
    s_lshl_b32 s{S_STL}, s{si}, 10
    s_add_u32 s{S_STL}, s{S_STL}, {ST2}
    s_lshl_b32 s{S_STW}, s{sj}, 6
    s_add_u32 s{S_STW}, s{S_STW}, s{S_STL}
    s_mul_i32 s{S_H}, s{si}, {4*192}
    s_mul_i32 s50, s{sj}, 12
    s_add_u32 s{S_H}, s{S_H}, s50
    s_mul_i32 s50, s3, 3
    s_add_u32 s{S_H}, s{S_H}, s50
    s_lshl_b32 s{S_H}, s{S_H}, 8
    s_add_u32 s{S_H}, s{S_H}, {HB}
    s_lshl_b32 s{S_BI}, s{sj}, 2
    s_add_u32 s{S_BI}, s{S_BI}, s3
    s_mul_i32 s{S_BI}, s{S_BI}, 384
    s_add_u32 s{S_BI}, s{S_BI}, {BIAS}
    s_mul_i32 s62, s3, {8*PT_}
    s_lshl_b32 s50, s{si}, 7
    s_add_u32 s62, s62, s50
    s_mul_i32 s50, s{R1}, {32*PT_}
    s_add_u32 s{TAB[0]}, s62, s50
    s_lshl_b32 s63, s3, 10
    """)
    for n in range(1, 20):
        a(f"s_add_u32 s{TAB[n]}, s{TAB[n-1]}, {32*PT_}\ns_sub_u32 s35, s{TAB[n]}, {640*PT_}\ns_min_u32 s{TAB[n]}, s{TAB[n]}, s35")
def h1_vsetup(sj, sj2):
    L = ["v_lshrrev_b32 v2, 3, v1", "v_bfe_u32 v3, v1, 4, 2", "v_lshlrev_b32 v3, 1, v3", f"v_xor_b32 v3, v3, v1", "v_and_b32 v3, 7, v3",
         f"v_mul_u32_u24 v2, {PT_}, v2", f"v_lshl_add_u32 v{HDA}, v3, 4, v2", f"v_add_u32 v{HDA}, {A1T}, v{HDA}",
         "v_lshrrev_b32 v2, 2, v1", "v_lshlrev_b32 v2, 7, v2", "v_and_b32 v3, 3, v1", "v_lshl_add_u32 v2, v3, 3, v2", "v_bfe_u32 v3, v1, 3, 2"]
    for rt in range(4): L += [f"v_xor_b32 v{HAD+rt}, {rt}, v3", f"v_lshl_add_u32 v{HAD+rt}, v{HAD+rt}, 5, v2"]
    L += [f"v_and_b32 v{HSO}, 15, v1", f"v_lshlrev_b32 v{HSO}, 4, v{HSO}",
          "v_bfe_u32 v2, v1, 4, 1", "v_lshrrev_b32 v3, 5, v1", f"v_mul_u32_u24 v{HOF}, {192*256}, v2", f"v_lshl_add_u32 v{HOF}, v3, 8, v{HOF}",
          f"v_add_u32 v{HOF}, v{HOF}, v{HSO}", "v_lshl_add_u32 v2, v2, 1, v3", f"v_mul_u32_u24 v{HOM}, {192*256}, v2", f"v_add_u32 v{HOM}, v{HOM}, v{HSO}",
          "v_bfe_u32 v2, v0, 1, 2", "v_lshlrev_b32 v2, 1, v2", f"s_lshr_b32 s50, s{sj}, 1", "v_xor_b32 v2, s50, v2", "v_lshlrev_b32 v2, 4, v2",
          "v_lshl_add_u32 v216, v0, 7, v2", f"s_and_b32 s50, s{sj}, 1\ns_lshl_b32 s50, s50, 3", "v_add_u32 v216, s50, v216",
          "v_add_u32 v217, 0x8000, v216", "v_add_u32 v218, 0x10000, v216", "v_cmp_gt_u32 vcc, 128, v0\nv_cndmask_b32 v218, v217, v218, vcc"]
    return L
def h1_icb(a):
    a(f"""
    v_lshlrev_b32 v2, 2, v0
    v_mov_b32 v3, 0x80000000
    v_cmp_gt_u32 vcc, 128, v0
    v_cndmask_b32 v3, v3, v2, vcc
    s_lshl_b32 s50, s{R1}, 7
    s_add_u32 s50, s50, {ICB}
    buffer_load_dword v220, v2, {WSR}, s50 offen{SC}
    buffer_load_dword v221, v2, {WSR}, s50 offen offset:1024{SC}
    buffer_load_dword v222, v3, {WSR}, s50 offen offset:2048{SC}
    """)
def h1_dma(h, ks):
    L = [f"s_add_u32 m0, s63, {h*IMG + ks*4096}", (f"buffer_load_dwordx4 v{HDA}, {WSR}, s{TAB[ks]} offen{SC} lds", f"a{h}_{ks}")]
    if h == 0 and ks == 19: L.append(f"v_add_u32 v{HDA}, 2048, v{HDA}")
    return L
def h1_reads(n):
    b = n & 1; ks = n % 20
    return [f"ds_read_b64_tr_b16 {vr(HX[b]+4*rt+2*half,2)}, v{HAD+rt} offset:{(ks%16)*4096+half*2048}" for rt in range(4) for half in range(2)]
H1RD = (0, 1, 2, 4, 5, 6, 8, 9)
def h1_sched(h, gates):
    sc = Sched(240)
    for ks in range(20):
        n = 20*h + ks + 1
        if n == 40: break
        if n in gates: sc.force(12*ks, [costed(lambda a, t=gates[n]: (a.waitv(t), a("s_barrier")), "s", 2)])
        sc.force(12*ks + 9, ["s_waitcnt lgkmcnt(3)"])
        for i, (k, l) in enumerate(zip(H1RD, h1_reads(n))):
            sc.force(12*ks + k, [l])
            bump = {15: 65536, 19: IMG - 65536, 35: 65536}.get(n)
            if bump and i % 2 == 1: sc.force(12*ks + k, [f"v_add_u32 v{HAD+i//2}, {bump}, v{HAD+i//2}"])
    return sc
def h1_pass(a, h, sc):
    for ks in range(20):
        b = (20*h + ks) & 1
        for rt in range(4):
            for T in range(3):
                ac = HACC[h] + 12*rt + 4*T
                a(f"v_mfma_f32_16x16x32_bf16 {vr(ac,4)}, {ar(12*ks+4*T,4)}, {vr(HX[b]+4*rt,4)}, {vr(ac,4) if ks else '0'}")
                sc.emit(a, 12*ks + 3*rt + T)
def h1_st_reads(h):
    L = [f"v_add_u32 v{216+n}, {IMG}, v{216+n}" for n in range(3)] if h else []
    return L, [f"ds_read_b64 {vr(224+2*n,2)}, v{216+n}" for n in range(3)]
def h1_st_list(h, scr, tag):
    SUM, SQ = 230, 234
    B = []
    for n in range(3):
        for d in range(2):
            x = SUM + 2*d if n == 0 else 2
            sel = "op_sel:[0,1] op_sel_hi:[1,1]" if n == 1 else "op_sel_hi:[1,0]"
            scl = "v[220:221]" if n < 2 else "v[222:223]"
            B += [f"v_lshlrev_b32 v{x}, 16, v{224+2*n+d}", f"v_and_b32 v{x+1}, 0xffff0000, v{224+2*n+d}", f"v_pk_mul_f32 {vr(x,2)}, {vr(x,2)}, {scl} {sel}"]
            if n == 0: B.append(f"v_pk_mul_f32 {vr(SQ+2*d,2)}, {vr(x,2)}, {vr(x,2)}")
            else: B += [f"v_pk_add_f32 {vr(SUM+2*d,2)}, {vr(SUM+2*d,2)}, {vr(x,2)}", f"v_pk_fma_f32 {vr(SQ+2*d,2)}, {vr(x,2)}, {vr(x,2)}, {vr(SQ+2*d,2)}"]
    sw = lambda t: costed(lambda a: a(t), "v", 1)
    L = ["\n".join(B)]
    L += [sw(f"v_permlane32_swap_b32 v{SUM+i}, v{SQ+i}") for i in range(4)]
    L += [f"v_add_f32 v{SUM+i}, v{SUM+i}, v{SQ+i}" for i in range(4)]
    L += [sw(f"v_permlane16_swap_b32 v{SUM+i}, v{SUM+2+i}") for i in range(2)]
    L += [f"v_add_f32 v{SUM+i}, v{SUM+i}, v{SUM+2+i}" for i in range(2)]
    L += ["v_lshrrev_b32 v2, 4, v1", "v_lshlrev_b32 v2, 3, v2", f"s_lshl_b32 s50, s3, 5\ns_add_u32 s50, s50, {scr}", "v_add_u32 v2, s50, v2"]
    for sh in (8, 4, 2, 1):
        L += [f"v_add_f32_dpp v{SUM+i}, v{SUM+i}, v{SUM+i} row_ror:{sh} row_mask:0xf bank_mask:0xf" for i in range(2)]
    L += [f"s_mov_b32 exec_lo, 0x00010001\ns_mov_b32 exec_hi, 0x00010001\nds_write_b64 v2, {vr(SUM,2)}\ns_mov_b64 exec, -1"]
    L += ["v_lshlrev_b32 v2, 2, v1", "v_and_b32 v2, 12, v2", f"v_add_u32 v2, {scr}, v2", "s_waitcnt lgkmcnt(0)\ns_barrier"]
    T = 230
    L += [costed(lambda a, w=w: a(f"ds_read2_b32 {vr(T+2*w,2)}, v2 offset0:{8*w} offset1:{8*w+4}"), "v", 1) for w in range(4)]
    L += [f"v_mov_b32 v225, s{tag}", f"v_mov_b32 v227, s{tag}"]
    if h: L.append(f"s_add_u32 s{S_STW}, s{S_STW}, {1024*16}")
    for x, y in ((0, 2), (1, 3), (4, 6), (5, 7), (0, 4), (1, 5)): L.append(f"v_add_f32 v{T+x}, v{T+x}, v{T+y}")
    b = Asm(); st_finalize(b, T, T + 1, 224, 226, T + 4)
    L += [(sw(x.text) if "rsq" in x.text else x.text) for k, x in b.items if k == "ins"]
    L += [costed(lambda a: a(f"s_mov_b64 exec, 0xf\nbuffer_store_dwordx4 v[224:227], v248, {WSR}, s{S_STW} offen{SC}\ns_mov_b64 exec, -1", cond=True), "v", 3)]
    return L
def h1_stloads(): return [f"buffer_load_dwordx4 {vr(HST+4*rt,4)}, v{HSO}, {WSR}, s{S_STL} offen offset:{256*rt}{SC}" for rt in range(4)]
def h1_stcheck(tag):
    return [f"v_xor_b32 v3, s{tag}, v{HST+1}"] + [f"v_bitop3_b32 v3, v{HST+1+2*k}, s{tag}, v3 bitop3:0xbe" for k in range(1, 8)]
def h1_biasloads():
    return ["v_and_b32 v247, 48, v1"] + [f"buffer_load_dwordx4 {vr(HCW+12*st+4*T,4)}, v247, {WSR}, s{S_BI} offen offset:{192*st+64*T}{SC}" for st in range(2) for T in range(3)]
def h1_biasstore(a):
    a(f"""
    v_and_b32 v90, 1, v1
    v_mul_u32_u24 v90, 192, v90
    v_and_b32 v91, 48, v1
    v_add_u32 v90, v90, v91
    s_mov_b32 exec_lo, 0x00030003
    s_mov_b32 exec_hi, 0x00030003
    """)
    for T in range(3): a(f"buffer_store_dwordx4 {vr(G1BC+4*T,4)}, v90, {WSR}, s{S_BI} offen offset:{64*T}{SC}", cond=True)
    a("s_mov_b64 exec, -1")
def h1_prefill():
    L = [f"v_mov_b32 v{238+k}, -1" for k in range(4)] + [f"s_add_u32 s58, s{S_H}, {64*192*256}"]
    S_ = [[f"buffer_store_dwordx4 v[238:241], v{HOF}, {WSR}, s58 offen{SC}"],
          [f"buffer_store_dwordx4 v[238:241], v{HOM}, {WSR}, s58 offen offset:512{SC}", f"s_add_u32 s58, s58, {2*192*256}"],
          [f"buffer_store_dwordx4 v[238:241], v{HOF}, {WSR}, s58 offen{SC}"]]
    return L, S_
def h1_epi(a, h):
    A0, B = HACC[h], 238
    def fix(rt, T):
        ac = A0 + 12*rt + 4*T; st = HST + 4*rt; b = B + 4*((rt + T) & 1)
        for p in (0, 2): a(f"v_pk_fma_f32 {vr(b+p,2)}, {vr(HCW+4*T+p,2)}, {vr(st+2,2)}, {vr(HSW+4*T+p,2)} op_sel_hi:[1,0,1]")
        for p in (0, 2): a(f"v_pk_fma_f32 {vr(ac+p,2)}, {vr(ac+p,2)}, {vr(st,2)}, {vr(b+p,2)} op_sel_hi:[1,0,1]")
    def prod(x, y, d):
        for p in (0, 2): a(f"v_pk_mul_f32 {vr(x+p,2)}, {vr(x+p,2)}, {vr(y+p,2)}")
        for p in range(2): a(f"v_cvt_pk_bf16_f32 v{d+p}, v{x+2*p}, v{x+2*p+1}")
    if h: a(f"s_add_u32 s{S_H}, s{S_H}, {64*192*256}")
    a(f"s_add_u32 s50, s{S_H}, {2*192*256}")
    for pp in range(2):
        p0 = A0 + 24*pp + 4
        for k in range(2):
            rt = 2*pp + k
            fix(rt, 0); fix(rt, 1)
            prod(A0 + 12*rt, A0 + 12*rt + 4, p0 + 2*k)
        a(f"v_permlane16_swap_b32 v{p0}, v{p0+2}\nv_permlane16_swap_b32 v{p0+1}, v{p0+3}")
        a(f"buffer_store_dwordx4 {vr(p0,4)}, v{HOF}, {WSR}, s{50 if pp else S_H} offen{SC}", tag=f"hst{h}")
    p0 = A0
    for pp in range(2):
        ra, rb = A0 + 24*pp + 8, A0 + 24*pp + 20
        fix(2*pp, 2); fix(2*pp + 1, 2)
        for i in range(4): a(f"v_permlane32_swap_b32 v{ra+i}, v{rb+i}")
        prod(ra, rb, p0 + 2*pp)
    a(f"v_permlane16_swap_b32 v{p0}, v{p0+2}\nv_permlane16_swap_b32 v{p0+1}, v{p0+3}")
    a(f"buffer_store_dwordx4 {vr(p0,4)}, v{HOM}, {WSR}, s{S_H} offen offset:512{SC}", tag=f"hst{h}")

def wdreg(n): return ar(240 + 4*n, 4) if n < 4 else vr(HWD + 4*(n-4), 4) if n < 12 else ar(4*(n-12), 4)
def h2_wsetup(sj2):
    return [f"s_lshl_b32 s62, s{sj2}, 2\ns_add_u32 s62, s62, s3", f"s_mul_i32 s62, s62, 61440\ns_add_u32 s62, s62, {WD}"]
def h2_wloads():
    L = []
    for n in range(60):
        L.append(f"buffer_load_dwordx4 {wdreg(n)}, v248, {WSR}, s62 offen offset:{(n%4)*1024}{SC}")
        if n % 4 == 3 and n < 59: L.append("s_add_u32 s62, s62, 4096")
    return L
Q2H, Q2NH, Q2ACC, Q2XE, Q2XL, Q2GB, Q2PT = 8, 12, (56, 76), 96, 108, 120, 168
def h2_hsetup(si2):
    L = [f"s_and_b32 s50, s3, 1\ns_lshl_b32 s51, s{si2}, 1", "s_add_u32 s52, s51, s50\ns_mul_i32 s52, s52, 192", "s_mul_i32 s53, s3, 48\ns_add_u32 s52, s52, s53",
         f"s_lshl_b32 s52, s52, 8\ns_add_u32 s52, s52, {HB}", "v_add_u32 v216, s52, v248", f"v_add_u32 v218, {64*192*256}, v216",
         "s_xor_b32 s50, s50, 1\ns_add_u32 s52, s51, s50", "s_mul_i32 s52, s52, 192\ns_add_u32 s52, s52, s53",
         f"s_lshl_b32 s52, s52, 8\ns_add_u32 s52, s52, {HB}", "v_add_u32 v217, s52, v248", f"v_add_u32 v219, {64*192*256}, v217"]
    return L
def h2_hload(n):
    sg, ks = divmod(n, 12)
    return f"buffer_load_dwordx4 {vr(Q2H+4*(n%Q2NH),4)}, v{216+sg}, {WSR}, {['0','s4','s5'][ks//4]} offen offset:{(ks%4)*1024}{SC}"
def h2_setup(si2, sj2):
    L = ["s_and_b32 s50, s3, 1\ns_lshr_b32 s51, s3, 1", "s_mul_i32 s52, s50, 20480\ns_mul_i32 s53, s3, 5120", "s_add_u32 s52, s52, s53",
         "v_add_u32 v220, s52, v248", "v_add_u32 v222, 40960, v220",
         "s_xor_b32 s52, s50, 1\ns_mul_i32 s52, s52, 20480", "s_add_u32 s52, s52, s53", "v_add_u32 v221, s52, v248", "v_add_u32 v223, 40960, v221",
         "s_mul_i32 s52, s51, 20480\ns_lshl_b32 s53, s50, 11", "s_add_u32 s52, s52, s53", "v_add_u32 v224, s52, v248",
         "s_mul_i32 s53, s51, 5120\ns_add_u32 s53, s53, 40960", "v_add_u32 v225, s53, v224",
         "s_xor_b32 s53, s51, 1\ns_mul_i32 s53, s53, 5120", "s_add_u32 s53, s53, 40960", "v_add_u32 v226, s53, v224",
         f"s_lshl_b32 s52, s{si2}, 1\ns_add_u32 s52, s52, s51", f"s_lshl_b32 s10, s52, 5\ns_mul_i32 s53, s{sj2}, {80*PT_}",
         f"s_add_u32 s10, s10, s53\ns_add_u32 s10, s10, {X1T}", f"s_mul_i32 s12, s{sj2}, 320",
         f"s_add_u32 s12, s12, {MOD+5*2560}\ns_mul_i32 s13, s52, {16*1280}", f"s_mul_i32 s53, s{sj2}, 160\ns_add_u32 s13, s13, s53",
         f"s_lshl_b32 s53, s50, 6\ns_add_u32 s13, s13, s53", f"s_add_u32 s14, s13, {1024*1280}",
         "v_and_b32 v2, 15, v1", "v_lshrrev_b32 v3, 4, v1", f"v_mul_u32_u24 v229, {4*PT_}, v3", "v_lshl_add_u32 v229, v2, 1, v229", f"s_mul_i32 s53, s50, {32*PT_}\ns_add_u32 s10, s10, s53",
         "v_lshlrev_b32 v230, 4, v3", "s_lshl_b32 s53, s50, 7", "v_add_u32 v230, s53, v230",
         "v_mul_u32_u24 v2, 1280, v2", "v_lshl_add_u32 v228, v3, 3, v2", "v_and_b32 v227, 1, v3", "v_lshl_add_u32 v2, v227, 5, v2", "v_lshrrev_b32 v3, 1, v3", "v_lshl_add_u32 v227, v3, 4, v2"]
    return L
def h2_eloads():
    G = [[f"buffer_load_dwordx4 {vr(Q2GB+4*T,4)}, v230, {WSR}, s12 offen offset:{64*T}{SC}"] for T in range(3)]
    X = []
    for T in range(3):
        for e in range(4):
            X.append([f"buffer_load_short_d16_hi v{Q2XE+4*T+e}, v229, {WSR}, s10 offen{SC}"])
            X.append([f"buffer_load_short_d16_hi v{Q2XL+4*T+e}, v229, {WSR}, s10 offen offset:2048{SC}", f"s_add_u32 s10, s10, {PT_ if e < 3 else 13*PT_}"])
    return [f"v_mov_b32 v{Q2XE+i}, 0" for i in range(24)], G + X
def h2_out(R, O, so):
    L = [f"v_cvt_pk_bf16_f32 v{O+k}, v{R+2*k}, v{R+2*k+1}" for k in range(6)]
    L += [costed(lambda a: a(f"v_permlane16_swap_b32 v{O}, v{O+2}"), "v", 2), costed(lambda a: a(f"v_permlane16_swap_b32 v{O+1}, v{O+3}"), "v", 2)]
    L += [f"buffer_store_dwordx4 {vr(O,4)}, v227, s[40:43], s{so} offen", f"buffer_store_dwordx2 {vr(O+4,2)}, v228, s[40:43], s{so} offen offset:64"]
    return L

WPNT = [""]
WPL = 138304
def wp_loads(a, su, WPL=WPL):
    a(f"""
    s_and_b32 s50, s{su}, 7
    s_lshr_b32 s51, s{su}, 3
    s_and_b32 s52, s3, 1
    s_lshl_b32 s51, s51, 1
    s_add_u32 s51, s51, s52
    s_mul_i32 s52, s51, {16*3072}
    s_mul_i32 s50, s50, 384
    s_add_u32 s52, s52, s50
    s_cmp_ge_u32 s3, 2
    s_cselect_b32 s40, s{WU_}, s{WG_}
    s_cselect_b32 s41, s{WU_+1}, s{WG_+1}
    s_mov_b32 s42, {640*1536*2}
    s_mov_b32 s43, 0x20000
    s_mul_i32 s51, s3, 6144
    """)
    for ph in range(3):
        a(f"""
        v_add_u32 v2, {64*ph}, v1
        v_mul_u32_u24 v232, 171, v2
        v_lshrrev_b32 v232, 12, v232
        v_mul_u32_u24 v4, 24, v232
        v_sub_u32 v4, v2, v4
        v_lshrrev_b32 v2, 1, v232
        v_lshlrev_b32 v2, 1, v2
        v_sub_u32 v4, v4, v2
        v_add_u32 v2, 24, v4
        v_min_u32 v4, v4, v2
        v_mul_u32_u24 v232, 3072, v232
        v_lshl_add_u32 v4, v4, 4, v232
        """)
        if ph: a(f"v_subrev_u32 v4, {1024*ph}, v4")
        a(f"v_mov_b32 v{233+ph}, v4")
    for n in range(6):
        if n % 3 == 0: a(f"s_add_u32 m0, s51, {WPL + n*1024}")
        a(f"buffer_load_dwordx4 v{233+n%3}, s[40:43], s52 offen offset:{1024*(n%3)}{WPNT[0]} lds", tag="wp")
        if n == 2: a(f"s_add_u32 s52, s52, {8*3072}")
def wp_finish(a, su, R, WPL=WPL):
    a(f"""
    v_lshrrev_b32 v2, 2, v1           ; row 4h+r
    v_mul_u32_u24 v4, 384, v2
    v_and_b32 v3, 1, v1
    v_lshl_add_u32 v4, v3, 3, v4
    v_add_u32 v4, {WPL}, v4
    v_and_b32 v2, 6, v2
    s_mul_i32 s50, s3, 3
    v_add_u32 v2, s50, v2
    v_bfe_u32 v3, v1, 1, 1
    v_mul_u32_u24 v232, {32*384}, v3
    s_and_b32 s50, s{su}, 7
    s_lshr_b32 s51, s{su}, 3
    s_lshl_b32 s50, s50, 3
    s_add_u32 s50, s50, s3
    s_mul_i32 s50, s50, 20
    s_add_u32 s50, s50, s51
    s_mul_i32 s50, s50, 3072
    s_add_u32 s50, s50, {WGU}
    s_add_u32 s51, s50, {4*61440}
    """)
    for jj in range(2):
        for mixed in range(2):
            d = 233 + 2*jj + mixed
            a(f"v_add_u32 v{d}, {12*jj + 2*mixed}, v2" if mixed else f"v_add3_u32 v{d}, v2, v3, {12*jj}")
            a(f"v_subrev_u32 v237, 24, v{d}\nv_min_u32 v{d}, v{d}, v237\nv_lshl_add_u32 v{d}, v{d}, 4, v4")
            if mixed: a(f"v_add_u32 v{d}, v{d}, v232")
    for n in range(6):
        jj, T = divmod(n, 3)
        for half in range(2):
            a(f"ds_read_b64_tr_b16 {vr(R+4*n+2*half,2)}, v{233+2*jj+(T == 2)} offset:{16*384*half + (32*384 if T == 1 else 0)}")
    for n in range(6):
        jj, T = divmod(n, 3)
        a(f"buffer_store_dwordx4 {vr(R+4*n,4)}, v248, {WSR}, s{50+jj} offen offset:{1024*T}{SC}", tag="wpst")
def wf_setup(sj):
    return [f"s_lshl_b32 s64, s{sj}, 2\ns_add_u32 s64, s64, s3", f"s_mul_i32 s64, s64, 61440\ns_add_u32 s64, s64, {WGU}"]
def wf_loads():
    L = []
    for n in range(60):
        L.append(f"buffer_load_dwordx4 {ar(4*n,4)}, v248, {WSR}, s64 offen offset:{(n%4)*1024}{SC}")
        if n % 4 == 3 and n < 59: L.append("s_add_u32 s64, s64, 4096")
    return L
```

```python
S, D, F = 2048, 640, 1536
import os
PT_ = int(os.environ.get('PITCH', 4096))
KVT  = 0x0000000
QT   = 0x02C0000
X1T  = 0x0580000
A1T  = 0x0840000
WGU  = 0x1800000
WD   = 0x0DC0000
HB   = 0x1000000
ST1  = 0x1600000
ST2  = 0x1608000
MOD  = 0x1610000
MODB = 0x1618000
ICB  = 0x161C000
MODT = 0x1678000
BIAS = 0x1670000
FLG  = 0x1620000
EPOCH = 0x1660000
STAMP = 0x1700000
WS_BYTES = 0x10000000
```

```python
from emit import Asm
from layout import *

Q, K, V, SHK, SSMK, SSD, WG_, WU_, WD_, CC, WMOD, OUT, DBG, WS = 4, 6, 8, 10, 12, 14, 18, 20, 22, 24, 26, 28, 30, 32
WSR = "s[36:39]"
R1 = 34
def sp(n): return f"s[{n}:{n+1}]"
def vr(a, n): return f"v[{a}:{a+n-1}]" if n > 1 else f"v{a}"
def ar(a, n): return f"a[{a}:{a+n-1}]" if n > 1 else f"a{a}"

WLB = 8192
SC = " sc1"

def srd(a, r, base, nbytes):
    a(f"s_mov_b32 s{r}, s{base}\ns_mov_b32 s{r+1}, s{base+1}\ns_mov_b32 s{r+2}, {hex(nbytes)}\ns_mov_b32 s{r+3}, 0x20000")

def prologue(a, nwg, endlabel, wait=True):
    a(f"""
    s_cmp_ge_u32 s2, {nwg}
    s_cbranch_scc1 {endlabel}
    s_load_dwordx16 s[4:19], s[0:1], 0
    s_load_dwordx8 s[20:27], s[0:1], 64
    s_load_dwordx4 s[28:31], s[0:1], 96
    s_load_dwordx2 s[32:33], s[0:1], 112
    v_lshrrev_b32 v1, 6, v0
    v_readfirstlane_b32 s3, v1
    v_and_b32 v1, 63, v0
    """)
    if wait:
        a("s_waitcnt lgkmcnt(0)")
        srd(a, 36, WS, WS_BYTES)

def put(a, items):
    for it in items:
        if callable(it): it(a)
        elif isinstance(it, tuple): a(it[0], tag=it[1])
        else: a(it)
def groups_of(lst):
    out = []; cur = []
    for it in lst:
        t = it[0] if isinstance(it, tuple) else it
        cur.append(it)
        if t.startswith(("buffer_", "global_")): out.append(cur); cur = []
    if cur: out[-1].extend(cur)
    return out
def txt_of(it): return "" if callable(it) else (it[0] if isinstance(it, tuple) else it)
def cost_of(it):
    if callable(it): return getattr(it, "cost", ("v", 2))
    L = [l.strip() for l in txt_of(it).split("\n") if l.strip()]
    if all(l.startswith("s_") for l in L): return ("s", len(L))
    if len(L) == 1 and L[0].startswith("ds_"): return ("d", 1)
    if len(L) == 1 and L[0].startswith(("buffer_", "global_")): return ("m", 2)
    return ("v", sum(2 if l.startswith(("buffer_", "global_", "v_perml", "v_rsq", "v_exp", "v_rcp")) else 1 for l in L))
def costed(f, kind, c): f.cost = (kind, c); return f
class Sched:
    def __init__(self, N):
        self.N = N; self.fill = {}; self.s = [0] * N; self.v = [0] * N; self.d = [0] * N; self.m0 = []; self.cap = 2; self.relax = False; self.keep = False; self.keep_s = True; self.m = [0] * N
    def free(self, n): return self.cap - self.v[n] - max(0, self.s[n] - 1)
    def ok(self, n, it):
        k, c = cost_of(it)
        empty = self.v[n] == 0 and self.s[n] == 0
        if self.m[n]: return False
        if k == "m": return empty or (self.relax and self.v[n] + self.s[n] <= self.relax)
        if k == "s": return max(0, self.s[n] + c - 1) + self.v[n] <= self.cap and not (empty and self.keep_s)
        if k == "d": return self.d[n] == 0 and self.free(n) >= 1
        if self.keep and c == 1 and empty: return False
        return self.free(n) >= c or (c > 2 and self.v[n] == 0 and self.s[n] <= 1)
    def force(self, n, items):
        for it in items:
            k, c = cost_of(it)
            self.fill.setdefault(n, []).append(it)
            if k == "s": self.s[n] += c
            else: self.v[n] += c
            if k == "d": self.d[n] += 1
            if k == "m": self.m[n] += 1
        return n
    def fit(self, n, it):
        while n < self.N and not self.ok(n, it): n += 1
        if n >= self.N: raise RuntimeError(f"schedule overflow ({txt_of(it)})")
        return n
    def seq(self, items, start, step=0):
        n = start; last = None; rank = -1
        for it in items:
            r = "sdvm".index(cost_of(it)[0])
            if last is not None and n == last and r < rank: n += 1
            n = self.fit(n, it); self.force(n, [it]); last = n; rank = r; n += step
        return last
    def vmem(self, groups, start, step, after=0):
        lease = any("m0" in txt_of(x) for g in groups for x in g)
        while True:
            save = ({k: list(v) for k, v in self.fill.items()}, list(self.s), list(self.v), list(self.d), list(self.m))
            n = start; first = None
            for g in groups:
                k = [i for i, it in enumerate(g) if callable(it) or txt_of(it).lstrip().startswith(("buffer_", "global_"))][0]
                pre, op, post = g[:k], g[k], g[k+1:]
                if pre:
                    n = self.seq(pre, n, 1 if len(pre) > 1 else 0)
                    if first is None: first = n
                    if "m0" in txt_of(pre[-1]): n += 1
                n = self.fit(max(n, after), op); self.force(n, [op]); last = n; tail = n
                if first is None: first = n
                if post: tail = self.seq(post, n + 1, 1)
                n = max(n + step, tail)
            bad = [hi for lo, hi in self.m0 if lease and lo <= last and first <= hi]
            if not bad: break
            self.fill.clear(); self.fill.update(save[0]); self.s[:], self.v[:], self.d[:], self.m[:] = save[1:]
            start = max(bad) + 1
        if lease: self.m0.append((first, last))
        self.tail = tail
        return last
    def emit(self, a, n):
        put(a, sorted(self.fill.get(n, []), key=lambda it: "sdvm".index(cost_of(it)[0])))
    def over(self): return sum(max(0, -self.free(n)) + max(0, self.d[n] - 1) + (self.s[n] if self.m[n] else 0) for n in range(self.N))
def place(fill, groups, start, step):
    n = start
    for g in groups:
        fill.setdefault(n, []).extend(g); n += step
    return n
NT = " nt"
KNT = ""

PA = 84992
GS = 1088
def phaseA_loads(a, su, before_ptr=None, after_dma=None):
    a(f"""
    s_lshr_b32 s50, s{su}, 4          ; g
    s_and_b32 s51, s{su}, 15          ; j
    s_mul_i32 s52, s51, {128*1280}
    s_lshl_b32 s53, s50, 7
    s_add_u32 s52, s52, s53
    v_lshrrev_b32 v3, 3, v1
    v_mul_u32_u24 v3, 1280, v3
    v_and_b32 v4, 7, v1
    v_lshl_add_u32 v3, v4, 4, v3
    s_mul_i32 s53, s3, {32*1280}
    s_add_u32 s53, s53, s52
    s_mul_i32 s54, s3, {4*GS}
    """)
    if before_ptr:
        a(f"s_mov_b32 s42, {S*D*2}\ns_mov_b32 s43, 0x20000\ns_mov_b32 s46, {S*D*2}\ns_mov_b32 s47, 0x20000")
        before_ptr(a)
        a(f"s_mov_b32 s40, s{K}\ns_mov_b32 s41, s{K+1}\ns_mov_b32 s44, s{V}\ns_mov_b32 s45, s{V+1}")
    else: srd(a, 40, K, S * D * 2); srd(a, 44, V, S * D * 2)
    a(f"""
    s_cmp_eq_u32 s3, 0
    s_cbranch_scc0 L_nohalo
    s_sub_u32 s55, s52, {8*1280}
    v_add_u32 v5, s55, v3
    s_mov_b32 m0, {PA}
    """)
    a(f"buffer_load_dwordx4 v5, s[40:43], 0 offen{NT} lds", cond=True)
    a.label("L_nohalo")
    for base, sr in ((PA + GS, 40), (PA + 17 * GS, 44)):
        a("s_mov_b32 s55, s53")
        for n in range(4):
            a(f"s_add_u32 m0, s54, {base + n*GS}")
            a(f"buffer_load_dwordx4 v3, s[{sr}:{sr+3}], s55 offen{NT} lds", tag="kv")
            if n < 3: a(f"s_add_u32 s55, s55, {8*1280}")
    if after_dma: after_dma(a)
    a(f"""
    s_lshr_b32 s55, s3, 1
    s_and_b32 s56, s3, 1
    s_lshl_b32 s51, s51, 7
    s_lshl_b32 s57, s55, 6
    s_add_u32 s51, s51, s57
    s_lshl_b32 s50, s50, 6
    s_lshl_b32 s57, s56, 5
    s_add_u32 s50, s50, s57
    v_lshrrev_b32 v5, 3, v1           ; rg
    v_lshl_add_u32 v6, v5, 3, s51     ; row0
    v_lshl_add_u32 v7, v4, 2, s50     ; ch0
    v_lshlrev_b32 v8, 3, v7
    global_load_dwordx4 v[48:51], v8, {sp(SHK)}
    global_load_dwordx4 v[52:55], v8, {sp(SHK)} offset:16
    v_mul_u32_u24 v7, {PT_}, v7
    v_lshl_add_u32 v245, v6, 1, v7
    v_sub_u32 v6, 2040, v6
    v_lshl_add_u32 v247, v6, 1, v7
    s_mul_i32 s55, s55, {8*GS}
    s_lshl_b32 s56, s56, 6
    s_add_u32 s55, s55, s56
    s_add_u32 s55, s55, {PA}
    v_mul_u32_u24 v5, {GS}, v5
    v_lshl_add_u32 v5, v4, 3, v5
    v_add_u32 v244, s55, v5
    """)
def phaseA_qload(a):
    srd(a, 44, Q, S * D * 2)
    for n in range(4):
        a(f"s_add_u32 m0, s54, {PA + 33*GS + n*GS}")
        a(f"buffer_load_dwordx4 v3, s[44:47], s53 offen{NT} lds", tag="q")
        if n < 3: a(f"s_add_u32 s53, s53, {8*1280}")
def phaseA_q(a, O):
    a(f"s_mov_b32 s51, 0x05040100\ns_mov_b32 s52, 0x07060302\ns_mov_b32 s53, {QT}")
    for r in range(8): a(f"ds_read_b64 {vr(40+2*r,2)}, v244 offset:{33*GS+128*r}")
    for c in range(4):
        for e in range(4):
            a(f"v_perm_b32 v{O+4*c+e}, v{40+2*(2*e+1)+(c>>1)}, v{40+2*(2*e)+(c>>1)}, s{51+(c&1)}")
        a(f"buffer_store_dwordx4 {vr(O+4*c,4)}, v245, {WSR}, s53 offen{SC}", tag="qst")
        if c < 3: a(f"s_add_u32 s53, s53, {PT_}")
def phaseA_read(a):
    a.waitv("kv")
    a("s_barrier")
    for r in range(3): a(f"ds_read_b64 {vr(10+2*r,2)}, v244 offset:{640+128*r}")
    for r in range(8): a(f"ds_read_b64 {vr(16+2*r,2)}, v244 offset:{GS+128*r}")
    for r in range(8): a(f"ds_read_b64 {vr(32+2*r,2)}, v244 offset:{17*GS+128*r}")
def unpack(a, dst_lo, dst_hi, src):
    a(f"v_lshlrev_b32 v{dst_lo}, 16, v{src}")
    a(f"v_and_b32 v{dst_hi}, 0xffff0000, v{src}")

def phaseA_compute(a, before_store=None, taps=True):
    KF, WF, KV, VT, O = 60, 104, 120, 56, 152
    for r in range(11):
        unpack(a, KF + 4*r, KF + 4*r + 1, 10 + 2*r); unpack(a, KF + 4*r + 2, KF + 4*r + 3, 11 + 2*r)
    for c in range(4 if taps else 0):
        unpack(a, WF + c, WF + 4 + c, 48 + 2*c); unpack(a, WF + 8 + c, WF + 12 + c, 49 + 2*c)
    a(f"s_movk_i32 s16, {PT_}\ns_movk_i32 s17, {2*PT_}\ns_movk_i32 s62, {3*PT_}")
    for p in range(2):
        for r in range(8):
            d = KV + 4*r + 2*p
            a(f"v_pk_mul_f32 {vr(d,2)}, {vr(KF+4*r+2*p,2)}, {vr(WF+12+2*p,2)}")
            for j in (2, 1, 0):
                a(f"v_pk_fma_f32 {vr(d,2)}, {vr(KF+4*(r+3-j)+2*p,2)}, {vr(WF+4*j+2*p,2)}, {vr(d,2)}")
            t = VT + 2*(r & 1)
            unpack(a, t, t + 1, 32 + 2*r + p)
            a(f"v_pk_mul_f32 {vr(d,2)}, {vr(d,2)}, {vr(t,2)}")
        for c in (2*p, 2*p + 1):
            for e in range(4):
                a(f"v_cvt_pk_bf16_f32 v{O+4*c+e}, v{KV+4*(7-2*e)+c}, v{KV+4*(6-2*e)+c}")
            if c == 0 and before_store: before_store(a)
            so = ["0", "s16", "s17", "s62"][c]
            a(f"buffer_store_dwordx4 {vr(O+4*c,4)}, v247, {WSR}, {so} offen{SC}", tag="kvst")
    assert KVT == 0

WSLOT = 12288
def wdir_setup(a, sj, V):
    a(f"""
    s_and_b32 s50, s3, 1
    s_mul_i32 s50, s50, {16*3072}
    s_mul_i32 s64, s{sj}, 192
    s_add_u32 s64, s64, s50
    s_mul_i32 s50, s{R1}, {32*3072}
    s_add_u32 s64, s64, s50
    s_cmp_ge_u32 s3, 2
    s_cselect_b32 s40, s{WU_}, s{WG_}
    s_cselect_b32 s41, s{WU_+1}, s{WG_+1}
    s_mov_b32 s42, {640*1536*2}
    s_mov_b32 s43, 0x20000
    s_mul_i32 s61, s3, 3072
    """)
    for ph in range(3):
        a(f"""
        v_add_u32 v2, {64*ph}, v1
        v_mul_u32_u24 v3, 171, v2
        v_lshrrev_b32 v3, 11, v3
        v_mul_u32_u24 v4, 12, v3
        v_sub_u32 v4, v2, v4
        v_bfe_u32 v2, v3, 2, 1
        v_mad_u32_u24 v4, v2, 10, v4
        v_subrev_u32 v2, 12, v4
        v_min_u32 v4, v4, v2
        v_mul_u32_u24 v3, 3072, v3
        v_lshl_add_u32 v{V+ph}, v4, 4, v3
        """)
        if ph: a(f"v_subrev_u32 v{V+ph}, {1024*ph}, v{V+ph}")
    a(f"""
    v_lshrrev_b32 v2, 2, v1           ; 4h+r
    v_mul_u32_u24 v2, 192, v2
    v_and_b32 v3, 1, v1
    v_lshl_add_u32 v2, v3, 3, v2
    s_mul_i32 s50, s3, 3
    v_bfe_u32 v3, v1, 4, 1
    v_lshl_add_u32 v3, v3, 1, s50     ; 3w + 2(h&1)
    v_bfe_u32 v4, v1, 1, 1
    v_add_u32 v{V+3}, v3, v4
    v_subrev_u32 v{V+4}, 12, v{V+3}
    v_min_u32 v{V+3}, v{V+3}, v{V+4}
    v_lshl_add_u32 v{V+3}, v{V+3}, 4, v2
    v_add_u32 v3, 2, v3
    v_subrev_u32 v{V+4}, 12, v3
    v_min_u32 v3, v3, v{V+4}
    v_lshl_add_u32 v3, v3, 4, v2
    v_mul_u32_u24 v4, 6144, v4
    v_add_u32 v{V+4}, v3, v4
    """)
WP2 = (0, 3104, 6224, 9328); WSLOT2 = 12416
def wdir_setup2(a, sj, V):
    a(f"""
    s_and_b32 s50, s3, 1
    s_mul_i32 s61, s50, {WP2[1]}
    s_mul_i32 s50, s50, {4*3072}
    s_mul_i32 s64, s{sj}, 192
    s_add_u32 s64, s64, s50
    s_mul_i32 s50, s{R1}, {32*3072}
    s_add_u32 s64, s64, s50
    s_cmp_ge_u32 s3, 2
    s_cselect_b32 s40, s{WU_}, s{WG_}
    s_cselect_b32 s41, s{WU_+1}, s{WG_+1}
    s_cselect_b32 s50, {WP2[2]}, 0
    s_add_u32 s61, s61, s50
    s_mov_b32 s42, {640*1536*2}
    s_mov_b32 s43, 0x20000
    """)
    for ph in range(3):
        a(f"""
        v_add_u32 v2, {64*ph}, v1
        v_mul_u32_u24 v3, 171, v2
        v_lshrrev_b32 v3, 11, v3
        v_mul_u32_u24 v4, 12, v3
        v_sub_u32 v4, v2, v4
        v_and_b32 v2, 12, v3
        v_add_u32 v3, v3, v2              ; 8*(i>>2) + (i&3)
        v_mul_u32_u24 v3, 3072, v3
        v_lshl_add_u32 v{V+ph}, v4, 4, v3
        """)
        if ph: a(f"v_subrev_u32 v{V+ph}, {1024*ph}, v{V+ph}")
    a(f"""
    v_lshrrev_b32 v2, 5, v1           ; h>>1
    v_bfe_u32 v3, v1, 2, 2            ; r
    v_lshl_add_u32 v2, v2, 2, v3
    v_mul_u32_u24 v2, 192, v2
    v_bfe_u32 v3, v1, 4, 1
    v_mad_u32_u24 v2, v3, s61, v2
    s_mul_i32 s50, s3, 48
    """.replace("v_mad_u32_u24 v2, v3, s61, v2", f"v_mul_u32_u24 v3, {WP2[1]}, v3\n    v_add3_u32 v2, v2, v3, s50").replace("    s_mul_i32 s50, s3, 48\n", "").replace("v_lshrrev_b32 v2, 5, v1", "s_mul_i32 s50, s3, 48\n    v_lshrrev_b32 v2, 5, v1"))
    a(f"""
    v_and_b32 v3, 3, v1
    v_lshl_add_u32 v{V+3}, v3, 3, v2
    v_and_b32 v3, 1, v1
    v_lshl_add_u32 v2, v3, 3, v2
    v_bfe_u32 v3, v1, 1, 1
    v_mul_u32_u24 v3, {WP2[2]}, v3
    v_add3_u32 v{V+4}, v2, v3, 32
    """)
def wdir_reads2(n, rel, V):
    L = []
    for T in range(3):
        for half in range(2):
            off = rel + 8*192*half + (WP2[2] if T == 1 else 0)
            L.append((f"ds_read_b64_tr_b16 {ar(12*n+4*T+2*half,2)}, v{V+(4 if T == 2 else 3)} offset:{off}", f"wr{n}"))
    return L
def wdir_dma(n, slot, V, each=False):
    L = []
    for ph in range(3):
        if ph == 0 or each: L.append(f"s_add_u32 m0, s61, {slot}")
        L.append((f"buffer_load_dwordx4 v{V+ph}, s[40:43], s64 offen offset:{1024*ph} lds", f"w{n}"))
    L += [f"s_add_u32 s64, s64, {32*3072}", f"s_sub_u32 s35, s64, {640*3072}", "s_min_u32 s64, s64, s35"]
    return L
def wdir_reads(n, rel, V):
    L = []
    for T in range(3):
        for half in range(2):
            off = rel + 16*half*192 + (6144 if T == 1 else 0)
            L.append((f"ds_read_b64_tr_b16 {ar(12*n+4*T+2*half,2)}, v{V+(4 if T == 2 else 3)} offset:{off}", f"wr{n}"))
    return L
P3 = [6]
def wdir_pre(a, V, n0, nslot=8):
    for n in range(n0): put(a, wdir_dma(n, WLB + (n % nslot)*WSLOT, V))
def wdir_all(a, V, mid=None, mid2=None, nslot=8, ahead=6, pre=0, stop=20, late=None):
    slot = lambda m: WLB + (m % nslot)*WSLOT if m < stop else late[m % 5]
    a(f"v_add_u32 v{V+3}, {WLB}, v{V+3}\nv_add_u32 v{V+4}, {WLB}, v{V+4}\nv_add_u32 v{V+8}, {4*WSLOT}, v{V+3}\nv_add_u32 v{V+9}, {4*WSLOT}, v{V+4}")
    for n in range(pre, ahead): put(a, wdir_dma(n, slot(n), V))
    nd = ahead
    for n in range(0, stop, 2):
        last = min(n + 1, stop - 1)
        a.waitv(f"w{last}")
        if n == 0: a.waitv("wst")
        if n >= 2: a.waitl(f"wr{n-1}")
        if n == P3[0]: a.waitv("wout")
        a("s_barrier")
        for m in range(n, last + 1):
            sl = m % nslot
            put(a, wdir_reads(m, (sl % 4)*WSLOT, V + (5 if sl >= 4 else 0)))
        for _ in range(2):
            if nd < 20 and (nd < stop or n + 2 >= stop - 6): put(a, wdir_dma(nd, slot(nd), V)); nd += 1
        if n == 0 and mid: mid(a)
        if n == P3[0] and mid2: mid2(a)
    return nd
WDL = WLB + 8 * WSLOT

def wd_loads(a, su):
    srd(a, 44, WD_, 1536 * 640 * 2)
    a(f"""
    s_mul_i32 s52, s{su}, {32*1280}
    s_mul_i32 s53, s3, 10240
    s_add_u32 s52, s52, s53
    v_lshlrev_b32 v5, 4, v1
    """)
    for n in range(10):
        if n % 4 == 0: a(f"s_add_u32 m0, s53, {WDL + n*1024}")
        a(f"buffer_load_dwordx4 v5, s[44:47], s52 offen offset:{(n%4)*1024}{NT} lds", tag="wst")
        if n % 4 == 3: a("s_add_u32 s52, s52, 4096")

def wd_finish(a, su, R, own_barrier=True):
    a(f"""
    v_lshrrev_b32 v2, 4, v1           ; h
    v_bfe_u32 v3, v1, 2, 2            ; r
    v_lshl_add_u32 v3, v2, 3, v3
    v_mul_u32_u24 v3, 1280, v3
    v_and_b32 v2, 3, v1
    v_lshl_add_u32 v2, v2, 3, v3
    s_mul_i32 s50, s3, 320
    s_add_u32 s50, s50, {WDL}
    v_add_u32 v2, s50, v2
    s_mov_b32 s50, 0x15555556
    s_mul_hi_u32 s51, s{su}, s50
    s_mul_i32 s52, s51, 12
    s_sub_u32 s52, s{su}, s52         ; ks
    s_lshl_b32 s50, s3, 3
    s_add_u32 s50, s50, s51
    s_mul_i32 s50, s50, 60
    s_mul_i32 s52, s52, 5
    s_add_u32 s50, s50, s52
    s_lshl_b32 s50, s50, 10
    s_add_u32 s50, s50, {WD}
    s_cmp_lt_u32 s{su}, 48
    s_cselect_b32 s50, s50, {WS_BYTES}
    s_add_u32 s51, s50, 4096
    s_add_u32 s52, s50, {4*61440}
    s_add_u32 s53, s52, 4096
    v_lshlrev_b32 v3, 4, v1
    """)
    if own_barrier:
        a.waitv("wst")
        a("s_barrier")
    for n in range(10):
        for half in range(2):
            a(f"ds_read_b64_tr_b16 {vr(R+4*n+2*half,2)}, v2 offset:{32*n+half*4*1280}")
    for n in range(10):
        jj, T = divmod(n, 5)
        a(f"buffer_store_dwordx4 {vr(R+4*n,4)}, v3, {WSR}, s{50+2*jj+T//4} offen offset:{(T%4)*1024}{SC}", tag="wout")

def mod_cloads(a, R):
    a(f"""
    v_lshrrev_b32 v2, 3, v0           ; kr
    v_mul_u32_u24 v3, 40, v2
    """)
    for p in range(5):
        a(f"global_load_dwordx2 {vr(R+2*p,2)}, v3, {sp(CC)} offset:{8*p}")
def mod_loads(a, su, R):
    srd(a, 44, WMOD, 640 * 3840 * 2)
    a(f"""
    v_lshrrev_b32 v8, 3, v0           ; kr
    s_mov_b32 s57, {20*7680}
    v_mul_lo_u32 v9, v8, s57
    v_and_b32 v8, 7, v0
    v_lshl_add_u32 v9, v8, 4, v9
    s_lshl_b32 s56, s{su}, 7
    """)
    for p in range(20):
        a(f"buffer_load_dwordx4 {vr(R+10+4*p,4)}, v9, s[44:47], s56 offen{NT}")
        if p < 19: a(f"s_add_u32 s56, s56, 7680")

def mod_silu(a, R, T):
    SI, ACC, TMP = T, T + 20, T + 28
    a("s_mov_b32 s50, 0xbfb8aa3b")
    for p in range(10):
        unpack(a, SI + 2*p, SI + 2*p + 1, R + p)
    for p in range(20):
        a(f"v_mul_f32 v{TMP+(p&1)}, s50, v{SI+p}")
        a(f"v_exp_f32 v{TMP+(p&1)}, v{TMP+(p&1)}")
        a(f"v_add_f32 v{TMP+(p&1)}, 1.0, v{TMP+(p&1)}")
        a(f"v_rcp_f32 v{TMP+(p&1)}, v{TMP+(p&1)}")
        a(f"v_mul_f32 v{SI+p}, v{SI+p}, v{TMP+(p&1)}")
    for p in range(10):
        a(f"v_cvt_pk_bf16_f32 v{TMP}, v{SI+2*p}, v{SI+2*p+1}")
        unpack(a, SI + 2*p, SI + 2*p + 1, TMP)
def mod_finish(a, su, R, T, ldsoff):
    SI, ACC, TMP = T, T + 20, T + 28
    for p in range(20):
        for i in range(4):
            t = TMP + 2*(i & 1)
            unpack(a, t, t + 1, R + 10 + 4*p + i)
            sel = "op_sel_hi:[1,0,1]" if p % 2 == 0 else "op_sel:[0,1,0] op_sel_hi:[1,1,1]"
            sel2 = "op_sel_hi:[1,0]" if p % 2 == 0 else "op_sel:[0,1] op_sel_hi:[1,1]"
            if p == 0: a(f"v_pk_mul_f32 {vr(ACC+2*i,2)}, {vr(t,2)}, {vr(SI+(p&~1),2)} {sel2}")
            else: a(f"v_pk_fma_f32 {vr(ACC+2*i,2)}, {vr(t,2)}, {vr(SI+(p&~1),2)}, {vr(ACC+2*i,2)} {sel}")
def mod_finish2(a, su, R, T, ldsoff, tag=None, sfx=''):
    SI, ACC, TMP = T, T + 20, T + 28
    a(f"""
    v_lshlrev_b32 v2, 5, v0
    ds_write_b128 v2, {vr(ACC,4)} offset:{ldsoff}
    ds_write_b128 v2, {vr(ACC+4,4)} offset:{ldsoff+16}
    s_waitcnt lgkmcnt(0)
    s_barrier
    s_cmp_eq_u32 s3, 0
    s_cbranch_scc0 L_mod_done{sfx}
    v_lshlrev_b32 v2, 2, v1
    """)
    for r in range(32):
        a(f"ds_read_b32 v{R+r}, v2 offset:{ldsoff+256*r}")
    for st in (16, 8, 4, 2, 1):
        for r in range(st):
            a(f"v_add_f32 v{R+r}, v{R+r}, v{R+r+st}")
    a(f"""
    s_mov_b32 s50, 429496730
    s_mul_hi_u32 s51, s{su}, s50       ; type
    s_mul_i32 s52, s51, 10
    s_sub_u32 s52, s{su}, s52
    v_cvt_pk_bf16_f32 v3, v{R}, v{R}
    v_lshlrev_b32 v3, 16, v3
    v_add_f32 v4, 1.0, v3
    v_cvt_pk_bf16_f32 v4, v4, v4
    v_lshlrev_b32 v4, 16, v4
    s_cmp_eq_u32 s51, 1
    s_cselect_b64 vcc, -1, 0
    s_cmp_eq_u32 s51, 4
    s_cselect_b64 vcc, -1, vcc
    v_cndmask_b32 v3, v3, v4, vcc
    s_cmp_eq_u32 s51, 4
    s_cbranch_scc0 L_mod_noicb{sfx}
    v_cmp_eq_f32 vcc, 0, v3
    v_mov_b32 v4, 0x2b800000
    v_cndmask_b32 v3, v3, v4, vcc
    v_rcp_f32 v4, v3
    s_lshl_b32 s53, s52, 8
    s_add_u32 s53, s53, {ICB}
    v_fma_f32 v5, -v3, v4, 1.0
    v_fmac_f32 v4, v5, v4
    buffer_store_dword v4, v2, {WSR}, s53 offen{SC}
    buffer_store_dword v4, v2, {WSR}, s53 offen offset:2560{SC}
    L_mod_noicb{sfx}:
    """)
    if tag:
        a(f"""
        v_mov_b32 v4, v3
        v_mov_b32 v5, s{tag}
        v_lshlrev_b32 v6, 3, v1
        s_lshl_b32 s53, s{su}, 9
        s_add_u32 s53, s53, {MODT}
        buffer_store_dwordx2 v[4:5], v6, {WSR}, s53 offen{SC}
        """)
    a(f"""
    s_lshl_b32 s53, s{su}, 8
    s_add_u32 s53, s53, {MOD}
    buffer_store_dword v3, v2, {WSR}, s53 offen{SC}
    s_sub_u32 s53, s51, 3
    s_cmp_lt_u32 s53, 2
    s_cbranch_scc0 L_mod_done{sfx}
    v_mov_b32_dpp v4, v3 quad_perm:[1,0,3,2] row_mask:0xf bank_mask:0xf
    v_lshrrev_b32 v5, 16, v3
    v_or_b32 v5, v5, v4
    v_lshrrev_b32 v6, 5, v1
    v_lshlrev_b32 v6, 7, v6
    v_bfe_u32 v7, v1, 2, 2             ; h
    v_lshl_add_u32 v6, v7, 4, v6
    v_bfe_u32 v7, v1, 4, 1             ; half
    v_lshl_add_u32 v6, v7, 3, v6
    v_and_b32 v7, 2, v1
    v_lshl_add_u32 v6, v7, 1, v6
    s_xor_b32 s53, s53, 1
    s_lshl_b32 s53, s53, 6
    s_lshl_b32 s52, s52, 8
    s_add_u32 s53, s53, s52
    s_add_u32 s53, s53, {MODB}
    s_mov_b32 exec_lo, 0x55555555
    s_mov_b32 exec_hi, 0x55555555
    buffer_store_dword v5, v6, {WSR}, s53 offen{SC}
    buffer_store_dword v5, v6, {WSR}, s53 offen offset:2560{SC}
    s_mov_b64 exec, -1
    L_mod_done{sfx}:
    """)

def st_finalize(a, s, q, r_out, nmr_out, t):
    a(f"""
    v_mul_f32 v{s}, {hex(0x3acccccd)}, v{s}         ; 1/640
    v_mul_f32 v{t}, v{s}, v{s}
    v_mov_b32 v{r_out}, {hex(0x3acccccd)}
    v_fma_f32 v{q}, v{q}, v{r_out}, -v{t}
    v_max_f32 v{q}, 0, v{q}
    v_add_f32 v{q}, {hex(0x3727c5ac)}, v{q}         ; 1e-5
    v_rsq_f32 v{r_out}, v{q}
    v_mul_f32 v{nmr_out}, -v{s}, v{r_out}
    """.replace(f"v_mul_f32 v{nmr_out}, -v{s}", f"v_mul_f32_e64 v{nmr_out}, -v{s}"))

def st1_loads(a, su, R):
    srd(a, 44, Q, S * D * 2)
    a(f"""
    s_lshl_b32 s50, s{su}, 2
    s_add_u32 s50, s50, s3
    s_mul_i32 s56, s50, {16*1280}
    v_lshrrev_b32 v2, 4, v1
    v_mul_u32_u24 v2, 1280, v2
    v_and_b32 v3, 15, v1
    v_lshl_add_u32 v2, v3, 4, v2
    """)
    for sg in range(4):
        for p in range(5):
            a(f"buffer_load_dwordx4 {vr(R+20*sg+4*p,4)}, v2, s[44:47], s56 offen offset:{256*p}{NT}")
        if sg < 3: a("s_add_u32 s56, s56, 5120")
def st1_finish(a, su, R, T):
    a("s_mov_b32 s50, 0x3f803f80")
    for i in range(8): a(f"v_mov_b32 v{T+i}, 0")
    for sg in range(4):
        for d in range(20):
            a(f"v_dot2_f32_bf16 v{T+sg}, v{R+20*sg+d}, s50, v{T+sg}")
            a(f"v_dot2_f32_bf16 v{T+4+sg}, v{R+20*sg+d}, v{R+20*sg+d}, v{T+4+sg}")
    a("s_nop 2")
    for sh in (8, 4, 2, 1):
        for i in range(8):
            a(f"v_add_f32_dpp v{T+i}, v{T+i}, v{T+i} row_ror:{sh} row_mask:0xf bank_mask:0xf")
    a("v_and_b32 v3, 15, v1")
    for sg in range(1, 4):
        a(f"v_cmp_eq_u32 vcc, {sg}, v3\nv_cndmask_b32 v{T}, v{T}, v{T+sg}, vcc\nv_cndmask_b32 v{T+4}, v{T+4}, v{T+4+sg}, vcc")
    st_finalize(a, T, T + 4, T + 8, T + 9, T + 10)
    a(f"""
    v_lshrrev_b32 v2, 4, v1
    v_lshl_add_u32 v2, v3, 2, v2
    v_lshlrev_b32 v2, 2, v2
    s_lshl_b32 s50, s{su}, 2
    s_add_u32 s50, s50, s3
    s_lshl_b32 s50, s50, 6
    s_add_u32 s50, s50, {ST1}
    s_cmp_lt_u32 s{su}, 32
    s_cselect_b32 s50, s50, {WS_BYTES}
    s_add_u32 s51, s50, 8192
    s_mov_b32 exec_lo, 0x000f000f
    s_mov_b32 exec_hi, 0x000f000f
    buffer_store_dword v{T+8}, v2, {WSR}, s50 offen{SC}
    buffer_store_dword v{T+9}, v2, {WSR}, s51 offen{SC}
    s_mov_b64 exec, -1
    """)

KSTR = 4160
KCH = 4 * KSTR
XOFF = 4 * KCH
XSTR = 4608
CONV_LDS = XOFF + 4 * XSTR
def conv_kload(a, sq):
    a(f"""
    s_lshl_b32 s58, s{sq}, 2
    s_add_u32 s58, s58, s3
    s_lshl_b32 s50, s58, 12
    s_mul_i32 s51, s3, {KCH}
    s_add_u32 m0, s51, 32
    v_lshlrev_b32 v248, 4, v1
    """)
    srd(a, 40, SSMK, S * D * 2)
    for n in range(4):
        a(f"buffer_load_dwordx4 v248, s[40:43], s50 offen offset:{1024*n}{NT} lds", tag="kdma")

def conv_kzero(a, keep=None):
    a(f"""
    s_mul_i32 s51, s3, {KCH}
    v_add_u32 v2, s51, v248
    v_lshrrev_b32 v3, 1, v1
    v_mul_u32_u24 v3, {KSTR}, v3
    v_and_b32 v4, 1, v1
    v_lshl_add_u32 v3, v4, 4, v3
    v_add_u32 v3, s51, v3
    v_mov_b32 v4, 0
    v_mov_b32 v5, 0
    v_mov_b32 v6, 0
    v_mov_b32 v7, 0
    s_mov_b64 exec, 0xff
    ds_write_b128 v3, v[4:7]
    s_mul_i32 s52, s3, {XSTR}
    s_add_u32 s52, s52, {XOFF+4096}
    s_mov_b64 exec, 0x3fffffff
    v_add_u32 v3, s52, v248
    ds_write_b128 v3, v[4:7]
    s_mov_b64 exec, -1
    """)
    if keep: a(f"v_mov_b32 v{keep}, v2")
def conv_kcopies(a, keep=None):
    if keep: a(f"v_mov_b32 v2, v{keep}")
    else: conv_kzero(a)
    a.waitv("kdma")
    for n in range(4):
        a(f"ds_read_b128 {vr(168+6*n,4)}, v2 offset:{32+1024*n}")
        a(f"ds_read_b64 {vr(172+6*n,2)}, v2 offset:{48+1024*n}")
    a(f"""
    s_mov_b64 exec, 1
    v_lshlrev_b32 v4, 16, v168
    v_alignbit_b32 v5, v169, v168, 16
    ds_write_b32 v2, v4 offset:{KSTR+28}
    ds_write_b32 v2, v168 offset:{2*KSTR+28}
    ds_write_b32 v2, v4 offset:{3*KSTR+24}
    ds_write_b32 v2, v5 offset:{3*KSTR+28}
    s_mov_b64 exec, -1
    """)
    for n in range(4):
        c = 168 + 6*n; t = 56 + 12*(n & 1)
        for d in range(4): a(f"v_alignbit_b32 v{t+d}, v{c+d+1}, v{c+d}, 16")
        a(f"v_pk_mov_b32 {vr(t+4,2)}, {vr(c,2)}, {vr(c+2,2)} op_sel:[1,0]")
        a(f"v_pk_mov_b32 {vr(t+6,2)}, {vr(c+2,2)}, {vr(c+4,2)} op_sel:[1,0]")
        for d in range(4): a(f"v_alignbit_b32 v{t+8+d}, v{c+d+2}, v{c+d+1}, 16")
        for j in range(1, 4):
            a(f"ds_write_b128 v2, {vr(t+4*(j-1),4)} offset:{j*KSTR+32+1024*n}")

def conv_xload(a):
    a(f"""
    s_mul_i32 s50, s58, {PT_}
    s_mul_i32 s52, s3, {XSTR}
    s_add_u32 m0, s52, {XOFF}
    """)
    for n in range(4):
        a(f"buffer_load_dwordx4 v248, {WSR}, s50 offen offset:{n*1024}{SC} lds", tag="xdma")
    assert KVT == 0

ACC, AB, FB, QR, SR, SM = 8, (40, 72), (104, 136), 168, 184, 216
SCAL = 250
ST1L = 84992
def conv_esetup(a, R):
    a(f"""
    v_and_b32 v{R}, 15, v1
    v_lshrrev_b32 v{R+1}, 4, v1
    v_lshlrev_b32 v{R}, 4, v{R}
    v_lshl_add_u32 v{R}, v{R+1}, 2, v{R}        ; 16a+4h
    v_lshlrev_b32 v{R+1}, 2, v{R}
    v_add_u32 v{R+1}, {ST1L}, v{R+1}
    v_lshlrev_b32 v{R}, 1, v{R}
    s_mul_i32 s65, s58, {PT_}
    s_add_u32 s65, s65, {QT}
    s_lshl_b32 s66, s3, 12
    s_add_u32 s67, s66, {ST1}
    s_lshl_b32 s55, s58, 2
    s_add_u32 s55, s55, {MOD}
    s_add_u32 s56, s55, 5120
    s_add_u32 s57, s55, 10240
    s_lshl_b32 s59, s58, 1
    v_mov_b32 v250, 0
    v_mov_b32 v251, s59
    v_mov_b32 v252, 0
    global_load_short_d16_hi v250, v251, {sp(SSD)}
    """)
def conv_eloads():
    L = []
    L = [f"s_add_u32 m0, s66, {ST1L}"] + [(f"buffer_load_dwordx4 v248, {WSR}, s67 offen offset:{n*1024}{SC} lds", "st1") for n in range(4)]
    L += [f"buffer_load_dword v254, v252, {WSR}, s55 offen{SC}", f"buffer_load_dword v255, v252, {WSR}, s55 offen offset:2560{SC}",
          f"buffer_load_dword v249, v252, {WSR}, s56 offen{SC}", f"buffer_load_dword v253, v252, {WSR}, s57 offen{SC}"]
    L += [f"buffer_load_dwordx2 {vr(QR+2*t,2)}, v6, {WSR}, s65 offen offset:{512*t}{SC}" for t in range(8)]
    return L
def conv_streads():
    L = []
    for t in range(8):
        L.append(f"ds_read_b128 {vr(SR+4*t,4)}, v7 offset:{1024*t}")
        L.append(f"ds_read_b128 {vr(SM+4*t,4)}, v7 offset:{8192+1024*t}")
    return L

def conv_loads(c):
    L = []
    b = c & 1
    for u in range(8):
        L.append(f"ds_read_b128 {vr(FB[b]+4*u,4)}, v5 offset:{512*(7-u)+64*c}")
        L.append(f"ds_read_b64 {vr(AB[b]+4*u,2)}, v4 offset:{512*u+64*c}")
        L.append(f"ds_read_b64 {vr(AB[b]+4*u+2,2)}, v4 offset:{512*u+64*c+8}")
    return L
CONV_RD = [k for k in range(2, 34) if k % 4 != 1]
def conv_sched():
    sc = Sched(288)
    for c in range(7):
        for k, l in zip(CONV_RD, conv_loads(c + 1)): sc.force(36*c + k, [l])
        sc.force(36*c + 35, ["s_waitcnt lgkmcnt(6)"])
    return sc
def conv_main(a, sc):
    a(f"""
    v_and_b32 v2, 15, v1                ; r / a
    v_lshrrev_b32 v3, 4, v1             ; h
    v_add_u32 v4, 1, v2
    v_and_b32 v5, 3, v4                 ; copy j
    v_sub_u32 v4, v4, v5                ; r+1-j
    v_add_u32 v4, 24, v4                ; +8 +16
    v_lshlrev_b32 v4, 1, v4
    v_mul_u32_u24 v5, {KSTR}, v5
    v_add_u32 v4, v4, v5
    v_lshlrev_b32 v5, 4, v3
    v_sub_u32 v4, v4, v5
    s_mul_i32 s51, s3, {KCH}
    v_add_u32 v4, s51, v4               ; A address
    v_lshlrev_b32 v2, 5, v2
    v_add_u32 v2, v2, v5
    s_mul_i32 s52, s3, {XSTR}
    s_add_u32 s52, s52, {XOFF+2*(2056-1792)}
    v_sub_u32 v5, s52, v2               ; F address (w'=7, c=0)
    """)
    a(f"""
    v_lshlrev_b32 v2, 3, v3
    v_and_b32 v3, 15, v1
    v_sub_u32 v2, v2, v3
    v_subrev_u32 v2, 9, v2              ; p = 8h - r - 9: position of filter tap 0 inside this lane's fragment
    v_and_b32 v3, 1, v2
    v_cmp_eq_u32 vcc, 1, v3
    v_lshrrev_b32 v3, 16, v250
    v_cndmask_b32 v3, v3, v250, vcc
    v_lshrrev_b32 v2, 1, v2
    """)
    for d in range(4):
        a(f"v_cmp_eq_u32 vcc, {d}, v2\nv_cndmask_b32 v{QR+d}, 0, v3, vcc")
    a.waitv("xdma")
    for l in conv_loads(0): a(l)
    n = 0
    for c in range(8):
        b = c & 1
        pairs = sorted([(u, w) for u in range(8) for w in range(8 - u)], key=lambda p: (max(p), p[0] + p[1]))
        seen = set()
        for k, (u, w) in enumerate(pairs):
            t = u + w
            cin = vr(ACC + 4*t, 4) if (c > 0 or t in seen) else "0"
            seen.add(t)
            a(f"v_mfma_f32_16x16x32_bf16 {vr(ACC+4*t,4)}, {vr(AB[b]+4*u,4)}, {vr(FB[b]+4*w,4)}, {cin}")
            if c == 0 and u == 0:
                a(f"v_mfma_f32_16x16x32_bf16 {vr(ACC+4*t,4)}, {vr(QR,4)}, {vr(FB[b]+4*w,4)}, {vr(ACC+4*t,4)}")
            sc.emit(a, n)
            n += 1

def conv_post(a):
    T, QF = 104, 40
    a(f"""
    s_mul_i32 s50, s58, {PT_}
    s_add_u32 s51, s50, {A1T}
    v_mul_f32 v251, v249, v255
    v_mul_f32 v252, v249, v254
    """)
    for t in range(8):
        q = QF + 4*t
        unpack(a, q, q + 1, QR + 2*t); unpack(a, q + 2, q + 3, QR + 2*t + 1)
        for p in range(2):
            r, m = SR + 4*t + 2*p, SM + 4*t + 2*p
            a(f"v_pk_fma_f32 {vr(r,2)}, {vr(q+2*p,2)}, {vr(r,2)}, {vr(m,2)}")
        for p in range(2):
            r = SR + 4*t + 2*p
            a(f"v_pk_fma_f32 {vr(r,2)}, {vr(r,2)}, v[250:251], v[252:253] op_sel:[0,1,0] op_sel_hi:[1,1,0]")
        for p in range(2):
            x = ACC + 4*t + 2*p
            a(f"v_pk_fma_f32 {vr(x,2)}, {vr(x,2)}, {vr(SR+4*t+2*p,2)}, {vr(q+2*p,2)}")
        for p in range(2):
            x = ACC + 4*t + 2*p
            a(f"v_pk_mul_f32 {vr(SR+4*t+2*p,2)}, {vr(x,2)}, v[252:253] op_sel:[0,1] op_sel_hi:[1,1]")
        for p in range(2):
            a(f"v_cvt_pk_bf16_f32 v{T+2*t+p}, v{SR+4*t+2*p}, v{SR+4*t+2*p+1}")
        a(f"buffer_store_dwordx2 {vr(T+2*t,2)}, v6, {WSR}, s51 offen offset:{512*t}{SC}", tag="a1st")
    for t in range(8):
        for p in range(2):
            a(f"v_cvt_pk_bf16_f32 v{136+2*t+p}, v{ACC+4*t+2*p}, v{ACC+4*t+2*p+1}")
XBL = 40960
XBS = 144
def conv_x1lds(a):
    a(f"""
    v_and_b32 v2, 15, v1
    v_mul_u32_u24 v2, {XBS}, v2
    v_lshrrev_b32 v3, 4, v1
    v_lshl_add_u32 v2, v3, 3, v2
    s_lshl_b32 s50, s3, 5
    s_add_u32 s50, s50, {XBL}
    v_add_u32 v2, s50, v2
    """)
    for t in range(8): a(f"ds_write_b64 v2, {vr(136+2*t,2)} offset:{16*XBS*t}")
def conv_post2(a, sq):
    a(f"""
    v_lshrrev_b32 v2, 3, v0
    v_mul_u32_u24 v4, {XBS}, v2
    v_bfe_u32 v3, v0, 2, 1
    v_lshl_add_u32 v4, v3, 6, v4
    v_and_b32 v3, 3, v0
    v_lshl_add_u32 v4, v3, 3, v4
    v_add_u32 v4, {XBL}, v4
    v_and_b32 v3, 7, v0
    v_mul_u32_u24 v2, {640*32}, v2
    v_lshl_add_u32 v2, v3, 4, v2
    s_lshl_b32 s50, s{sq}, 7
    s_add_u32 s50, s50, {X1T}
    s_mov_b32 s51, 0x05040100
    s_mov_b32 s52, 0x07060302
    """)
    for n in range(4):
        a(f"ds_read_b64 {vr(8+4*n,2)}, v4 offset:{32*XBS*n}")
        a(f"ds_read_b64 {vr(10+4*n,2)}, v4 offset:{32*XBS*n+32}")
    for n in range(4):
        for r in range(4): a(f"v_perm_b32 v{136+4*n+r}, v{10+4*n+(r>>1)}, v{8+4*n+(r>>1)}, s{51+(r&1)}")
        a(f"buffer_store_dwordx4 {vr(136+4*n,4)}, v2, {WSR}, s50 offen{SC}", tag="x1st")
        if n < 3: a(f"s_add_u32 s50, s50, {32*640*32}")

def st2_setup(a, sj):
    a(f"""
    v_and_b32 v2, 7, v0
    v_lshlrev_b32 v2, 1, v2
    v_xor_b32 v2, s{sj}, v2
    v_lshlrev_b32 v2, 4, v2
    v_lshl_add_u32 v218, v0, 8, v2
    v_add_u32 v219, 0x10000, v218
    v_add_u32 v220, 0x20000, v218
    v_lshlrev_b32 v2, 2, v0
    v_mov_b32 v3, 0x80000000
    v_cmp_gt_u32 vcc, 128, v0
    v_cndmask_b32 v220, v219, v220, vcc
    v_cndmask_b32 v3, v3, v2, vcc
    s_lshl_b32 s50, s{R1}, 7
    s_add_u32 s50, s50, {ICB}
    buffer_load_dword v221, v2, {WSR}, s50 offen{SC}
    buffer_load_dword v222, v2, {WSR}, s50 offen offset:1024{SC}
    buffer_load_dword v223, v3, {WSR}, s50 offen offset:2048{SC}
    """)
def st2_reads(R): return [f"ds_read_b128 {vr(R+4*n,4)}, v{218+n}" for n in range(3)]
def st2_partial_list(R, T, ldsoff):
    SUM, SQ = T, T + 8
    B = []
    for n in range(3):
        for d in range(4):
            x = SUM + 2*d if n == 0 else 2
            sel = "op_sel:[0,1] op_sel_hi:[1,1]" if n != 1 else "op_sel_hi:[1,0]"
            sc = f"v[{220 if n == 0 else 222}:{221 if n == 0 else 223}]"
            B += [f"v_lshlrev_b32 v{x}, 16, v{R+4*n+d}", f"v_and_b32 v{x+1}, 0xffff0000, v{R+4*n+d}", f"v_pk_mul_f32 {vr(x,2)}, {vr(x,2)}, {sc} {sel}"]
            if n == 0: B.append(f"v_pk_mul_f32 {vr(SQ+2*d,2)}, {vr(x,2)}, {vr(x,2)}")
            else: B += [f"v_pk_add_f32 {vr(SUM+2*d,2)}, {vr(SUM+2*d,2)}, {vr(x,2)}", f"v_pk_fma_f32 {vr(SQ+2*d,2)}, {vr(x,2)}, {vr(x,2)}, {vr(SQ+2*d,2)}"]
    L = ["\n".join(B)]
    sw = lambda t: costed(lambda a: a(t), "v", 1)
    L += [sw(f"v_permlane32_swap_b32 v{SUM+i}, v{SQ+i}") for i in range(8)]
    L += [f"v_add_f32 v{SUM+i}, v{SUM+i}, v{SQ+i}" for i in range(8)]
    L += [sw(f"v_permlane16_swap_b32 v{SUM+i}, v{SUM+4+i}") for i in range(4)]
    L += [f"v_add_f32 v{SUM+i}, v{SUM+i}, v{SUM+4+i}" for i in range(4)]
    for sh in (8, 4, 2, 1):
        L += [f"v_add_f32_dpp v{SUM+i}, v{SUM+i}, v{SUM+i} row_ror:{sh} row_mask:0xf bank_mask:0xf" for i in range(4)]
    L += [f"s_lshl_b32 s50, s3, 6\ns_add_u32 s50, s50, {ldsoff}", "v_and_b32 v2, 48, v1", "v_add_u32 v2, s50, v2",
          f"s_mov_b32 exec_lo, 0x00010001\ns_mov_b32 exec_hi, 0x00010001\nds_write_b128 v2, {vr(SUM,4)}\ns_mov_b64 exec, -1"]
    return L

def st2_final_list(sb, T, ldsoff, tag):
    L = ["v_lshlrev_b32 v2, 2, v1", "v_and_b32 v2, 28, v2", f"v_add_u32 v2, {ldsoff}, v2"]
    L += [costed(lambda a, w=w: a(f"ds_read2_b32 {vr(T+2*w,2)}, v2 offset0:{16*w} offset1:{16*w+8}"), "v", 1) for w in range(4)]
    L += [f"s_lshl_b32 s50, s{sb}, 7\ns_add_u32 s50, s50, {ST2}", "v_lshlrev_b32 v2, 4, v1", f"v_mov_b32 v{T+9}, s{tag}", f"v_mov_b32 v{T+11}, s{tag}"]
    for x, y in ((0, 2), (1, 3), (4, 6), (5, 7), (0, 4), (1, 5)): L.append(f"v_add_f32 v{T+x}, v{T+x}, v{T+y}")
    b = Asm(); st_finalize(b, T, T + 1, T + 8, T + 10, T + 4)
    L += [(costed(lambda a, t=x.text: a(t), "v", 1) if "rsq" in x.text else x.text) for k, x in b.items if k == "ins"]
    L += [f"s_mov_b64 exec, 0xff\nbuffer_store_dwordx4 {vr(T+8,4)}, v2, {WSR}, s50 offen{SC}\ns_mov_b64 exec, -1"]
    return L

G1ACC, G1X, G1AD, G1CW, G1SW, G1ST, G1DA = 8, (104, 136), 168, 176, 188, 200, 216
MBL = 67584
def g1_table_load(MBL=MBL):
    return [f"s_mul_i32 s52, s3, 2560\ns_add_u32 m0, s52, {MBL}", f"s_lshl_b32 s52, s{R1}, 7\ns_add_u32 s52, s52, {MODB}",
            (f"buffer_load_dwordx4 v248, {WSR}, s52 offen{SC} lds", "tab"), (f"buffer_load_dwordx4 v248, {WSR}, s52 offen offset:1024{SC} lds", "tab"),
            "s_mov_b32 exec_hi, 0", (f"buffer_load_dwordx4 v248, {WSR}, s52 offen offset:2048{SC} lds", "tab"), "s_mov_b32 exec_hi, -1"]
G1BC = 176
def g1_bias(a, k0, k1, R, MBL=MBL, AV=165):
    if k0 == 0:
        a(f"""
        v_and_b32 v{AV}, 1, v1
        v_lshlrev_b32 v{AV}, 6, v{AV}
        v_and_b32 v{AV+1}, 48, v1
        s_mul_i32 s57, s3, 2560
        s_add_u32 s57, s57, {MBL}
        v_add3_u32 v{AV}, v{AV}, v{AV+1}, s57
        """)
        a.waitv("tab")
    if k0 >= k1: return
    rd = [f"ds_read_b128 {vr(R+4*(ks%8),4)}, v{AV} offset:{128*ks}" for ks in range(k0, k1)]
    for k in range(min(6, len(rd))): a(rd.pop(0))
    for ks in range(k0, k1):
        for T in range(3):
            cin = vr(G1BC + 4*T, 4) if ks else "0"
            a(f"v_mfma_f32_16x16x32_bf16 {vr(G1BC+4*T,4)}, {ar(12*ks+4*T,4)}, {vr(R+4*(ks%8),4)}, {cin}")
            if T == 0 and rd: a(rd.pop(0))
def g1_bias_end():
    L = []
    for i in range(12):
        L.append(f"v_mov_b32_dpp v{G1SW+i}, v{G1BC+i} quad_perm:[1,1,3,3] row_mask:0xf bank_mask:0xf")
        L.append(f"v_mov_b32_dpp v{G1CW+i}, v{G1BC+i} quad_perm:[0,0,2,2] row_mask:0xf bank_mask:0xf")
    return L

def g1_asetup(a, si):
    a(f"""
    v_lshrrev_b32 v2, 4, v1             ; k_local
    v_and_b32 v3, 15, v1                ; c'
    v_lshlrev_b32 v4, 1, v2
    v_xor_b32 v4, v3, v4                ; c (parity 0)
    v_xor_b32 v5, 8, v4
    v_mul_u32_u24 v2, {PT_}, v2
    v_lshl_add_u32 v{G1DA}, v4, 4, v2
    v_lshl_add_u32 v{G1DA+1}, v5, 4, v2
    v_add_u32 v{G1DA}, {A1T}, v{G1DA}
    v_add_u32 v{G1DA+1}, {A1T+4*PT_}, v{G1DA+1}
    s_mul_i32 s62, s3, {8*PT_}
    s_lshl_b32 s50, s{si}, 8
    s_add_u32 s62, s62, s50
    s_mul_i32 s50, s{R1}, {32*PT_}
    s_add_u32 s62, s62, s50
    s_lshl_b32 s63, s3, 11
    v_lshlrev_b32 v251, 4, v3
    v_lshrrev_b32 v2, 2, v1             ; 4h+r
    v_and_b32 v3, 7, v2                 ; y
    v_lshlrev_b32 v2, 8, v2
    v_and_b32 v4, 3, v1
    v_lshl_add_u32 v2, v4, 3, v2        ; + b*16 + (c4&1)*8
    """)
    for rt in range(8):
        a(f"v_xor_b32 v4, {rt}, v3\nv_lshl_add_u32 v{G1AD+rt}, v4, 5, v2")

def g1_dma(ks):
    return [f"s_add_u32 m0, s63, {ks*8192}",
            f"buffer_load_dwordx4 v{G1DA}, {WSR}, s62 offen{SC} lds",
            f"s_add_u32 m0, s63, {ks*8192+1024}",
            f"buffer_load_dwordx4 v{G1DA+1}, {WSR}, s62 offen{SC} lds",
            f"s_add_u32 s62, s62, {32*PT_}", f"s_sub_u32 s35, s62, {640*PT_}", "s_min_u32 s62, s62, s35"]

def g1_stloads(sreg):
    return [f"buffer_load_dwordx4 {vr(G1ST+4*rt,4)}, v251, {WSR}, s{sreg} offen offset:{256*rt}{SC}" for rt in range(8)]
def g1_stcheck(tag):
    L = [f"v_xor_b32 v2, s{tag}, v{G1ST+1}"]
    L += [f"v_bitop3_b32 v2, v{G1ST+1+2*k}, s{tag}, v2 bitop3:0xbe" for k in range(1, 16)]
    return L

def g1_epilogue(a, si, sj):
    P, B = 104, 136
    a(f"""
    s_lshl_b32 s50, s{si}, 3
    s_mul_i32 s50, s50, 192
    s_mul_i32 s51, s{sj}, 12
    s_mul_i32 s52, s3, 3
    s_add_u32 s50, s50, s51
    s_add_u32 s50, s50, s52
    s_lshl_b32 s50, s50, 8
    s_add_u32 s50, s50, {HB}
    v_bfe_u32 v4, v1, 4, 1
    v_lshrrev_b32 v5, 5, v1
    v_and_b32 v3, 15, v1
    v_lshlrev_b32 v3, 4, v3
    v_mul_u32_u24 v2, {192*256}, v4
    v_lshl_add_u32 v2, v5, 8, v2
    v_add_u32 v2, v2, v3
    v_lshl_add_u32 v4, v4, 1, v5
    v_mul_u32_u24 v4, {192*256}, v4
    v_add_u32 v3, v4, v3
    """)
    def fix(rt, T):
        ac = G1ACC + 12*rt + 4*T; st = G1ST + 4*rt; b = B + 4*((rt + T) & 1)
        for p in range(2):
            a(f"v_pk_fma_f32 {vr(b+2*p,2)}, {vr(G1CW+4*T+2*p,2)}, {vr(st+2,2)}, {vr(G1SW+4*T+2*p,2)} op_sel_hi:[1,0,1]")
        for p in range(2):
            a(f"v_pk_fma_f32 {vr(ac+2*p,2)}, {vr(ac+2*p,2)}, {vr(st,2)}, {vr(b+2*p,2)} op_sel_hi:[1,0,1]")
    def prod(x, y, d):
        for p in range(2): a(f"v_pk_mul_f32 {vr(x+2*p,2)}, {vr(x+2*p,2)}, {vr(y+2*p,2)}")
        for p in range(2): a(f"v_cvt_pk_bf16_f32 v{d+p}, v{x+2*p}, v{x+2*p+1}")
    for G in range(2):
        for pp in range(2):
            p0 = P + 12*G + 4*pp
            for k in range(2):
                rt = 4*G + 2*pp + k
                fix(rt, 0); fix(rt, 1)
                prod(G1ACC + 12*rt, G1ACC + 12*rt + 4, p0 + 2*k)
            a(f"v_permlane16_swap_b32 v{p0}, v{p0+2}\nv_permlane16_swap_b32 v{p0+1}, v{p0+3}")
            a(f"buffer_store_dwordx4 {vr(p0,4)}, v2, {WSR}, s50 offen{SC}")
            if pp == 0: a(f"s_add_u32 s50, s50, {2*192*256}")
        p0 = P + 12*G + 8
        for pp in range(2):
            ra, rb = G1ACC + 12*(4*G + 2*pp) + 8, G1ACC + 12*(4*G + 2*pp + 1) + 8
            fix(4*G + 2*pp, 2); fix(4*G + 2*pp + 1, 2)
            for i in range(4): a(f"v_permlane32_swap_b32 v{ra+i}, v{rb+i}")
            prod(ra, rb, p0 + 2*pp)
        a(f"v_permlane16_swap_b32 v{p0}, v{p0+2}\nv_permlane16_swap_b32 v{p0+1}, v{p0+3}")
        a(f"s_sub_u32 s51, s50, {2*192*256}")
        a(f"buffer_store_dwordx4 {vr(p0,4)}, v3, {WSR}, s51 offen offset:512{SC}")
        if G == 0: a(f"s_add_u32 s50, s50, {2*192*256}")

G2ACC, G2X1, G2GB, G2H, G2NH, G2PT = (8, 28), 48, 68, 88, 16, 160
def g2_rot(a, sr2):
    a(f"s_lshl_b32 s4, s{sr2}, 10")
    for n in range(1, 12):
        a(f"s_add_u32 s{4+n}, s{3+n}, 1024\ns_sub_u32 s35, s{4+n}, {12*1024}\ns_min_u32 s{4+n}, s{4+n}, s35")
def g2_wsetup(a, sj2):
    a(f"""
    s_lshl_b32 s50, s{sj2}, 2
    s_add_u32 s50, s50, s3
    s_mul_i32 s50, s50, 61440
    s_add_u32 s50, s50, {WD}
    v_add_u32 v252, s50, v248
    v_add_u32 v253, 4096, v252
    """)
def g2_wloads():
    L = []
    for n in range(60):
        ks, T = divmod(n, 5)
        if T == 0: L.append(f"s_mul_i32 s64, s{4+ks}, 5")
        L.append(f"buffer_load_dwordx4 {ar(4*n,4)}, v{253 if T == 4 else 252}, {WSR}, s64 offen offset:{(T%4)*1024}{SC}")
    return L

def g2_setup(a, si2, sj2):
    a(f"s_lshl_b32 s50, s{si2}, 2\ns_mul_i32 s51, s3, 48")
    for sg in range(4):
        a(f"""
        s_add_u32 s52, s3, {1+sg}
        s_and_b32 s52, s52, 3
        s_mul_i32 s53, s52, {3*5120}
        s_add_u32 s52, s52, s50
        s_mul_i32 s52, s52, 192
        s_add_u32 s52, s52, s51
        s_lshl_b32 s52, s52, 8
        s_add_u32 s52, s52, {HB}
        v_add_u32 v{240+sg}, s52, v248
        """)
        if sg < 3: a(f"v_add_u32 v{4+sg}, s53, v248")
    a(f"""
    s_mul_i32 s53, s3, {3*5120}
    v_add_u32 v246, s53, v248
    s_lshl_b32 s50, s{si2}, 6
    s_lshl_b32 s51, s3, 4
    s_add_u32 s50, s50, s51
    v_and_b32 v245, 15, v1
    v_add_u32 v7, s50, v245
    v_mul_u32_u24 v7, 1280, v7
    v_lshrrev_b32 v247, 4, v1
    v_lshl_add_u32 v7, v247, 3, v7
    s_mul_i32 s51, s{sj2}, 160
    v_add_u32 v7, s51, v7
    v_lshlrev_b32 v244, 7, v247
    v_lshl_add_u32 v244, v245, 2, v244
    v_lshlrev_b32 v245, 4, v247
    v_lshlrev_b32 v2, 3, v247
    v_sub_u32 v2, v7, v2
    v_and_b32 v3, 1, v247
    v_lshl_add_u32 v2, v3, 5, v2
    v_lshrrev_b32 v3, 1, v247
    v_lshl_add_u32 v247, v3, 4, v2
    s_mul_i32 s65, s{sj2}, {80*32}
    s_mul_i32 s50, s50, {640*2}
    s_add_u32 s65, s65, s50
    s_add_u32 s65, s65, {X1T}
    s_mul_i32 s66, s{sj2}, 320
    s_add_u32 s66, s66, {MOD+5*2560}
    """)
def g2_eloads():
    L = []
    for T in range(5):
        L.append(f"buffer_load_dwordx4 {vr(G2GB+4*T,4)}, v245, {WSR}, s66 offen offset:{64*T}{SC}")
        for e in range(2):
            L.append(f"buffer_load_dword v{G2X1+4*T+2*e+1}, v244, {WSR}, s65 offen offset:{512*T+64*e}{SC}")
    return L

def g2_main(a, stamp=lambda a, n: None, npre=12, extra=(), ostore="", e0=40):
    def hload(n):
        sg, ks = divmod(n, 12)
        return f"buffer_load_dwordx4 {vr(G2H+4*(n%G2NH),4)}, v{240+sg}, {WSR}, s{4+ks} offen{SC}"
    for n in range(npre): a(hload(n))
    sc = Sched(240); sc.keep_s = False
    p = 0
    for nh in range(npre, 48):
        p = sc.vmem([[hload(nh)]], max(p, 5 * (nh - G2NH) + 4 if nh >= G2NH else 0), 1) + 2
    p = sc.vmem(list(extra), e0, 4)
    for i in range(0, 20, 2):
        p = sc.seq([f"v_lshlrev_b32 v{G2X1+i}, 16, v{G2X1+i+1}", f"v_and_b32 v{G2X1+i+1}, 0xffff0000, v{G2X1+i+1}"], max(p, 150))
    assert p < 190
    PT = G2PT
    for sg in range(1, 4):
        prev = G2ACC[(sg - 1) & 1]
        q = sc.seq([f"ds_write_b128 v{4+sg-1}, {vr(prev+4*T,4)} offset:{(sg-1)*5120+T*1024}" for T in range(5)], 60 * sg + 4, 2)
    post = ["s_waitcnt lgkmcnt(0)\ns_barrier"]
    rd = [f"ds_read_b128 {vr(PT+4*m,4)}, v246 offset:{m*1024}" for m in range(15)]
    q = sc.seq(post, q + 4)
    q1 = sc.seq(rd, q)
    q = sc.seq([f"v_add_f32 v{PT+i}, v{PT+i}, v{PT+20+i}" for i in range(20)], q + 14)
    q = sc.seq([f"v_add_f32 v{PT+i}, v{PT+i}, v{PT+40+i}" for i in range(20)], max(q, q1 + 3))
    fm = [f"v_fma_f32 v{G2X1+i}, v{PT+i}, v{G2GB+i}, v{G2X1+i}" for i in range(20)]
    while fm and any(sc.ok(n, fm[0]) for n in range(q, 240)): q = sc.seq([fm.pop(0)], q)
    for sg in range(4):
        acc = G2ACC[sg & 1]
        stamp(a, f"h{sg}")
        for ks in range(12):
            n = sg * 12 + ks
            for T in range(5):
                cin = vr(acc + 4*T, 4) if ks else "0"
                a(f"v_mfma_f32_16x16x32_bf16 {vr(acc+4*T,4)}, {ar(20*ks+4*T,4)}, {vr(G2H+4*(n%G2NH),4)}, {cin}")
                sc.emit(a, 5*n + T)
    put(a, fm)
    stamp(a, "h4")
    acc = G2ACC[1]; O = G2ACC[0]
    for T in range(5):
        for p in range(2):
            x = acc + 4*T + 2*p
            a(f"v_pk_fma_f32 {vr(x,2)}, {vr(x,2)}, {vr(G2GB+4*T+2*p,2)}, {vr(G2X1+4*T+2*p,2)}")
        a(f"v_cvt_pk_bf16_f32 v{O+2*T}, v{acc+4*T}, v{acc+4*T+1}")
        a(f"v_cvt_pk_bf16_f32 v{O+2*T+1}, v{acc+4*T+2}, v{acc+4*T+3}")
        if T in (1, 3):
            a(f"v_permlane16_swap_b32 v{O+2*T-2}, v{O+2*T}\nv_permlane16_swap_b32 v{O+2*T-1}, v{O+2*T+1}")
            a(f"global_store_dwordx4 v247, {vr(O+2*T-2,4)}, {sp(OUT)} offset:{32*(T-1)}{ostore}")
    a(f"global_store_dwordx2 v7, {vr(O+8,2)}, {sp(OUT)} offset:128{ostore}")
```

```python
from phases import cost_of, costed, txt_of, put
RANK = "sdvm"
class Gaps:
    def __init__(self, N):
        self.N = N; self.fill = {}; self.s = [0] * N; self.v = [0] * N; self.d = [0] * N; self.m = [0] * N
        self.bulk = []
        self.m0 = []
    def cost(self, n, s=0, v=0, d=0):
        return max(0, self.v[n] + v + max(0, self.s[n] + s - 1) - 2) + max(0, self.d[n] + d - 1)
    def extra(self, n, it):
        k, c = cost_of(it)
        if k == "m": c = 2
        e = self.cost(n, c if k == "s" else 0, 0 if k == "s" else c, 1 if k == "d" else 0) - self.cost(n)
        if self.m[n] and k != "s": e += 1
        if k == "m" and self.m[n]: e += 4
        return e
    def force(self, n, items):
        for it in items:
            k, c = cost_of(it)
            if k == "m": c = 2; self.m[n] += 1
            self.fill.setdefault(n, []).append(it)
            if k == "s": self.s[n] += c
            else: self.v[n] += c
            if k == "d": self.d[n] += 1
        return n
    def best(self, it, lo, hi, keep=None):
        hi = max(lo, min(hi, self.N - 1))
        assert lo < self.N, f"schedule overflow ({txt_of(it)})"
        return min(range(lo, hi + 1), key=lambda n: (self.extra(n, it) + (0.5 if keep and keep(n) else 0), n))
    def chain(self, items, lo, hi=None, step=0, keep=None):
        hi = self.N - 1 if hi is None else hi
        p = lo; rank = -1; last = None
        for i, it in enumerate(items):
            r = RANK.index(cost_of(it)[0])
            if last is not None and p == last and r < rank: p += 1
            dl = lo + (hi - lo) * (i + 1) // len(items)
            p = self.best(it, min(p, self.N - 1), max(p, dl), keep); self.force(p, [it]); last = p; rank = r; p += step
        return last
    def at(self, it, n, slack=3): return self.chain([it], n, n + slack)
    def vm(self, g, lo, hi=None, cand=None):
        k = [i for i, it in enumerate(g) if cost_of(it)[0] == "m"][0]
        pre, op, post = g[:k], g[k], g[k+1:]
        m0 = any("m0" in txt_of(x) for x in pre)
        lo = max(lo, 1 if pre else 0)
        def okm0(n): return not m0 or not any(w <= n and n - 1 <= u for w, u in self.m0)
        hi = min(self.N - 1, lo + 6 if hi is None else hi)
        c = [n for n in range(lo, max(hi, lo) + 1) if okm0(n) and (cand is None or cand(n))]
        n = lo
        while not c:
            n += 1; assert n < self.N, f"schedule overflow ({txt_of(op)})"
            if okm0(n): c = [n]
        n = min(c, key=lambda n: (self.extra(n, op), n))
        if pre: self.force(n - 1, pre)
        if m0: self.m0.append((n - 1, n))
        self.force(n, [op]); tail = n
        for x in post:
            tail = self.best(x, min(tail + 1, self.N - 1), tail + 2); self.force(tail, [x])
        return n, tail
    def streams(self, S, pace, lo=0, hi=None, cand=None, wt=None):
        hi = self.N - 1 if hi is None else hi
        pos = [[] for _ in S]; after = [0] * len(S); t = float(lo)
        while True:
            n = int(t + 0.5)
            while n <= hi and ((cand and not cand(n)) or self.m[n] or any(abs(n - b) < 2 for b in self.bulk)): n += 1
            live = [i for i in range(len(S)) if len(pos[i]) < len(S[i])]
            if n > hi or not live: break
            rel = lambda i: max(S[i][len(pos[i])][1]() if callable(S[i][len(pos[i])][1]) else S[i][len(pos[i])][1], after[i])
            ready = [i for i in live if rel(i) <= n]
            if not ready: t = float(min(rel(i) for i in live)); continue
            i = min(ready, key=lambda i: S[i][len(pos[i])][2])
            g = S[i][len(pos[i])][0]
            p, tail = self.vm(g, n, n)
            pos[i].append(p); after[i] = tail + 2; self.bulk.append(p)
            t = max(t + pace * (wt[i] if wt else 1), p + 2.0)
        return pos
    def emit(self, a, n): put(a, sorted(self.fill.get(n, []), key=lambda it: RANK.index(cost_of(it)[0])))
    def over(self): return sum(self.cost(n) for n in range(self.N))
```

```python
import sys, re
from halves import *
import phases, halves
NAME = "adaLN_cond__ssm_conv_h3__glu_gated_bilinear__prompt"
OPT = {"modlate": "1"}
OPT.update({x.split("=")[0][2:]: (x.split("=") + ["1"])[1] for x in sys.argv[1:] if x.startswith("--")})
OPT = {k: v for k, v in OPT.items() if v != "off"}
def O(k, d): return type(d)(OPT.get(k, d))
FA, FQ, FP2, FP3, FXE, FXL, FB_, FHE, FHL, FY, FT, FW = [FLG + 128 * n for n in (0, 160, 200, 264, 360, 520, 680, 696, 952, 1208, 1368, 1528)]
TAG, BUDGET, T16 = 48, 49, 77
S_CU, S_PU, S_I, S_J, S_I2, S_J2 = 70, 71, 72, 73, 74, 75
STAMPS = "stamps" in OPT
SNAMES = OPT["stamps"].split(",") if STAMPS else ["start"]
assert len(SNAMES) <= 12 and SNAMES[0] == "start"
STI = "s_memtime" if "cyc" in OPT else "s_memrealtime"
def stamp(a, name):
    if STAMPS and name in SNAMES:
        n = SNAMES.index(name)
        a(f"{STI} s[{78+2*n}:{79+2*n}]")
def fstamp(sc, n, name):
    if STAMPS and name in SNAMES: sc.fill.setdefault(n, []).insert(0, costed(lambda a: stamp(a, name), 's', 0))

lab = [0]
def poll(a, voff, sbase, tmp=2, TAG=TAG):
    lab[0] += 1; L = f"L_poll{lab[0]}"
    a.label(L)
    a(f"""
    buffer_load_dword v{tmp}, v{voff}, {WSR}, s{sbase} offen sc1
    s_waitcnt vmcnt(0)
    v_cmp_ne_u32 vcc, s{TAG}, v{tmp}
    s_cbranch_vccz {L}_ok
    s_cmp_eq_u32 s{BUDGET}, 0
    s_cbranch_scc1 {L}_ok
    s_sub_u32 s{BUDGET}, s{BUDGET}, 1
    s_sleep {O('psl', 1)}
    s_branch {L}
    {L}_ok:
    """)
def flagstore(a, sline, base, v=2, sr=50, TAG=TAG):
    a(f"""
    s_lshl_b32 s{sr}, s{sline}, 7
    s_add_u32 s{sr}, s{sr}, {base}
    v_mov_b32 v{v}, 0
    v_mov_b32 v{v+1}, s{TAG}
    s_mov_b64 exec, 1
    buffer_store_dword v{v+1}, v{v}, {WSR}, s{sr} offen sc1
    s_mov_b64 exec, -1
    """, cond=True)
def wflag(a, sline, base, v=254, TAG=TAG):
    lab[0] += 1; L = f"L_wf{lab[0]}"
    a(f"s_cmp_eq_u32 s3, 0\ns_cbranch_scc0 {L}")
    flagstore(a, sline, base, v, 54, TAG)
    a.label(L)
def wcount(a, base, v=254):
    lab[0] += 1; L = f"L_wf{lab[0]}"
    a(f"s_cmp_eq_u32 s3, 0\ns_cbranch_scc0 {L}")
    a(f"""
    s_lshr_b32 s54, s{S_CU}, 4
    s_lshl_b32 s54, s54, 7
    s_add_u32 s54, s54, {base}
    v_mov_b32 v{v}, 0
    v_mov_b32 v{v+1}, 1
    s_mov_b64 exec, 1
    buffer_atomic_add v{v+1}, v{v}, {WSR}, s54 offen sc1
    s_mov_b64 exec, -1
    """, cond=True)
    a.label(L)
def signal(a, sline, base, pre=None, tag=None, TAG=TAG):
    if tag: a.waitv(tag); a("s_waitcnt lgkmcnt(0)")
    else: a("s_waitcnt vmcnt(0) lgkmcnt(0)")
    a("s_barrier")
    if pre: pre()
    wflag(a, sline, base, 2, TAG)
slow = []; slow2 = []; pending = {}
def poll_issue(a, voff, sbase, tmp):
    pending[tmp] = (voff, sbase)
    a(f"buffer_load_dword v{tmp}, v{voff}, {WSR}, s{sbase} offen sc1")
def poll_check(a, voff, sbase, tmp, TAG=TAG):
    lab[0] += 1; L = f"L_chk{lab[0]}"
    assert pending.pop(tmp, None) == (voff, sbase), "poll_check without a preceding poll_issue"
    a(f"v_cmp_ne_u32 vcc, s{TAG}, v{tmp}\ns_cbranch_vccnz {L}_slow")
    a.label(L + "_back")
    slow.append((L, voff, sbase, tmp, TAG))
def emit_slow(a):
    for f in slow2: f(a)
    for L, voff, sbase, tmp, TG in slow:
        a.label(L + "_slow"); a.reset()
        poll(a, voff, sbase, tmp, TG)
        a(f"s_branch {L}_back")
def poll_lines(a, sfirst_expr, n):
    a(sfirst_expr)
    a(f"v_min_u32 v5, {n-1}, v1\nv_lshlrev_b32 v5, 7, v5")
    poll(a, 5, 52)
def small(x, tag=None): return costed(lambda a: a(x, tag=tag), "m", 1)
PI = lambda v, s, t: [costed(lambda a: poll_issue(a, v, s, t), "m", 1)]
PC = lambda v, s, t, st=None, TG=TAG: costed(lambda a: (poll_check(a, v, s, t, TG), st and stamp(a, st)), "v", 1)
def BAR(*waits, then=None, c=2):
    def f(a):
        for w in waits: (a.waitl(w[2:]) if w.startswith("l:") else a.waitv(w))
        a("s_barrier")
        if then: then(a)
    return costed(f, "s", c)

from sched2 import Gaps
halves.Sched = Gaps

SL = [WSLOT2 * n for n in range(5)]
phases.PA = 25536
ST1L = 62464
KB = 78848
XOFF = KB + 4 * KCH
assert XOFF + 4 * XSTR == 163840
def kload(a):
    a(f"s_lshl_b32 s50, s58, 12\ns_mul_i32 s51, s3, {KCH}\ns_add_u32 m0, s51, {KB+32}")
    srd(a, 44, SSMK, S * D * 2)
    for n in range(4): a(f"buffer_load_dwordx4 v248, s[44:47], s50 offen offset:{1024*n}{' nt' if 'knt' not in OPT else ''} lds", tag="kdma")
def kzero(a, keep):
    a(f"""
    s_mul_i32 s51, s3, {KCH}
    s_add_u32 s51, s51, {KB}
    v_add_u32 v{keep}, s51, v248
    v_lshrrev_b32 v8, 1, v1
    v_mul_u32_u24 v8, {KSTR}, v8
    v_and_b32 v4, 1, v1
    v_lshl_add_u32 v8, v4, 4, v8
    v_add_u32 v8, s51, v8
    v_mov_b32 v4, 0
    v_mov_b32 v5, 0
    v_mov_b32 v6, 0
    v_mov_b32 v7, 0
    s_mov_b64 exec, 0xff
    ds_write_b128 v8, v[4:7]
    s_mul_i32 s52, s3, {XSTR}
    s_add_u32 s52, s52, {XOFF+4096}
    s_mov_b64 exec, 0x3fffffff
    v_add_u32 v8, s52, v248
    ds_write_b128 v8, v[4:7]
    s_mov_b64 exec, -1
    """)
def kcopies(a, keep, R=8):
    a.waitv("kdma")
    for n in range(4):
        a(f"ds_read_b128 {vr(R+6*n,4)}, v{keep} offset:{32+1024*n}")
        a(f"ds_read_b64 {vr(R+4+6*n,2)}, v{keep} offset:{48+1024*n}")
    a(f"""
    s_mov_b64 exec, 1
    v_lshlrev_b32 v80, 16, v{R}
    v_alignbit_b32 v81, v{R+1}, v{R}, 16
    ds_write_b32 v{keep}, v80 offset:{KSTR+28}
    ds_write_b32 v{keep}, v{R} offset:{2*KSTR+28}
    ds_write_b32 v{keep}, v80 offset:{3*KSTR+24}
    ds_write_b32 v{keep}, v81 offset:{3*KSTR+28}
    s_mov_b64 exec, -1
    """)
    for n in range(4):
        c = R + 6*n; t = 56 + 12*(n & 1)
        for d in range(4): a(f"v_alignbit_b32 v{t+d}, v{c+d+1}, v{c+d}, 16")
        a(f"v_pk_mov_b32 {vr(t+4,2)}, {vr(c,2)}, {vr(c+2,2)} op_sel:[1,0]")
        a(f"v_pk_mov_b32 {vr(t+6,2)}, {vr(c+2,2)}, {vr(c+4,2)} op_sel:[1,0]")
        for d in range(4): a(f"v_alignbit_b32 v{t+8+d}, v{c+d+2}, v{c+d+1}, 16")
        for j in range(1, 4):
            a(f"ds_write_b128 v{keep}, {vr(t+4*(j-1),4)} offset:{j*KSTR+32+1024*n}")
def xload(a):
    a(f"s_mul_i32 s50, s58, {PT_}\ns_mul_i32 s52, s3, {XSTR}\ns_add_u32 m0, s52, {XOFF}")
    for n in range(4): a(f"buffer_load_dwordx4 v248, {WSR}, s50 offen offset:{n*1024}{SC} lds", tag="xdma")
AA, AF = 229, 230
def conv_addr(a):
    a(f"""
    v_and_b32 v2, 15, v1                ; r / a
    v_lshrrev_b32 v8, 4, v1             ; h
    v_add_u32 v4, 1, v2
    v_and_b32 v5, 3, v4                 ; copy j
    v_sub_u32 v4, v4, v5                ; r+1-j
    v_add_u32 v4, 24, v4
    v_lshlrev_b32 v4, 1, v4
    v_mul_u32_u24 v5, {KSTR}, v5
    v_add_u32 v4, v4, v5
    v_lshlrev_b32 v5, 4, v8
    v_sub_u32 v4, v4, v5
    s_mul_i32 s51, s3, {KCH}
    s_add_u32 s51, s51, {KB}
    v_add_u32 v{AA}, s51, v4
    v_lshlrev_b32 v2, 5, v2
    v_add_u32 v2, v2, v5
    s_mul_i32 s52, s3, {XSTR}
    s_add_u32 s52, s52, {XOFF+2*(2056-1792)}
    v_sub_u32 v{AF}, s52, v2
    """)
def conv_dfrag(a):
    a(f"""
    v_lshrrev_b32 v3, 4, v1
    v_lshlrev_b32 v2, 3, v3
    v_and_b32 v3, 15, v1
    v_sub_u32 v2, v2, v3
    v_subrev_u32 v2, 9, v2              ; p = 8h - r - 9: position of filter tap 0 inside this lane's fragment
    v_and_b32 v3, 1, v2
    v_cmp_eq_u32 vcc, 1, v3
    v_lshrrev_b32 v3, 16, v250
    v_cndmask_b32 v3, v3, v250, vcc
    v_lshrrev_b32 v2, 1, v2
    """)
    for d in range(4): a(f"v_cmp_eq_u32 vcc, {d}, v2\nv_cndmask_b32 v{DFR+d}, 0, v3, vcc")
QR, SR, SM, ET = 176, 184, 200, 232
def esetup(a):
    a(f"""
    v_and_b32 v2, 15, v1
    v_lshrrev_b32 v8, 4, v1
    v_lshlrev_b32 v249, 6, v2
    v_lshl_add_u32 v249, v8, 4, v249
    v_add_u32 v249, {ST1L}, v249
    v_and_b32 v231, 1, v8
    v_lshlrev_b32 v231, 9, v231
    v_lshl_add_u32 v231, v2, 5, v231
    v_lshrrev_b32 v8, 1, v8
    v_lshl_add_u32 v231, v8, 4, v231
    s_mul_i32 s68, s58, {PT_}
    s_add_u32 s65, s68, {QT}
    s_add_u32 s68, s68, {A1T}
    s_lshl_b32 s66, s3, 12
    s_add_u32 s67, s66, {ST1}
    s_lshl_b32 s59, s58, 1
    v_mov_b32 v250, 0
    v_mov_b32 v251, s59
    global_load_short_d16_hi v250, v251, {sp(SSD)}
    v_min_u32 v240, 11, v1
    v_lshlrev_b32 v240, 7, v240
    s_lshr_b32 s52, s{S_CU}, 4
    s_lshl_b32 s52, s52, 11
    s_add_u32 s59, s52, {FA}
    s_lshl_b32 s69, s3, 9
    s_sub_u32 s52, s52, s69
    s_add_u32 s52, s52, {FT-FQ-8*128}
    v_cmp_lt_u32 vcc, 7, v1
    v_mov_b32 v241, s52
    v_cndmask_b32 v241, 0, v241, vcc
    v_add_u32 v240, v240, v241
    s_lshl_b32 s69, s3, 10
    s_add_u32 s69, s69, {FQ}
    s_lshl_b32 s55, s58, 3
    s_add_u32 s55, s55, {MODT}
    v_and_b32 v253, 3, v1
    v_cmp_eq_u32 vcc, 3, v253
    v_addc_co_u32 v253, vcc, 0, v253, vcc
    v_mul_u32_u24 v253, 5120, v253
    v_min_u32 v241, 4, v1
    v_lshlrev_b32 v241, 7, v241
    s_mul_i32 s60, s3, {5*128}
    s_add_u32 s60, s60, {FP2+40*128}
    v_min_u32 v242, 15, v1
    v_lshlrev_b32 v242, 7, v242
    """)
def st1dma(): return [[f"s_add_u32 m0, s66, {ST1L}", (f"buffer_load_dwordx4 v248, {WSR}, s67 offen offset:{n*1024}{SC} lds", "st1")] for n in range(4)]
def qloads(h): return [[f"buffer_load_dwordx4 {vr(QR+4*p,4)}, v231, {WSR}, s65 offen offset:{2048*h+1024*p}{SC}"] for p in range(2)]
def streads(h): return [f"ds_read_b128 {vr((SM if m else SR)+4*t,4)}, v249 offset:{8192*m+1024*(4*h+t)}" for t in range(4) for m in range(2)]
sw = lambda t, c=2: costed(lambda a: a(t), "v", c)
def qswaps(): return [f"v_permlane16_swap_b32 v{QR+4*p+k}, v{QR+4*p+2+k}" for p in range(2) for k in range(2)]
def pre_pk(a):
    put(a, qswaps())
    for t in range(4):
        r, m, q = SR + 4*t, SM + 4*t, ET + 4*(t & 1)
        unpack(a, q, q + 1, QR + 2*t); unpack(a, q + 2, q + 3, QR + 2*t + 1)
        for p in (0, 2): a(f"v_pk_fma_f32 {vr(r+p,2)}, {vr(q+p,2)}, {vr(r+p,2)}, {vr(m+p,2)}")
        for p in (0, 2): a(f"v_pk_mul_f32 {vr(m+p,2)}, {vr(q+p,2)}, v[252:253] op_sel_hi:[1,0]")
        for p in (0, 2): a(f"v_pk_fma_f32 {vr(r+p,2)}, {vr(r+p,2)}, v[250:251], v[250:251] op_sel:[0,0,1] op_sel_hi:[1,0,1]")
def pre_list():
    L = [sw(x) for x in qswaps()]
    for t in range(4):
        for i in range(4):
            r, m, q = SR + 4*t + i, SM + 4*t + i, ET + (i & 1)
            L += [f"v_lshlrev_b32 v{q}, 16, v{QR+2*t+(i>>1)}" if i % 2 == 0 else f"v_and_b32 v{q}, 0xffff0000, v{QR+2*t+(i>>1)}",
                  f"v_fma_f32 v{r}, v{q}, v{r}, v{m}", f"v_mul_f32 v{m}, v252, v{q}", f"v_fma_f32 v{r}, v{r}, v250, v251"]
    return L
def fin_pk(a, h, order=range(4)):
    done = set()
    for t in order:
        x = ACC + 4*(4*h + t)
        for p in (0, 2): a(f"v_pk_fma_f32 {vr(SR+4*t+p,2)}, {vr(SR+4*t+p,2)}, {vr(x+p,2)}, {vr(SM+4*t+p,2)}")
        for p in range(2): a(f"v_cvt_pk_bf16_f32 v{ET+2*t+p}, v{SR+4*t+2*p}, v{SR+4*t+2*p+1}")
        done.add(t)
        if t ^ 1 in done:
            p = t >> 1
            for k in range(2): a(f"v_permlane16_swap_b32 v{ET+4*p+k}, v{ET+4*p+2+k}")
            a(f"buffer_store_dwordx4 {vr(ET+4*p,4)}, v231, {WSR}, s68 offen offset:{2048*h+1024*p}{SC}", tag=f"a1st{h}")

WDH = WLB + 8 * WSLOT2
def wdh_loads(a):
    srd(a, 44, WD_, 1536 * 640 * 2)
    a(f"""
    s_lshr_b32 s52, s{S_PU}, 1
    s_lshl_b32 s52, s52, 2
    s_add_u32 s52, s52, s3
    s_mul_i32 s52, s52, {8*1280}
    s_and_b32 s53, s{S_PU}, 1
    s_mul_i32 s53, s53, 640
    s_add_u32 s52, s52, s53
    s_mul_i32 s53, s3, 5120
    """)
    for n in range(5):
        a(f"""
        v_add_u32 v5, {64*n}, v1
        v_mul_u32_u24 v6, 205, v5
        v_lshrrev_b32 v6, 13, v6
        v_mul_u32_u24 v6, 640, v6
        v_lshl_add_u32 v5, v5, 4, v6
        s_add_u32 m0, s53, {WDH + n*1024}
        """)
        a(f"buffer_load_dwordx4 v5, s[44:47], s52 offen nt lds", tag="wst")
def wdh_finish(a, R):
    a(f"""
    v_lshrrev_b32 v2, 4, v1           ; h
    v_bfe_u32 v3, v1, 2, 2            ; r
    v_lshl_add_u32 v3, v2, 3, v3
    v_mul_u32_u24 v3, 640, v3
    v_and_b32 v2, 3, v1
    v_lshl_add_u32 v2, v2, 3, v3
    s_mul_i32 s50, s3, 160
    s_add_u32 s50, s50, {WDH}
    v_add_u32 v2, s50, v2
    s_lshr_b32 s53, s{S_PU}, 1
    s_mov_b32 s50, 0x15555556
    s_mul_hi_u32 s51, s53, s50
    s_mul_i32 s52, s51, 12
    s_sub_u32 s52, s53, s52           ; ks
    s_and_b32 s50, s{S_PU}, 1
    s_lshl_b32 s50, s50, 2
    s_add_u32 s50, s50, s3
    s_lshl_b32 s50, s50, 2
    s_add_u32 s50, s50, s51
    s_mul_i32 s50, s50, 60
    s_mul_i32 s52, s52, 5
    s_add_u32 s50, s50, s52
    s_lshl_b32 s50, s50, 10
    s_add_u32 s50, s50, {WD}
    s_add_u32 s51, s50, 4096
    """)
    for n in range(5):
        for half in range(2): a(f"ds_read_b64_tr_b16 {vr(R+4*n+2*half,2)}, v2 offset:{32*n+half*4*640}")
    for n in range(5): a(f"buffer_store_dwordx4 {vr(R+4*n,4)}, v248, {WSR}, s{50+n//4} offen offset:{(n%4)*1024}{SC}", tag="wout")

halves.HACC = HACC = (56, 8)
halves.Q2H = Q2H = 56; halves.Q2NH = Q2NH = O("nh", 12); halves.Q2ACC = Q2ACC = (8, 28)
XE, XL, GB, PT, IC, XR = 120, 232, (48, 52, 132), 168, 168, 180
XI = 81920
def xflags(v, late, t=2, sr=50):
    L = ["v_lshrrev_b32 v2, 1, v1", "v_lshlrev_b32 v2, 10, v2", "v_and_b32 v3, 1, v1", f"v_lshl_add_u32 v{v}, v3, 7, v2",
         f"s_lshl_b32 s50, s3, 8\ns_add_u32 s50, s50, {(FXL if late else FXE)-FLG}", f"v_add_u32 v{v}, s50, v{v}"]
    if late: L += [f"s_lshl_b32 s50, s{S_J}, 7\ns_add_u32 s50, s50, {FB_-FLG}", "v_mov_b32 v2, s50"]
    else: L += [f"s_add_u32 s50, s50, {19*1024}", "v_mov_b32 v2, s50"]
    L += [f"v_cmp_lt_u32 vcc, 39, v1\nv_cndmask_b32 v{v}, v{v}, v2, vcc", f"s_mov_b32 s17, {FLG}"]
    return [re.sub(r"\bs50\b", f"s{sr}", re.sub(r"\bv3\b", f"v{t+1}", re.sub(r"\bv2\b", f"v{t}", x))) for x in L]
WG3 = [int(x) for x in O("wg", "0,9,13,20").split(",")]
def wflags():
    L = [f"s_lshr_b32 s61, s{S_J}, 1\ns_lshl_b32 s61, s61, 7\ns_add_u32 s61, s61, {FW}"]
    for g, (lo, n) in enumerate((WG3[k], WG3[k+1] - WG3[k]) for k in range(3)):
        L += [f"v_min_u32 v{224+g}, {n-1}, v1", f"v_add_lshl_u32 v{224+g}, v{224+g}, {lo}, 10"]
    return L
def hflags(base):
    return [f"s_lshr_b32 s50, s{S_I2}, 1\ns_lshl_b32 s50, s50, 2", f"s_add_u32 s50, s50, s3\ns_lshl_b32 s50, s50, 9", f"s_add_u32 s50, s50, {base-FLG}",
            "v_min_u32 v246, 3, v1", "v_lshlrev_b32 v246, 7, v246", "v_add_u32 v246, s50, v246"]
def g2_setup(si2, sj2):
    return ["s_and_b32 s50, s3, 1\ns_lshr_b32 s51, s3, 1", "s_mul_i32 s52, s50, 20480\ns_mul_i32 s53, s3, 5120", "s_add_u32 s52, s52, s53",
         "v_add_u32 v220, s52, v248", "v_add_u32 v222, 40960, v220",
         "s_xor_b32 s52, s50, 1\ns_mul_i32 s52, s52, 20480", "s_add_u32 s52, s52, s53", "v_add_u32 v221, s52, v248", "v_add_u32 v223, 40960, v221",
         "s_mul_i32 s52, s51, 20480\ns_lshl_b32 s53, s50, 11", "s_add_u32 s52, s52, s53", "v_add_u32 v224, s52, v248",
         "s_mul_i32 s53, s51, 5120\ns_add_u32 s53, s53, 40960", "v_add_u32 v225, s53, v224",
         "s_xor_b32 s53, s51, 1\ns_mul_i32 s53, s53, 5120", "s_add_u32 s53, s53, 40960", "v_add_u32 v226, s53, v224",
         f"s_lshl_b32 s52, s{si2}, 1\ns_add_u32 s52, s52, s51", f"s_mul_i32 s12, s{sj2}, 320\ns_add_u32 s15, s12, {ICB}",
         f"s_add_u32 s12, s12, {MOD+5*2560}\ns_mul_i32 s13, s52, {16*1280}", f"s_mul_i32 s53, s{sj2}, 160\ns_add_u32 s13, s13, s53",
         f"s_lshl_b32 s53, s50, 6\ns_add_u32 s13, s13, s53", f"s_add_u32 s14, s13, {1024*1280}",
         f"s_mul_i32 s10, s{sj2}, 10\ns_add_u32 s10, s10, s3", f"s_mul_i32 s10, s10, {8*PT_}\ns_lshl_b32 s53, s{si2}, 6", f"s_add_u32 s10, s10, s53\ns_add_u32 s10, s10, {A1T}",
         f"s_lshl_b32 s11, s3, 10\ns_add_u32 s11, s11, {XI}",
         "v_lshrrev_b32 v2, 3, v1", f"v_mul_u32_u24 v229, {PT_}, v2", "v_bfe_u32 v2, v1, 2, 1", "v_lshl_add_u32 v229, v2, 11, v229", "v_and_b32 v2, 3, v1", "v_lshl_add_u32 v229, v2, 4, v229",
         "v_lshrrev_b32 v3, 2, v1", "v_lshlrev_b32 v231, 7, v3", "v_lshl_add_u32 v231, v2, 3, v231", f"s_lshl_b32 s53, s50, 12\ns_lshl_b32 s52, s51, 5", f"s_add_u32 s53, s53, s52\ns_add_u32 s53, s53, {XI}", "v_add_u32 v231, s53, v231",
         "v_and_b32 v2, 15, v1", "v_lshrrev_b32 v3, 4, v1",
         "v_lshlrev_b32 v230, 4, v3", "s_lshl_b32 s53, s50, 7", "v_add_u32 v230, s53, v230",
         "v_mul_u32_u24 v2, 1280, v2", "v_lshl_add_u32 v228, v3, 3, v2", "v_and_b32 v227, 1, v3", "v_lshl_add_u32 v2, v227, 5, v2", "v_lshrrev_b32 v3, 1, v3", "v_lshl_add_u32 v227, v3, 4, v2"]
def g2_xdma():
    return [[f"s_add_u32 m0, s11, {4096*n}", (f"buffer_load_dwordx4 v229, {WSR}, s10 offen{SC} lds", "xi")] + ([f"s_add_u32 s10, s10, {32*PT_}"] if n < 2 else []) for n in range(3)]
def g2_gloads(): return [[f"buffer_load_dwordx4 {vr(GB[T],4)}, v230, {WSR}, s12 offen offset:{64*T}{SC}"] for T in range(3)] + \
                        [[f"buffer_load_dwordx4 {vr(IC+4*T,4)}, v230, {WSR}, s15 offen offset:{64*T}{SC}"] for T in range(3)]
def g2_xreads(): return [f"ds_read_b64_tr_b16 {vr(XR+6*h+2*T,2)}, v231 offset:{2048*T+64*h}" for h in range(2) for T in range(3)]
def g2_xform():
    L = []
    for h, X in enumerate((XE, XL)):
        for i in range(12):
            r = XR + 6*h + i // 2
            L += [f"v_lshlrev_b32 v{X+i}, 16, v{r}" if i % 2 == 0 else f"v_and_b32 v{X+i}, 0xffff0000, v{r}", f"v_mul_f32 v{X+i}, v{X+i}, v{IC+i}"]
    return L
gb = lambda i: GB[i // 4] + i % 4

LJ = 2; S_ = S
GE = [int(x) for x in O("ge", "3,8").split(",") if x]
GLs = [int(x) for x in O("gl", "0,2,5").split(",")]
GATES = {}
for k, g in enumerate(GE): GATES[g] = f"a0_{(GE[k+1] if k + 1 < len(GE) else 20) - 1}"
for k, g in enumerate(GLs): GATES[20 + g] = f"a1_{(GLs[k+1] if k + 1 < len(GLs) else 20) - 1}"
LDONE = [0]; WDONE = [0]
G1B = lambda n: n % 12 in (3, 7, 11)
G1S = lambda n: n % 12 == 10
G1K = lambda n: n % 12 in (3, 7, 10, 11)
gate_of = lambda G, ks: max([x for x in G if x <= ks], default=0)
def smalls(sc, groups, p, step=1):
    for g in groups: p = sc.vm(g, p, p + 14, lambda n: G1K(n) and not sc.m[n])[1] + step
    return p
def passA(a, npre, head=None, wrest=None, extra=None):
    sc = h1_sched(0, GATES)
    LQ = O("lq", 160); LI = LQ - O("lql", 40)
    q = sc.chain(xflags(219, 1, 238, 55), LI - 30, LI - 2, keep=G1K)
    smalls(sc, [PI(219, 17, 240)], LI)
    p = sc.at(PC(219, 17, 240, "Lx"), LQ) + 1
    W0 = O("wa0", 70)
    q3 = sc.chain(["v_min_u32 v243, 11, v1", "v_lshlrev_b32 v243, 8, v243", f"s_mul_i32 s58, s3, 24\ns_lshr_b32 s57, s{S_J2}, 2", f"s_add_u32 s58, s58, s57\ns_lshl_b32 s58, s58, 7", f"s_add_u32 s58, s58, {FP3}"], max(0, W0 - 56), W0 - 46, keep=G1K)
    q3 = smalls(sc, [PI(243, 58, 244)], q3 + 1)
    n = sc.at(PC(243, 58, 244), max(W0, q3 + 30)) + 1
    wl = groups_of(h2_wloads())
    bl = h1_biasloads()
    smalls(sc, [[bl[0], small(bl[1])]] + [[small(x)] for x in bl[2:]], O("lb", LQ + 4), 6)
    lfree = extra(sc) if extra else (lambda ks: 0)
    S = [[(h1_dma(0, ks), 0, 12 * (gate_of(GE, ks) - 1) - 40 + ks / 100) for ks in range(npre, 20)],
         [(h1_dma(1, ks), max(p, lfree(ks)), 190 + 12 * (gate_of(GLs, ks) - 1) + ks / 100) for ks in range(20)], [(g, n, 300) for g in wl[:12]], wrest or []]
    pos = sc.streams(S, O("pa", 4.0), 0, 238, lambda n: G1B(n) or (n < O("pad", 0) and G1S(n)), wt=[1, 1, 1, O("ww", 1.5)])
    assert len(pos[0]) == len(S[0]) and len(pos[3]) == len(S[3]), [(len(x), len(y)) for x, y in zip(pos, S)]
    for ks, x in zip(range(npre, 20), pos[0]): assert x <= 12 * (gate_of(GE, ks) - 1), (ks, x)
    if wrest: print("   weights: slack", [int(y[2] - x) for x, y in zip(pos[3], wrest)][2::3], file=sys.stderr); assert all(x < y[2] + O("lead", 50) - 10 for x, y in zip(pos[3], wrest))
    assert len(pos[1]) >= (GLs[1] if len(GLs) > 1 else 20)
    LDONE[0] = len(pos[1]); WDONE[0] = len(pos[2])
    pre, rd = h1_st_reads(0)
    q = max(12 * (GE[-1] - 1) + 1 if GE else 1, O("sa", 20), sc.wdone if hasattr(sc, "wdone") else 0)
    q = sc.chain(rd, q, q + 4, 1, keep=G1B)
    q = sc.chain(h1_st_list(0, 0, TAG), q + 6, q + O("sl", 70), keep=G1K)
    print(f"pass A: early dma {pos[0]}, wd {WDONE[0]}, stats at {q}, late slots issued {LDONE[0]}, overflow {sc.over()}", file=sys.stderr)
    for ks in range(20): fstamp(sc, 12 * ks, f"a{ks}")
    if "gbar" in OPT:
        if head: head(a); head = None
        lab[0] += 1; L = f"L_gb{lab[0]}"
        a(f"""
        s_waitcnt vmcnt(0)
        s_barrier
        v_mov_b32 v254, 0
        v_mov_b32 v255, 1
        s_cmp_eq_u32 s3, 0
        s_cbranch_scc0 {L}
        s_mov_b64 exec, 1
        global_atomic_add v254, v255, {sp(DBG)} sc1
        s_mov_b64 exec, -1
        {L}:
        global_load_dword v255, v254, {sp(DBG)} sc1
        s_waitcnt vmcnt(0)
        v_cmp_ne_u32 vcc, 256, v255
        s_cbranch_vccz {L}x
        s_sleep 2
        s_branch {L}
        {L}x:
        """)
        stamp(a, "gb")
    a.waitv(f"a0_{(GE[0] if GE else 20) - 1}")
    a("s_waitcnt lgkmcnt(0)\ns_barrier")
    put(a, h1_reads(0))
    if head: head(a)
    h1_pass(a, 0, sc)

def rest(a, X):
    stamp(a, "pB")
    sc = h1_sched(1, GATES)
    wl = groups_of(h2_wloads())
    def stslow(h):
        def f(a):
            a.label(f"L_st{X}{h}_slow"); a.reset()
            put(a, h1_stloads()); put(a, h1_stcheck(TAG))
            a(f"v_cmp_ne_u32 vcc, 0, v3\ns_cbranch_vccz L_st{X}{h}_back\ns_cmp_eq_u32 s{BUDGET}, 0\ns_cbranch_scc1 L_st{X}{h}_back\ns_sub_u32 s{BUDGET}, s{BUDGET}, 1\ns_branch L_st{X}{h}_slow")
        slow2.append(f)
        def chk(a):
            a(f"v_cmp_ne_u32 vcc, 0, v3\ns_cbranch_vccnz L_st{X}{h}_slow"); a.label(f"L_st{X}{h}_back")
        return costed(chk, "v", 1)
    EA = O("ea", 44)
    smalls(sc, [[small(x)] for x in h1_stloads()], max(0, EA - 44))
    p = sc.chain(h1_stcheck(TAG) + [stslow(0)], EA - 10, EA - 2, keep=G1K)
    p = sc.force(p + 1, [costed(lambda a: (stamp(a, "eA"), h1_epi(a, 0), a(f"s_add_u32 s{S_STL}, s{S_STL}, {1024*16}\ns_lshl_b32 s76, s{S_I}, 4\ns_add_u32 s76, s76, s{S_J}")), "v", 2)])
    pf = sc.at(BAR("hst0", then=lambda a: wflag(a, 76, FHE), c=3), p + O("ph", 40))
    SB = O("sb", 228); HC = O("hc", 190)
    smalls(sc, [[small(x)] for x in h1_stloads()], SB - 48)
    smalls(sc, [PI(246, 17, 247)], HC - 36)
    q2 = sc.at(PC(246, 17, 247, "Hseen"), HC)
    S = [[(h1_dma(1, ks), 0, 12 * (gate_of(GLs, ks) - 1) - 40 + ks / 100) for ks in range(LDONE[0], 20)],
         [(wl[n], 12 * ((n - 12) // 3 + 1) if n >= 12 else 0, 200 + n) for n in range(WDONE[0], 60)],
         [([h2_hload(n)], q2 + 1, O("hd", 180) + 5 * n) for n in range(12)]]
    pos = sc.streams(S, O("pb", 4.0), 0, 238, lambda n: G1B(n) or (n >= O("pbd", 240) and G1S(n)))
    assert len(pos[0]) == len(S[0])
    for ks, x in zip(range(LDONE[0], 20), pos[0]): assert x <= 12 * (gate_of(GLs, ks) - 1), (ks, x)
    nw = WDONE[0] + len(pos[1]); nh = len(pos[2])
    g = max(k for k in GATES if k >= 20)
    pre, rd = h1_st_reads(1)
    q = sc.chain(pre, 0, 10, keep=G1K)
    q = max(q, 12 * (g - 21) + 1, p + 1)
    q = sc.chain(rd, q, q + 4, 1, keep=G1B)
    q = sc.chain(h1_st_list(1, 0, TAG), q + 6, q + O("sl", 70), keep=G1K)
    assert q + 30 < SB - 48, q
    q3 = sc.chain(h2_hsetup(S_I2) + hflags(FHE), q + 1, HC - 38, keep=G1K)
    assert q3 < HC - 36, q3
    sc.chain(h1_stcheck(TAG) + [stslow(1)], SB, 238)
    print(f"pass B: epilogue A at {p}, FHE at {pf}, stats B done {q}, wd {nw}, h {nh}, overflow {sc.over()}", file=sys.stderr)
    for ks in range(20): fstamp(sc, 12 * ks, f"b{ks}")
    h1_pass(a, 1, sc)
    stamp(a, "g1done")
    for n in range(nh, 12): a(h2_hload(n))
    for g_ in wl[nw:]: put(a, g_)
    h1_epi(a, 1)
    for n in range(12, Q2NH): a(h2_hload(n))
    stamp(a, "g1epi")
    sc = Gaps(240)
    srd(a, 40, OUT, S_ * D * 2)
    PB1 = O("pb1", 40)
    sc.force(PB1, [BAR("hst1", then=lambda a: wflag(a, 76, FHL), c=3)])
    LC = O("lc", 110)
    sc.vm(PI(246, 17, 247), LC - O("ll", 30))
    p = sc.at(PC(246, 17, 247, "Lseen"), LC) + 1
    QS = O("qs", 46)
    pos = sc.streams([[([h2_hload(n)], max(5 * (n - Q2NH) + 5, p if n >= 24 else 0), 5 * n) for n in range(Q2NH, 48)], [(g, max(QS, PB1) + 1, 100) for g in g2_xdma()]], O("p2", 3.0))
    assert len(pos[0]) == 48 - Q2NH and all(x < 5 * n for x, n in zip(pos[0], range(Q2NH, 48))), pos
    wr = lambda sg: [f"ds_write_b128 v{220+sg}, {vr(Q2ACC[sg&1]+4*T,4)} offset:{T*1024}" for T in range(5)]
    assert PB1 < 62
    sc.chain(wr(0), 64, 76, 2)
    q = sc.chain(g2_setup(S_I2, S_J2) + hflags(FHL), 0, QS - 1)
    pg = q + 1
    for x in g2_gloads(): pg = sc.vm([small(x[0])], pg)[0] + 1
    q = sc.at(BAR("xi"), max(pos[1][-1], pg) + O("xw", 40))
    q = sc.chain(g2_xreads(), q, q + 8)
    qx = sc.chain(g2_xform(), q + 4, q + 36)
    q = sc.chain(wr(1), 123, 135, 2)
    q = sc.at("s_waitcnt lgkmcnt(0)\ns_barrier", max(q + O("g2d", 8), qx + 1))
    q = sc.chain([f"ds_read_b128 {vr(PT+12*sr+4*T,4)}, v224 offset:{5120*sr+1024*T}" for sr in range(4) for T in range(3)], q, q + 14)
    add = lambda x, y: [f"v_add_f32 v{x+i}, v{x+i}, v{y+i}" for i in range(12)]
    q = sc.chain(add(PT, PT + 12) + add(PT + 24, PT + 36) + add(PT, PT + 24), q + 2, q + 26)
    ho = h2_out(XE, PT + 12, 13)
    q = sc.chain([f"v_fma_f32 v{XE+i}, v{PT+i}, v{gb(i)}, v{XE+i}" for i in range(12)] + ho, q, q + 18)
    qe = q
    q = sc.chain(wr(2), 183, 195, 2)
    q = sc.at("s_waitcnt lgkmcnt(0)\ns_barrier", q + O("g2d", 8))
    q = sc.chain([f"ds_read_b128 {vr(PT+24+12*k+4*T,4)}, v225 offset:{10240*k+1024*T}" for k in range(2) for T in range(3)], max(q, qe), max(q, qe) + 8) + 7
    tail = add(PT + 24, PT + 36) + [f"v_fma_f32 v{XL+i}, v{PT+24+i}, v{gb(i)}, v{XL+i}" for i in range(12)]
    while tail and any(sc.extra(n, tail[0]) == 0 for n in range(q, 240)): q = sc.chain([tail.pop(0)], q, 239)
    print(f"gemm2: residual formed at {qx}, early rows stored at {qe}, left over {len(tail)}, overflow {sc.over()}", file=sys.stderr)
    for sg in range(4):
        stamp(a, f"h{sg}")
        for ks in range(12):
            n = 12 * sg + ks
            for T in range(5):
                ac = Q2ACC[sg & 1] + 4*T
                a(f"v_mfma_f32_16x16x32_bf16 {vr(ac,4)}, {wdreg(5*ks+T)}, {vr(Q2H+4*(n%Q2NH),4)}, {vr(ac,4) if ks else '0'}")
                sc.emit(a, 5*n + T)
    stamp(a, "h4")
    put(a, tail)
    put(a, wr(3))
    a("s_waitcnt lgkmcnt(0)\ns_barrier")
    put(a, [f"ds_read_b128 {vr(PT+12*k+4*T,4)}, v226 offset:{10240*k+1024*T}" for k in range(2) for T in range(3)])
    for i in range(0, 12, 2): a(f"v_pk_add_f32 {vr(PT+i,2)}, {vr(PT+i,2)}, {vr(PT+12+i,2)}")
    for i in range(0, 12, 2): a(f"v_pk_fma_f32 {vr(XL+i,2)}, {vr(PT+i,2)}, {vr(gb(i),2)}, {vr(XL+i,2)}")
    put(a, h2_out(XL, PT, 14))
    if "enc" in OPT:
        a("s_waitcnt vmcnt(0)"); stamp(a, "end")
        if OPT.get("encp", "c") == X:
            k = SNAMES.index(OPT["enc"])
            if "encw" in OPT: a(f"s_cmp_eq_u32 s2, {OPT['encw']}\ns_cbranch_scc0 L_enc_x{X}")
            a(f"""
            L_enc{X}:
            s_sleep 4
            s_memrealtime s[50:51]
            s_waitcnt lgkmcnt(0)
            s_sub_u32 s50, s50, s{78+2*k}
            s_cmp_lt_u32 s50, 3000
            s_cbranch_scc1 L_enc{X}
            L_enc_x{X}:
            """)
    elif STAMPS:
        a("s_waitcnt vmcnt(0)")
        stamp(a, "end")
        a("s_waitcnt lgkmcnt(0)")
        a(f"s_lshl_b32 s50, s2, 2\ns_add_u32 s50, s50, s3\ns_lshl_b32 s50, s50, 6\ns_add_u32 s50, s50, {STAMP}\nv_mov_b32 v2, 0")
        for n in range(12): a(f"v_mov_b32 v{8+n}, s{78+2*n}")
        a("s_mov_b64 exec, 1")
        for n in range(3): a(f"buffer_store_dwordx4 v[{8+4*n}:{11+4*n}], v2, {WSR}, s50 offen offset:{16*n}")
        a("s_mov_b64 exec, -1")

    a("s_endpgm")

def body(a):
    def eload(a):
        srd(a, 36, WS, WS_BYTES)
        a(f"v_mov_b32 v2, 0\ns_mov_b32 s57, {EPOCH}\nbuffer_load_dword v246, v2, {WSR}, s57 offen sc1")
    a(f"""
    s_mov_b32 s{BUDGET}, {0 if "xnopoll" in OPT else 400000}
    s_and_b32 s50, s2, 7
    s_lshr_b32 s51, s2, 3              ; slot
    s_lshr_b32 s52, s50, {4-LJ}
    s_lshl_b32 s52, s52, {5-LJ}
    s_lshr_b32 s53, s51, {LJ}
    s_add_u32 s{S_I}, s52, s53
    s_lshl_b32 s53, s53, 3              ; k rotation by row tile (speed only: spreads first touches of the weights)
    s_mov_b32 s54, {hex(sum(int(x) << (8*k) for k, x in enumerate(O("rot", "0,0,0,0,0,16,4,0").split(",")[:4])))}
    s_mov_b32 s55, {hex(sum(int(x) << (8*k) for k, x in enumerate(O("rot", "0,0,0,0,0,16,4,0").split(",")[4:])))}
    s_lshr_b64 s[54:55], s[54:55], s53
    s_and_b32 s{R1}, s54, 255
    s_and_b32 s52, s50, {(1 << (4-LJ)) - 1}
    s_lshl_b32 s52, s52, {LJ}
    s_and_b32 s53, s51, {(1 << LJ) - 1}
    s_add_u32 s{S_J}, s52, s53
    s_and_b32 s{S_J2}, s51, 7
    s_lshr_b32 s53, s51, 3
    s_lshl_b32 s52, s50, 2
    s_add_u32 s{S_I2}, s52, s53
    s_mul_i32 s{S_CU}, s50, 20
    s_add_u32 s{S_CU}, s{S_CU}, s51
    s_sub_u32 s{S_PU}, s2, 160
    s_lshl_b32 s52, s50, 1
    s_cmp_ge_u32 s51, 10
    s_addc_u32 s52, s52, 0
    s_cmp_ge_u32 s51, 10
    s_cselect_b32 s53, 10, 0
    s_sub_u32 s53, s51, s53
    s_lshl_b32 s53, s53, 4
    s_add_u32 s76, s52, s53
    s_lshl_b32 s58, s{S_CU}, 2
    s_add_u32 s58, s58, s3
    v_lshlrev_b32 v248, 4, v1
    """)
    def ptrs(a):
        a("s_waitcnt lgkmcnt(0)")
        stamp(a, "start")
        a("s_cmp_ge_u32 s2, 160\ns_cbranch_scc1 L_prep")
        if "xnoconv" in OPT: a("s_branch L_end")
    def gettag():
        a(f"""
        v_readfirstlane_b32 s{TAG}, v246
        s_mul_i32 s{TAG}, s{TAG}, 0x9E3779B1
        s_add_u32 s{TAG}, s{TAG}, 0x7F4A7C15
        """)
    QM, KM = O("qm", "late"), O("km", "mid")
    WV = 224
    def wdma(n, slot=None, V=WV, each=False):
        L = wdir_dma(n, SL[n % 5] if slot is None else slot, V, each=each)
        return [((x[0].replace(" lds", " nt lds"), x[1]) if isinstance(x, tuple) and n < O("wnt", 0) else x) for x in L]
    wrd = lambda n: wdir_reads2(n, SL[n % 5], WV)
    NB = O("nb", 4); N2 = O("n2", 0); NC = O("nc", 15)
    phaseA_loads(a, 76, ptrs, eload)
    if QM == "first": phaseA_qload(a)
    if KM == "first": kload(a)
    a("v_mov_b32 v243, v3")
    wdir_setup2(a, S_J, WV)
    kzero(a, 223)
    esetup(a)
    conv_addr(a)
    put(a, h1_vsetup(S_J, S_J2) + xflags(219, 0)[:-1])
    a("v_mov_b32 v3, v243")
    if QM == "late": phaseA_qload(a)
    if KM == "late": kload(a)
    phaseA_read(a)
    stamp(a, "kvland")
    if QM == "mid": phaseA_qload(a)
    if KM == "mid": kload(a)
    phaseA_compute(a)
    stamp(a, "Acomp")
    if KM == "post": kload(a)
    if QM != "mid":
        a.waitv("q"); a("s_barrier")
        phaseA_q(a, 184)
    if "kcl" not in OPT: kcopies(a, 223)
    signal(a, 76, FA, gettag, tag="kvst")
    stamp(a, "Asig")
    if QM == "mid": phaseA_q(a, 184)
    for n in range(NB): put(a, wdma(n))
    if "kcl" in OPT: kcopies(a, 223)
    conv_dfrag(a)
    a(f"v_mov_b32 v4, v{AA}\nv_mov_b32 v5, v{AF}")
    if NB: a.waitv(f"w{NB-1}")
    a.waitv("qst"); a("s_barrier"); wflag(a, 76, FT)
    stamp(a, "kcop")
    for n in range(NB): put(a, wrd(n))
    poll(a, 242, 59)
    stamp(a, "kvseen")
    xload(a)
    C2 = O("c2", 10); CL = O("cl", 40); PE = O("pe", 95); PF = O("pf", 45)
    nr = nd = NB
    if C2 - CL < 0: poll_issue(a, 240, 69, 243)
    if NB + N2 > 5: a("s_waitcnt lgkmcnt(0)\ns_barrier")
    while nd < min(NC, nr + N2): put(a, wdma(nd)); nd += 1
    sc = c2_sched(); N = sc.N
    if C2 - CL >= 0: sc.vm(PI(240, 69, 243), C2 - CL)
    p2 = sc.at(costed(lambda a: (poll_check(a, 240, 69, 243), a.waitl(f"wr{NB-1}"), a("s_barrier"), stamp(a, "qseen")), "v", 2), C2)
    ml = f"buffer_load_dwordx2 v[{ET}:{ET+1}], v253, {WSR}, s55 offen sc1"
    sc.vm([small(ml)], PE - O("ml", 45))
    def mslow(a):
        a.label("L_m_slow"); a.reset()
        a(ml)
        a(f"v_cmp_ne_u32 vcc, s{TAG}, v{ET+1}\ns_cbranch_vccz L_m_back\ns_cmp_eq_u32 s{BUDGET}, 0\ns_cbranch_scc1 L_m_back\ns_sub_u32 s{BUDGET}, s{BUDGET}, 1\ns_sleep 1\ns_branch L_m_slow")
    slow2.append(mslow)
    def mcheck(a):
        a(f"v_cmp_ne_u32 vcc, s{TAG}, v{ET+1}\ns_cbranch_vccnz L_m_slow"); a.label("L_m_back")
        a(f"""
        v_mov_b32_dpp v252, v{ET} quad_perm:[3,3,3,3] row_mask:0xf bank_mask:0xf
        v_mul_f32_dpp v251, v{ET}, v252 quad_perm:[2,2,2,2] row_mask:0xf bank_mask:0xf
        v_mul_f32_dpp v250, v{ET}, v251 quad_perm:[1,1,1,1] row_mask:0xf bank_mask:0xf
        v_mul_f32_dpp v251, v{ET}, v251 quad_perm:[0,0,0,0] row_mask:0xf bank_mask:0xf
        """)
    sc.force(PE - 12, [BAR("st1")])
    sc.chain(streads(0), PE - 12, PE - 4, 1)
    sc.force(PE, [costed(lambda a: (mcheck(a), stamp(a, "e1"), pre_pk(a), fin_pk(a, 0), stamp(a, "e1done")), "v", 2)])
    sc.force(PE + PF, [BAR("a1st0", then=lambda a: (wflag(a, S_CU, FXE), stamp(a, "fxe")), c=3)])
    XC = O("xc", 250)
    sc.vm(PI(219, 17, 223), XC - O("xl", 30))
    XC = sc.at(PC(219, 17, 223, "xseen"), XC)
    pfp = sc.vm(PI(241, 60, 243), PE + 10)[0]
    sl = sc.chain(streads(1), PE + 2, PE + 14, 1)
    LEAD = O("lead", 50); W0 = O("w0", 102); W1 = O("w1", 270); bp = {}; sfree = [0] * 5; q = 0
    for n in range(nr, NC):
        p = max(q + 1, W0 + (W1 - W0) * (n - nr) // max(1, NC - 1 - nr))
        if PE - 13 <= p <= PE + 1: p = PE + 2
        bp[n] = sc.at(BAR(f"w{n}", f"l:wr{n-1}"), p, 2)
        q = sc.chain(wrd(n), bp[n], bp[n] + 7, 1)
        sfree[(n - 1) % 5] = bp[n]
    pw = sc.at(BAR(f"l:wr{NC-1}"), q + 4); sfree[(NC - 1) % 5] = pw
    pre5 = nr + 5
    SW = [(g, max(p2 + 1, O("d0", 30)) if n < pre5 else bp[max(n - 4, nr)] + 1, bp[n] - LEAD) for n in range(nd, NC) for g in groups_of(wdma(n, each=True))]
    erel = lambda ks: max([XC + 1] + [sfree[k] + 1 for k in range(5) if SL[k] < 4096 * (ks + 1) and 4096 * ks < SL[k] + WSLOT2])
    S = [SW, [(g, p2 + 1, PE - 70) for g in st1dma() + qloads(0)], [(g, PE + 1, PE + 20) for g in qloads(1)],
         [(h1_dma(0, ks), erel(ks), N - 60 + (12 * (gate_of(GE, ks) - 1) if ks >= GE[0] else 0) + ks / 100) for ks in range(O("npre", 15))]]
    pos = sc.streams(S, O("pc", 4.0), 0, N - 2, wt=[O("ww", 1.5), 1, 1, 1])
    assert all(len(x) == len(y) for x, y in zip(pos[:3], S)), [(len(x), len(y)) for x, y in zip(pos, S)]
    assert pos[1][-1] < PE - 14
    log = [(n, bp[n], bp[n] - pos[0][3 * (n - nd) + 2]) for n in range(nd, NC)]
    assert all(x[2] > 0 for x in log), log
    npre = len(pos[3]); ql = pos[2][-1]
    b = Asm(); h1_ssetup(b, S_I, S_J); put(b, [f"s_mov_b32 s17, {FLG}"])
    SS = [re.sub(r"\bs50\b", "s53", re.sub(r"\bs35\b", "s52", re.sub(r"\bs62\b", "s16", x.text))) for k, x in b.items if k == "ins"]
    SS = SS[-1:] + SS[:-1] + [y for x in h2_wsetup(S_J2) for y in x.split("\n")]
    q = sc.chain(SS, 1, XC - 40, 1)
    pl = sc.chain(pre_list(), max(ql + 50, sl + 4), O("pld", 270))
    pi = sc.at(costed(lambda a: (poll_check(a, 241, 60, 243), a("s_barrier")), "v", 2), pfp + 50)
    b = Asm(); h1_icb(b); IL = [x.text.replace("s50", "s56") for k, x in b.items if k == "ins"]
    pi = sc.chain(IL[:2] + [IL[2] + "\n" + IL[3]] + IL[4:6], pi + 1, pi + 8)
    for x in IL[6:]: pi = sc.vm([small(x)], pi + 1)[0]
    print(f"conv: weights {log} done {pw}; stats/q {pos[1]}; late pre {pl}; x seen {XC}; early {pos[3]}; overflow {sc.over()}", file=sys.stderr)
    for c in range(8): fstamp(sc, c2_start(1, c), f"c{c}")
    a.waitv("xdma")
    stamp(a, "cstart")
    for l in c2_loads(0, 0): a(l)
    seen = set()
    for n, (part, c, u, w, dterm) in enumerate(C2M):
        t = u + w; bb = c & 1
        A = vr(DFR, 4) if dterm else vr(AB[bb] + 4*u, 4)
        a(f"v_mfma_f32_16x16x32_bf16 {vr(ACC+4*t,4)}, {A}, {vr(FB[bb]+4*w,4)}, {vr(ACC + 4*t, 4) if t in seen else '0'}")
        seen.add(t)
        sc.emit(a, n)
    stamp(a, "cdone")
    order = sorted(range(4), key=lambda t: max(n for n, m in enumerate(C2M) if m[2] + m[3] == 4 + t))
    NP2 = max(npre, min(GE[0] if GE else 20, 15))
    for ks in range(npre, NP2): put(a, h1_dma(0, ks))
    V2 = 200; WB = 163840 - WSLOT2 * (20 - NC)
    tb = {n: O("t0", 90) + O("tp", 18) * (n - NC) for n in range(NC, 21)}
    wrest = [(g, 0, tb[n] - LEAD) for n in range(NC, 20) for g in groups_of(wdma(n, WB + WSLOT2 * (n - NC), V2, True))]
    def conv_extra(sc):
        q = 0; fr = {}
        for n in range(NC, 21):
            if NC == 20: break
            q = sc.at(BAR(*([f"w{n}"] if n < 20 else []), *([f"l:wr{n-1}"] if n > NC else [])), max(q + 1, tb[n]), 2); fr[n - 1] = q + 1
            if n < 20:
                q = sc.chain(wdir_reads2(n, WSLOT2 * (n - NC), V2), q, q + 10, 1, keep=G1B)
                assert q + 6 < 12 * n, (n, q)
        sc.at(BAR("a1st1", then=lambda a: wflag(a, S_CU, FXL), c=3), O("pl", 35))
        return lambda ks: max([0] + [fr[n] for n in range(NC, 20) if WB + WSLOT2 * (n - NC) < IMG + 4096 * (ks + 1) and IMG + 4096 * ks < WB + WSLOT2 * (n - NC + 1)])
    def head(a):
        fin_pk(a, 1, order)
        if NC < 20:
            for k in range(3): a(f"v_mov_b32 v{200+k}, v{WV+k}")
            for k in (3, 4): a(f"v_add_u32 v{200+k}, {WB}, v{WV+k}")
    passA(a, NP2, head, wrest, conv_extra)
    rest(a, 'c')
    a.label("L_prep"); a.reset()
    if "xnoprep" in OPT: a("s_branch L_end")
    eload(a)
    a(f"""
    s_lshr_b32 s51, s2, 3
    s_cmp_eq_u32 s51, 31
    s_cbranch_scc0 L_nopf
    s_getpc_b64 s[40:41]
    L_pc:
    s_sub_u32 s40, s40, L_pc-{NAME}_kernel
    s_subb_u32 s41, s41, 0
    s_mov_b32 s42, L_code_end-{NAME}_kernel
    s_mov_b32 s43, 0x20000
    v_lshlrev_b32 v2, 7, v0
    s_mov_b32 s52, 0x8000
    buffer_load_dword v250, v2, s[40:43], 0 offen
    buffer_load_dword v251, v2, s[40:43], s52 offen
    s_mov_b32 s52, 0x10000
    buffer_load_dword v252, v2, s[40:43], s52 offen
    L_nopf:
    """, nowait=True)
    a.reset()
    PWN = O("pwn", 4); PWC = O("pwc", ""); V = 230
    slot = lambda m: WLB + (m % 8) * WSLOT2
    def pw(a):
        wdir_setup2(a, S_J, V)
        for n in range(PWN): put(a, wdir_dma(n, slot(n), V))
    a("s_mov_b32 s76, 0")
    WDE = "wdl" not in OPT
    a(f"""
    s_add_u32 s50, s{S_PU}, 10
    s_cmp_lt_u32 s{S_PU}, 30
    s_cselect_b32 s77, s{S_PU}, s50
    s_sub_u32 s50, s{S_PU}, 10
    s_cmp_lt_u32 s{S_PU}, 50
    s_cselect_b32 s50, s50, s{S_PU}          ; 30..39, 50..63
    s_cmp_lt_u32 s{S_PU}, 40
    s_cselect_b32 s77, s77, s50
    s_cmp_ge_u32 s{S_PU}, 60
    s_cbranch_scc1 L_p_q
    """)
    mod_cloads(a, 80)
    if "modlate" not in OPT: mod_loads(a, 77, 80)
    mod_silu(a, 80, 180)
    if "n" in PWC:
        a(f"s_cmp_ge_u32 s{S_PU}, 40\ns_cbranch_scc0 L_p_m\ns_mov_b32 s76, 1")
        b = Asm(); pw(b)
        for k, x in b.items: a(x.text, cond=x.kind == "vmem")
        a.label("L_p_m")
    if "nwait" in OPT:
        a(f"s_cmp_ge_u32 s{S_PU}, 40\ns_cbranch_scc0 L_p_nw")
        gettag()
        poll_lines(a, f"s_mov_b32 s52, {FT}", 16)
        a.label("L_p_nw")
    if "modlate" in OPT: mod_loads(a, 77, 80)
    if WDE: wdh_loads(a)
    stamp(a, "kvland")
    mod_finish(a, 77, 80, 180, 0)
    stamp(a, "Acomp")
    gettag()
    mod_finish2(a, 77, 80, 180, 0, TAG)
    signal(a, 77, FP2)
    a("s_branch L_p_w")
    a.label("L_p_q"); a.reset()
    a(f"""
    s_and_b32 s50, s2, 7
    s_lshl_b32 s50, s50, 2
    s_lshr_b32 s52, s2, 3
    s_sub_u32 s52, s52, 28
    s_add_u32 s50, s50, s52
    s_sub_u32 s77, s77, 28
    s_cmp_ge_u32 s{S_PU}, 64
    s_cselect_b32 s77, s50, s77
    """)
    if "q" in PWC: a("s_mov_b32 s76, 1"); pw(a)
    if "qnt" not in OPT: phases.NT = ""
    st1_loads(a, 77, 80)
    phases.NT = " nt"
    if WDE: wdh_loads(a)
    stamp(a, "kvland")
    st1_finish(a, 77, 80, 180)
    stamp(a, "Acomp")
    signal(a, 77, FQ, gettag)
    a.label("L_p_w"); a.reset()
    stamp(a, "Asig")
    if not WDE: wdh_loads(a); a.waitv("wst"); a("s_barrier")
    wdh_finish(a, 16)
    a("s_cmp_eq_u32 s76, 0\ns_cbranch_scc0 L_p_w2")
    b = Asm(); pw(b)
    for k, x in b.items: a(x.text, cond=x.kind == "vmem")
    a.label("L_p_w2")
    a(f"v_add_u32 v{V+3}, {WLB}, v{V+3}\nv_add_u32 v{V+4}, {WLB}, v{V+4}\nv_add_u32 v{V+8}, {4*WSLOT2}, v{V+3}\nv_add_u32 v{V+9}, {4*WSLOT2}, v{V+4}")
    for n in range(PWN, 6): put(a, wdir_dma(n, slot(n), V))
    h1_ssetup(a, S_I, S_J)
    put(a, h1_vsetup(S_J, S_J2) + xflags(219, 0) + h2_wsetup(S_J2))
    nd = 6
    for n in range(0, 20, 2):
        if n + 1 < PWN: a(f"s_waitcnt vmcnt({3 * (nd - n - 2)})")
        else: a.waitv(f"w{n+1}")
        if n == O("p3", 2): a.waitv("wout")
        if n >= 2: a.waitl(f"wr{n-1}")
        a("s_barrier")
        if n == O("p3", 2):
            wflag(a, S_PU, FP3, 2)
        for m in (n, n + 1): put(a, wdir_reads2(m, (m % 4) * WSLOT2, V + (5 if m % 8 >= 4 else 0)))
        for _ in range(2):
            if nd < 20: put(a, wdir_dma(nd, slot(nd), V)); nd += 1
    a("s_waitcnt lgkmcnt(0)\ns_barrier")
    stamp(a, "kcop")
    stamp(a, "kvseen")
    a.reset()
    a("s_cmp_eq_u32 s2, 255\ns_cbranch_scc0 L_noepoch")
    a(f"""
    v_lshlrev_b32 v5, 7, v0
    v_add_u32 v6, {FP2-FA-196*128}, v5
    v_cmp_lt_u32 vcc, 195, v0
    v_cndmask_b32 v5, v5, v6, vcc
    s_mov_b32 s52, {FA}
    """)
    poll(a, 5, 52)
    a("s_barrier")
    a(f"s_cmp_eq_u32 s3, 0\ns_cbranch_scc0 L_noepoch\ns_mov_b32 s50, {EPOCH}\nv_mov_b32 v2, 0\nv_mov_b32 v3, s{TAG}\ns_mov_b64 exec, 1")
    a(f"buffer_store_dword v3, v2, {WSR}, s50 offen sc1", cond=True)
    a("s_mov_b64 exec, -1")
    a.label("L_noepoch")
    a(f"s_cmp_eq_u32 s{S_I}, 7\ns_cbranch_scc0 L_nobias")
    poll_lines(a, f"s_mov_b32 s52, {FP2+30*128}", 20)
    put(a, g1_table_load())
    g1_bias(a, 0, 20, 40)
    h1_biasstore(a)
    signal(a, S_J, FB_)
    a.label("L_nobias"); a.reset()
    stamp(a, "cdone")
    a(f"""
    v_min_u32 v5, 19, v1
    v_lshlrev_b32 v5, 7, v5
    s_mov_b32 s52, {FP2+40*128}
    """)
    poll(a, 5, 52)
    poll(a, 219, 17, 223)
    stamp(a, "xseen")
    NPP = O("npp", 12)
    for ks in range(NPP): put(a, h1_dma(0, ks))
    h1_icb(a)
    passA(a, NPP)
    rest(a, 'p')

def build():
    name = NAME + "_kernel"
    a = Asm()
    a.raw(f".globl {name}\n.p2align 8\n.type {name},@function\n{name}:")
    prologue(a, 256, "L_end", wait=False)
    body(a)
    a.label("L_end")
    a("s_endpgm")
    emit_slow(a)
    a.label("L_code_end")
    hdr = open("cdna_kernels/" + NAME + ".s.ref").read().split("; Override")[0]
    txt = hdr + "; @launch grid=(256,1,1) block=(256,1,1) lds=163840\n"
    txt += '.amdgcn_target "amdgcn-amd-amdhsa--gfx950"\n.text\n' + a.finish()
    txt += f""".section .rodata,"a"
.p2align 6
.amdhsa_kernel {name}
  .amdhsa_next_free_vgpr 512
  .amdhsa_next_free_sgpr 102
  .amdhsa_accum_offset 256
  .amdhsa_group_segment_fixed_size 0
  .amdhsa_kernarg_size 120
  .amdhsa_user_sgpr_count 2
  .amdhsa_user_sgpr_kernarg_segment_ptr 1
  .amdhsa_system_sgpr_workgroup_id_x 1
.end_amdhsa_kernel
"""
    return txt
if __name__ == "__main__":
    out = [x for x in sys.argv[1:] if not x.startswith("--")][0]
    open(out, "w").write(build())
```

```python
import sys, re
from halves import *
import phases, halves
NAME = "adaLN_cond__ssm_conv_h3__glu_gated_bilinear__prompt"
OPT = {"modlate": "1"}
OPT.update({x.split("=")[0][2:]: (x.split("=") + ["1"])[1] for x in sys.argv[1:] if x.startswith("--")})
OPT = {k: v for k, v in OPT.items() if v != "off"}
def O(k, d): return type(d)(OPT.get(k, d))
FA, FQ, FP2, FP3, FXE, FXL, FB_, FHE, FHL, FY, FT, FW = [FLG + 128 * n for n in (0, 160, 200, 264, 360, 520, 680, 696, 952, 1208, 1368, 1528)]
TAG, BUDGET, T16 = 48, 49, 77
S_CU, S_PU, S_I, S_J, S_I2, S_J2 = 70, 71, 72, 73, 74, 75
STAMPS = "stamps" in OPT
SNAMES = OPT["stamps"].split(",") if STAMPS else ["start"]
assert len(SNAMES) <= 12 and SNAMES[0] == "start"
STI = "s_memtime" if "cyc" in OPT else "s_memrealtime"
def stamp(a, name):
    if STAMPS and name in SNAMES:
        n = SNAMES.index(name)
        a(f"{STI} s[{78+2*n}:{79+2*n}]")
def fstamp(sc, n, name):
    if STAMPS and name in SNAMES: sc.fill.setdefault(n, []).insert(0, costed(lambda a: stamp(a, name), 's', 0))

lab = [0]
def poll(a, voff, sbase, tmp=2, TAG=TAG):
    lab[0] += 1; L = f"L_poll{lab[0]}"
    a.label(L)
    a(f"""
    buffer_load_dword v{tmp}, v{voff}, {WSR}, s{sbase} offen sc1
    s_waitcnt vmcnt(0)
    v_cmp_ne_u32 vcc, s{TAG}, v{tmp}
    s_cbranch_vccz {L}_ok
    s_cmp_eq_u32 s{BUDGET}, 0
    s_cbranch_scc1 {L}_ok
    s_sub_u32 s{BUDGET}, s{BUDGET}, 1
    s_sleep {O('psl', 1)}
    s_branch {L}
    {L}_ok:
    """)
def flagstore(a, sline, base, v=2, sr=50, TAG=TAG):
    a(f"""
    s_lshl_b32 s{sr}, s{sline}, 7
    s_add_u32 s{sr}, s{sr}, {base}
    v_mov_b32 v{v}, 0
    v_mov_b32 v{v+1}, s{TAG}
    s_mov_b64 exec, 1
    buffer_store_dword v{v+1}, v{v}, {WSR}, s{sr} offen sc1
    s_mov_b64 exec, -1
    """, cond=True)
def wflag(a, sline, base, v=254, TAG=TAG):
    lab[0] += 1; L = f"L_wf{lab[0]}"
    a(f"s_cmp_eq_u32 s3, 0\ns_cbranch_scc0 {L}")
    flagstore(a, sline, base, v, 54, TAG)
    a.label(L)
def wcount(a, base, v=254):
    lab[0] += 1; L = f"L_wf{lab[0]}"
    a(f"s_cmp_eq_u32 s3, 0\ns_cbranch_scc0 {L}")
    a(f"""
    s_lshr_b32 s54, s{S_CU}, 4
    s_lshl_b32 s54, s54, 7
    s_add_u32 s54, s54, {base}
    v_mov_b32 v{v}, 0
    v_mov_b32 v{v+1}, 1
    s_mov_b64 exec, 1
    buffer_atomic_add v{v+1}, v{v}, {WSR}, s54 offen sc1
    s_mov_b64 exec, -1
    """, cond=True)
    a.label(L)
def signal(a, sline, base, pre=None, tag=None, TAG=TAG):
    if tag: a.waitv(tag); a("s_waitcnt lgkmcnt(0)")
    else: a("s_waitcnt vmcnt(0) lgkmcnt(0)")
    a("s_barrier")
    if pre: pre()
    wflag(a, sline, base, 2, TAG)
slow = []; slow2 = []; pending = {}
def poll_issue(a, voff, sbase, tmp):
    pending[tmp] = (voff, sbase)
    a(f"buffer_load_dword v{tmp}, v{voff}, {WSR}, s{sbase} offen sc1")
def poll_check(a, voff, sbase, tmp, TAG=TAG):
    lab[0] += 1; L = f"L_chk{lab[0]}"
    assert pending.pop(tmp, None) == (voff, sbase), "poll_check without a preceding poll_issue"
    a(f"v_cmp_ne_u32 vcc, s{TAG}, v{tmp}\ns_cbranch_vccnz {L}_slow")
    a.label(L + "_back")
    slow.append((L, voff, sbase, tmp, TAG))
def emit_slow(a):
    for f in slow2: f(a)
    for L, voff, sbase, tmp, TG in slow:
        a.label(L + "_slow"); a.reset()
        poll(a, voff, sbase, tmp, TG)
        a(f"s_branch {L}_back")
def poll_lines(a, sfirst_expr, n):
    a(sfirst_expr)
    a(f"v_min_u32 v5, {n-1}, v1\nv_lshlrev_b32 v5, 7, v5")
    poll(a, 5, 52)
def small(x, tag=None): return costed(lambda a: a(x, tag=tag), "m", 1)
PI = lambda v, s, t: [costed(lambda a: poll_issue(a, v, s, t), "m", 1)]
PC = lambda v, s, t, st=None, TG=TAG: costed(lambda a: (poll_check(a, v, s, t, TG), st and stamp(a, st)), "v", 1)
def BAR(*waits, then=None, c=2):
    def f(a):
        for w in waits: (a.waitl(w[2:]) if w.startswith("l:") else a.waitv(w))
        a("s_barrier")
        if then: then(a)
    return costed(f, "s", c)

from sched2 import Gaps
halves.Sched = Gaps

if "noalias" not in OPT: A1T = halves.A1T = KVT
def preH(a, v=245, t=2):
    a(f"""
    v_min_u32 v{t}, 47, v1
    v_cmp_lt_u32 vcc, 23, v{t}
    v_cndmask_b32 v{t+1}, 0, 1, vcc
    v_mul_u32_u24 v{t+1}, {49152 - 24*128}, v{t+1}
    v_lshl_add_u32 v{t}, v{t}, 7, v{t+1}
    s_and_b32 s50, s3, 1
    s_lshl_b32 s50, s50, 1
    s_lshr_b32 s51, s3, 1
    s_lshl_b32 s51, s51, 6
    s_add_u32 s50, s50, s51
    s_lshl_b32 s51, s{S_I}, 2
    s_add_u32 s50, s50, s51
    s_mul_i32 s50, s50, 49152
    s_mul_i32 s51, s{S_J}, 3072
    s_add_u32 s50, s50, s51
    s_add_u32 s50, s50, {HB}
    """)
    a(f"buffer_load_dword v{v}, v{t}, {WSR}, s50 offen", tag="pre")
def preT(a, base, rev, v, t=2):
    a(f"""
    s_lshr_b32 s50, s76, 4
    s_mul_i32 s50, s50, {64*PT_}
    s_and_b32 s51, s76, 15
    s_lshl_b32 s51, s51, 8
    """ + (f"s_sub_u32 s51, {4096-256}, s51\n" if rev else "") + f"""
    s_add_u32 s50, s50, s51
    s_lshl_b32 s51, s3, 4
    s_mul_i32 s51, s51, {PT_}
    s_add_u32 s50, s50, s51
    s_add_u32 s50, s50, {base}
    v_bfe_u32 v{t}, v1, 1, 4
    v_mul_u32_u24 v{t}, {PT_}, v{t}
    v_and_b32 v{t+1}, 1, v1
    v_lshl_add_u32 v{t}, v{t+1}, 7, v{t}
    """)
    a(f"buffer_load_dword v{v}, v{t}, {WSR}, s50 offen nt", tag="pre")
SL = [WSLOT2 * n for n in range(5)]
phases.PA = 25536
ST1L = 62464
KB = 78848
XOFF = KB + 4 * KCH
assert XOFF + 4 * XSTR == 163840
def kload(a):
    a(f"s_lshl_b32 s50, s58, 12\ns_mul_i32 s51, s3, {KCH}\ns_add_u32 m0, s51, {KB+32}")
    srd(a, 44, SSMK, S * D * 2)
    for n in range(4): a(f"buffer_load_dwordx4 v248, s[44:47], s50 offen offset:{1024*n}{' nt' if 'knt' not in OPT else ''} lds", tag="kdma")
def kzero(a, keep):
    a(f"""
    s_mul_i32 s51, s3, {KCH}
    s_add_u32 s51, s51, {KB}
    v_add_u32 v{keep}, s51, v248
    v_lshrrev_b32 v8, 1, v1
    v_mul_u32_u24 v8, {KSTR}, v8
    v_and_b32 v4, 1, v1
    v_lshl_add_u32 v8, v4, 4, v8
    v_add_u32 v8, s51, v8
    v_mov_b32 v4, 0
    v_mov_b32 v5, 0
    v_mov_b32 v6, 0
    v_mov_b32 v7, 0
    s_mov_b64 exec, 0xff
    ds_write_b128 v8, v[4:7]
    s_mul_i32 s52, s3, {XSTR}
    s_add_u32 s52, s52, {XOFF+4096}
    s_mov_b64 exec, 0x3fffffff
    v_add_u32 v8, s52, v248
    ds_write_b128 v8, v[4:7]
    s_mov_b64 exec, -1
    """)
def kcopies(a, keep, R=8):
    a.waitv("kdma")
    for n in range(4):
        a(f"ds_read_b128 {vr(R+6*n,4)}, v{keep} offset:{32+1024*n}")
        a(f"ds_read_b64 {vr(R+4+6*n,2)}, v{keep} offset:{48+1024*n}")
    a(f"""
    s_mov_b64 exec, 1
    v_lshlrev_b32 v80, 16, v{R}
    v_alignbit_b32 v81, v{R+1}, v{R}, 16
    ds_write_b32 v{keep}, v80 offset:{KSTR+28}
    ds_write_b32 v{keep}, v{R} offset:{2*KSTR+28}
    ds_write_b32 v{keep}, v80 offset:{3*KSTR+24}
    ds_write_b32 v{keep}, v81 offset:{3*KSTR+28}
    s_mov_b64 exec, -1
    """)
    for n in range(4):
        c = R + 6*n; t = 56 + 12*(n & 1)
        for d in range(4): a(f"v_alignbit_b32 v{t+d}, v{c+d+1}, v{c+d}, 16")
        a(f"v_pk_mov_b32 {vr(t+4,2)}, {vr(c,2)}, {vr(c+2,2)} op_sel:[1,0]")
        a(f"v_pk_mov_b32 {vr(t+6,2)}, {vr(c+2,2)}, {vr(c+4,2)} op_sel:[1,0]")
        for d in range(4): a(f"v_alignbit_b32 v{t+8+d}, v{c+d+2}, v{c+d+1}, 16")
        for j in range(1, 4):
            a(f"ds_write_b128 v{keep}, {vr(t+4*(j-1),4)} offset:{j*KSTR+32+1024*n}")
def xload(a):
    a(f"s_mul_i32 s50, s58, {PT_}\ns_mul_i32 s52, s3, {XSTR}\ns_add_u32 m0, s52, {XOFF}")
    for n in range(4): a(f"buffer_load_dwordx4 v248, {WSR}, s50 offen offset:{n*1024}{SC} lds", tag="xdma")
AA, AF = 229, 230
def conv_addr(a):
    a(f"""
    v_and_b32 v2, 15, v1                ; r / a
    v_lshrrev_b32 v8, 4, v1             ; h
    v_add_u32 v4, 1, v2
    v_and_b32 v5, 3, v4                 ; copy j
    v_sub_u32 v4, v4, v5                ; r+1-j
    v_add_u32 v4, 24, v4
    v_lshlrev_b32 v4, 1, v4
    v_mul_u32_u24 v5, {KSTR}, v5
    v_add_u32 v4, v4, v5
    v_lshlrev_b32 v5, 4, v8
    v_sub_u32 v4, v4, v5
    s_mul_i32 s51, s3, {KCH}
    s_add_u32 s51, s51, {KB}
    v_add_u32 v{AA}, s51, v4
    v_lshlrev_b32 v2, 5, v2
    v_add_u32 v2, v2, v5
    s_mul_i32 s52, s3, {XSTR}
    s_add_u32 s52, s52, {XOFF+2*(2056-1792)}
    v_sub_u32 v{AF}, s52, v2
    """)
def conv_dfrag(a):
    a(f"""
    v_lshrrev_b32 v3, 4, v1
    v_lshlrev_b32 v2, 3, v3
    v_and_b32 v3, 15, v1
    v_sub_u32 v2, v2, v3
    v_subrev_u32 v2, 9, v2              ; p = 8h - r - 9: position of filter tap 0 inside this lane's fragment
    v_and_b32 v3, 1, v2
    v_cmp_eq_u32 vcc, 1, v3
    v_lshrrev_b32 v3, 16, v250
    v_cndmask_b32 v3, v3, v250, vcc
    v_lshrrev_b32 v2, 1, v2
    """)
    for d in range(4): a(f"v_cmp_eq_u32 vcc, {d}, v2\nv_cndmask_b32 v{DFR+d}, 0, v3, vcc")
QR, SR, SM, ET = 176, 184, 200, 232
def esetup(a):
    a(f"""
    v_and_b32 v2, 15, v1
    v_lshrrev_b32 v8, 4, v1
    v_lshlrev_b32 v249, 6, v2
    v_lshl_add_u32 v249, v8, 4, v249
    v_add_u32 v249, {ST1L}, v249
    v_and_b32 v231, 1, v8
    v_lshlrev_b32 v231, 9, v231
    v_lshl_add_u32 v231, v2, 5, v231
    v_lshrrev_b32 v8, 1, v8
    v_lshl_add_u32 v231, v8, 4, v231
    s_mul_i32 s68, s58, {PT_}
    s_add_u32 s65, s68, {QT}
    s_add_u32 s68, s68, {A1T}
    s_lshl_b32 s66, s3, 12
    s_add_u32 s67, s66, {ST1}
    s_lshl_b32 s59, s58, 1
    v_mov_b32 v250, 0
    v_mov_b32 v251, s59
    global_load_short_d16_hi v250, v251, {sp(SSD)}
    v_min_u32 v240, 11, v1
    v_lshlrev_b32 v240, 7, v240
    s_lshr_b32 s52, s{S_CU}, 4
    s_lshl_b32 s52, s52, 11
    s_add_u32 s59, s52, {FA}
    s_lshl_b32 s69, s3, 9
    s_sub_u32 s52, s52, s69
    s_add_u32 s52, s52, {FT-FQ-8*128}
    v_cmp_lt_u32 vcc, 7, v1
    v_mov_b32 v241, s52
    v_cndmask_b32 v241, 0, v241, vcc
    v_add_u32 v240, v240, v241
    s_lshl_b32 s69, s3, 10
    s_add_u32 s69, s69, {FQ}
    s_lshl_b32 s55, s58, 3
    s_add_u32 s55, s55, {MODT}
    v_and_b32 v253, 3, v1
    v_cmp_eq_u32 vcc, 3, v253
    v_addc_co_u32 v253, vcc, 0, v253, vcc
    v_mul_u32_u24 v253, 5120, v253
    v_min_u32 v241, 4, v1
    v_lshlrev_b32 v241, 7, v241
    s_mul_i32 s60, s3, {5*128}
    s_add_u32 s60, s60, {FP2+40*128}
    v_min_u32 v242, 15, v1
    v_lshlrev_b32 v242, 7, v242
    """)
def st1dma(): return [[f"s_add_u32 m0, s66, {ST1L}", (f"buffer_load_dwordx4 v248, {WSR}, s67 offen offset:{n*1024}{SC} lds", "st1")] for n in range(4)]
def qloads(h): return [[f"buffer_load_dwordx4 {vr(QR+4*p,4)}, v231, {WSR}, s65 offen offset:{2048*h+1024*p}{SC}"] for p in range(2)]
def streads(h): return [f"ds_read_b128 {vr((SM if m else SR)+4*t,4)}, v249 offset:{8192*m+1024*(4*h+t)}" for t in range(4) for m in range(2)]
sw = lambda t, c=2: costed(lambda a: a(t), "v", c)
def qswaps(): return [f"v_permlane16_swap_b32 v{QR+4*p+k}, v{QR+4*p+2+k}" for p in range(2) for k in range(2)]
def pre_pk(a):
    put(a, qswaps())
    for t in range(4):
        r, m, q = SR + 4*t, SM + 4*t, ET + 4*(t & 1)
        unpack(a, q, q + 1, QR + 2*t); unpack(a, q + 2, q + 3, QR + 2*t + 1)
        for p in (0, 2): a(f"v_pk_fma_f32 {vr(r+p,2)}, {vr(q+p,2)}, {vr(r+p,2)}, {vr(m+p,2)}")
        for p in (0, 2): a(f"v_pk_mul_f32 {vr(m+p,2)}, {vr(q+p,2)}, v[252:253] op_sel_hi:[1,0]")
        for p in (0, 2): a(f"v_pk_fma_f32 {vr(r+p,2)}, {vr(r+p,2)}, v[250:251], v[250:251] op_sel:[0,0,1] op_sel_hi:[1,0,1]")
def pre_list():
    L = [sw(x) for x in qswaps()]
    for t in range(4):
        for i in range(4):
            r, m, q = SR + 4*t + i, SM + 4*t + i, ET + (i & 1)
            L += [f"v_lshlrev_b32 v{q}, 16, v{QR+2*t+(i>>1)}" if i % 2 == 0 else f"v_and_b32 v{q}, 0xffff0000, v{QR+2*t+(i>>1)}",
                  f"v_fma_f32 v{r}, v{q}, v{r}, v{m}", f"v_mul_f32 v{m}, v252, v{q}", f"v_fma_f32 v{r}, v{r}, v250, v251"]
    return L
def fin_pk(a, h, order=range(4)):
    done = set()
    for t in order:
        x = ACC + 4*(4*h + t)
        for p in (0, 2): a(f"v_pk_fma_f32 {vr(SR+4*t+p,2)}, {vr(SR+4*t+p,2)}, {vr(x+p,2)}, {vr(SM+4*t+p,2)}")
        for p in range(2): a(f"v_cvt_pk_bf16_f32 v{ET+2*t+p}, v{SR+4*t+2*p}, v{SR+4*t+2*p+1}")
        done.add(t)
        if t ^ 1 in done:
            p = t >> 1
            for k in range(2): a(f"v_permlane16_swap_b32 v{ET+4*p+k}, v{ET+4*p+2+k}")
            a(f"buffer_store_dwordx4 {vr(ET+4*p,4)}, v231, {WSR}, s68 offen offset:{2048*h+1024*p}{SC}", tag=f"a1st{h}")

WDH = WLB + 8 * WSLOT2
def wdh_loads(a):
    srd(a, 44, WD_, 1536 * 640 * 2)
    a(f"""
    s_lshr_b32 s52, s{S_PU}, 1
    s_lshl_b32 s52, s52, 2
    s_add_u32 s52, s52, s3
    s_mul_i32 s52, s52, {8*1280}
    s_and_b32 s53, s{S_PU}, 1
    s_mul_i32 s53, s53, 640
    s_add_u32 s52, s52, s53
    s_mul_i32 s53, s3, 5120
    """)
    for n in range(5):
        a(f"""
        v_add_u32 v5, {64*n}, v1
        v_mul_u32_u24 v6, 205, v5
        v_lshrrev_b32 v6, 13, v6
        v_mul_u32_u24 v6, 640, v6
        v_lshl_add_u32 v5, v5, 4, v6
        s_add_u32 m0, s53, {WDH + n*1024}
        """)
        a(f"buffer_load_dwordx4 v5, s[44:47], s52 offen nt lds", tag="wst")
def wdh_finish(a, R):
    a(f"""
    v_lshrrev_b32 v2, 4, v1           ; h
    v_bfe_u32 v3, v1, 2, 2            ; r
    v_lshl_add_u32 v3, v2, 3, v3
    v_mul_u32_u24 v3, 640, v3
    v_and_b32 v2, 3, v1
    v_lshl_add_u32 v2, v2, 3, v3
    s_mul_i32 s50, s3, 160
    s_add_u32 s50, s50, {WDH}
    v_add_u32 v2, s50, v2
    s_lshr_b32 s53, s{S_PU}, 1
    s_mov_b32 s50, 0x15555556
    s_mul_hi_u32 s51, s53, s50
    s_mul_i32 s52, s51, 12
    s_sub_u32 s52, s53, s52           ; ks
    s_and_b32 s50, s{S_PU}, 1
    s_lshl_b32 s50, s50, 2
    s_add_u32 s50, s50, s3
    s_lshl_b32 s50, s50, 2
    s_add_u32 s50, s50, s51
    s_mul_i32 s50, s50, 60
    s_mul_i32 s52, s52, 5
    s_add_u32 s50, s50, s52
    s_lshl_b32 s50, s50, 10
    s_add_u32 s50, s50, {WD}
    s_add_u32 s51, s50, 4096
    """)
    for n in range(5):
        for half in range(2): a(f"ds_read_b64_tr_b16 {vr(R+4*n+2*half,2)}, v2 offset:{32*n+half*4*640}")
    for n in range(5): a(f"buffer_store_dwordx4 {vr(R+4*n,4)}, v248, {WSR}, s{50+n//4} offen offset:{(n%4)*1024}{SC}", tag="wout")

halves.HACC = HACC = (56, 8)
halves.Q2H = Q2H = 56; halves.Q2NH = Q2NH = O("nh", 12); halves.Q2ACC = Q2ACC = (8, 28)
XE, XL, GB, PT, IC, XR = 120, 232, (48, 52, 132), 168, 168, 180
XI = 81920
def xflags(v, late, t=2, sr=50):
    L = ["v_lshrrev_b32 v2, 1, v1", "v_lshlrev_b32 v2, 10, v2", "v_and_b32 v3, 1, v1", f"v_lshl_add_u32 v{v}, v3, 7, v2",
         f"s_lshl_b32 s50, s3, 8\ns_add_u32 s50, s50, {(FXL if late else FXE)-FLG}", f"v_add_u32 v{v}, s50, v{v}"]
    if late: L += [f"s_lshl_b32 s50, s{S_J}, 7\ns_add_u32 s50, s50, {FB_-FLG}", "v_mov_b32 v2, s50"]
    else: L += [f"s_add_u32 s50, s50, {19*1024}", "v_mov_b32 v2, s50"]
    L += [f"v_cmp_lt_u32 vcc, 39, v1\nv_cndmask_b32 v{v}, v{v}, v2, vcc", f"s_mov_b32 s17, {FLG}"]
    return [re.sub(r"\bs50\b", f"s{sr}", re.sub(r"\bv3\b", f"v{t+1}", re.sub(r"\bv2\b", f"v{t}", x))) for x in L]
WG3 = [int(x) for x in O("wg", "0,9,13,20").split(",")]
def wflags():
    L = [f"s_lshr_b32 s61, s{S_J}, 1\ns_lshl_b32 s61, s61, 7\ns_add_u32 s61, s61, {FW}"]
    for g, (lo, n) in enumerate((WG3[k], WG3[k+1] - WG3[k]) for k in range(3)):
        L += [f"v_min_u32 v{224+g}, {n-1}, v1", f"v_add_lshl_u32 v{224+g}, v{224+g}, {lo}, 10"]
    return L
def hflags(base):
    return [f"s_lshr_b32 s50, s{S_I2}, 1\ns_lshl_b32 s50, s50, 2", f"s_add_u32 s50, s50, s3\ns_lshl_b32 s50, s50, 9", f"s_add_u32 s50, s50, {base-FLG}",
            "v_min_u32 v246, 3, v1", "v_lshlrev_b32 v246, 7, v246", "v_add_u32 v246, s50, v246"]
def g2_setup(si2, sj2):
    return ["s_and_b32 s50, s3, 1\ns_lshr_b32 s51, s3, 1", "s_mul_i32 s52, s50, 20480\ns_mul_i32 s53, s3, 5120", "s_add_u32 s52, s52, s53",
         "v_add_u32 v220, s52, v248", "v_add_u32 v222, 40960, v220",
         "s_xor_b32 s52, s50, 1\ns_mul_i32 s52, s52, 20480", "s_add_u32 s52, s52, s53", "v_add_u32 v221, s52, v248", "v_add_u32 v223, 40960, v221",
         "s_mul_i32 s52, s51, 20480\ns_lshl_b32 s53, s50, 11", "s_add_u32 s52, s52, s53", "v_add_u32 v224, s52, v248",
         "s_mul_i32 s53, s51, 5120\ns_add_u32 s53, s53, 40960", "v_add_u32 v225, s53, v224",
         "s_xor_b32 s53, s51, 1\ns_mul_i32 s53, s53, 5120", "s_add_u32 s53, s53, 40960", "v_add_u32 v226, s53, v224",
         f"s_lshl_b32 s52, s{si2}, 1\ns_add_u32 s52, s52, s51", f"s_mul_i32 s12, s{sj2}, 320\ns_add_u32 s15, s12, {ICB}",
         f"s_add_u32 s12, s12, {MOD+5*2560}\ns_mul_i32 s13, s52, {16*1280}", f"s_mul_i32 s53, s{sj2}, 160\ns_add_u32 s13, s13, s53",
         f"s_lshl_b32 s53, s50, 6\ns_add_u32 s13, s13, s53", f"s_add_u32 s14, s13, {1024*1280}",
         f"s_mul_i32 s10, s{sj2}, 10\ns_add_u32 s10, s10, s3", f"s_mul_i32 s10, s10, {8*PT_}\ns_lshl_b32 s53, s{si2}, 6", f"s_add_u32 s10, s10, s53\ns_add_u32 s10, s10, {A1T}",
         f"s_lshl_b32 s11, s3, 10\ns_add_u32 s11, s11, {XI}",
         "v_lshrrev_b32 v2, 3, v1", f"v_mul_u32_u24 v229, {PT_}, v2", "v_bfe_u32 v2, v1, 2, 1", "v_lshl_add_u32 v229, v2, 11, v229", "v_and_b32 v2, 3, v1", "v_lshl_add_u32 v229, v2, 4, v229",
         "v_lshrrev_b32 v3, 2, v1", "v_lshlrev_b32 v231, 7, v3", "v_lshl_add_u32 v231, v2, 3, v231", f"s_lshl_b32 s53, s50, 12\ns_lshl_b32 s52, s51, 5", f"s_add_u32 s53, s53, s52\ns_add_u32 s53, s53, {XI}", "v_add_u32 v231, s53, v231",
         "v_and_b32 v2, 15, v1", "v_lshrrev_b32 v3, 4, v1",
         "v_lshlrev_b32 v230, 4, v3", "s_lshl_b32 s53, s50, 7", "v_add_u32 v230, s53, v230",
         "v_mul_u32_u24 v2, 1280, v2", "v_lshl_add_u32 v228, v3, 3, v2", "v_and_b32 v227, 1, v3", "v_lshl_add_u32 v2, v227, 5, v2", "v_lshrrev_b32 v3, 1, v3", "v_lshl_add_u32 v227, v3, 4, v2"]
def g2_xdma():
    return [[f"s_add_u32 m0, s11, {4096*n}", (f"buffer_load_dwordx4 v229, {WSR}, s10 offen{SC} lds", "xi")] + ([f"s_add_u32 s10, s10, {32*PT_}"] if n < 2 else []) for n in range(3)]
def g2_gloads(): return [[f"buffer_load_dwordx4 {vr(GB[T],4)}, v230, {WSR}, s12 offen offset:{64*T}{SC}"] for T in range(3)] + \
                        [[f"buffer_load_dwordx4 {vr(IC+4*T,4)}, v230, {WSR}, s15 offen offset:{64*T}{SC}"] for T in range(3)]
def g2_xreads(): return [f"ds_read_b64_tr_b16 {vr(XR+6*h+2*T,2)}, v231 offset:{2048*T+64*h}" for h in range(2) for T in range(3)]
def g2_xform():
    L = []
    for h, X in enumerate((XE, XL)):
        for i in range(12):
            r = XR + 6*h + i // 2
            L += [f"v_lshlrev_b32 v{X+i}, 16, v{r}" if i % 2 == 0 else f"v_and_b32 v{X+i}, 0xffff0000, v{r}", f"v_mul_f32 v{X+i}, v{X+i}, v{IC+i}"]
    return L
gb = lambda i: GB[i // 4] + i % 4

LJ = 2; S_ = S
GE = [int(x) for x in O("ge", "3,8").split(",") if x]
GLs = [int(x) for x in O("gl", "0,2,5").split(",")]
GATES = {}
for k, g in enumerate(GE): GATES[g] = f"a0_{(GE[k+1] if k + 1 < len(GE) else 20) - 1}"
for k, g in enumerate(GLs): GATES[20 + g] = f"a1_{(GLs[k+1] if k + 1 < len(GLs) else 20) - 1}"
LDONE = [0]; WDONE = [0]
G1B = lambda n: n % 12 in (3, 7, 11)
G1S = lambda n: n % 12 == 10
G1K = lambda n: n % 12 in (3, 7, 10, 11)
gate_of = lambda G, ks: max([x for x in G if x <= ks], default=0)
def smalls(sc, groups, p, step=1):
    for g in groups: p = sc.vm(g, p, p + 14, lambda n: G1K(n) and not sc.m[n])[1] + step
    return p
def passA(a, npre, head=None, wrest=None, extra=None):
    sc = h1_sched(0, GATES)
    LQ = O("lq", 160); LI = LQ - O("lql", 40)
    q = sc.chain(xflags(219, 1, 238, 55), LI - 30, LI - 2, keep=G1K)
    smalls(sc, [PI(219, 17, 240)], LI)
    p = sc.at(PC(219, 17, 240, "Lx"), LQ) + 1
    W0 = O("wa0", 70)
    q3 = sc.chain(["v_min_u32 v243, 11, v1", "v_lshlrev_b32 v243, 8, v243", f"s_mul_i32 s58, s3, 24\ns_lshr_b32 s57, s{S_J2}, 2", f"s_add_u32 s58, s58, s57\ns_lshl_b32 s58, s58, 7", f"s_add_u32 s58, s58, {FP3}"], max(0, W0 - 56), W0 - 46, keep=G1K)
    q3 = smalls(sc, [PI(243, 58, 244)], q3 + 1)
    n = sc.at(PC(243, 58, 244), max(W0, q3 + 30)) + 1
    wl = groups_of(h2_wloads())
    bl = h1_biasloads()
    smalls(sc, [[bl[0], small(bl[1])]] + [[small(x)] for x in bl[2:]], O("lb", LQ + 4), 6)
    lfree = extra(sc) if extra else (lambda ks: 0)
    S = [[(h1_dma(0, ks), 0, 12 * (gate_of(GE, ks) - 1) - 40 + ks / 100) for ks in range(npre, 20)],
         [(h1_dma(1, ks), max(p, lfree(ks)), 190 + 12 * (gate_of(GLs, ks) - 1) + ks / 100) for ks in range(20)], [(g, n, 300) for g in wl[:12]], wrest or []]
    pos = sc.streams(S, O("pa", 4.0), 0, 238, lambda n: G1B(n) or (n < O("pad", 0) and G1S(n)), wt=[1, 1, 1, O("ww", 1.5)])
    assert len(pos[0]) == len(S[0]) and len(pos[3]) == len(S[3]), [(len(x), len(y)) for x, y in zip(pos, S)]
    for ks, x in zip(range(npre, 20), pos[0]): assert x <= 12 * (gate_of(GE, ks) - 1), (ks, x)
    if wrest: print("   weights: slack", [int(y[2] - x) for x, y in zip(pos[3], wrest)][2::3], file=sys.stderr); assert all(x < y[2] + O("lead", 50) - 10 for x, y in zip(pos[3], wrest))
    assert len(pos[1]) >= (GLs[1] if len(GLs) > 1 else 20)
    LDONE[0] = len(pos[1]); WDONE[0] = len(pos[2])
    pre, rd = h1_st_reads(0)
    q = max(12 * (GE[-1] - 1) + 1 if GE else 1, O("sa", 20), sc.wdone if hasattr(sc, "wdone") else 0)
    q = sc.chain(rd, q, q + 4, 1, keep=G1B)
    q = sc.chain(h1_st_list(0, 0, TAG), q + 6, q + O("sl", 70), keep=G1K)
    print(f"pass A: early dma {pos[0]}, wd {WDONE[0]}, stats at {q}, late slots issued {LDONE[0]}, overflow {sc.over()}", file=sys.stderr)
    for ks in range(20): fstamp(sc, 12 * ks, f"a{ks}")
    if "gbar" in OPT:
        if head: head(a); head = None
        lab[0] += 1; L = f"L_gb{lab[0]}"
        a(f"""
        s_waitcnt vmcnt(0)
        s_barrier
        v_mov_b32 v254, 0
        v_mov_b32 v255, 1
        s_cmp_eq_u32 s3, 0
        s_cbranch_scc0 {L}
        s_mov_b64 exec, 1
        global_atomic_add v254, v255, {sp(DBG)} sc1
        s_mov_b64 exec, -1
        {L}:
        global_load_dword v255, v254, {sp(DBG)} sc1
        s_waitcnt vmcnt(0)
        v_cmp_ne_u32 vcc, 256, v255
        s_cbranch_vccz {L}x
        s_sleep 2
        s_branch {L}
        {L}x:
        """)
        stamp(a, "gb")
    a.waitv(f"a0_{(GE[0] if GE else 20) - 1}")
    a("s_waitcnt lgkmcnt(0)\ns_barrier")
    put(a, h1_reads(0))
    if head: head(a)
    h1_pass(a, 0, sc)

def rest(a, X):
    stamp(a, "pB")
    sc = h1_sched(1, GATES)
    wl = groups_of(h2_wloads())
    def stslow(h):
        def f(a):
            a.label(f"L_st{X}{h}_slow"); a.reset()
            put(a, h1_stloads()); put(a, h1_stcheck(TAG))
            a(f"v_cmp_ne_u32 vcc, 0, v3\ns_cbranch_vccz L_st{X}{h}_back\ns_cmp_eq_u32 s{BUDGET}, 0\ns_cbranch_scc1 L_st{X}{h}_back\ns_sub_u32 s{BUDGET}, s{BUDGET}, 1\ns_branch L_st{X}{h}_slow")
        slow2.append(f)
        def chk(a):
            a(f"v_cmp_ne_u32 vcc, 0, v3\ns_cbranch_vccnz L_st{X}{h}_slow"); a.label(f"L_st{X}{h}_back")
        return costed(chk, "v", 1)
    EA = O("ea", 44)
    smalls(sc, [[small(x)] for x in h1_stloads()], max(0, EA - 44))
    p = sc.chain(h1_stcheck(TAG) + [stslow(0)], EA - 10, EA - 2, keep=G1K)
    p = sc.force(p + 1, [costed(lambda a: (stamp(a, "eA"), h1_epi(a, 0), a(f"s_add_u32 s{S_STL}, s{S_STL}, {1024*16}\ns_lshl_b32 s76, s{S_I}, 4\ns_add_u32 s76, s76, s{S_J}")), "v", 2)])
    pf = sc.at(BAR("hst0", then=lambda a: wflag(a, 76, FHE), c=3), p + O("ph", 40))
    SB = O("sb", 228); HC = O("hc", 190)
    smalls(sc, [[small(x)] for x in h1_stloads()], SB - 48)
    smalls(sc, [PI(246, 17, 247)], HC - 36)
    q2 = sc.at(PC(246, 17, 247, "Hseen"), HC)
    S = [[(h1_dma(1, ks), 0, 12 * (gate_of(GLs, ks) - 1) - 40 + ks / 100) for ks in range(LDONE[0], 20)],
         [(wl[n], 12 * ((n - 12) // 3 + 1) if n >= 12 else 0, 200 + n) for n in range(WDONE[0], 60)],
         [([h2_hload(n)], q2 + 1, O("hd", 180) + 5 * n) for n in range(12)]]
    pos = sc.streams(S, O("pb", 4.0), 0, 238, lambda n: G1B(n) or (n >= O("pbd", 240) and G1S(n)))
    assert len(pos[0]) == len(S[0])
    for ks, x in zip(range(LDONE[0], 20), pos[0]): assert x <= 12 * (gate_of(GLs, ks) - 1), (ks, x)
    nw = WDONE[0] + len(pos[1]); nh = len(pos[2])
    g = max(k for k in GATES if k >= 20)
    pre, rd = h1_st_reads(1)
    q = sc.chain(pre, 0, 10, keep=G1K)
    q = max(q, 12 * (g - 21) + 1, p + 1)
    q = sc.chain(rd, q, q + 4, 1, keep=G1B)
    q = sc.chain(h1_st_list(1, 0, TAG), q + 6, q + O("sl", 70), keep=G1K)
    assert q + 30 < SB - 48, q
    q3 = sc.chain(h2_hsetup(S_I2) + hflags(FHE), q + 1, HC - 38, keep=G1K)
    assert q3 < HC - 36, q3
    sc.chain(h1_stcheck(TAG) + [stslow(1)], SB, 238)
    print(f"pass B: epilogue A at {p}, FHE at {pf}, stats B done {q}, wd {nw}, h {nh}, overflow {sc.over()}", file=sys.stderr)
    for ks in range(20): fstamp(sc, 12 * ks, f"b{ks}")
    h1_pass(a, 1, sc)
    stamp(a, "g1done")
    for n in range(nh, 12): a(h2_hload(n))
    for g_ in wl[nw:]: put(a, g_)
    h1_epi(a, 1)
    for n in range(12, Q2NH): a(h2_hload(n))
    stamp(a, "g1epi")
    sc = Gaps(240)
    srd(a, 40, OUT, S_ * D * 2)
    PB1 = O("pb1", 40)
    sc.force(PB1, [BAR("hst1", then=lambda a: wflag(a, 76, FHL), c=3)])
    LC = O("lc", 110)
    sc.vm(PI(246, 17, 247), LC - O("ll", 30))
    p = sc.at(PC(246, 17, 247, "Lseen"), LC) + 1
    QS = O("qs", 46)
    pos = sc.streams([[([h2_hload(n)], max(5 * (n - Q2NH) + 5, p if n >= 24 else 0), 5 * n) for n in range(Q2NH, 48)], [(g, max(QS, PB1) + 1, 100) for g in g2_xdma()]], O("p2", 3.0))
    assert len(pos[0]) == 48 - Q2NH and all(x < 5 * n for x, n in zip(pos[0], range(Q2NH, 48))), pos
    wr = lambda sg: [f"ds_write_b128 v{220+sg}, {vr(Q2ACC[sg&1]+4*T,4)} offset:{T*1024}" for T in range(5)]
    assert PB1 < 62
    sc.chain(wr(0), 64, 76, 2)
    q = sc.chain(g2_setup(S_I2, S_J2) + hflags(FHL), 0, QS - 1)
    pg = q + 1
    for x in g2_gloads(): pg = sc.vm([small(x[0])], pg)[0] + 1
    q = sc.at(BAR("xi"), max(pos[1][-1], pg) + O("xw", 40))
    q = sc.chain(g2_xreads(), q, q + 8)
    qx = sc.chain(g2_xform(), q + 4, q + 36)
    q = sc.chain(wr(1), 123, 135, 2)
    q = sc.at("s_waitcnt lgkmcnt(0)\ns_barrier", max(q + O("g2d", 8), qx + 1))
    q = sc.chain([f"ds_read_b128 {vr(PT+12*sr+4*T,4)}, v224 offset:{5120*sr+1024*T}" for sr in range(4) for T in range(3)], q, q + 14)
    add = lambda x, y: [f"v_add_f32 v{x+i}, v{x+i}, v{y+i}" for i in range(12)]
    q = sc.chain(add(PT, PT + 12) + add(PT + 24, PT + 36) + add(PT, PT + 24), q + 2, q + 26)
    ho = h2_out(XE, PT + 12, 13)
    q = sc.chain([f"v_fma_f32 v{XE+i}, v{PT+i}, v{gb(i)}, v{XE+i}" for i in range(12)] + ho, q, q + 18)
    qe = q
    q = sc.chain(wr(2), 183, 195, 2)
    q = sc.at("s_waitcnt lgkmcnt(0)\ns_barrier", q + O("g2d", 8))
    q = sc.chain([f"ds_read_b128 {vr(PT+24+12*k+4*T,4)}, v225 offset:{10240*k+1024*T}" for k in range(2) for T in range(3)], max(q, qe), max(q, qe) + 8) + 7
    tail = add(PT + 24, PT + 36) + [f"v_fma_f32 v{XL+i}, v{PT+24+i}, v{gb(i)}, v{XL+i}" for i in range(12)]
    while tail and any(sc.extra(n, tail[0]) == 0 for n in range(q, 240)): q = sc.chain([tail.pop(0)], q, 239)
    print(f"gemm2: residual formed at {qx}, early rows stored at {qe}, left over {len(tail)}, overflow {sc.over()}", file=sys.stderr)
    for sg in range(4):
        stamp(a, f"h{sg}")
        for ks in range(12):
            n = 12 * sg + ks
            for T in range(5):
                ac = Q2ACC[sg & 1] + 4*T
                a(f"v_mfma_f32_16x16x32_bf16 {vr(ac,4)}, {wdreg(5*ks+T)}, {vr(Q2H+4*(n%Q2NH),4)}, {vr(ac,4) if ks else '0'}")
                sc.emit(a, 5*n + T)
    stamp(a, "h4")
    put(a, tail)
    put(a, wr(3))
    a("s_waitcnt lgkmcnt(0)\ns_barrier")
    put(a, [f"ds_read_b128 {vr(PT+12*k+4*T,4)}, v226 offset:{10240*k+1024*T}" for k in range(2) for T in range(3)])
    for i in range(0, 12, 2): a(f"v_pk_add_f32 {vr(PT+i,2)}, {vr(PT+i,2)}, {vr(PT+12+i,2)}")
    for i in range(0, 12, 2): a(f"v_pk_fma_f32 {vr(XL+i,2)}, {vr(PT+i,2)}, {vr(gb(i),2)}, {vr(XL+i,2)}")
    put(a, h2_out(XL, PT, 14))
    if "xcct" in OPT and X == "c":
        a(f"""
        s_cmp_eq_u32 s2, 8
        s_cbranch_scc0 L_xt_x
        v_mov_b32 v2, 0
        global_load_dword v3, v2, {sp(DBG)} sc1
        s_getreg_b32 s50, hwreg(HW_REG_XCC_ID, 0, 4)
        s_add_u32 s50, s50, 1
        s_waitcnt vmcnt(0)
        v_readfirstlane_b32 s51, v3
        s_cmp_eq_u32 s50, s51
        s_cbranch_scc1 L_xt_x
        s_memrealtime s[52:53]
        L_xt:
        s_sleep 4
        s_memrealtime s[50:51]
        s_waitcnt lgkmcnt(0)
        s_sub_u32 s50, s50, s52
        s_cmp_lt_u32 s50, 2000
        s_cbranch_scc1 L_xt
        L_xt_x:
        """)
    if "enc" in OPT:
        a("s_waitcnt vmcnt(0)"); stamp(a, "end")
        if OPT.get("encp", "c") == X:
            k = SNAMES.index(OPT["enc"])
            if "encw" in OPT: a(f"s_cmp_eq_u32 s2, {OPT['encw']}\ns_cbranch_scc0 L_enc_x{X}")
            a(f"""
            L_enc{X}:
            s_sleep 4
            s_memrealtime s[50:51]
            s_waitcnt lgkmcnt(0)
            s_sub_u32 s50, s50, s{78+2*k}
            s_cmp_lt_u32 s50, 3000
            s_cbranch_scc1 L_enc{X}
            L_enc_x{X}:
            """)
    elif STAMPS:
        a("s_waitcnt vmcnt(0)")
        stamp(a, "end")
        a("s_waitcnt lgkmcnt(0)")
        a(f"s_lshl_b32 s50, s2, 2\ns_add_u32 s50, s50, s3\ns_lshl_b32 s50, s50, 6\ns_add_u32 s50, s50, {STAMP}\nv_mov_b32 v2, 0")
        for n in range(12): a(f"v_mov_b32 v{8+n}, s{78+2*n}")
        a("s_mov_b64 exec, 1")
        for n in range(3): a(f"buffer_store_dwordx4 v[{8+4*n}:{11+4*n}], v2, {WSR}, s50 offen offset:{16*n}")
        a("s_mov_b64 exec, -1")

    a("s_endpgm")

def body(a):
    def eload(a):
        srd(a, 36, WS, WS_BYTES)
        a(f"v_mov_b32 v2, 0\ns_mov_b32 s57, {EPOCH}\nbuffer_load_dword v246, v2, {WSR}, s57 offen sc1")
    a(f"""
    s_mov_b32 s{BUDGET}, {0 if "xnopoll" in OPT else 400000}
    s_and_b32 s50, s2, 7
    s_lshr_b32 s51, s2, 3              ; slot
    s_lshr_b32 s52, s50, {4-LJ}
    s_lshl_b32 s52, s52, {5-LJ}
    s_lshr_b32 s53, s51, {LJ}
    s_add_u32 s{S_I}, s52, s53
    s_lshl_b32 s53, s53, 3              ; k rotation by row tile (speed only: spreads first touches of the weights)
    s_mov_b32 s54, {hex(sum(int(x) << (8*k) for k, x in enumerate(O("rot", "0,0,0,0,0,16,4,0").split(",")[:4])))}
    s_mov_b32 s55, {hex(sum(int(x) << (8*k) for k, x in enumerate(O("rot", "0,0,0,0,0,16,4,0").split(",")[4:])))}
    s_lshr_b64 s[54:55], s[54:55], s53
    s_and_b32 s{R1}, s54, 255
    s_and_b32 s52, s50, {(1 << (4-LJ)) - 1}
    s_lshl_b32 s52, s52, {LJ}
    s_and_b32 s53, s51, {(1 << LJ) - 1}
    s_add_u32 s{S_J}, s52, s53
    s_and_b32 s{S_J2}, s51, 7
    s_lshr_b32 s53, s51, 3
    s_lshl_b32 s52, s50, 2
    s_add_u32 s{S_I2}, s52, s53
    s_mul_i32 s{S_CU}, s50, 20
    s_add_u32 s{S_CU}, s{S_CU}, s51
    s_sub_u32 s{S_PU}, s2, 160
    s_lshl_b32 s52, s50, 1
    s_cmp_ge_u32 s51, 10
    s_addc_u32 s52, s52, 0
    s_cmp_ge_u32 s51, 10
    s_cselect_b32 s53, 10, 0
    s_sub_u32 s53, s51, s53
    s_lshl_b32 s53, s53, 4
    s_add_u32 s76, s52, s53
    s_lshl_b32 s58, s{S_CU}, 2
    s_add_u32 s58, s58, s3
    v_lshlrev_b32 v248, 4, v1
    """)
    def ptrs(a):
        a("s_waitcnt lgkmcnt(0)")
        stamp(a, "start")
        a("s_cmp_ge_u32 s2, 160\ns_cbranch_scc1 L_prep")
        if "xnoconv" in OPT: a("s_branch L_end")
    def gettag():
        a(f"""
        v_readfirstlane_b32 s{TAG}, v246
        s_mul_i32 s{TAG}, s{TAG}, 0x9E3779B1
        s_add_u32 s{TAG}, s{TAG}, 0x7F4A7C15
        """)
    QM, KM = O("qm", "late"), O("km", "mid")
    WV = 224
    def wdma(n, slot=None, V=WV, each=False):
        L = wdir_dma(n, SL[n % 5] if slot is None else slot, V, each=each)
        return [((x[0].replace(" lds", " nt lds"), x[1]) if isinstance(x, tuple) and n < O("wnt", 0) else x) for x in L]
    wrd = lambda n: wdir_reads2(n, SL[n % 5], WV)
    NB = O("nb", 4); N2 = O("n2", 0); NC = O("nc", 15)
    phaseA_loads(a, 76, ptrs, eload)
    if QM == "first": phaseA_qload(a)
    if KM == "first": kload(a)
    a("v_mov_b32 v243, v3")
    PK, PQ, PH = O("prk", ""), O("prq", ""), O("prh", "")
    if PK == "r1": preT(a, KVT, True, 238)
    if PQ == "r1": preT(a, QT, False, 239)
    if PH == "r1": preH(a, 237)
    wdir_setup2(a, S_J, WV)
    kzero(a, 223)
    esetup(a)
    conv_addr(a)
    put(a, h1_vsetup(S_J, S_J2) + xflags(219, 0)[:-1])
    a("v_mov_b32 v3, v243")
    if QM == "late": phaseA_qload(a)
    if KM == "late": kload(a)
    if PK == "late": preT(a, KVT, True, 238, 8)
    if PQ == "late": preT(a, QT, False, 239, 8)
    phaseA_read(a)
    stamp(a, "kvland")
    if QM == "mid": phaseA_qload(a)
    if PQ == "mid": preT(a, QT, False, 239)
    if KM == "mid": kload(a)
    phaseA_compute(a)
    stamp(a, "Acomp")
    if KM == "post": kload(a)
    if QM != "mid":
        a.waitv("q"); a("s_barrier")
        phaseA_q(a, 184)
    if "kcl" not in OPT: kcopies(a, 223)
    signal(a, 76, FA, gettag, tag="kvst")
    stamp(a, "Asig")
    if QM == "mid": phaseA_q(a, 184)
    if PH == "sig": preH(a, 237)
    for n in range(NB): put(a, wdma(n))
    if "kcl" in OPT: kcopies(a, 223)
    if "xcct" in OPT:
        a(f"s_cmp_eq_u32 s2, 0\ns_cbranch_scc0 L_xt0\ns_getreg_b32 s50, hwreg(HW_REG_XCC_ID, 0, 4)\ns_add_u32 s50, s50, 1\nv_mov_b32 v2, 0\nv_mov_b32 v3, s50")
        a(f"global_store_dword v2, v3, {sp(DBG)} sc1", cond=True); a.label("L_xt0")
    conv_dfrag(a)
    a(f"v_mov_b32 v4, v{AA}\nv_mov_b32 v5, v{AF}")
    if NB: a.waitv(f"w{NB-1}")
    a.waitv("qst"); a("s_barrier"); wflag(a, 76, FT)
    stamp(a, "kcop")
    for n in range(NB): put(a, wrd(n))
    poll(a, 242, 59)
    stamp(a, "kvseen")
    xload(a)
    C2 = O("c2", 10); CL = O("cl", 40); PE = O("pe", 95); PF = O("pf", 45)
    nr = nd = NB
    if C2 - CL < 0: poll_issue(a, 240, 69, 243)
    if NB + N2 > 5: a("s_waitcnt lgkmcnt(0)\ns_barrier")
    while nd < min(NC, nr + N2): put(a, wdma(nd)); nd += 1
    sc = c2_sched(); N = sc.N
    if C2 - CL >= 0: sc.vm(PI(240, 69, 243), C2 - CL)
    p2 = sc.at(costed(lambda a: (poll_check(a, 240, 69, 243), a.waitl(f"wr{NB-1}"), a("s_barrier"), stamp(a, "qseen")), "v", 2), C2)
    ml = f"buffer_load_dwordx2 v[{ET}:{ET+1}], v253, {WSR}, s55 offen sc1"
    sc.vm([small(ml)], PE - O("ml", 45))
    def mslow(a):
        a.label("L_m_slow"); a.reset()
        a(ml)
        a(f"v_cmp_ne_u32 vcc, s{TAG}, v{ET+1}\ns_cbranch_vccz L_m_back\ns_cmp_eq_u32 s{BUDGET}, 0\ns_cbranch_scc1 L_m_back\ns_sub_u32 s{BUDGET}, s{BUDGET}, 1\ns_sleep 1\ns_branch L_m_slow")
    slow2.append(mslow)
    def mcheck(a):
        a(f"v_cmp_ne_u32 vcc, s{TAG}, v{ET+1}\ns_cbranch_vccnz L_m_slow"); a.label("L_m_back")
        a(f"""
        v_mov_b32_dpp v252, v{ET} quad_perm:[3,3,3,3] row_mask:0xf bank_mask:0xf
        v_mul_f32_dpp v251, v{ET}, v252 quad_perm:[2,2,2,2] row_mask:0xf bank_mask:0xf
        v_mul_f32_dpp v250, v{ET}, v251 quad_perm:[1,1,1,1] row_mask:0xf bank_mask:0xf
        v_mul_f32_dpp v251, v{ET}, v251 quad_perm:[0,0,0,0] row_mask:0xf bank_mask:0xf
        """)
    sc.force(PE - 12, [BAR("st1")])
    sc.chain(streads(0), PE - 12, PE - 4, 1)
    sc.force(PE, [costed(lambda a: (mcheck(a), stamp(a, "e1"), pre_pk(a), fin_pk(a, 0), stamp(a, "e1done")), "v", 2)])
    sc.force(PE + PF, [BAR("a1st0", then=lambda a: (wflag(a, S_CU, FXE), stamp(a, "fxe")), c=3)])
    XC = O("xc", 250)
    sc.vm(PI(219, 17, 223), XC - O("xl", 30))
    XC = sc.at(PC(219, 17, 223, "xseen"), XC)
    pfp = sc.vm(PI(241, 60, 243), PE + 10)[0]
    sl = sc.chain(streads(1), PE + 2, PE + 14, 1)
    LEAD = O("lead", 50); W0 = O("w0", 102); W1 = O("w1", 270); bp = {}; sfree = [0] * 5; q = 0
    for n in range(nr, NC):
        p = max(q + 1, W0 + (W1 - W0) * (n - nr) // max(1, NC - 1 - nr))
        if PE - 13 <= p <= PE + 1: p = PE + 2
        bp[n] = sc.at(BAR(f"w{n}", f"l:wr{n-1}"), p, 2)
        q = sc.chain(wrd(n), bp[n], bp[n] + 7, 1)
        sfree[(n - 1) % 5] = bp[n]
    pw = sc.at(BAR(f"l:wr{NC-1}"), q + 4); sfree[(NC - 1) % 5] = pw
    pre5 = nr + 5
    SW = [(g, max(p2 + 1, O("d0", 30)) if n < pre5 else bp[max(n - 4, nr)] + 1, bp[n] - LEAD) for n in range(nd, NC) for g in groups_of(wdma(n, each=True))]
    erel = lambda ks: max([XC + 1] + [sfree[k] + 1 for k in range(5) if SL[k] < 4096 * (ks + 1) and 4096 * ks < SL[k] + WSLOT2])
    S = [SW, [(g, p2 + 1, PE - 70) for g in st1dma() + qloads(0)], [(g, PE + 1, PE + 20) for g in qloads(1)],
         [(h1_dma(0, ks), erel(ks), N - 60 + (12 * (gate_of(GE, ks) - 1) if ks >= GE[0] else 0) + ks / 100) for ks in range(O("npre", 15))]]
    pos = sc.streams(S, O("pc", 4.0), 0, N - 2, wt=[O("ww", 1.5), 1, 1, 1])
    assert all(len(x) == len(y) for x, y in zip(pos[:3], S)), [(len(x), len(y)) for x, y in zip(pos, S)]
    assert pos[1][-1] < PE - 14
    log = [(n, bp[n], bp[n] - pos[0][3 * (n - nd) + 2]) for n in range(nd, NC)]
    assert all(x[2] > 0 for x in log), log
    npre = len(pos[3]); ql = pos[2][-1]
    b = Asm(); h1_ssetup(b, S_I, S_J); put(b, [f"s_mov_b32 s17, {FLG}"])
    SS = [re.sub(r"\bs50\b", "s53", re.sub(r"\bs35\b", "s52", re.sub(r"\bs62\b", "s16", x.text))) for k, x in b.items if k == "ins"]
    SS = SS[-1:] + SS[:-1] + [y for x in h2_wsetup(S_J2) for y in x.split("\n")]
    q = sc.chain(SS, 1, XC - 40, 1)
    pl = sc.chain(pre_list(), max(ql + 50, sl + 4), O("pld", 270))
    pi = sc.at(costed(lambda a: (poll_check(a, 241, 60, 243), a("s_barrier")), "v", 2), pfp + 50)
    b = Asm(); h1_icb(b); IL = [x.text.replace("s50", "s56") for k, x in b.items if k == "ins"]
    pi = sc.chain(IL[:2] + [IL[2] + "\n" + IL[3]] + IL[4:6], pi + 1, pi + 8)
    for x in IL[6:]: pi = sc.vm([small(x)], pi + 1)[0]
    print(f"conv: weights {log} done {pw}; stats/q {pos[1]}; late pre {pl}; x seen {XC}; early {pos[3]}; overflow {sc.over()}", file=sys.stderr)
    for c in range(8): fstamp(sc, c2_start(1, c), f"c{c}")
    a.waitv("xdma")
    stamp(a, "cstart")
    for l in c2_loads(0, 0): a(l)
    seen = set()
    for n, (part, c, u, w, dterm) in enumerate(C2M):
        t = u + w; bb = c & 1
        A = vr(DFR, 4) if dterm else vr(AB[bb] + 4*u, 4)
        a(f"v_mfma_f32_16x16x32_bf16 {vr(ACC+4*t,4)}, {A}, {vr(FB[bb]+4*w,4)}, {vr(ACC + 4*t, 4) if t in seen else '0'}")
        seen.add(t)
        sc.emit(a, n)
    stamp(a, "cdone")
    order = sorted(range(4), key=lambda t: max(n for n, m in enumerate(C2M) if m[2] + m[3] == 4 + t))
    NP2 = max(npre, min(GE[0] if GE else 20, 15))
    for ks in range(npre, NP2): put(a, h1_dma(0, ks))
    V2 = 200; WB = 163840 - WSLOT2 * (20 - NC)
    tb = {n: O("t0", 90) + O("tp", 18) * (n - NC) for n in range(NC, 21)}
    wrest = [(g, 0, tb[n] - LEAD) for n in range(NC, 20) for g in groups_of(wdma(n, WB + WSLOT2 * (n - NC), V2, True))]
    def conv_extra(sc):
        q = 0; fr = {}
        for n in range(NC, 21):
            if NC == 20: break
            q = sc.at(BAR(*([f"w{n}"] if n < 20 else []), *([f"l:wr{n-1}"] if n > NC else [])), max(q + 1, tb[n]), 2); fr[n - 1] = q + 1
            if n < 20:
                q = sc.chain(wdir_reads2(n, WSLOT2 * (n - NC), V2), q, q + 10, 1, keep=G1B)
                assert q + 6 < 12 * n, (n, q)
        sc.at(BAR("a1st1", then=lambda a: wflag(a, S_CU, FXL), c=3), O("pl", 35))
        return lambda ks: max([0] + [fr[n] for n in range(NC, 20) if WB + WSLOT2 * (n - NC) < IMG + 4096 * (ks + 1) and IMG + 4096 * ks < WB + WSLOT2 * (n - NC + 1)])
    def head(a):
        fin_pk(a, 1, order)
        if NC < 20:
            for k in range(3): a(f"v_mov_b32 v{200+k}, v{WV+k}")
            for k in (3, 4): a(f"v_add_u32 v{200+k}, {WB}, v{WV+k}")
    passA(a, NP2, head, wrest, conv_extra)
    rest(a, 'c')
    a.label("L_prep"); a.reset()
    if "xnoprep" in OPT: a("s_branch L_end")
    eload(a)
    a(f"""
    s_lshr_b32 s51, s2, 3
    s_cmp_eq_u32 s51, 31
    s_cbranch_scc0 L_nopf
    s_getpc_b64 s[40:41]
    L_pc:
    s_sub_u32 s40, s40, L_pc-{NAME}_kernel
    s_subb_u32 s41, s41, 0
    s_mov_b32 s42, L_code_end-{NAME}_kernel
    s_mov_b32 s43, 0x20000
    v_lshlrev_b32 v2, 7, v0
    s_mov_b32 s52, 0x8000
    buffer_load_dword v250, v2, s[40:43], 0 offen
    buffer_load_dword v251, v2, s[40:43], s52 offen
    s_mov_b32 s52, 0x10000
    buffer_load_dword v252, v2, s[40:43], s52 offen
    L_nopf:
    """, nowait=True)
    a.reset()
    PWN = O("pwn", 4); PWC = O("pwc", ""); V = 230
    slot = lambda m: WLB + (m % 8) * WSLOT2
    def pw(a):
        wdir_setup2(a, S_J, V)
        for n in range(PWN): put(a, wdir_dma(n, slot(n), V))
    a("s_mov_b32 s76, 0")
    WDE = "wdl" not in OPT
    a(f"""
    s_add_u32 s50, s{S_PU}, 10
    s_cmp_lt_u32 s{S_PU}, 30
    s_cselect_b32 s77, s{S_PU}, s50
    s_sub_u32 s50, s{S_PU}, 10
    s_cmp_lt_u32 s{S_PU}, 50
    s_cselect_b32 s50, s50, s{S_PU}          ; 30..39, 50..63
    s_cmp_lt_u32 s{S_PU}, 40
    s_cselect_b32 s77, s77, s50
    s_cmp_ge_u32 s{S_PU}, 60
    s_cbranch_scc1 L_p_q
    """)
    mod_cloads(a, 80)
    if "modlate" not in OPT: mod_loads(a, 77, 80)
    mod_silu(a, 80, 180)
    if "n" in PWC:
        a(f"s_cmp_ge_u32 s{S_PU}, 40\ns_cbranch_scc0 L_p_m\ns_mov_b32 s76, 1")
        b = Asm(); pw(b)
        for k, x in b.items: a(x.text, cond=x.kind == "vmem")
        a.label("L_p_m")
    if "nwait" in OPT:
        a(f"s_cmp_ge_u32 s{S_PU}, 40\ns_cbranch_scc0 L_p_nw")
        gettag()
        poll_lines(a, f"s_mov_b32 s52, {FT}", 16)
        a.label("L_p_nw")
    if "modlate" in OPT: mod_loads(a, 77, 80)
    if WDE: wdh_loads(a)
    stamp(a, "kvland")
    mod_finish(a, 77, 80, 180, 0)
    stamp(a, "Acomp")
    gettag()
    mod_finish2(a, 77, 80, 180, 0, TAG)
    signal(a, 77, FP2)
    a("s_branch L_p_w")
    a.label("L_p_q"); a.reset()
    a(f"""
    s_and_b32 s50, s2, 7
    s_lshl_b32 s50, s50, 2
    s_lshr_b32 s52, s2, 3
    s_sub_u32 s52, s52, 28
    s_add_u32 s50, s50, s52
    s_sub_u32 s77, s77, 28
    s_cmp_ge_u32 s{S_PU}, 64
    s_cselect_b32 s77, s50, s77
    """)
    if "q" in PWC: a("s_mov_b32 s76, 1"); pw(a)
    if "qnt" not in OPT: phases.NT = ""
    st1_loads(a, 77, 80)
    phases.NT = " nt"
    if WDE: wdh_loads(a)
    stamp(a, "kvland")
    st1_finish(a, 77, 80, 180)
    stamp(a, "Acomp")
    signal(a, 77, FQ, gettag)
    a.label("L_p_w"); a.reset()
    stamp(a, "Asig")
    if PH: preH(a, 245)
    if not WDE: wdh_loads(a); a.waitv("wst"); a("s_barrier")
    wdh_finish(a, 16)
    a("s_cmp_eq_u32 s76, 0\ns_cbranch_scc0 L_p_w2")
    b = Asm(); pw(b)
    for k, x in b.items: a(x.text, cond=x.kind == "vmem")
    a.label("L_p_w2")
    a(f"v_add_u32 v{V+3}, {WLB}, v{V+3}\nv_add_u32 v{V+4}, {WLB}, v{V+4}\nv_add_u32 v{V+8}, {4*WSLOT2}, v{V+3}\nv_add_u32 v{V+9}, {4*WSLOT2}, v{V+4}")
    for n in range(PWN, 6): put(a, wdir_dma(n, slot(n), V))
    h1_ssetup(a, S_I, S_J)
    put(a, h1_vsetup(S_J, S_J2) + xflags(219, 0) + h2_wsetup(S_J2))
    nd = 6
    for n in range(0, 20, 2):
        if n + 1 < PWN: a(f"s_waitcnt vmcnt({3 * (nd - n - 2)})")
        else: a.waitv(f"w{n+1}")
        if n == O("p3", 2): a.waitv("wout")
        if n >= 2: a.waitl(f"wr{n-1}")
        a("s_barrier")
        if n == O("p3", 2):
            wflag(a, S_PU, FP3, 2)
        for m in (n, n + 1): put(a, wdir_reads2(m, (m % 4) * WSLOT2, V + (5 if m % 8 >= 4 else 0)))
        for _ in range(2):
            if nd < 20: put(a, wdir_dma(nd, slot(nd), V)); nd += 1
    a("s_waitcnt lgkmcnt(0)\ns_barrier")
    stamp(a, "kcop")
    stamp(a, "kvseen")
    a.reset()
    a("s_cmp_eq_u32 s2, 255\ns_cbranch_scc0 L_noepoch")
    a(f"""
    v_lshlrev_b32 v5, 7, v0
    v_add_u32 v6, {FP2-FA-196*128}, v5
    v_cmp_lt_u32 vcc, 195, v0
    v_cndmask_b32 v5, v5, v6, vcc
    s_mov_b32 s52, {FA}
    """)
    poll(a, 5, 52)
    a("s_barrier")
    a(f"s_cmp_eq_u32 s3, 0\ns_cbranch_scc0 L_noepoch\ns_mov_b32 s50, {EPOCH}\nv_mov_b32 v2, 0\nv_mov_b32 v3, s{TAG}\ns_mov_b64 exec, 1")
    a(f"buffer_store_dword v3, v2, {WSR}, s50 offen sc1", cond=True)
    a("s_mov_b64 exec, -1")
    a.label("L_noepoch")
    a(f"s_cmp_eq_u32 s{S_I}, 7\ns_cbranch_scc0 L_nobias")
    poll_lines(a, f"s_mov_b32 s52, {FP2+30*128}", 20)
    put(a, g1_table_load())
    g1_bias(a, 0, 20, 40)
    h1_biasstore(a)
    signal(a, S_J, FB_)
    a.label("L_nobias"); a.reset()
    stamp(a, "cdone")
    a(f"""
    v_min_u32 v5, 19, v1
    v_lshlrev_b32 v5, 7, v5
    s_mov_b32 s52, {FP2+40*128}
    """)
    poll(a, 5, 52)
    poll(a, 219, 17, 223)
    stamp(a, "xseen")
    NPP = O("npp", 12)
    for ks in range(NPP): put(a, h1_dma(0, ks))
    h1_icb(a)
    passA(a, NPP)
    rest(a, 'p')

def build():
    name = NAME + "_kernel"
    a = Asm()
    a.raw(f".globl {name}\n.p2align 8\n.type {name},@function\n{name}:")
    prologue(a, 256, "L_end", wait=False)
    body(a)
    a.label("L_end")
    a("s_endpgm")
    emit_slow(a)
    a.label("L_code_end")
    hdr = open("cdna_kernels/" + NAME + ".s.ref").read().split("; Override")[0]
    txt = hdr + "; @launch grid=(256,1,1) block=(256,1,1) lds=163840\n"
    txt += '.amdgcn_target "amdgcn-amd-amdhsa--gfx950"\n.text\n' + a.finish()
    txt += f""".section .rodata,"a"
.p2align 6
.amdhsa_kernel {name}
  .amdhsa_next_free_vgpr 512
  .amdhsa_next_free_sgpr 102
  .amdhsa_accum_offset 256
  .amdhsa_group_segment_fixed_size 0
  .amdhsa_kernarg_size 120
  .amdhsa_user_sgpr_count 2
  .amdhsa_user_sgpr_kernarg_segment_ptr 1
  .amdhsa_system_sgpr_workgroup_id_x 1
.end_amdhsa_kernel
"""
    return txt
if __name__ == "__main__":
    out = [x for x in sys.argv[1:] if not x.startswith("--")][0]
    open(out, "w").write(build())
```

```python
import sys, re
from halves import *
import phases, halves
NAME = "adaLN_cond__ssm_conv_h3__glu_gated_bilinear__prompt"
OPT = {"modlate": "1"}
OPT.update({x.split("=")[0][2:]: (x.split("=") + ["1"])[1] for x in sys.argv[1:] if x.startswith("--")})
OPT = {k: v for k, v in OPT.items() if v != "off"}
def O(k, d): return type(d)(OPT.get(k, d))
FA, FQ, FP2, FP3, FXE, FXL, FB_, FHE, FHL, FY, FT, FW = [FLG + 128 * n for n in (0, 160, 200, 264, 360, 520, 680, 696, 952, 1208, 1368, 1528)]
TAG, BUDGET, T16 = 48, 49, 77
S_CU, S_PU, S_I, S_J, S_I2, S_J2 = 70, 71, 72, 73, 74, 75
PP = "pp" in OPT
if PP: OPT.update(rot="0,0,0,0,0,0,0,0", goff="0", nb="0", n2="0", nc="20")
STAMPS = "stamps" in OPT
SNAMES = OPT["stamps"].split(",") if STAMPS else ["start"]
assert len(SNAMES) <= 12 and SNAMES[0] == "start"
STI = "s_memtime" if "cyc" in OPT else "s_memrealtime"
def stamp(a, name):
    if STAMPS and name in SNAMES:
        n = SNAMES.index(name)
        a(f"{STI} s[{78+2*n}:{79+2*n}]")
def fstamp(sc, n, name):
    if STAMPS and name in SNAMES: sc.fill.setdefault(n, []).insert(0, costed(lambda a: stamp(a, name), 's', 0))

lab = [0]
def poll(a, voff, sbase, tmp=2, TAG=TAG):
    lab[0] += 1; L = f"L_poll{lab[0]}"
    a.label(L)
    a(f"""
    buffer_load_dword v{tmp}, v{voff}, {WSR}, s{sbase} offen sc1
    s_waitcnt vmcnt(0)
    v_cmp_ne_u32 vcc, s{TAG}, v{tmp}
    s_cbranch_vccz {L}_ok
    s_cmp_eq_u32 s{BUDGET}, 0
    s_cbranch_scc1 {L}_ok
    s_sub_u32 s{BUDGET}, s{BUDGET}, 1
    s_sleep {O('psl', 1)}
    s_branch {L}
    {L}_ok:
    """)
def flagstore(a, sline, base, v=2, sr=50, TAG=TAG):
    a(f"""
    s_lshl_b32 s{sr}, s{sline}, 7
    s_add_u32 s{sr}, s{sr}, {base}
    v_mov_b32 v{v}, 0
    v_mov_b32 v{v+1}, s{TAG}
    s_mov_b64 exec, 1
    buffer_store_dword v{v+1}, v{v}, {WSR}, s{sr} offen sc1
    s_mov_b64 exec, -1
    """, cond=True)
def wflag(a, sline, base, v=254, TAG=TAG):
    lab[0] += 1; L = f"L_wf{lab[0]}"
    a(f"s_cmp_eq_u32 s3, 0\ns_cbranch_scc0 {L}")
    flagstore(a, sline, base, v, 54, TAG)
    a.label(L)
def wcount(a, base, v=254):
    lab[0] += 1; L = f"L_wf{lab[0]}"
    a(f"s_cmp_eq_u32 s3, 0\ns_cbranch_scc0 {L}")
    a(f"""
    s_lshr_b32 s54, s{S_CU}, 4
    s_lshl_b32 s54, s54, 7
    s_add_u32 s54, s54, {base}
    v_mov_b32 v{v}, 0
    v_mov_b32 v{v+1}, 1
    s_mov_b64 exec, 1
    buffer_atomic_add v{v+1}, v{v}, {WSR}, s54 offen sc1
    s_mov_b64 exec, -1
    """, cond=True)
    a.label(L)
def signal(a, sline, base, pre=None, tag=None, TAG=TAG):
    if tag: a.waitv(tag); a("s_waitcnt lgkmcnt(0)")
    else: a("s_waitcnt vmcnt(0) lgkmcnt(0)")
    a("s_barrier")
    if pre: pre()
    wflag(a, sline, base, 2, TAG)
slow = []; slow2 = []; pending = {}
def poll_issue(a, voff, sbase, tmp):
    pending[tmp] = (voff, sbase)
    a(f"buffer_load_dword v{tmp}, v{voff}, {WSR}, s{sbase} offen sc1")
def poll_check(a, voff, sbase, tmp, TAG=TAG):
    lab[0] += 1; L = f"L_chk{lab[0]}"
    assert pending.pop(tmp, None) == (voff, sbase), "poll_check without a preceding poll_issue"
    a(f"v_cmp_ne_u32 vcc, s{TAG}, v{tmp}\ns_cbranch_vccnz {L}_slow")
    a.label(L + "_back")
    slow.append((L, voff, sbase, tmp, TAG))
def emit_slow(a):
    for f in slow2: f(a)
    for L, voff, sbase, tmp, TG in slow:
        a.label(L + "_slow"); a.reset()
        poll(a, voff, sbase, tmp, TG)
        a(f"s_branch {L}_back")
def poll_lines(a, sfirst_expr, n):
    a(sfirst_expr)
    a(f"v_min_u32 v5, {n-1}, v1\nv_lshlrev_b32 v5, 7, v5")
    poll(a, 5, 52)
def small(x, tag=None): return costed(lambda a: a(x, tag=tag), "m", 1)
PI = lambda v, s, t: [costed(lambda a: poll_issue(a, v, s, t), "m", 1)]
PC = lambda v, s, t, st=None, TG=TAG: costed(lambda a: (poll_check(a, v, s, t, TG), st and stamp(a, st)), "v", 1)
def BAR(*waits, then=None, c=2):
    def f(a):
        for w in waits: (a.waitl(w[2:]) if w.startswith("l:") else a.waitv(w))
        a("s_barrier")
        if then: then(a)
    return costed(f, "s", c)

from sched2 import Gaps
halves.Sched = Gaps

if "noalias" not in OPT: A1T = halves.A1T = KVT
def preH(a, v=245, t=2):
    a(f"""
    v_min_u32 v{t}, 47, v1
    v_cmp_lt_u32 vcc, 23, v{t}
    v_cndmask_b32 v{t+1}, 0, 1, vcc
    v_mul_u32_u24 v{t+1}, {49152 - 24*128}, v{t+1}
    v_lshl_add_u32 v{t}, v{t}, 7, v{t+1}
    s_and_b32 s50, s3, 1
    s_lshl_b32 s50, s50, 1
    s_lshr_b32 s51, s3, 1
    s_lshl_b32 s51, s51, 6
    s_add_u32 s50, s50, s51
    s_lshl_b32 s51, s{S_I}, 2
    s_add_u32 s50, s50, s51
    s_mul_i32 s50, s50, 49152
    s_mul_i32 s51, s{S_J}, 3072
    s_add_u32 s50, s50, s51
    s_add_u32 s50, s50, {HB}
    """)
    a(f"buffer_load_dword v{v}, v{t}, {WSR}, s50 offen", tag="pre")
def preT(a, base, rev, v, t=2):
    a(f"""
    s_lshr_b32 s50, s76, 4
    s_mul_i32 s50, s50, {64*PT_}
    s_and_b32 s51, s76, 15
    s_lshl_b32 s51, s51, 8
    """ + (f"s_sub_u32 s51, {4096-256}, s51\n" if rev else "") + f"""
    s_add_u32 s50, s50, s51
    s_lshl_b32 s51, s3, 4
    s_mul_i32 s51, s51, {PT_}
    s_add_u32 s50, s50, s51
    s_add_u32 s50, s50, {base}
    v_bfe_u32 v{t}, v1, 1, 4
    v_mul_u32_u24 v{t}, {PT_}, v{t}
    v_and_b32 v{t+1}, 1, v1
    v_lshl_add_u32 v{t}, v{t+1}, 7, v{t}
    """)
    a(f"buffer_load_dword v{v}, v{t}, {WSR}, s50 offen nt", tag="pre")
SL = [WSLOT2 * n for n in range(5)]
phases.PA = 25536
ST1L = 62464
KB = 78848
XOFF = KB + 4 * KCH
assert XOFF + 4 * XSTR == 163840
def kload(a):
    a(f"s_lshl_b32 s50, s58, 12\ns_mul_i32 s51, s3, {KCH}\ns_add_u32 m0, s51, {KB+32}")
    srd(a, 44, SSMK, S * D * 2)
    for n in range(4): a(f"buffer_load_dwordx4 v248, s[44:47], s50 offen offset:{1024*n}{' nt' if 'knt' not in OPT else ''} lds", tag="kdma")
def kzero(a, keep):
    a(f"""
    s_mul_i32 s51, s3, {KCH}
    s_add_u32 s51, s51, {KB}
    v_add_u32 v{keep}, s51, v248
    v_lshrrev_b32 v8, 1, v1
    v_mul_u32_u24 v8, {KSTR}, v8
    v_and_b32 v4, 1, v1
    v_lshl_add_u32 v8, v4, 4, v8
    v_add_u32 v8, s51, v8
    v_mov_b32 v4, 0
    v_mov_b32 v5, 0
    v_mov_b32 v6, 0
    v_mov_b32 v7, 0
    s_mov_b64 exec, 0xff
    ds_write_b128 v8, v[4:7]
    s_mul_i32 s52, s3, {XSTR}
    s_add_u32 s52, s52, {XOFF+4096}
    s_mov_b64 exec, 0x3fffffff
    v_add_u32 v8, s52, v248
    ds_write_b128 v8, v[4:7]
    s_mov_b64 exec, -1
    """)
def kcopies(a, keep, R=8):
    a.waitv("kdma")
    for n in range(4):
        a(f"ds_read_b128 {vr(R+6*n,4)}, v{keep} offset:{32+1024*n}")
        a(f"ds_read_b64 {vr(R+4+6*n,2)}, v{keep} offset:{48+1024*n}")
    a(f"""
    s_mov_b64 exec, 1
    v_lshlrev_b32 v80, 16, v{R}
    v_alignbit_b32 v81, v{R+1}, v{R}, 16
    ds_write_b32 v{keep}, v80 offset:{KSTR+28}
    ds_write_b32 v{keep}, v{R} offset:{2*KSTR+28}
    ds_write_b32 v{keep}, v80 offset:{3*KSTR+24}
    ds_write_b32 v{keep}, v81 offset:{3*KSTR+28}
    s_mov_b64 exec, -1
    """)
    for n in range(4):
        c = R + 6*n; t = 56 + 12*(n & 1)
        for d in range(4): a(f"v_alignbit_b32 v{t+d}, v{c+d+1}, v{c+d}, 16")
        a(f"v_pk_mov_b32 {vr(t+4,2)}, {vr(c,2)}, {vr(c+2,2)} op_sel:[1,0]")
        a(f"v_pk_mov_b32 {vr(t+6,2)}, {vr(c+2,2)}, {vr(c+4,2)} op_sel:[1,0]")
        for d in range(4): a(f"v_alignbit_b32 v{t+8+d}, v{c+d+2}, v{c+d+1}, 16")
        for j in range(1, 4):
            a(f"ds_write_b128 v{keep}, {vr(t+4*(j-1),4)} offset:{j*KSTR+32+1024*n}")
def xload(a):
    a(f"s_mul_i32 s50, s58, {PT_}\ns_mul_i32 s52, s3, {XSTR}\ns_add_u32 m0, s52, {XOFF}")
    for n in range(4): a(f"buffer_load_dwordx4 v248, {WSR}, s50 offen offset:{n*1024}{SC} lds", tag="xdma")
AA, AF = 229, 230
def conv_addr(a):
    a(f"""
    v_and_b32 v2, 15, v1                ; r / a
    v_lshrrev_b32 v8, 4, v1             ; h
    v_add_u32 v4, 1, v2
    v_and_b32 v5, 3, v4                 ; copy j
    v_sub_u32 v4, v4, v5                ; r+1-j
    v_add_u32 v4, 24, v4
    v_lshlrev_b32 v4, 1, v4
    v_mul_u32_u24 v5, {KSTR}, v5
    v_add_u32 v4, v4, v5
    v_lshlrev_b32 v5, 4, v8
    v_sub_u32 v4, v4, v5
    s_mul_i32 s51, s3, {KCH}
    s_add_u32 s51, s51, {KB}
    v_add_u32 v{AA}, s51, v4
    v_lshlrev_b32 v2, 5, v2
    v_add_u32 v2, v2, v5
    s_mul_i32 s52, s3, {XSTR}
    s_add_u32 s52, s52, {XOFF+2*(2056-1792)}
    v_sub_u32 v{AF}, s52, v2
    """)
def conv_dfrag(a):
    a(f"""
    v_lshrrev_b32 v3, 4, v1
    v_lshlrev_b32 v2, 3, v3
    v_and_b32 v3, 15, v1
    v_sub_u32 v2, v2, v3
    v_subrev_u32 v2, 9, v2              ; p = 8h - r - 9: position of filter tap 0 inside this lane's fragment
    v_and_b32 v3, 1, v2
    v_cmp_eq_u32 vcc, 1, v3
    v_lshrrev_b32 v3, 16, v250
    v_cndmask_b32 v3, v3, v250, vcc
    v_lshrrev_b32 v2, 1, v2
    """)
    for d in range(4): a(f"v_cmp_eq_u32 vcc, {d}, v2\nv_cndmask_b32 v{DFR+d}, 0, v3, vcc")
QR, SR, SM, ET = 176, 184, 200, 232
def esetup(a):
    a(f"""
    v_and_b32 v2, 15, v1
    v_lshrrev_b32 v8, 4, v1
    v_lshlrev_b32 v249, 6, v2
    v_lshl_add_u32 v249, v8, 4, v249
    v_add_u32 v249, {ST1L}, v249
    v_and_b32 v231, 1, v8
    v_lshlrev_b32 v231, 9, v231
    v_lshl_add_u32 v231, v2, 5, v231
    v_lshrrev_b32 v8, 1, v8
    v_lshl_add_u32 v231, v8, 4, v231
    s_mul_i32 s68, s58, {PT_}
    s_add_u32 s65, s68, {QT}
    s_add_u32 s68, s68, {A1T}
    s_lshl_b32 s66, s3, 12
    s_add_u32 s67, s66, {ST1}
    s_lshl_b32 s59, s58, 1
    v_mov_b32 v250, 0
    v_mov_b32 v251, s59
    global_load_short_d16_hi v250, v251, {sp(SSD)}
    v_min_u32 v240, 11, v1             ; lanes 0..7: statistics units 8w.., lanes 8..11: q tiles 4w.. of this channel group
    v_lshlrev_b32 v240, 7, v240
    s_lshr_b32 s52, s{S_CU}, 4
    s_lshl_b32 s52, s52, 11
    s_add_u32 s59, s52, {FA}
    s_lshl_b32 s69, s3, 9
    s_sub_u32 s52, s52, s69
    s_add_u32 s52, s52, {FT-FQ-8*128}
    v_cmp_lt_u32 vcc, 7, v1
    v_mov_b32 v241, s52
    v_cndmask_b32 v241, 0, v241, vcc
    v_add_u32 v240, v240, v241
    """ + ("" if not PP else f"""
    v_min_u32 v241, 16, v1             ; lanes 12..16: weight pieces of k-steps 5w..
    v_lshlrev_b32 v241, 10, v241
    s_lshr_b32 s52, s{S_J}, 1
    s_lshl_b32 s52, s52, 7
    s_lshl_b32 s69, s3, 12
    s_add_u32 s52, s52, s69
    s_add_u32 s52, s52, {FW-FQ-12*1024}
    v_add_u32 v241, s52, v241
    v_cmp_lt_u32 vcc, 11, v1
    v_cndmask_b32 v240, v240, v241, vcc
    """) + f"""
    s_lshl_b32 s69, s3, 10
    s_add_u32 s69, s69, {FQ}
    s_lshl_b32 s55, s58, 3
    s_add_u32 s55, s55, {MODT}
    v_and_b32 v253, 3, v1              ; granules sa, ca1, ga, cb1
    v_cmp_eq_u32 vcc, 3, v253
    v_addc_co_u32 v253, vcc, 0, v253, vcc
    v_mul_u32_u24 v253, 5120, v253
    v_min_u32 v241, 9, v1              ; 1+cb units (reciprocal table)
    v_lshlrev_b32 v241, 7, v241
    s_mov_b32 s60, {FP2+40*128}
    v_min_u32 v242, 15, v1
    v_lshlrev_b32 v242, 7, v242
    """)
def st1dma(): return [[f"s_add_u32 m0, s66, {ST1L}", (f"buffer_load_dwordx4 v248, {WSR}, s67 offen offset:{n*1024}{SC} lds", "st1")] for n in range(4)]
def qloads(h): return [[f"buffer_load_dwordx4 {vr(QR+4*p,4)}, v231, {WSR}, s65 offen offset:{2048*h+1024*p}{SC}"] for p in range(2)]
def streads(h): return [f"ds_read_b128 {vr((SM if m else SR)+4*t,4)}, v249 offset:{8192*m+1024*(4*h+t)}" for t in range(4) for m in range(2)]
sw = lambda t, c=2: costed(lambda a: a(t), "v", c)
def qswaps(): return [f"v_permlane16_swap_b32 v{QR+4*p+k}, v{QR+4*p+2+k}" for p in range(2) for k in range(2)]
def pre_pk(a):
    put(a, qswaps())
    for t in range(4):
        r, m, q = SR + 4*t, SM + 4*t, ET + 4*(t & 1)
        unpack(a, q, q + 1, QR + 2*t); unpack(a, q + 2, q + 3, QR + 2*t + 1)
        for p in (0, 2): a(f"v_pk_fma_f32 {vr(r+p,2)}, {vr(q+p,2)}, {vr(r+p,2)}, {vr(m+p,2)}")
        for p in (0, 2): a(f"v_pk_mul_f32 {vr(m+p,2)}, {vr(q+p,2)}, v[252:253] op_sel_hi:[1,0]")
        for p in (0, 2): a(f"v_pk_fma_f32 {vr(r+p,2)}, {vr(r+p,2)}, v[250:251], v[250:251] op_sel:[0,0,1] op_sel_hi:[1,0,1]")
def pre_list():
    L = [sw(x) for x in qswaps()]
    for t in range(4):
        for i in range(4):
            r, m, q = SR + 4*t + i, SM + 4*t + i, ET + (i & 1)
            L += [f"v_lshlrev_b32 v{q}, 16, v{QR+2*t+(i>>1)}" if i % 2 == 0 else f"v_and_b32 v{q}, 0xffff0000, v{QR+2*t+(i>>1)}",
                  f"v_fma_f32 v{r}, v{q}, v{r}, v{m}", f"v_mul_f32 v{m}, v252, v{q}", f"v_fma_f32 v{r}, v{r}, v250, v251"]
    return L
def fin_pk(a, h, order=range(4)):
    done = set()
    for t in order:
        x = ACC + 4*(4*h + t)
        for p in (0, 2): a(f"v_pk_fma_f32 {vr(SR+4*t+p,2)}, {vr(SR+4*t+p,2)}, {vr(x+p,2)}, {vr(SM+4*t+p,2)}")
        for p in range(2): a(f"v_cvt_pk_bf16_f32 v{ET+2*t+p}, v{SR+4*t+2*p}, v{SR+4*t+2*p+1}")
        done.add(t)
        if t ^ 1 in done:
            p = t >> 1
            for k in range(2): a(f"v_permlane16_swap_b32 v{ET+4*p+k}, v{ET+4*p+2+k}")
            a(f"buffer_store_dwordx4 {vr(ET+4*p,4)}, v231, {WSR}, s68 offen offset:{2048*h+1024*p}{SC}", tag=f"a1st{h}")

def wp_setup(a):
    b = Asm(); wp_loads(b, S_CU, 0)
    for k, x in b.items:
        if x.kind != "vmem" and "m0" not in x.text and x.text != f"s_add_u32 s52, s52, {8*3072}": a(x.text)
    a("s_mov_b32 s56, s52\ns_mul_i32 s57, s3, 6144")
def wp_issue(a):
    for n in range(6):
        if n % 3 == 0: a(f"s_add_u32 m0, s57, {n*1024}")
        a(f"buffer_load_dwordx4 v{233+n%3}, s[40:43], s56 offen offset:{1024*(n%3)}{WPNT[0]} lds", tag="wp")
        if n == 2: a(f"s_add_u32 s56, s56, {8*3072}")
def first_loads(a, su, before_ptr, after_dma):
    PA = phases.PA
    a(f"""
    s_lshr_b32 s50, s{su}, 4          ; g
    s_and_b32 s51, s{su}, 15          ; j
    s_mul_i32 s52, s51, {128*1280}
    s_lshl_b32 s53, s50, 7
    s_add_u32 s52, s52, s53           ; tile byte offset
    v_lshrrev_b32 v3, 3, v1
    v_mul_u32_u24 v3, 1280, v3
    v_and_b32 v4, 7, v1
    v_lshl_add_u32 v3, v4, 4, v3      ; DMA lane offset
    s_mul_i32 s53, s3, {32*1280}
    s_add_u32 s53, s53, s52           ; wave soffset
    s_mul_i32 s54, s3, {4*GS}
    v_add_u32 v10, {8*1280-GS}, v3
    v_add_u32 v11, {2*(8*1280-GS)}, v3
    v_add_u32 v12, {3*(8*1280-GS)}, v3
    s_sub_u32 s55, s52, {8*1280}
    v_add_u32 v5, s55, v3
    s_add_u32 s56, s54, {PA + 17*GS}
    s_add_u32 m0, s54, {PA + GS}
    s_mov_b32 s42, {S*D*2}
    s_mov_b32 s43, 0x20000
    s_mov_b32 s46, {S*D*2}
    s_mov_b32 s47, 0x20000
    """)
    before_ptr(a)
    a(f"s_mov_b64 s[40:41], s[{K}:{K+1}]\ns_mov_b64 s[44:45], s[{V}:{V+1}]")
    for n in range(4): a(f"buffer_load_dwordx4 v{9+n if n else 3}, s[40:43], s53 offen offset:{n*GS} nt lds", tag="kv")
    a("s_mov_b32 m0, s56\ns_cmp_eq_u32 s3, 0")
    for n in range(4): a(f"buffer_load_dwordx4 v{9+n if n else 3}, s[44:47], s53 offen offset:{n*GS} nt lds", tag="kv")
    a(f"s_cbranch_scc0 L_nohalo\ns_mov_b32 m0, {PA}")
    a(f"buffer_load_dwordx4 v5, s[40:43], 0 offen nt lds", cond=True)
    a.label("L_nohalo")
    after_dma(a)
    b = Asm(); phaseA_loads(b, su, lambda b: None, lambda b: b.comment("CUT"))
    k = [i for i, (t, x) in enumerate(b.items) if t == "raw" and "CUT" in x][0]
    a.items += b.items[k + 1:]
WDH0 = 81920
def wdh_loads(a, su, WDH):
    a(f"""
    s_lshr_b32 s52, s{su}, 1
    s_lshl_b32 s52, s52, 2
    s_add_u32 s52, s52, s3
    s_mul_i32 s52, s52, {8*1280}
    s_and_b32 s53, s{su}, 1
    s_mul_i32 s53, s53, 640
    s_add_u32 s52, s52, s53
    s_mul_i32 s53, s3, 5120
    """)
    for n in range(5):
        a(f"""
        v_add_u32 v5, {64*n}, v1
        v_mul_u32_u24 v6, 205, v5
        v_lshrrev_b32 v6, 13, v6
        v_mul_u32_u24 v6, 640, v6
        v_lshl_add_u32 v5, v5, 4, v6
        s_add_u32 m0, s53, {WDH + n*1024}
        """)
        a(f"buffer_load_dwordx4 v5, s[56:59], s52 offen nt lds", tag="wst")
def wdh_finish(a, su, WDH, R):
    a(f"""
    v_lshrrev_b32 v2, 4, v1           ; h
    v_bfe_u32 v3, v1, 2, 2            ; r
    v_lshl_add_u32 v3, v2, 3, v3
    v_mul_u32_u24 v3, 640, v3
    v_and_b32 v2, 3, v1
    v_lshl_add_u32 v2, v2, 3, v3
    s_mul_i32 s50, s3, 160
    s_add_u32 s50, s50, {WDH}
    v_add_u32 v2, s50, v2
    s_lshr_b32 s53, s{su}, 1
    s_mov_b32 s50, 0x15555556
    s_mul_hi_u32 s51, s53, s50
    s_mul_i32 s52, s51, 12
    s_sub_u32 s52, s53, s52           ; ks
    s_and_b32 s50, s{su}, 1
    s_lshl_b32 s50, s50, 2
    s_add_u32 s50, s50, s3
    s_lshl_b32 s50, s50, 2
    s_add_u32 s50, s50, s51
    s_mul_i32 s50, s50, 60
    s_mul_i32 s52, s52, 5
    s_add_u32 s50, s50, s52
    s_lshl_b32 s50, s50, 10
    s_add_u32 s50, s50, {WD}
    s_add_u32 s51, s50, 4096
    """)
    for n in range(5):
        for half in range(2): a(f"ds_read_b64_tr_b16 {vr(R+4*n+2*half,2)}, v2 offset:{32*n+half*4*640}")
    for n in range(5): a(f"buffer_store_dwordx4 {vr(R+4*n,4)}, v248, {WSR}, s{50+n//4} offen offset:{(n%4)*1024}{SC}", tag="wout")

halves.HACC = HACC = (56, 8)
halves.Q2H = Q2H = 56; halves.Q2NH = Q2NH = O("nh", 12); halves.Q2ACC = Q2ACC = (8, 28)
XE, XL, GB, PT, IC, XR = 120, 232, (48, 52, 132), 168, 168, 180
XI = 81920
def xflags(v, late, t=2, sr=50):
    L = ["v_lshrrev_b32 v2, 1, v1", "v_lshlrev_b32 v2, 10, v2", "v_and_b32 v3, 1, v1", f"v_lshl_add_u32 v{v}, v3, 7, v2",
         f"s_lshl_b32 s50, s3, 8\ns_add_u32 s50, s50, {(FXL if late else FXE)-FLG}", f"v_add_u32 v{v}, s50, v{v}"]
    if late: L += [f"s_lshl_b32 s50, s{S_J}, 7\ns_add_u32 s50, s50, {FB_-FLG}", "v_mov_b32 v2, s50"]
    else: L += [f"s_add_u32 s50, s50, {19*1024}", "v_mov_b32 v2, s50"]
    L += [f"v_cmp_lt_u32 vcc, 39, v1\nv_cndmask_b32 v{v}, v{v}, v2, vcc", f"s_mov_b32 s17, {FLG}"]
    return [re.sub(r"\bs50\b", f"s{sr}", re.sub(r"\bv3\b", f"v{t+1}", re.sub(r"\bv2\b", f"v{t}", x))) for x in L]
WG3 = [int(x) for x in O("wg", "0,9,13,20").split(",")]
def wflags():
    L = [f"s_lshr_b32 s61, s{S_J}, 1\ns_lshl_b32 s61, s61, 7\ns_add_u32 s61, s61, {FW}"]
    for g, (lo, n) in enumerate((WG3[k], WG3[k+1] - WG3[k]) for k in range(3)):
        L += [f"v_min_u32 v{224+g}, {n-1}, v1", f"v_add_lshl_u32 v{224+g}, v{224+g}, {lo}, 10"]
    return L
def hflags(base, gbu=False):
    return [f"s_lshr_b32 s50, s{S_I2}, 1\ns_lshl_b32 s50, s50, 2", f"s_add_u32 s50, s50, s3\ns_lshl_b32 s50, s50, 9", f"s_add_u32 s50, s50, {base-FLG}",
            f"v_min_u32 v246, {13 if gbu else 3}, v1", "v_lshlrev_b32 v246, 7, v246"] + \
           ([f"v_mov_b32 v2, s50", f"v_mov_b32 v3, {FP2+50*128-FLG-4*128}", "v_cmp_lt_u32 vcc, 3, v1\nv_cndmask_b32 v2, v2, v3, vcc", "v_add_u32 v246, v246, v2"] if gbu else ["v_add_u32 v246, s50, v246"])
def g2_setup(si2, sj2):
    return ["s_and_b32 s50, s3, 1\ns_lshr_b32 s51, s3, 1", "s_mul_i32 s52, s50, 20480\ns_mul_i32 s53, s3, 5120", "s_add_u32 s52, s52, s53",
         "v_add_u32 v220, s52, v248", "v_add_u32 v222, 40960, v220",
         "s_xor_b32 s52, s50, 1\ns_mul_i32 s52, s52, 20480", "s_add_u32 s52, s52, s53", "v_add_u32 v221, s52, v248", "v_add_u32 v223, 40960, v221",
         "s_mul_i32 s52, s51, 20480\ns_lshl_b32 s53, s50, 11", "s_add_u32 s52, s52, s53", "v_add_u32 v224, s52, v248",
         "s_mul_i32 s53, s51, 5120\ns_add_u32 s53, s53, 40960", "v_add_u32 v225, s53, v224",
         "s_xor_b32 s53, s51, 1\ns_mul_i32 s53, s53, 5120", "s_add_u32 s53, s53, 40960", "v_add_u32 v226, s53, v224",
         f"s_lshl_b32 s52, s{si2}, 1\ns_add_u32 s52, s52, s51", f"s_mul_i32 s12, s{sj2}, 320\ns_add_u32 s15, s12, {ICB}",
         f"s_add_u32 s12, s12, {MOD+5*2560}\ns_mul_i32 s13, s52, {16*1280}", f"s_mul_i32 s53, s{sj2}, 160\ns_add_u32 s13, s13, s53",
         f"s_lshl_b32 s53, s50, 6\ns_add_u32 s13, s13, s53", f"s_add_u32 s14, s13, {1024*1280}",
         f"s_mul_i32 s10, s{sj2}, 10\ns_add_u32 s10, s10, s3", f"s_mul_i32 s10, s10, {8*PT_}\ns_lshl_b32 s53, s{si2}, 6", f"s_add_u32 s10, s10, s53\ns_add_u32 s10, s10, {A1T}",
         f"s_lshl_b32 s11, s3, 10\ns_add_u32 s11, s11, {XI}",
         "v_lshrrev_b32 v2, 3, v1", f"v_mul_u32_u24 v229, {PT_}, v2", "v_bfe_u32 v2, v1, 2, 1", "v_lshl_add_u32 v229, v2, 11, v229", "v_and_b32 v2, 3, v1", "v_lshl_add_u32 v229, v2, 4, v229",
         "v_lshrrev_b32 v3, 2, v1", "v_lshlrev_b32 v231, 7, v3", "v_lshl_add_u32 v231, v2, 3, v231", f"s_lshl_b32 s53, s50, 12\ns_lshl_b32 s52, s51, 5", f"s_add_u32 s53, s53, s52\ns_add_u32 s53, s53, {XI}", "v_add_u32 v231, s53, v231",
         "v_and_b32 v2, 15, v1", "v_lshrrev_b32 v3, 4, v1",
         "v_lshlrev_b32 v230, 4, v3", "s_lshl_b32 s53, s50, 7", "v_add_u32 v230, s53, v230",
         "v_mul_u32_u24 v2, 1280, v2", "v_lshl_add_u32 v228, v3, 3, v2", "v_and_b32 v227, 1, v3", "v_lshl_add_u32 v2, v227, 5, v2", "v_lshrrev_b32 v3, 1, v3", "v_lshl_add_u32 v227, v3, 4, v2"]
def g2_xdma():
    return [[f"s_add_u32 m0, s11, {4096*n}", (f"buffer_load_dwordx4 v229, {WSR}, s10 offen{SC} lds", "xi")] + ([f"s_add_u32 s10, s10, {32*PT_}"] if n < 2 else []) for n in range(3)]
def g2_gloads(): return [[f"buffer_load_dwordx4 {vr(GB[T],4)}, v230, {WSR}, s12 offen offset:{64*T}{SC}"] for T in range(3)] + \
                        [[f"buffer_load_dwordx4 {vr(IC+4*T,4)}, v230, {WSR}, s15 offen offset:{64*T}{SC}"] for T in range(3)]
def g2_xreads(): return [f"ds_read_b64_tr_b16 {vr(XR+6*h+2*T,2)}, v231 offset:{2048*T+64*h}" for h in range(2) for T in range(3)]
def g2_xform():
    L = []
    for h, X in enumerate((XE, XL)):
        for i in range(12):
            r = XR + 6*h + i // 2
            L += [f"v_lshlrev_b32 v{X+i}, 16, v{r}" if i % 2 == 0 else f"v_and_b32 v{X+i}, 0xffff0000, v{r}", f"v_mul_f32 v{X+i}, v{X+i}, v{IC+i}"]
    return L
gb = lambda i: GB[i // 4] + i % 4

LJ = 2; S_ = S
GE = [int(x) for x in O("ge", "3,8").split(",") if x]
GLs = [int(x) for x in O("gl", "0,2,5").split(",")]
GATES = {}
for k, g in enumerate(GE): GATES[g] = f"a0_{(GE[k+1] if k + 1 < len(GE) else 20) - 1}"
for k, g in enumerate(GLs): GATES[20 + g] = f"a1_{(GLs[k+1] if k + 1 < len(GLs) else 20) - 1}"
LDONE = [0]; WDONE = [0]
G1B = lambda n: n % 12 in (3, 7, 11)
G1S = lambda n: n % 12 == 10
G1K = lambda n: n % 12 in (3, 7, 10, 11)
gate_of = lambda G, ks: max([x for x in G if x <= ks], default=0)
def smalls(sc, groups, p, step=1):
    for g in groups: p = sc.vm(g, p, p + 14, lambda n: G1K(n) and not sc.m[n])[1] + step
    return p
GBF = []
def passA(a, npre, head=None, wrest=None, extra=None):
    sc = h1_sched(0, GATES)
    LQ = O("lq", 160); LI = LQ - O("lql", 40)
    q = sc.chain(xflags(219, 1, 238, 55), LI - 30, LI - 2, keep=G1K)
    smalls(sc, [PI(219, 17, 240)], LI)
    p = sc.at(PC(219, 17, 240, "Lx"), LQ) + 1
    W0 = O("wa0", 110)
    q3 = sc.chain(["v_min_u32 v243, 11, v1", "v_lshlrev_b32 v243, 8, v243", f"s_mul_i32 s58, s3, 24\ns_lshr_b32 s57, s{S_J2}, 2", f"s_add_u32 s58, s58, s57\ns_lshl_b32 s58, s58, 7", f"s_add_u32 s58, s58, {FP3}"] + GBF, max(0, W0 - 56), W0 - 46, keep=G1K)
    q3 = smalls(sc, [PI(243, 58, 244)], q3 + 1)
    n = sc.at(PC(243, 58, 244), max(W0, q3 + 30)) + 1
    wl = groups_of(h2_wloads())
    bl = h1_biasloads()
    smalls(sc, [[bl[0], small(bl[1])]] + [[small(x)] for x in bl[2:]], O("lb", LQ + 4), 6)
    lfree = extra(sc) if extra else (lambda ks: 0)
    S = [[(h1_dma(0, ks), 0, 12 * (gate_of(GE, ks) - 1) - 40 + ks / 100) for ks in range(npre, 20)],
         [(h1_dma(1, ks), max(p, lfree(ks)), 190 + 12 * (gate_of(GLs, ks) - 1) + ks / 100) for ks in range(20)], [(g, n, 300) for g in wl[:12]], wrest or []]
    pos = sc.streams(S, O("pa", 4.0), 0, 238, lambda n: G1B(n) or (n < O("pad", 0) and G1S(n)), wt=[1, 1, 1, O("ww", 1.0 if PP else 1.5)])
    assert len(pos[0]) == len(S[0]) and len(pos[3]) == len(S[3]), [(len(x), len(y)) for x, y in zip(pos, S)]
    for ks, x in zip(range(npre, 20), pos[0]): assert x <= 12 * (gate_of(GE, ks) - 1), (ks, x)
    if wrest: print("   weights: slack", [int(y[2] - x) for x, y in zip(pos[3], wrest)][2::3], file=sys.stderr); assert all(x < y[2] + O("lead", 50) - 10 for x, y in zip(pos[3], wrest))
    assert len(pos[1]) >= (GLs[1] if len(GLs) > 1 else 20)
    LDONE[0] = len(pos[1]); WDONE[0] = len(pos[2])
    pre, rd = h1_st_reads(0)
    q = max(12 * (GE[-1] - 1) + 1 if GE else 1, O("sa", 20), sc.wdone if hasattr(sc, "wdone") else 0)
    q = sc.chain(rd, q, q + 4, 1, keep=G1B)
    q = sc.chain(h1_st_list(0, 0, TAG), q + 6, q + O("sl", 70), keep=G1K)
    print(f"pass A: early dma {pos[0]}, wd {WDONE[0]}, stats at {q}, late slots issued {LDONE[0]}, overflow {sc.over()}", file=sys.stderr)
    for ks in range(20): fstamp(sc, 12 * ks, f"a{ks}")
    if "gbar" in OPT:
        if head: head(a); head = None
        lab[0] += 1; L = f"L_gb{lab[0]}"
        a(f"""
        s_waitcnt vmcnt(0)
        s_barrier
        v_mov_b32 v254, 0
        v_mov_b32 v255, 1
        s_cmp_eq_u32 s3, 0
        s_cbranch_scc0 {L}
        s_mov_b64 exec, 1
        global_atomic_add v254, v255, {sp(DBG)} sc1
        s_mov_b64 exec, -1
        {L}:
        global_load_dword v255, v254, {sp(DBG)} sc1
        s_waitcnt vmcnt(0)
        v_cmp_ne_u32 vcc, 256, v255
        s_cbranch_vccz {L}x
        s_sleep 2
        s_branch {L}
        {L}x:
        """)
        stamp(a, "gb")
    a.waitv(f"a0_{(GE[0] if GE else 20) - 1}")
    a("s_waitcnt lgkmcnt(0)\ns_barrier")
    put(a, h1_reads(0))
    if head: head(a)
    h1_pass(a, 0, sc)

def rest(a, X):
    stamp(a, "pB")
    sc = h1_sched(1, GATES)
    wl = groups_of(h2_wloads())
    def stslow(h):
        def f(a):
            a.label(f"L_st{X}{h}_slow"); a.reset()
            put(a, h1_stloads()); put(a, h1_stcheck(TAG))
            a(f"v_cmp_ne_u32 vcc, 0, v3\ns_cbranch_vccz L_st{X}{h}_back\ns_cmp_eq_u32 s{BUDGET}, 0\ns_cbranch_scc1 L_st{X}{h}_back\ns_sub_u32 s{BUDGET}, s{BUDGET}, 1\ns_branch L_st{X}{h}_slow")
        slow2.append(f)
        def chk(a):
            a(f"v_cmp_ne_u32 vcc, 0, v3\ns_cbranch_vccnz L_st{X}{h}_slow"); a.label(f"L_st{X}{h}_back")
        return costed(chk, "v", 1)
    EA = O("ea", 44)
    smalls(sc, [[small(x)] for x in h1_stloads()], max(0, EA - 44))
    p = sc.chain(h1_stcheck(TAG) + [stslow(0)], EA - 10, EA - 2, keep=G1K)
    p = sc.force(p + 1, [costed(lambda a: (stamp(a, "eA"), h1_epi(a, 0), a(f"s_add_u32 s{S_STL}, s{S_STL}, {1024*16}\ns_lshl_b32 s76, s{S_I}, 4\ns_add_u32 s76, s76, s{S_J}")), "v", 2)])
    pf = sc.at(BAR("hst0", then=lambda a: wflag(a, 76, FHE), c=3), p + O("ph", 40))
    SB = O("sb", 228); HC = O("hc", 190)
    smalls(sc, [[small(x)] for x in h1_stloads()], SB - 48)
    smalls(sc, [PI(246, 17, 247)], HC - 36)
    q2 = sc.at(PC(246, 17, 247, "Hseen"), HC)
    S = [[(h1_dma(1, ks), 0, 12 * (gate_of(GLs, ks) - 1) - 40 + ks / 100) for ks in range(LDONE[0], 20)],
         [(wl[n], 12 * ((n - 12) // 3 + 1) if n >= 12 else 0, 200 + n) for n in range(WDONE[0], 60)],
         [([h2_hload(n)], q2 + 1, O("hd", 180) + 5 * n) for n in range(12)]]
    pos = sc.streams(S, O("pb", 4.0), 0, 238, lambda n: G1B(n) or (n >= O("pbd", 240) and G1S(n)))
    assert len(pos[0]) == len(S[0])
    for ks, x in zip(range(LDONE[0], 20), pos[0]): assert x <= 12 * (gate_of(GLs, ks) - 1), (ks, x)
    nw = WDONE[0] + len(pos[1]); nh = len(pos[2])
    g = max(k for k in GATES if k >= 20)
    pre, rd = h1_st_reads(1)
    q = sc.chain(pre, 0, 10, keep=G1K)
    q = max(q, 12 * (g - 21) + 1, p + 1)
    q = sc.chain(rd, q, q + 4, 1, keep=G1B)
    q = sc.chain(h1_st_list(1, 0, TAG), q + 6, q + O("sl", 70), keep=G1K)
    assert q + 30 < SB - 48, q
    q3 = sc.chain(h2_hsetup(S_I2) + hflags(FHE, True), q + 1, HC - 38, keep=G1K)
    assert q3 < HC - 36, q3
    sc.chain(h1_stcheck(TAG) + [stslow(1)], SB, 238)
    print(f"pass B: epilogue A at {p}, FHE at {pf}, stats B done {q}, wd {nw}, h {nh}, overflow {sc.over()}", file=sys.stderr)
    for ks in range(20): fstamp(sc, 12 * ks, f"b{ks}")
    h1_pass(a, 1, sc)
    stamp(a, "g1done")
    for n in range(nh, 12): a(h2_hload(n))
    for g_ in wl[nw:]: put(a, g_)
    h1_epi(a, 1)
    for n in range(12, Q2NH): a(h2_hload(n))
    stamp(a, "g1epi")
    sc = Gaps(240)
    srd(a, 40, OUT, S_ * D * 2)
    PB1 = O("pb1", 40)
    sc.force(PB1, [BAR("hst1", then=lambda a: wflag(a, 76, FHL), c=3)])
    LC = O("lc", 110)
    sc.vm(PI(246, 17, 247), LC - O("ll", 30))
    p = sc.at(PC(246, 17, 247, "Lseen"), LC) + 1
    QS = O("qs", 46)
    pos = sc.streams([[([h2_hload(n)], max(5 * (n - Q2NH) + 5, p if n >= 24 else 0), 5 * n) for n in range(Q2NH, 48)], [(g, max(QS, PB1) + 1, 100) for g in g2_xdma()]], O("p2", 3.0))
    assert len(pos[0]) == 48 - Q2NH and all(x < 5 * n for x, n in zip(pos[0], range(Q2NH, 48))), pos
    wr = lambda sg: [f"ds_write_b128 v{220+sg}, {vr(Q2ACC[sg&1]+4*T,4)} offset:{T*1024}" for T in range(5)]
    assert PB1 < 62
    sc.chain(wr(0), 64, 76, 2)
    q = sc.chain(g2_setup(S_I2, S_J2) + hflags(FHL), 0, QS - 1)
    pg = q + 1
    for x in g2_gloads(): pg = sc.vm([small(x[0])], pg)[0] + 1
    q = sc.at(BAR("xi"), max(pos[1][-1], pg) + O("xw", 40))
    q = sc.chain(g2_xreads(), q, q + 8)
    qx = sc.chain(g2_xform(), q + 4, q + 36)
    q = sc.chain(wr(1), 123, 135, 2)
    q = sc.at("s_waitcnt lgkmcnt(0)\ns_barrier", max(q + O("g2d", 8), qx + 1))
    q = sc.chain([f"ds_read_b128 {vr(PT+12*sr+4*T,4)}, v224 offset:{5120*sr+1024*T}" for sr in range(4) for T in range(3)], q, q + 14)
    add = lambda x, y: [f"v_add_f32 v{x+i}, v{x+i}, v{y+i}" for i in range(12)]
    q = sc.chain(add(PT, PT + 12) + add(PT + 24, PT + 36) + add(PT, PT + 24), q + 2, q + 26)
    ho = h2_out(XE, PT + 12, 13)
    q = sc.chain([f"v_fma_f32 v{XE+i}, v{PT+i}, v{gb(i)}, v{XE+i}" for i in range(12)] + ho, q, q + 18)
    qe = q
    q = sc.chain(wr(2), 183, 195, 2)
    q = sc.at("s_waitcnt lgkmcnt(0)\ns_barrier", q + O("g2d", 8))
    q = sc.chain([f"ds_read_b128 {vr(PT+24+12*k+4*T,4)}, v225 offset:{10240*k+1024*T}" for k in range(2) for T in range(3)], max(q, qe), max(q, qe) + 8) + 7
    tail = add(PT + 24, PT + 36) + [f"v_fma_f32 v{XL+i}, v{PT+24+i}, v{gb(i)}, v{XL+i}" for i in range(12)]
    while tail and any(sc.extra(n, tail[0]) == 0 for n in range(q, 240)): q = sc.chain([tail.pop(0)], q, 239)
    print(f"gemm2: residual formed at {qx}, early rows stored at {qe}, left over {len(tail)}, overflow {sc.over()}", file=sys.stderr)
    for sg in range(4):
        stamp(a, f"h{sg}")
        for ks in range(12):
            n = 12 * sg + ks
            for T in range(5):
                ac = Q2ACC[sg & 1] + 4*T
                a(f"v_mfma_f32_16x16x32_bf16 {vr(ac,4)}, {wdreg(5*ks+T)}, {vr(Q2H+4*(n%Q2NH),4)}, {vr(ac,4) if ks else '0'}")
                sc.emit(a, 5*n + T)
    stamp(a, "h4")
    put(a, tail)
    put(a, wr(3))
    a("s_waitcnt lgkmcnt(0)\ns_barrier")
    put(a, [f"ds_read_b128 {vr(PT+12*k+4*T,4)}, v226 offset:{10240*k+1024*T}" for k in range(2) for T in range(3)])
    for i in range(0, 12, 2): a(f"v_pk_add_f32 {vr(PT+i,2)}, {vr(PT+i,2)}, {vr(PT+12+i,2)}")
    for i in range(0, 12, 2): a(f"v_pk_fma_f32 {vr(XL+i,2)}, {vr(PT+i,2)}, {vr(gb(i),2)}, {vr(XL+i,2)}")
    put(a, h2_out(XL, PT, 14))
    if "xcct" in OPT and X == "c":
        a(f"""
        s_cmp_eq_u32 s2, 8
        s_cbranch_scc0 L_xt_x
        v_mov_b32 v2, 0
        global_load_dword v3, v2, {sp(DBG)} sc1
        s_getreg_b32 s50, hwreg(HW_REG_XCC_ID, 0, 4)
        s_add_u32 s50, s50, 1
        s_waitcnt vmcnt(0)
        v_readfirstlane_b32 s51, v3
        s_cmp_eq_u32 s50, s51
        s_cbranch_scc1 L_xt_x
        s_memrealtime s[52:53]
        L_xt:
        s_sleep 4
        s_memrealtime s[50:51]
        s_waitcnt lgkmcnt(0)
        s_sub_u32 s50, s50, s52
        s_cmp_lt_u32 s50, 2000
        s_cbranch_scc1 L_xt
        L_xt_x:
        """)
    if "enc" in OPT:
        a("s_waitcnt vmcnt(0)"); stamp(a, "end")
        if OPT.get("encp", "c") == X:
            k = 0; A_, B_ = [78 + 2 * SNAMES.index(x) for x in OPT["enc"].split(",")]
            a(f"s_waitcnt lgkmcnt(0)\ns_sub_u32 s52, s{B_}, s{A_}\ns_mul_i32 s52, s52, {O('encm', 5)}\ns_add_u32 s52, s52, 3000")
            if "encw" in OPT: a(f"s_cmp_eq_u32 s2, {OPT['encw']}\ns_cbranch_scc0 L_enc_x{X}")
            a(f"""
            L_enc{X}:
            s_sleep 4
            s_memrealtime s[50:51]
            s_waitcnt lgkmcnt(0)
            s_sub_u32 s50, s50, s{78+2*k}
            s_cmp_lt_u32 s50, s52
            s_cbranch_scc1 L_enc{X}
            L_enc_x{X}:
            """)
    elif STAMPS:
        a("s_waitcnt vmcnt(0)")
        stamp(a, "end")
        a("s_waitcnt lgkmcnt(0)")
        a(f"s_lshl_b32 s50, s2, 2\ns_add_u32 s50, s50, s3\ns_lshl_b32 s50, s50, 6\ns_add_u32 s50, s50, {STAMP}\nv_mov_b32 v2, 0")
        for n in range(12): a(f"v_mov_b32 v{8+n}, s{78+2*n}")
        a("s_mov_b64 exec, 1")
        for n in range(3): a(f"buffer_store_dwordx4 v[{8+4*n}:{11+4*n}], v2, {WSR}, s50 offen offset:{16*n}")
        a("s_mov_b64 exec, -1")

    a("s_endpgm")

def body(a):
    def eload(a, tag=None):
        srd(a, 36, WS, WS_BYTES)
        a(f"v_mov_b32 v2, 0\ns_mov_b32 s57, {EPOCH}\nbuffer_load_dword v246, v2, {WSR}, s57 offen sc1", tag=tag)
    if "oldpf" not in OPT:
        a(f"""
        s_getpc_b64 s[40:41]
        L_pc0:
        s_lshr_b32 s51, s2, 3
        s_mul_i32 s51, s51, {O("pfl", 17) * 128}
        s_mov_b32 s42, L_code_end-L_pc0
        s_mov_b32 s43, 0x20000
        v_min_u32 v2, {O("pfl", 17) - 1}, v1
        v_lshlrev_b32 v2, 7, v2
        s_cmp_eq_u32 s3, 3
        s_cbranch_scc0 L_pf0
        """)
        a("buffer_load_dword v252, v2, s[40:43], s51 offen", nowait=True)
        a.label("L_pf0"); a.reset()
    a(f"""
    s_mov_b32 s{BUDGET}, {0 if "xnopoll" in OPT else 400000}
    s_and_b32 s50, s2, 7
    s_lshr_b32 s51, s2, 3              ; slot
    s_lshr_b32 s52, s50, {4-LJ}
    s_lshl_b32 s52, s52, {5-LJ}
    s_lshr_b32 s53, s51, {LJ}
    s_add_u32 s{S_I}, s52, s53
    s_lshl_b32 s53, s53, 3              ; k rotation by row tile (speed only: spreads first touches of the weights)
    s_mov_b32 s54, {hex(sum(int(x) << (8*k) for k, x in enumerate(O("rot", "0,2,4,6,8,1,5,9").split(",")[:4])))}
    s_mov_b32 s55, {hex(sum(int(x) << (8*k) for k, x in enumerate(O("rot", "0,2,4,6,8,1,5,9").split(",")[4:])))}
    s_lshr_b64 s[54:55], s[54:55], s53
    s_and_b32 s{R1}, s54, 255
    s_lshr_b32 s54, s50, 2              ; the two groups of XCDs that share a column tile start half way apart
    s_mul_i32 s54, s54, {O("goff", 10)}
    s_add_u32 s{R1}, s{R1}, s54
    s_sub_u32 s54, s{R1}, 20
    s_min_u32 s{R1}, s{R1}, s54
    s_and_b32 s52, s50, {(1 << (4-LJ)) - 1}
    s_lshl_b32 s52, s52, {LJ}
    s_and_b32 s53, s51, {(1 << LJ) - 1}
    s_add_u32 s{S_J}, s52, s53
    s_and_b32 s{S_J2}, s51, 7
    s_lshr_b32 s53, s51, 3
    s_lshl_b32 s52, s50, 2
    s_add_u32 s{S_I2}, s52, s53
    s_mul_i32 s{S_CU}, s50, 20
    s_add_u32 s{S_CU}, s{S_CU}, s51
    s_sub_u32 s{S_PU}, s2, 160
    s_lshl_b32 s52, s50, 1
    s_cmp_ge_u32 s51, 10
    s_addc_u32 s52, s52, 0
    s_cmp_ge_u32 s51, 10
    s_cselect_b32 s53, 10, 0
    s_sub_u32 s53, s51, s53
    s_lshl_b32 s53, s53, 4
    s_add_u32 s76, s52, s53
    s_lshl_b32 s58, s{S_CU}, 2
    s_add_u32 s58, s58, s3
    v_lshlrev_b32 v248, 4, v1
    """)
    def ptrs(a):
        a("s_waitcnt lgkmcnt(0)")
        if "entry" not in OPT: stamp(a, "start")
        else: a.comment("stamp 0 start"); stamp(a, "pro")
        a("s_cmp_ge_u32 s2, 160\ns_cbranch_scc1 L_prep")
        if "xnoconv" in OPT: a("s_branch L_end")
    def gettag():
        a(f"""
        v_readfirstlane_b32 s{TAG}, v246
        s_mul_i32 s{TAG}, s{TAG}, 0x9E3779B1
        s_add_u32 s{TAG}, s{TAG}, 0x7F4A7C15
        """)
    QM, KM = O("qm", "late"), O("km", "mid")
    WV = 224
    def wdma(n, slot=None, V=WV, each=False):
        L = wdir_dma(n, SL[n % 5] if slot is None else slot, V, each=each)
        return [((x[0].replace(" lds", " nt lds"), x[1]) if isinstance(x, tuple) and n < O("wnt", 0) else x) for x in L]
    wrd = lambda n: wdir_reads2(n, SL[n % 5], WV)
    NB = O("nb", 4); N2 = O("n2", 0); NC = O("nc", 15)
    first_loads(a, 76, ptrs, lambda a: (stamp(a, "kviss"), eload(a, "kv")))
    if QM == "first": phaseA_qload(a)
    if KM == "first": kload(a)
    a("v_mov_b32 v243, v3")
    PK, PQ, PH = O("prk", ""), O("prq", ""), O("prh", "")
    if PK == "r1": preT(a, KVT, True, 238)
    if PQ == "r1": preT(a, QT, False, 239)
    if PH == "r1": preH(a, 237)
    WM = O("wm", "mid")
    if PP:
        if "wpnt" not in OPT: WPNT[0] = " nt"
        put(a, wf_setup(S_J)); wp_setup(a)
    else: wdir_setup2(a, S_J, WV)
    kzero(a, 223)
    esetup(a)
    conv_addr(a)
    put(a, h1_vsetup(S_J, S_J2) + xflags(219, 0)[:-1])
    a("v_mov_b32 v3, v243")
    if QM == "late": phaseA_qload(a)
    if KM == "late": kload(a)
    if PP and WM == "late": wp_issue(a)
    if PK == "late": preT(a, KVT, True, 238, 8)
    if PQ == "late": preT(a, QT, False, 239, 8)
    stamp(a, "setup")
    phaseA_read(a)
    stamp(a, "kvland")
    if QM == "mid": phaseA_qload(a)
    if PQ == "mid": preT(a, QT, False, 239)
    if KM == "mid": kload(a)
    if PP and WM == "mid": wp_issue(a)
    NM = O("nm", 0); assert NM <= min(2, NB)
    for n in range(NM): put(a, wdma(n))
    phaseA_compute(a)
    stamp(a, "Acomp")
    if KM == "post": kload(a)
    if QM != "mid":
        a.waitv("q"); a("s_barrier")
        phaseA_q(a, 184)
    if PP and WM == "post": wp_issue(a)
    if "kcl" not in OPT: kcopies(a, 223)
    signal(a, 76, FA, gettag, tag="kvst")
    stamp(a, "Asig")
    if QM == "mid": phaseA_q(a, 184)
    if PH == "sig": preH(a, 237)
    if KM == "sig": kload(a)
    if PP:
        if WM == "post": a.waitv("wp"); a("s_barrier")
        wp_finish(a, S_CU, 128, 0)
    for n in range(NM, NB): put(a, wdma(n))
    if "kcl" in OPT: kcopies(a, 223)
    if "xcct" in OPT:
        a(f"s_cmp_eq_u32 s2, 0\ns_cbranch_scc0 L_xt0\ns_getreg_b32 s50, hwreg(HW_REG_XCC_ID, 0, 4)\ns_add_u32 s50, s50, 1\nv_mov_b32 v2, 0\nv_mov_b32 v3, s50")
        a(f"global_store_dword v2, v3, {sp(DBG)} sc1", cond=True); a.label("L_xt0")
    conv_dfrag(a)
    a(f"v_mov_b32 v4, v{AA}\nv_mov_b32 v5, v{AF}")
    if NB: a.waitv(f"w{NB-1}")
    FWL = PP and "fwl" in OPT
    if PP and not FWL: a.waitv("wpst")
    a.waitv("qst"); a("s_barrier"); wflag(a, 76, FT)
    if PP and not FWL: wflag(a, S_CU, FW)
    stamp(a, "kcop")
    for n in range(NB): put(a, wrd(n))
    poll(a, 242, 59)
    stamp(a, "kvseen")
    xload(a)
    if FWL: a("s_barrier"); wflag(a, S_CU, FW)
    C2 = O("c2", 10); CL = O("cl", 40); PE = O("pe", 95); PF = O("pf", 45)
    nr = nd = NB
    if C2 - CL < 0: poll_issue(a, 240, 69, 243)
    if NB + N2 > 5: a("s_waitcnt lgkmcnt(0)\ns_barrier")
    while nd < min(NC, nr + N2): put(a, wdma(nd)); nd += 1
    sc = c2_sched(); N = sc.N
    if C2 - CL >= 0: sc.vm(PI(240, 69, 243), C2 - CL)
    p2 = sc.at(costed(lambda a: (poll_check(a, 240, 69, 243), a.waitl(f"wr{NB-1}"), a("s_barrier"), stamp(a, "qseen")), "v", 2), C2)
    ml = f"buffer_load_dwordx2 v[{ET}:{ET+1}], v253, {WSR}, s55 offen sc1"
    sc.vm([small(ml)], PE - O("ml", 45))
    def mslow(a):
        a.label("L_m_slow"); a.reset()
        a(ml)
        a(f"v_cmp_ne_u32 vcc, s{TAG}, v{ET+1}\ns_cbranch_vccz L_m_back\ns_cmp_eq_u32 s{BUDGET}, 0\ns_cbranch_scc1 L_m_back\ns_sub_u32 s{BUDGET}, s{BUDGET}, 1\ns_sleep 1\ns_branch L_m_slow")
    slow2.append(mslow)
    def mcheck(a):
        a(f"v_cmp_ne_u32 vcc, s{TAG}, v{ET+1}\ns_cbranch_vccnz L_m_slow"); a.label("L_m_back")
        a(f"""
        v_mov_b32_dpp v252, v{ET} quad_perm:[3,3,3,3] row_mask:0xf bank_mask:0xf
        v_mul_f32_dpp v251, v{ET}, v252 quad_perm:[2,2,2,2] row_mask:0xf bank_mask:0xf
        v_mul_f32_dpp v250, v{ET}, v251 quad_perm:[1,1,1,1] row_mask:0xf bank_mask:0xf
        v_mul_f32_dpp v251, v{ET}, v251 quad_perm:[0,0,0,0] row_mask:0xf bank_mask:0xf
        """)
    sc.force(PE - 12, [BAR("st1")])
    sc.chain(streads(0), PE - 12, PE - 4, 1)
    sc.force(PE, [costed(lambda a: (mcheck(a), stamp(a, "e1"), pre_pk(a), fin_pk(a, 0), stamp(a, "e1done")), "v", 2)])
    sc.force(PE + PF, [BAR("a1st0", then=lambda a: (wflag(a, S_CU, FXE), stamp(a, "fxe")), c=3)])
    XC = O("xc", 250)
    sc.vm(PI(219, 17, 223), XC - O("xl", 30))
    XC = sc.at(PC(219, 17, 223, "xseen"), XC)
    pfp = sc.vm(PI(241, 60, 243), PE + 10)[0]
    sl = sc.chain(streads(1), PE + 2, PE + 14, 1)
    LEAD = O("lead", 50); W0 = O("w0", 102); W1 = O("w1", 270); bp = {}; sfree = [0] * 5; q = 0
    for n in range(nr, NC if not PP else 0):
        p = max(q + 1, W0 + (W1 - W0) * (n - nr) // max(1, NC - 1 - nr))
        if PE - 13 <= p <= PE + 1: p = PE + 2
        bp[n] = sc.at(BAR(f"w{n}", f"l:wr{n-1}"), p, 2)
        q = sc.chain(wrd(n), bp[n], bp[n] + 7, 1)
        sfree[(n - 1) % 5] = bp[n]
    pw = 0
    if not PP: pw = sc.at(BAR(f"l:wr{NC-1}"), q + 4); sfree[(NC - 1) % 5] = pw
    pre5 = nr + 5; wf = groups_of(wf_loads())
    SW = [(wf[n], p2 + 1, N - O("wdl", 100) + 4 * n) for n in range(60)] if PP else [(g, max(p2 + 1, O("d0", 30)) if n < pre5 else bp[max(n - 4, nr)] + 1, bp[n] - LEAD) for n in range(nd, NC) for g in groups_of(wdma(n, each=True))]
    erel = lambda ks: max([XC + 1] + [sfree[k] + 1 for k in range(5) if SL[k] < 4096 * (ks + 1) and 4096 * ks < SL[k] + WSLOT2])
    S = [SW, [(g, p2 + 1, PE - 70) for g in st1dma() + qloads(0)], [(g, PE + 1, PE + 20) for g in qloads(1)],
         [(h1_dma(0, ks), erel(ks), N - 60 + (12 * (gate_of(GE, ks) - 1) if ks >= GE[0] else 0) + ks / 100) for ks in range(O("npre", 15))]]
    pos = sc.streams(S, O("pc", 4.0), 0, N - 2, wt=[O("ww", 1.0 if PP else 1.5), 1, 1, 1])
    assert all(len(x) == len(y) for x, y in list(zip(pos, S))[PP:3]), [(len(x), len(y)) for x, y in zip(pos, S)]
    assert pos[1][-1] < PE - 14
    log = [(n, bp[n], bp[n] - pos[0][3 * (n - nd) + 2]) for n in range(nd, NC)] if not PP else [(len(pos[0]), 0, 1)]; nwf = len(pos[0])
    assert all(x[2] > 0 for x in log), log
    npre = len(pos[3]); ql = pos[2][-1]
    b = Asm(); h1_ssetup(b, S_I, S_J); put(b, [f"s_mov_b32 s17, {FLG}"])
    SS = [re.sub(r"\bs50\b", "s53", re.sub(r"\bs35\b", "s52", re.sub(r"\bs62\b", "s16", x.text))) for k, x in b.items if k == "ins"]
    SS = SS[-1:] + SS[:-1] + [y for x in h2_wsetup(S_J2) for y in x.split("\n")]
    q = sc.chain(SS, 1, XC - 40, 1)
    pl = sc.chain(pre_list(), max(ql + 50, sl + 4), O("pld", 270))
    pi = sc.at(PC(241, 60, 243), pfp + 50)
    b = Asm(); h1_icb(b); IL = [x.text.replace("s50", "s56") for k, x in b.items if k == "ins"]
    pi = sc.chain(IL[:2] + [IL[2] + "\n" + IL[3]] + IL[4:6], pi + 1, pi + 8)
    for x in IL[6:]: pi = sc.vm([small(x)], pi + 1)[0]
    print(f"conv: weights {log} done {pw}; stats/q {pos[1]}; late pre {pl}; x seen {XC}; early {pos[3]}; overflow {sc.over()}", file=sys.stderr)
    for c in range(8): fstamp(sc, c2_start(1, c), f"c{c}")
    a.waitv("xdma")
    stamp(a, "cstart")
    for l in c2_loads(0, 0): a(l)
    seen = set()
    for n, (part, c, u, w, dterm) in enumerate(C2M):
        t = u + w; bb = c & 1
        A = vr(DFR, 4) if dterm else vr(AB[bb] + 4*u, 4)
        a(f"v_mfma_f32_16x16x32_bf16 {vr(ACC+4*t,4)}, {A}, {vr(FB[bb]+4*w,4)}, {vr(ACC + 4*t, 4) if t in seen else '0'}")
        seen.add(t)
        sc.emit(a, n)
    stamp(a, "cdone")
    order = sorted(range(4), key=lambda t: max(n for n, m in enumerate(C2M) if m[2] + m[3] == 4 + t))
    NP2 = max(npre, min(GE[0] if GE else 20, 15))
    for ks in range(npre, NP2): put(a, h1_dma(0, ks))
    V2 = 200; WB = 163840 - WSLOT2 * (20 - NC)
    tb = {n: O("t0", 90) + O("tp", 18) * (n - NC) for n in range(NC, 21)}
    wrest = [(g, 0, tb[n] - LEAD) for n in range(NC, 20) for g in groups_of(wdma(n, WB + WSLOT2 * (n - NC), V2, True))]
    if PP: wrest = [(wf[n], 0, 12 * (n // 3) - 60 + n / 100) for n in range(nwf, 60)]
    def conv_extra(sc, conv=True):
        q = 0; fr = {}
        for n in range(NC, 21):
            if NC == 20: break
            q = sc.at(BAR(*([f"w{n}"] if n < 20 else []), *([f"l:wr{n-1}"] if n > NC else [])), max(q + 1, tb[n]), 2); fr[n - 1] = q + 1
            if n < 20:
                q = sc.chain(wdir_reads2(n, WSLOT2 * (n - NC), V2), q, q + 10, 1, keep=G1B)
                assert q + 6 < 12 * n, (n, q)
        if conv: sc.at(BAR("a1st1", then=lambda a: wflag(a, S_CU, FXL), c=3), O("pl", 35))
        return lambda ks: max([0] + [fr[n] for n in range(NC, 20) if WB + WSLOT2 * (n - NC) < IMG + 4096 * (ks + 1) and IMG + 4096 * ks < WB + WSLOT2 * (n - NC + 1)])
    def head(a):
        fin_pk(a, 1, order)
        if NC < 20:
            for k in range(3): a(f"v_mov_b32 v{200+k}, v{WV+k}")
            for k in (3, 4): a(f"v_add_u32 v{200+k}, {WB}, v{WV+k}")
    passA(a, NP2, head, wrest, conv_extra)
    rest(a, 'c')
    a.label("L_prep"); a.reset()
    if "xnoprep" in OPT: a("s_branch L_end")
    eload(a)
    if 'oldpf' in OPT:
        CN = " nt" if "cnt" in OPT else ""
        a(f"""
        s_lshr_b32 s51, s2, 3
        s_cmp_eq_u32 s51, {O("pfs", 31)}
        s_cbranch_scc0 L_nopf
        s_getpc_b64 s[40:41]
        L_pc:
        s_sub_u32 s40, s40, L_pc-{NAME}_kernel
        s_subb_u32 s41, s41, 0
        s_mov_b32 s42, L_code_end-{NAME}_kernel
        s_mov_b32 s43, 0x20000
        v_lshlrev_b32 v2, 7, v0
        s_mov_b32 s52, 0x8000
        buffer_load_dword v250, v2, s[40:43], 0 offen{CN}
        buffer_load_dword v251, v2, s[40:43], s52 offen{CN}
        s_mov_b32 s52, 0x10000
        buffer_load_dword v252, v2, s[40:43], s52 offen{CN}
        L_nopf:
        """, nowait=True)
        a.reset()
    a.reset()
    V = 230; slot = lambda m: WLB + (m % 8) * WSLOT2
    def wpipe(a, n0, n1, mid=None, first=None, at=None):
        nd = min(n0 + 6, n1)
        wdir_dma = lambda n, sl, V: wdma(n, sl, V)
        for n in range(n0, nd): put(a, wdir_dma(n, slot(n), V))
        if mid: mid(a)
        for n in range(n0, n1, 2):
            last = min(n + 1, n1 - 1)
            a.waitv(f"w{last}")
            if n > n0: a.waitl(f"wr{n-1}")
            a("s_barrier")
            if first and n == n0: first(a)
            for m in range(n, last + 1): put(a, wdir_reads2(m, (m % 4) * WSLOT2, V + (5 if m % 8 >= 4 else 0)))
            for _ in range(2):
                if nd < n1:
                    put(a, wdir_dma(nd, slot(nd), V)); nd += 1
                    if at and nd == at[0]: at[1](a)
        if at: a.waitv("wst")
        a("s_waitcnt lgkmcnt(0)\ns_barrier")
    a(f"""
    s_add_u32 s50, s{S_PU}, 10
    s_cmp_lt_u32 s{S_PU}, 30
    s_cselect_b32 s77, s{S_PU}, s50
    s_sub_u32 s50, s{S_PU}, 10
    s_cmp_lt_u32 s{S_PU}, 50
    s_cselect_b32 s50, s50, s{S_PU}          ; 30..39, 50..63
    s_cmp_lt_u32 s{S_PU}, 40
    s_cselect_b32 s77, s77, s50
    s_mov_b32 s76, 0
    s_cmp_ge_u32 s{S_PU}, 60
    s_cbranch_scc1 L_p_q
    """)
    mod_cloads(a, 80)
    if "modlate" not in OPT: mod_loads(a, 77, 80)
    mod_silu(a, 80, 180)
    if "modlate" in OPT: mod_loads(a, 77, 80)
    stamp(a, "kvland")
    mod_finish(a, 77, 80, 180, 0)
    stamp(a, "Acomp")
    gettag()
    mod_finish2(a, 77, 80, 180, 0, TAG)
    a(f"s_add_u32 s77, s77, {(FP2-FQ)//128}\ns_branch L_p_w")
    a.label("L_p_q"); a.reset()
    a(f"""
    s_and_b32 s50, s2, 7
    s_lshr_b32 s52, s2, 3             ; the other two have no job: they start on the weights and publish cw / sw of their column tile
    s_lshr_b32 s53, s50, 2
    s_xor_b32 s53, s53, s52
    s_and_b32 s53, s53, 1
    s_xor_b32 s76, s53, 1
    s_cmp_ge_u32 s{S_PU}, 64
    s_cselect_b32 s76, s76, 0
    s_cselect_b32 s53, s53, 0
    s_lshl_b32 s50, s50, 2
    s_and_b32 s52, s52, 2
    s_add_u32 s77, s50, s52
    s_add_u32 s69, s77, 1
    s_cmp_eq_u32 s53, 0
    s_cbranch_scc0 L_p_s
    s_waitcnt vmcnt(0)
    """)
    gettag()
    a(f"s_add_u32 s77, s{S_PU}, {(FY-FQ)//128}\ns_branch L_p_w")
    a.label("L_p_s"); a.reset()
    if "qnt" not in OPT: phases.NT = ""
    st1_loads(a, 77, 16); st1_loads(a, 69, 96)
    phases.NT = " nt"
    stamp(a, "kvland")
    st1_finish(a, 77, 16, 180); st1_finish(a, 69, 96, 180)
    stamp(a, "Acomp")
    signal(a, 77, FQ, lambda: (gettag(), wflag(a, 69, FQ, 2)))
    a.label("L_p_w"); a.reset()
    stamp(a, "Asig")
    srd(a, 56, WD_, 1536 * 640 * 2)
    WDH = WLB + 8 * WSLOT2
    wdir_setup2(a, S_J, V)
    a(f"v_add_u32 v{V+3}, {WLB}, v{V+3}\nv_add_u32 v{V+4}, {WLB}, v{V+4}\nv_add_u32 v{V+8}, {4*WSLOT2}, v{V+3}\nv_add_u32 v{V+9}, {4*WSLOT2}, v{V+4}")
    def psetup(a):
        h1_ssetup(a, S_I, S_J)
        put(a, h1_vsetup(S_J, S_J2) + xflags(219, 0) + h2_wsetup(S_J2))
    wpipe(a, 0, NC, psetup, lambda a: (wflag(a, 77, FQ, 2), wflag(a, S_PU, FY, 2)), (min(NC, O("wdp", 15)), lambda a: wdh_loads(a, S_PU, WDH)))
    wdh_finish(a, S_PU, WDH, 16)
    stamp(a, "kcop")
    a(f"s_cmp_eq_u32 s76, 1\ns_cbranch_scc0 L_nobias\ns_mov_b32 s69, s64")
    def tab(a):
        poll_lines(a, f"s_mov_b32 s52, {FP2+30*128}", 20)
        put(a, g1_table_load(WDH + 20480))
    wpipe(a, NC, 20, tab)
    a("s_mov_b32 s64, s69")
    g1_bias(a, 0, 20, 40, WDH + 20480)
    h1_biasstore(a)
    a.label("L_nobias"); a.reset()
    a("s_waitcnt vmcnt(0)\ns_barrier")
    wflag(a, S_PU, FP3, 2)
    a(f"s_cmp_eq_u32 s76, 1\ns_cbranch_scc0 L_nobias2")
    wflag(a, S_J, FB_, 2)
    a.label("L_nobias2")
    a("s_cmp_eq_u32 s2, 223\ns_cbranch_scc0 L_p_x")
    a(f"""
    v_lshlrev_b32 v5, 7, v0
    v_add_u32 v6, {FY-FA-160*128}, v5
    v_cmp_lt_u32 vcc, 159, v0
    v_cndmask_b32 v5, v5, v6, vcc
    s_mov_b32 s52, {FA}
    """)
    poll(a, 5, 52)
    a("s_barrier")
    a(f"s_cmp_eq_u32 s3, 0\ns_cbranch_scc0 L_p_x\ns_mov_b32 s50, {EPOCH}\nv_mov_b32 v2, 0\nv_mov_b32 v3, s{TAG}\ns_mov_b64 exec, 1")
    a(f"buffer_store_dword v3, v2, {WSR}, s50 offen sc1", cond=True)
    a("s_mov_b64 exec, -1")
    a.label("L_p_x"); a.reset()
    stamp(a, "cdone")
    a(f"""
    v_min_u32 v2, 49, v1
    v_lshlrev_b32 v2, 7, v2
    v_add_u32 v2, {FP2-FLG}, v2
    v_cmp_lt_u32 vcc, 39, v1
    v_cndmask_b32 v219, v219, v2, vcc
    """)
    for k in range(3): a(f"v_mov_b32 v{200+k}, v{V+k}")
    for k in (3, 4): a(f"v_add_u32 v{200+k}, {WB-WLB}, v{V+k}")
    NPW = O("npw", 2)
    for n in range(NC, min(20, NC + NPW)): put(a, wdma(n, WB + WSLOT2 * (n - NC), V2))
    poll(a, 219, 17, 223)
    stamp(a, "xseen")
    NPP = O("npp", 12)
    for ks in range(NPP): put(a, h1_dma(0, ks))
    h1_icb(a)
    passA(a, NPP, None, wrest[3 * NPW:], lambda sc: conv_extra(sc, False))
    rest(a, 'p')

def build():
    name = NAME + "_kernel"
    a = Asm()
    a.raw(f".globl {name}\n.p2align 8\n.type {name},@function\n{name}:")
    if "entry" in OPT: a(f"{STI} s[78:79]")
    prologue(a, 256, "L_end", wait=False)
    body(a)
    a.label("L_end")
    a("s_endpgm")
    emit_slow(a)
    a.label("L_code_end")
    hdr = open("cdna_kernels/" + NAME + ".s.ref").read().split("; Override")[0]
    txt = hdr + "; @launch grid=(256,1,1) block=(256,1,1) lds=163840\n"
    txt += '.amdgcn_target "amdgcn-amd-amdhsa--gfx950"\n.text\n' + a.finish()
    txt += f""".section .rodata,"a"
.p2align 6
.amdhsa_kernel {name}
  .amdhsa_next_free_vgpr 512
  .amdhsa_next_free_sgpr 102
  .amdhsa_accum_offset 256
  .amdhsa_group_segment_fixed_size 0
  .amdhsa_kernarg_size 120
  .amdhsa_user_sgpr_count 2
  .amdhsa_user_sgpr_kernarg_segment_ptr 1
  .amdhsa_system_sgpr_workgroup_id_x 1
.end_amdhsa_kernel
"""
    return txt
if __name__ == "__main__":
    out = [x for x in sys.argv[1:] if not x.startswith("--")][0]
    open(out, "w").write(build())
```

```python
import sys, re
from halves import *
import phases, halves
NAME = "adaLN_cond__ssm_conv_h3__glu_gated_bilinear__prompt"
OPT = {"modlate": "1", "noeb": "1", "ww": "1.1", "wa0": "70", "wnt": "3", "psl": "4", "km": "late", "ea": "44", "pf": "35", "hc": "180", "xl": "20", "pl": "25", "ll": "20"}
OPT.update({x.split("=")[0][2:]: (x.split("=") + ["1"])[1] for x in sys.argv[1:] if x.startswith("--")})
OPT = {k: v for k, v in OPT.items() if v != "off"}
def O(k, d): return type(d)(OPT.get(k, d))
FA, FQ, FP2, FP3, FXE, FXL, FB_, FHE, FHL, FY, FT, FW = [FLG + 128 * n for n in (0, 160, 200, 264, 360, 520, 680, 696, 952, 1208, 1368, 1528)]
TAG, BUDGET, T16 = 48, 49, 77
S_CU, S_PU, S_I, S_J, S_I2, S_J2 = 70, 71, 72, 73, 74, 75
PP = "pp" in OPT
if PP: OPT.update(rot="0,0,0,0,0,0,0,0", goff="0", nb="0", n2="0", nc="20")
STAMPS = "stamps" in OPT
SNAMES = OPT["stamps"].split(",") if STAMPS else ["start"]
assert len(SNAMES) <= 12 and SNAMES[0] == "start"
STI = "s_memtime" if "cyc" in OPT else "s_memrealtime"
def stamp(a, name):
    if STAMPS and name in SNAMES:
        n = SNAMES.index(name)
        a(f"{'s_memrealtime' if n == 0 and 'enc' in OPT else STI} s[{78+2*n}:{79+2*n}]")
def fstamp(sc, n, name):
    if STAMPS and name in SNAMES: sc.fill.setdefault(n, []).insert(0, costed(lambda a: stamp(a, name), 's', 0))

lab = [0]
def poll(a, voff, sbase, tmp=2, TAG=TAG):
    lab[0] += 1; L = f"L_poll{lab[0]}"
    a.label(L)
    a(f"""
    buffer_load_dword v{tmp}, v{voff}, {WSR}, s{sbase} offen sc1
    s_waitcnt vmcnt(0)
    v_cmp_ne_u32 vcc, s{TAG}, v{tmp}
    s_cbranch_vccz {L}_ok
    s_cmp_eq_u32 s{BUDGET}, 0
    s_cbranch_scc1 {L}_ok
    s_sub_u32 s{BUDGET}, s{BUDGET}, 1
    s_sleep {O('psl', 1)}
    s_branch {L}
    {L}_ok:
    """)
def flagstore(a, sline, base, v=2, sr=50, TAG=TAG):
    a(f"""
    s_lshl_b32 s{sr}, s{sline}, 7
    s_add_u32 s{sr}, s{sr}, {base}
    v_mov_b32 v{v}, 0
    v_mov_b32 v{v+1}, s{TAG}
    s_mov_b64 exec, 1
    buffer_store_dword v{v+1}, v{v}, {WSR}, s{sr} offen sc1
    s_mov_b64 exec, -1
    """, cond=True)
def wflag(a, sline, base, v=254, TAG=TAG):
    lab[0] += 1; L = f"L_wf{lab[0]}"
    a(f"s_cmp_eq_u32 s3, 0\ns_cbranch_scc0 {L}")
    flagstore(a, sline, base, v, 54, TAG)
    a.label(L)
def wcount(a, base, v=254):
    lab[0] += 1; L = f"L_wf{lab[0]}"
    a(f"s_cmp_eq_u32 s3, 0\ns_cbranch_scc0 {L}")
    a(f"""
    s_lshr_b32 s54, s{S_CU}, 4
    s_lshl_b32 s54, s54, 7
    s_add_u32 s54, s54, {base}
    v_mov_b32 v{v}, 0
    v_mov_b32 v{v+1}, 1
    s_mov_b64 exec, 1
    buffer_atomic_add v{v+1}, v{v}, {WSR}, s54 offen sc1
    s_mov_b64 exec, -1
    """, cond=True)
    a.label(L)
def signal(a, sline, base, pre=None, tag=None, TAG=TAG):
    if tag: a.waitv(tag); a("s_waitcnt lgkmcnt(0)")
    else: a("s_waitcnt vmcnt(0) lgkmcnt(0)")
    a("s_barrier")
    if pre: pre()
    wflag(a, sline, base, 2, TAG)
slow = []; slow2 = []; pending = {}
def poll_issue(a, voff, sbase, tmp):
    pending[tmp] = (voff, sbase)
    a(f"buffer_load_dword v{tmp}, v{voff}, {WSR}, s{sbase} offen sc1")
def poll_check(a, voff, sbase, tmp, TAG=TAG):
    lab[0] += 1; L = f"L_chk{lab[0]}"
    assert pending.pop(tmp, None) == (voff, sbase), "poll_check without a preceding poll_issue"
    a(f"v_cmp_ne_u32 vcc, s{TAG}, v{tmp}\ns_cbranch_vccnz {L}_slow")
    a.label(L + "_back")
    slow.append((L, voff, sbase, tmp, TAG))
def emit_slow(a):
    for f in slow2: f(a)
    for L, voff, sbase, tmp, TG in slow:
        a.label(L + "_slow"); a.reset()
        poll(a, voff, sbase, tmp, TG)
        a(f"s_branch {L}_back")
def poll_lines(a, sfirst_expr, n):
    a(sfirst_expr)
    a(f"v_min_u32 v5, {n-1}, v1\nv_lshlrev_b32 v5, 7, v5")
    poll(a, 5, 52)
def small(x, tag=None): return costed(lambda a: a(x, tag=tag), "m", 1)
PI = lambda v, s, t: [costed(lambda a: poll_issue(a, v, s, t), "m", 1)]
PC = lambda v, s, t, st=None, TG=TAG: costed(lambda a: (poll_check(a, v, s, t, TG), st and stamp(a, st)), "v", 1)
def BAR(*waits, then=None, c=2):
    def f(a):
        for w in waits: (a.waitl(w[2:]) if w.startswith("l:") else a.waitv(w))
        a("s_barrier")
        if then: then(a)
    return costed(f, "s", c)

from sched2 import Gaps
halves.Sched = Gaps

if "noalias" not in OPT: A1T = halves.A1T = KVT
def preH(a, v=245, t=2):
    a(f"""
    v_min_u32 v{t}, 47, v1
    v_cmp_lt_u32 vcc, 23, v{t}
    v_cndmask_b32 v{t+1}, 0, 1, vcc
    v_mul_u32_u24 v{t+1}, {49152 - 24*128}, v{t+1}
    v_lshl_add_u32 v{t}, v{t}, 7, v{t+1}
    s_and_b32 s50, s3, 1
    s_lshl_b32 s50, s50, 1
    s_lshr_b32 s51, s3, 1
    s_lshl_b32 s51, s51, 6
    s_add_u32 s50, s50, s51
    s_lshl_b32 s51, s{S_I}, 2
    s_add_u32 s50, s50, s51
    s_mul_i32 s50, s50, 49152
    s_mul_i32 s51, s{S_J}, 3072
    s_add_u32 s50, s50, s51
    s_add_u32 s50, s50, {HB}
    """)
    a(f"buffer_load_dword v{v}, v{t}, {WSR}, s50 offen", tag="pre")
def preT(a, base, rev, v, t=2):
    a(f"""
    s_lshr_b32 s50, s76, 4
    s_mul_i32 s50, s50, {64*PT_}
    s_and_b32 s51, s76, 15
    s_lshl_b32 s51, s51, 8
    """ + (f"s_sub_u32 s51, {4096-256}, s51\n" if rev else "") + f"""
    s_add_u32 s50, s50, s51
    s_lshl_b32 s51, s3, 4
    s_mul_i32 s51, s51, {PT_}
    s_add_u32 s50, s50, s51
    s_add_u32 s50, s50, {base}
    v_bfe_u32 v{t}, v1, 1, 4
    v_mul_u32_u24 v{t}, {PT_}, v{t}
    v_and_b32 v{t+1}, 1, v1
    v_lshl_add_u32 v{t}, v{t+1}, 7, v{t}
    """)
    a(f"buffer_load_dword v{v}, v{t}, {WSR}, s50 offen nt", tag="pre")
SL = [WSLOT2 * n for n in range(5)]
phases.PA = 25536
ST1L = 62464
KB = 78848
XOFF = KB + 4 * KCH
assert XOFF + 4 * XSTR == 163840
def kload(a):
    a(f"s_lshl_b32 s50, s58, 12\ns_mul_i32 s51, s3, {KCH}\ns_add_u32 m0, s51, {KB+32}")
    srd(a, 44, SSMK, S * D * 2)
    for n in range(4): a(f"buffer_load_dwordx4 v248, s[44:47], s50 offen offset:{1024*n}{' nt' if 'knt' not in OPT else ''} lds", tag="kdma")
def kzero(a, keep):
    a(f"""
    s_mul_i32 s51, s3, {KCH}
    s_add_u32 s51, s51, {KB}
    v_add_u32 v{keep}, s51, v248
    v_lshrrev_b32 v8, 1, v1
    v_mul_u32_u24 v8, {KSTR}, v8
    v_and_b32 v4, 1, v1
    v_lshl_add_u32 v8, v4, 4, v8
    v_add_u32 v8, s51, v8
    v_mov_b32 v4, 0
    v_mov_b32 v5, 0
    v_mov_b32 v6, 0
    v_mov_b32 v7, 0
    s_mov_b64 exec, 0xff
    ds_write_b128 v8, v[4:7]
    s_mul_i32 s52, s3, {XSTR}
    s_add_u32 s52, s52, {XOFF+4096}
    s_mov_b64 exec, 0x3fffffff
    v_add_u32 v8, s52, v248
    ds_write_b128 v8, v[4:7]
    s_mov_b64 exec, -1
    """)
def kcopies(a, keep, R=8):
    a.waitv("kdma")
    for n in range(4):
        a(f"ds_read_b128 {vr(R+6*n,4)}, v{keep} offset:{32+1024*n}")
        a(f"ds_read_b64 {vr(R+4+6*n,2)}, v{keep} offset:{48+1024*n}")
    a(f"""
    s_mov_b64 exec, 1
    v_lshlrev_b32 v80, 16, v{R}
    v_alignbit_b32 v81, v{R+1}, v{R}, 16
    ds_write_b32 v{keep}, v80 offset:{KSTR+28}
    ds_write_b32 v{keep}, v{R} offset:{2*KSTR+28}
    ds_write_b32 v{keep}, v80 offset:{3*KSTR+24}
    ds_write_b32 v{keep}, v81 offset:{3*KSTR+28}
    s_mov_b64 exec, -1
    """)
    for n in range(4):
        c = R + 6*n; t = 56 + 12*(n & 1)
        for d in range(4): a(f"v_alignbit_b32 v{t+d}, v{c+d+1}, v{c+d}, 16")
        a(f"v_pk_mov_b32 {vr(t+4,2)}, {vr(c,2)}, {vr(c+2,2)} op_sel:[1,0]")
        a(f"v_pk_mov_b32 {vr(t+6,2)}, {vr(c+2,2)}, {vr(c+4,2)} op_sel:[1,0]")
        for d in range(4): a(f"v_alignbit_b32 v{t+8+d}, v{c+d+2}, v{c+d+1}, 16")
        for j in range(1, 4):
            a(f"ds_write_b128 v{keep}, {vr(t+4*(j-1),4)} offset:{j*KSTR+32+1024*n}")
def xload(a):
    a(f"s_mul_i32 s50, s58, {PT_}\ns_mul_i32 s52, s3, {XSTR}\ns_add_u32 m0, s52, {XOFF}")
    for n in range(4): a(f"buffer_load_dwordx4 v248, {WSR}, s50 offen offset:{n*1024}{SC} lds", tag="xdma")
AA, AF = 229, 230
def conv_addr(a):
    a(f"""
    v_and_b32 v2, 15, v1                ; r / a
    v_lshrrev_b32 v8, 4, v1             ; h
    v_add_u32 v4, 1, v2
    v_and_b32 v5, 3, v4                 ; copy j
    v_sub_u32 v4, v4, v5                ; r+1-j
    v_add_u32 v4, 24, v4
    v_lshlrev_b32 v4, 1, v4
    v_mul_u32_u24 v5, {KSTR}, v5
    v_add_u32 v4, v4, v5
    v_lshlrev_b32 v5, 4, v8
    v_sub_u32 v4, v4, v5
    s_mul_i32 s51, s3, {KCH}
    s_add_u32 s51, s51, {KB}
    v_add_u32 v{AA}, s51, v4
    v_lshlrev_b32 v2, 5, v2
    v_add_u32 v2, v2, v5
    s_mul_i32 s52, s3, {XSTR}
    s_add_u32 s52, s52, {XOFF+2*(2056-1792)}
    v_sub_u32 v{AF}, s52, v2
    """)
def conv_dfrag(a):
    a(f"""
    v_lshrrev_b32 v3, 4, v1
    v_lshlrev_b32 v2, 3, v3
    v_and_b32 v3, 15, v1
    v_sub_u32 v2, v2, v3
    v_subrev_u32 v2, 9, v2              ; p = 8h - r - 9: position of filter tap 0 inside this lane's fragment
    v_and_b32 v3, 1, v2
    v_cmp_eq_u32 vcc, 1, v3
    v_lshrrev_b32 v3, 16, v250
    v_cndmask_b32 v3, v3, v250, vcc
    v_lshrrev_b32 v2, 1, v2
    """)
    for d in range(4): a(f"v_cmp_eq_u32 vcc, {d}, v2\nv_cndmask_b32 v{DFR+d}, 0, v3, vcc")
QR, SR, SM, ET = 176, 184, 200, 232
def esetup(a):
    a(f"""
    v_and_b32 v2, 15, v1
    v_lshrrev_b32 v8, 4, v1
    v_lshlrev_b32 v249, 6, v2
    v_lshl_add_u32 v249, v8, 4, v249
    v_add_u32 v249, {ST1L}, v249
    v_and_b32 v231, 1, v8
    v_lshlrev_b32 v231, 9, v231
    v_lshl_add_u32 v231, v2, 5, v231
    v_lshrrev_b32 v8, 1, v8
    v_lshl_add_u32 v231, v8, 4, v231
    s_mul_i32 s68, s58, {PT_}
    s_add_u32 s65, s68, {QT}
    s_add_u32 s68, s68, {A1T}
    s_lshl_b32 s66, s3, 12
    s_add_u32 s67, s66, {ST1}
    s_lshl_b32 s59, s58, 1
    v_mov_b32 v250, 0
    v_mov_b32 v251, s59
    global_load_short_d16_hi v250, v251, {sp(SSD)}
    v_min_u32 v240, 11, v1             ; lanes 0..7: statistics units 8w.., lanes 8..11: q tiles 4w.. of this channel group
    v_lshlrev_b32 v240, 7, v240
    s_lshr_b32 s52, s{S_CU}, 4
    s_lshl_b32 s52, s52, 11
    s_add_u32 s59, s52, {FA}
    s_lshl_b32 s69, s3, 9
    s_sub_u32 s52, s52, s69
    s_add_u32 s52, s52, {FT-FQ-8*128}
    v_cmp_lt_u32 vcc, 7, v1
    v_mov_b32 v241, s52
    v_cndmask_b32 v241, 0, v241, vcc
    v_add_u32 v240, v240, v241
    """ + ("" if not PP else f"""
    v_min_u32 v241, 16, v1             ; lanes 12..16: weight pieces of k-steps 5w..
    v_lshlrev_b32 v241, 10, v241
    s_lshr_b32 s52, s{S_J}, 1
    s_lshl_b32 s52, s52, 7
    s_lshl_b32 s69, s3, 12
    s_add_u32 s52, s52, s69
    s_add_u32 s52, s52, {FW-FQ-12*1024}
    v_add_u32 v241, s52, v241
    v_cmp_lt_u32 vcc, 11, v1
    v_cndmask_b32 v240, v240, v241, vcc
    """) + f"""
    s_lshl_b32 s69, s3, 10
    s_add_u32 s69, s69, {FQ}
    s_lshl_b32 s55, s58, 3
    s_add_u32 s55, s55, {MODT}
    v_and_b32 v253, 3, v1              ; granules sa, ca1, ga, cb1
    v_cmp_eq_u32 vcc, 3, v253
    v_addc_co_u32 v253, vcc, 0, v253, vcc
    v_mul_u32_u24 v253, 5120, v253
    v_min_u32 v241, 9, v1              ; 1+cb units (reciprocal table)
    v_lshlrev_b32 v241, 7, v241
    s_mov_b32 s60, {FP2+40*128}
    v_min_u32 v242, 15, v1
    v_lshlrev_b32 v242, 7, v242
    """)
def st1dma(): return [[f"s_add_u32 m0, s66, {ST1L}", (f"buffer_load_dwordx4 v248, {WSR}, s67 offen offset:{n*1024}{SC} lds", "st1")] for n in range(4)]
def qloads(h): return [[f"buffer_load_dwordx4 {vr(QR+4*p,4)}, v231, {WSR}, s65 offen offset:{2048*h+1024*p}{SC}"] for p in range(2)]
def streads(h): return [f"ds_read_b128 {vr((SM if m else SR)+4*t,4)}, v249 offset:{8192*m+1024*(4*h+t)}" for t in range(4) for m in range(2)]
sw = lambda t, c=2: costed(lambda a: a(t), "v", c)
def qswaps(): return [f"v_permlane16_swap_b32 v{QR+4*p+k}, v{QR+4*p+2+k}" for p in range(2) for k in range(2)]
def pre_pk(a):
    put(a, qswaps())
    for t in range(4):
        r, m, q = SR + 4*t, SM + 4*t, ET + 4*(t & 1)
        unpack(a, q, q + 1, QR + 2*t); unpack(a, q + 2, q + 3, QR + 2*t + 1)
        for p in (0, 2): a(f"v_pk_fma_f32 {vr(r+p,2)}, {vr(q+p,2)}, {vr(r+p,2)}, {vr(m+p,2)}")
        for p in (0, 2): a(f"v_pk_mul_f32 {vr(m+p,2)}, {vr(q+p,2)}, v[252:253] op_sel_hi:[1,0]")
        for p in (0, 2): a(f"v_pk_fma_f32 {vr(r+p,2)}, {vr(r+p,2)}, v[250:251], v[250:251] op_sel:[0,0,1] op_sel_hi:[1,0,1]")
def pre_list():
    L = [sw(x) for x in qswaps()]
    for t in range(4):
        for i in range(4):
            r, m, q = SR + 4*t + i, SM + 4*t + i, ET + (i & 1)
            L += [f"v_lshlrev_b32 v{q}, 16, v{QR+2*t+(i>>1)}" if i % 2 == 0 else f"v_and_b32 v{q}, 0xffff0000, v{QR+2*t+(i>>1)}",
                  f"v_fma_f32 v{r}, v{q}, v{r}, v{m}", f"v_mul_f32 v{m}, v252, v{q}", f"v_fma_f32 v{r}, v{r}, v250, v251"]
    return L
def fin_pk(a, h, order=range(4)):
    done = set()
    for t in order:
        x = ACC + 4*(4*h + t)
        for p in (0, 2): a(f"v_pk_fma_f32 {vr(SR+4*t+p,2)}, {vr(SR+4*t+p,2)}, {vr(x+p,2)}, {vr(SM+4*t+p,2)}")
        for p in range(2): a(f"v_cvt_pk_bf16_f32 v{ET+2*t+p}, v{SR+4*t+2*p}, v{SR+4*t+2*p+1}")
        done.add(t)
        if t ^ 1 in done:
            p = t >> 1
            for k in range(2): a(f"v_permlane16_swap_b32 v{ET+4*p+k}, v{ET+4*p+2+k}")
            a(f"buffer_store_dwordx4 {vr(ET+4*p,4)}, v231, {WSR}, s68 offen offset:{2048*h+1024*p}{SC}", tag=f"a1st{h}")

def wp_setup(a):
    b = Asm(); wp_loads(b, S_CU, 0)
    for k, x in b.items:
        if x.kind != "vmem" and "m0" not in x.text and x.text != f"s_add_u32 s52, s52, {8*3072}": a(x.text)
    a("s_mov_b32 s56, s52\ns_mul_i32 s57, s3, 6144")
def wp_issue(a):
    for n in range(6):
        if n % 3 == 0: a(f"s_add_u32 m0, s57, {n*1024}")
        a(f"buffer_load_dwordx4 v{233+n%3}, s[40:43], s56 offen offset:{1024*(n%3)}{WPNT[0]} lds", tag="wp")
        if n == 2: a(f"s_add_u32 s56, s56, {8*3072}")
def first_loads(a, su, before_ptr, after_dma):
    PA = phases.PA
    a(f"""
    s_lshr_b32 s50, s{su}, 4          ; g
    s_and_b32 s51, s{su}, 15          ; j
    s_mul_i32 s52, s51, {128*1280}
    s_lshl_b32 s53, s50, 7
    s_add_u32 s52, s52, s53           ; tile byte offset
    v_lshrrev_b32 v3, 3, v1
    v_mul_u32_u24 v3, 1280, v3
    v_and_b32 v4, 7, v1
    v_lshl_add_u32 v3, v4, 4, v3      ; DMA lane offset
    s_mul_i32 s53, s3, {32*1280}
    s_add_u32 s53, s53, s52           ; wave soffset
    s_mul_i32 s54, s3, {4*GS}
    v_add_u32 v10, {8*1280-GS}, v3
    v_add_u32 v11, {2*(8*1280-GS)}, v3
    v_add_u32 v12, {3*(8*1280-GS)}, v3
    s_sub_u32 s55, s52, {8*1280}
    v_add_u32 v5, s55, v3
    s_add_u32 s56, s54, {PA + 17*GS}
    s_add_u32 m0, s54, {PA + GS}
    s_mov_b32 s42, {S*D*2}
    s_mov_b32 s43, 0x20000
    s_mov_b32 s46, {S*D*2}
    s_mov_b32 s47, 0x20000
    """)
    before_ptr(a)
    a(f"s_mov_b64 s[40:41], s[{K}:{K+1}]\ns_mov_b64 s[44:45], s[{V}:{V+1}]")
    for n in range(4): a(f"buffer_load_dwordx4 v{9+n if n else 3}, s[40:43], s53 offen offset:{n*GS} nt lds", tag="kv")
    a("s_mov_b32 m0, s56\ns_cmp_eq_u32 s3, 0")
    for n in range(4): a(f"buffer_load_dwordx4 v{9+n if n else 3}, s[44:47], s53 offen offset:{n*GS} nt lds", tag="kv")
    a(f"s_cbranch_scc0 L_nohalo\ns_mov_b32 m0, {PA}")
    a(f"buffer_load_dwordx4 v5, s[40:43], 0 offen nt lds", cond=True)
    a.label("L_nohalo")
    after_dma(a)
    b = Asm(); phaseA_loads(b, su, lambda b: None, lambda b: b.comment("CUT"))
    k = [i for i, (t, x) in enumerate(b.items) if t == "raw" and "CUT" in x][0]
    a.items += b.items[k + 1:]
WDH0 = 81920
def wdh_loads(a, su, WDH):
    a(f"""
    s_lshr_b32 s52, s{su}, 1
    s_lshl_b32 s52, s52, 2
    s_add_u32 s52, s52, s3
    s_mul_i32 s52, s52, {8*1280}
    s_and_b32 s53, s{su}, 1
    s_mul_i32 s53, s53, 640
    s_add_u32 s52, s52, s53
    s_mul_i32 s53, s3, 5120
    """)
    for n in range(5):
        a(f"""
        v_add_u32 v5, {64*n}, v1
        v_mul_u32_u24 v6, 205, v5
        v_lshrrev_b32 v6, 13, v6
        v_mul_u32_u24 v6, 640, v6
        v_lshl_add_u32 v5, v5, 4, v6
        s_add_u32 m0, s53, {WDH + n*1024}
        """)
        a(f"buffer_load_dwordx4 v5, s[56:59], s52 offen nt lds", tag="wst")
def wdh_finish(a, su, WDH, R):
    a(f"""
    v_lshrrev_b32 v2, 4, v1           ; h
    v_bfe_u32 v3, v1, 2, 2            ; r
    v_lshl_add_u32 v3, v2, 3, v3
    v_mul_u32_u24 v3, 640, v3
    v_and_b32 v2, 3, v1
    v_lshl_add_u32 v2, v2, 3, v3
    s_mul_i32 s50, s3, 160
    s_add_u32 s50, s50, {WDH}
    v_add_u32 v2, s50, v2
    s_lshr_b32 s53, s{su}, 1
    s_mov_b32 s50, 0x15555556
    s_mul_hi_u32 s51, s53, s50
    s_mul_i32 s52, s51, 12
    s_sub_u32 s52, s53, s52           ; ks
    s_and_b32 s50, s{su}, 1
    s_lshl_b32 s50, s50, 2
    s_add_u32 s50, s50, s3
    s_lshl_b32 s50, s50, 2
    s_add_u32 s50, s50, s51
    s_mul_i32 s50, s50, 60
    s_mul_i32 s52, s52, 5
    s_add_u32 s50, s50, s52
    s_lshl_b32 s50, s50, 10
    s_add_u32 s50, s50, {WD}
    s_add_u32 s51, s50, 4096
    """)
    for n in range(5):
        for half in range(2): a(f"ds_read_b64_tr_b16 {vr(R+4*n+2*half,2)}, v2 offset:{32*n+half*4*640}")
    for n in range(5): a(f"buffer_store_dwordx4 {vr(R+4*n,4)}, v248, {WSR}, s{50+n//4} offen offset:{(n%4)*1024}{SC}", tag="wout")

halves.HACC = HACC = (56, 8)
halves.Q2H = Q2H = 56; halves.Q2NH = Q2NH = O("nh", 12); halves.Q2ACC = Q2ACC = (8, 28)
XE, XL, GB, PT, IC, XR = 204, 232, (48, 52, 124), 168, 168, 180
ACC2 = (8, 28, 104, 8)
XI = 81920
def xflags(v, late, t=2, sr=50):
    L = ["v_lshrrev_b32 v2, 1, v1", "v_lshlrev_b32 v2, 10, v2", "v_and_b32 v3, 1, v1", f"v_lshl_add_u32 v{v}, v3, 7, v2",
         f"s_lshl_b32 s50, s3, 8\ns_add_u32 s50, s50, {(FXL if late else FXE)-FLG}", f"v_add_u32 v{v}, s50, v{v}"]
    if late: L += [f"s_lshl_b32 s50, s{S_J}, 7\ns_add_u32 s50, s50, {FB_-FLG}", "v_mov_b32 v2, s50"]
    else: L += [f"s_add_u32 s50, s50, {19*1024}", "v_mov_b32 v2, s50"]
    L += [f"v_cmp_lt_u32 vcc, 39, v1\nv_cndmask_b32 v{v}, v{v}, v2, vcc", f"s_mov_b32 s17, {FLG}"]
    return [re.sub(r"\bs50\b", f"s{sr}", re.sub(r"\bv3\b", f"v{t+1}", re.sub(r"\bv2\b", f"v{t}", x))) for x in L]
WG3 = [int(x) for x in O("wg", "0,9,13,20").split(",")]
def wflags():
    L = [f"s_lshr_b32 s61, s{S_J}, 1\ns_lshl_b32 s61, s61, 7\ns_add_u32 s61, s61, {FW}"]
    for g, (lo, n) in enumerate((WG3[k], WG3[k+1] - WG3[k]) for k in range(3)):
        L += [f"v_min_u32 v{224+g}, {n-1}, v1", f"v_add_lshl_u32 v{224+g}, v{224+g}, {lo}, 10"]
    return L
def hflags(base, gbu=False):
    return [f"s_lshr_b32 s50, s{S_I2}, 1\ns_lshl_b32 s50, s50, 2", f"s_add_u32 s50, s50, s3\ns_lshl_b32 s50, s50, 9", f"s_add_u32 s50, s50, {base-FLG}",
            f"v_min_u32 v246, {13 if gbu else 3}, v1", "v_lshlrev_b32 v246, 7, v246"] + \
           ([f"v_mov_b32 v2, s50", f"v_mov_b32 v3, {FP2+50*128-FLG-4*128}", "v_cmp_lt_u32 vcc, 3, v1\nv_cndmask_b32 v2, v2, v3, vcc", "v_add_u32 v246, v246, v2"] if gbu else ["v_add_u32 v246, s50, v246"])
G2O = [(n & 1, n >> 1) for n in range(24)] + [(2 + n // 12, n % 12) for n in range(24)]
def h2_hload(n):
    sg, ks = G2O[n]
    return f"buffer_load_dwordx4 {vr(Q2H+4*(n%Q2NH),4)}, v{216+sg}, {WSR}, {['0','s4','s5'][ks//4]} offen offset:{(ks%4)*1024}{SC}"
def g2_setup(si2, sj2):
    return ["s_and_b32 s50, s3, 1\ns_lshr_b32 s51, s3, 1", "s_mul_i32 s52, s50, 20480\ns_mul_i32 s53, s3, 5120", "s_add_u32 s52, s52, s53",
         "v_add_u32 v220, s52, v248", "v_add_u32 v222, 40960, v220",
         "s_xor_b32 s52, s50, 1\ns_mul_i32 s52, s52, 20480", "s_add_u32 s52, s52, s53", "v_add_u32 v221, s52, v248", "v_add_u32 v223, 40960, v221",
         "s_mul_i32 s52, s51, 20480\ns_lshl_b32 s53, s50, 11", "s_add_u32 s52, s52, s53", "v_add_u32 v224, s52, v248",
         "s_mul_i32 s53, s51, 5120\ns_add_u32 s53, s53, 40960", "v_add_u32 v225, s53, v224",
         "s_xor_b32 s53, s51, 1\ns_mul_i32 s53, s53, 5120", "s_add_u32 s53, s53, 40960", "v_add_u32 v226, s53, v224",
         f"s_lshl_b32 s52, s{si2}, 1\ns_add_u32 s52, s52, s51", f"s_mul_i32 s12, s{sj2}, 320",
         f"s_add_u32 s12, s12, {MOD+5*2560}\ns_mul_i32 s13, s52, {16*1280}", f"s_mul_i32 s53, s{sj2}, 160\ns_add_u32 s13, s13, s53",
         f"s_lshl_b32 s53, s50, 6\ns_add_u32 s13, s13, s53", f"s_add_u32 s14, s13, {1024*1280}",
         f"s_mul_i32 s10, s{sj2}, 10\ns_add_u32 s10, s10, s3", f"s_mul_i32 s10, s10, {8*PT_}\ns_lshl_b32 s53, s{si2}, 6", f"s_add_u32 s10, s10, s53\ns_add_u32 s10, s10, {A1T}",
         f"s_lshl_b32 s11, s3, 10\ns_add_u32 s11, s11, {XI}",
         "v_lshrrev_b32 v2, 3, v1", f"v_mul_u32_u24 v229, {PT_}, v2", "v_bfe_u32 v2, v1, 2, 1", "v_lshl_add_u32 v229, v2, 11, v229", "v_and_b32 v2, 3, v1", "v_lshl_add_u32 v229, v2, 4, v229",
         "v_lshrrev_b32 v3, 2, v1", "v_lshlrev_b32 v231, 7, v3", "v_lshl_add_u32 v231, v2, 3, v231", f"s_lshl_b32 s53, s50, 12\ns_lshl_b32 s52, s51, 5", f"s_add_u32 s53, s53, s52\ns_add_u32 s53, s53, {XI}", "v_add_u32 v231, s53, v231",
         "v_and_b32 v2, 15, v1", "v_lshrrev_b32 v3, 4, v1",
         "v_mul_u32_u24 v2, 1280, v2", "v_lshl_add_u32 v228, v3, 3, v2", "v_and_b32 v227, 1, v3", "v_lshl_add_u32 v2, v227, 5, v2", "v_lshrrev_b32 v3, 1, v3", "v_lshl_add_u32 v227, v3, 4, v2"]
def g2_xdma():
    return [[f"s_add_u32 m0, s11, {4096*n}", (f"buffer_load_dwordx4 v229, {WSR}, s10 offen{SC} lds", "xi")] + ([f"s_add_u32 s10, s10, {32*PT_}"] if n < 2 else []) for n in range(3)]
def g2_gloads(): return [[f"buffer_load_dwordx4 {vr(GB[T],4)}, v230, {WSR}, s12 offen offset:{64*T}{SC}"] for T in range(3)] + \
                        [[f"buffer_load_dwordx4 {vr(IC+4*T,4)}, v230, {WSR}, s15 offen offset:{64*T}{SC}"] for T in range(3)]
GI = XI + 12288
def g2_gsetup(): return ["v_min_u32 v2, 23, v1", "v_lshlrev_b32 v244, 4, v2", f"v_mov_b32 v3, {ICB-(MOD+5*2560)-192}", "v_cmp_lt_u32 vcc, 11, v2\nv_cndmask_b32 v3, 0, v3, vcc",
                         "s_and_b32 s53, s3, 1\ns_lshl_b32 s53, s53, 7", "v_add3_u32 v244, v244, v3, s53", f"s_lshl_b32 s15, s3, 10\ns_add_u32 s15, s15, {GI}", "v_and_b32 v230, 48, v1", "v_add_u32 v230, s15, v230"]
def g2_gdma(): return ["s_mov_b32 m0, s15", small(f"buffer_load_dwordx4 v244, {WSR}, s12 offen{SC} lds", "gi")]
def g2_greads(): return [f"ds_read_b128 {vr(GB[T],4)}, v230 offset:{64*T}" for T in range(3)] + [f"ds_read_b128 {vr(IC+4*T,4)}, v230 offset:{192+64*T}" for T in range(3)]
SCR = 1024
def st_dma(): return [f"s_add_u32 m0, s63, {SCR}", small(f"buffer_load_dwordx4 v248, {WSR}, s{S_STL} offen{SC} lds", "st2")]
def st_reads(): return [f"ds_read_b128 {vr(HST+4*rt,4)}, v{HSO} offset:{SCR+256*rt}" for rt in range(4)]
def bi_dma(): return [f"s_add_u32 m0, s63, {SCR+4096}", small(f"buffer_load_dwordx4 v247, {WSR}, s{S_BI} offen{SC} lds", "bi")]
def bi_reads(): return [f"ds_read_b128 {vr(HCW+12*st+4*T,4)}, v247 offset:{SCR+4096+192*st+64*T}" for st in range(2) for T in range(3)]
WL = lambda tag: costed(lambda a: a.waitv(tag), "s", 1)
def g2_xreads(): return [f"ds_read_b64_tr_b16 {vr(XR+6*h+2*T,2)}, v231 offset:{2048*T+64*h}" for h in range(2) for T in range(3)]
def g2_xform():
    L = []
    for h, X in enumerate((XE, XL)):
        for i in range(12):
            r = XR + 6*h + i // 2
            L += [f"v_lshlrev_b32 v{X+i}, 16, v{r}" if i % 2 == 0 else f"v_and_b32 v{X+i}, 0xffff0000, v{r}", f"v_mul_f32 v{X+i}, v{X+i}, v{IC+i}"]
    return L
gb = lambda i: GB[i // 4] + i % 4

LJ = O("lj", 1); S_ = S
_h2_out = h2_out
def h2_out(R, O_, so): return [(x + " " + OPT["ost"].replace("_", " ") if isinstance(x, str) and x.startswith("buffer_store") and "ost" in OPT else x) for x in _h2_out(R, O_, so)]
GE = [int(x) for x in O("ge", "3,8").split(",") if x]
GLs = [int(x) for x in O("gl", "0,2,5").split(",")]
GATES = {}
for k, g in enumerate(GE): GATES[g] = f"a0_{(GE[k+1] if k + 1 < len(GE) else 20) - 1}"
for k, g in enumerate(GLs): GATES[20 + g] = f"a1_{(GLs[k+1] if k + 1 < len(GLs) else 20) - 1}"
LDONE = [0]; WDONE = [0]
G1B = lambda n: n % 12 in (3, 7, 11)
G1S = lambda n: n % 12 == 10
G1K = lambda n: n % 12 in (3, 7, 10, 11)
gate_of = lambda G, ks: max([x for x in G if x <= ks], default=0)
def smalls(sc, groups, p, step=1):
    for g in groups: p = sc.vm(g, p, p + 14, lambda n: G1K(n) and not sc.m[n])[1] + step
    return p
GBF = []
def preh(sc, h, p):
    L = ["v_min_u32 v245, 23, v1", "v_lshlrev_b32 v245, 7, v245", f"s_mul_i32 s56, s3, {49152 - 768}\ns_add_u32 s56, s56, s{S_H}"]
    if h: L.append(f"s_add_u32 s56, s56, {64*192*256}")
    q = sc.chain(L, p - 8, p - 1, keep=G1K)
    smalls(sc, [[small(f"buffer_load_dword v245, v245, {WSR}, s56 offen")]], q + 1)
_vsetup = h1_vsetup
def h1_vsetup(sj, sj2): return _vsetup(sj, sj2) + ["s_lshl_b32 s50, s3, 10", f"v_add_u32 v{HSO}, s50, v{HSO}"]
def passA(a, npre, head=None, wrest=None, extra=None):
    sc = h1_sched(0, GATES)
    LQ = O("lq", 160); LI = LQ - O("lql", 40)
    q = sc.chain(xflags(219, 1, 238, 55), LI - 30, LI - 2, keep=G1K)
    smalls(sc, [PI(219, 17, 240)], LI)
    p = sc.at(PC(219, 17, 240, "Lx"), LQ) + 1
    W0 = O("wa0", 110)
    q3 = sc.chain(["v_min_u32 v243, 11, v1", "v_lshlrev_b32 v243, 8, v243", f"s_mul_i32 s58, s3, 24\ns_lshr_b32 s57, s{S_J2}, 2", f"s_add_u32 s58, s58, s57\ns_lshl_b32 s58, s58, 7", f"s_add_u32 s58, s58, {FP3}"] + GBF, max(0, W0 - 56), W0 - 46, keep=G1K)
    q3 = smalls(sc, [PI(243, 58, 244)], q3 + 1)
    n = sc.at(PC(243, 58, 244), max(W0, q3 + 30)) + 1
    wl = groups_of(h2_wloads())
    pb = sc.chain(["v_min_u32 v247, 23, v1", "v_lshlrev_b32 v247, 4, v247"], LQ - 8, LQ, keep=G1K)
    pb = smalls(sc, [bi_dma()], max(pb + 1, O("lb", LQ + 4)))
    sc.chain(["v_and_b32 v247, 48, v1", "v_add_u32 v247, s63, v247", WL("bi")] + bi_reads(), pb + 50, pb + 62, keep=G1B)
    EA = O("ea", 30)
    if EA < 60: smalls(sc, [st_dma()], 240 + EA - 60)
    if O("ph0", 0): preh(sc, 0, O("ph0", 0))
    lfree = extra(sc) if extra else (lambda ks: 0)
    S = [[(h1_dma(0, ks), 0, 12 * (gate_of(GE, ks) - 1) - 40 + ks / 100) for ks in range(npre, 20)],
         [(h1_dma(1, ks), max(p, lfree(ks)), 190 + 12 * (gate_of(GLs, ks) - 1) + ks / 100) for ks in range(20)], [(g, n, 300) for g in wl[:12]], wrest or []]
    pos = sc.streams(S, O("pa", 4.0), 0, 238, lambda n: G1B(n) or (n < O("pad", 0) and G1S(n)), wt=[1, 1, 1, O("ww", 1.3)])
    assert len(pos[0]) == len(S[0]) and len(pos[3]) == len(S[3]), [(len(x), len(y)) for x, y in zip(pos, S)]
    for ks, x in zip(range(npre, 20), pos[0]): assert x <= 12 * (gate_of(GE, ks) - 1), (ks, x)
    if wrest: print("   weights: slack", [int(y[2] - x) for x, y in zip(pos[3], wrest)][2::3], file=sys.stderr); assert all(x < y[2] + O("lead", 50) - 10 for x, y in zip(pos[3], wrest))
    assert len(pos[1]) >= (GLs[1] if len(GLs) > 1 else 20)
    LDONE[0] = len(pos[1]); WDONE[0] = len(pos[2])
    pre, rd = h1_st_reads(0)
    q = max(12 * (GE[-1] - 1) + 1 if GE else 1, O("sa", 20), sc.wdone if hasattr(sc, "wdone") else 0)
    q = sc.chain(rd, q, q + 4, 1, keep=G1B)
    q = sc.chain(h1_st_list(0, 0, TAG), q + 6, q + O("sl", 70), keep=G1K)
    print(f"pass A: early dma {pos[0]}, wd {WDONE[0]}, stats at {q}, late slots issued {LDONE[0]}, overflow {sc.over()}", file=sys.stderr)
    for ks in range(20): fstamp(sc, 12 * ks, f"a{ks}")
    if "gbar" in OPT:
        if head: head(a); head = None
        lab[0] += 1; L = f"L_gb{lab[0]}"
        a(f"""
        s_waitcnt vmcnt(0)
        s_barrier
        v_mov_b32 v254, 0
        v_mov_b32 v255, 1
        s_cmp_eq_u32 s3, 0
        s_cbranch_scc0 {L}
        s_mov_b64 exec, 1
        global_atomic_add v254, v255, {sp(DBG)} sc1
        s_mov_b64 exec, -1
        {L}:
        global_load_dword v255, v254, {sp(DBG)} sc1
        s_waitcnt vmcnt(0)
        v_cmp_ne_u32 vcc, 256, v255
        s_cbranch_vccz {L}x
        s_sleep 2
        s_branch {L}
        {L}x:
        """)
        stamp(a, "gb")
    a.waitv(f"a0_{(GE[0] if GE else 20) - 1}")
    a("s_waitcnt lgkmcnt(0)\ns_barrier")
    put(a, h1_reads(0))
    if head: head(a)
    h1_pass(a, 0, sc)

def rest(a, X):
    stamp(a, "pB")
    sc = h1_sched(1, GATES)
    wl = groups_of(h2_wloads())
    def stslow(h):
        def f(a):
            a.label(f"L_st{X}{h}_slow"); a.reset()
            put(a, st_dma()); a.waitv("st2"); put(a, st_reads()); put(a, h1_stcheck(TAG))
            a(f"v_cmp_ne_u32 vcc, 0, v3\ns_cbranch_vccz L_st{X}{h}_back\ns_cmp_eq_u32 s{BUDGET}, 0\ns_cbranch_scc1 L_st{X}{h}_back\ns_sub_u32 s{BUDGET}, s{BUDGET}, 1\ns_branch L_st{X}{h}_slow")
        slow2.append(f)
        def chk(a):
            a(f"v_cmp_ne_u32 vcc, 0, v3\ns_cbranch_vccnz L_st{X}{h}_slow"); a.label(f"L_st{X}{h}_back")
        return costed(chk, "v", 1)
    EA = O("ea", 30)
    if EA >= 60: smalls(sc, [st_dma()], EA - 60)
    p = sc.chain([WL("st2")] + st_reads(), max(0, EA - 16), max(4, EA - 11), keep=G1B)
    p = sc.chain(h1_stcheck(TAG) + [stslow(0)], p + 3, p + 10, keep=G1K)
    p = sc.force(p + 1, [costed(lambda a: (stamp(a, "eA"), h1_epi(a, 0), a(f"s_add_u32 s{S_STL}, s{S_STL}, {1024*16}\ns_lshl_b32 s76, s{S_I}, 4\ns_add_u32 s76, s76, s{S_J}")), "v", 2)])
    pf = sc.at(BAR("hst0", then=lambda a: wflag(a, 76, FHE), c=3), p + O("ph", 40))
    SB = O("sb", 228); HC = O("hc", 190)
    if O("ph1", 0): preh(sc, 1, O("ph1", 0))
    smalls(sc, [st_dma()], SB - 56)
    smalls(sc, [PI(246, 17, 247)], HC - 36)
    q2 = sc.at(PC(246, 17, 247, "Hseen"), HC)
    S = [[(h1_dma(1, ks), 0, 12 * (gate_of(GLs, ks) - 1) - 40 + ks / 100) for ks in range(LDONE[0], 20)],
         [(wl[n], 12 * ((n - 12) // 3 + 1) if n >= 12 else 0, 200 + n) for n in range(WDONE[0], 60)],
         [([h2_hload(n)], q2 + 1, O("hd", 180) + 5 * n) for n in range(12)]]
    pos = sc.streams(S, O("pb", 4.0), 0, 238, lambda n: G1B(n) or (n >= O("pbd", 240) and G1S(n)))
    assert len(pos[0]) == len(S[0])
    for ks, x in zip(range(LDONE[0], 20), pos[0]): assert x <= 12 * (gate_of(GLs, ks) - 1), (ks, x)
    nw = WDONE[0] + len(pos[1]); nh = len(pos[2])
    g = max(k for k in GATES if k >= 20)
    pre, rd = h1_st_reads(1)
    q = sc.chain(pre, 0, 10, keep=G1K)
    q = max(q, 12 * (g - 21) + 1, p + 1)
    q = sc.chain(rd, q, q + 4, 1, keep=G1B)
    q = sc.chain(h1_st_list(1, 0, TAG), q + 6, q + O("sl", 70), keep=G1K)
    assert q + 20 < SB - 56, q
    q3 = sc.chain(h2_hsetup(S_I2) + hflags(FHE, True), q + 1, HC - 38, keep=G1K)
    assert q3 < HC - 36, q3
    q4 = sc.chain([WL("st2")] + st_reads(), SB - 6, SB - 1)
    sc.chain(h1_stcheck(TAG) + [stslow(1)], q4 + 3, 238)
    print(f"pass B: epilogue A at {p}, FHE at {pf}, stats B done {q}, wd {nw}, h {nh}, overflow {sc.over()}", file=sys.stderr)
    for ks in range(20): fstamp(sc, 12 * ks, f"b{ks}")
    h1_pass(a, 1, sc)
    stamp(a, "g1done")
    h1_epi(a, 1)
    for n in range(nh, 12): a(h2_hload(n))
    stamp(a, "g1epi")
    sc = Gaps(240)
    srd(a, 40, OUT, S_ * D * 2)
    PB1 = O("pb1", 55); PB0 = O("pb0", 20)
    sc.force(PB0, [BAR()])
    sc.force(PB1, [BAR("hst1", then=lambda a: wflag(a, 76, FHL), c=3)])
    LC = O("lc", 110)
    sc.vm(PI(246, 17, 247), LC - O("ll", 30))
    p = sc.at(PC(246, 17, 247, "Lseen"), LC) + 1
    QS = O("qs", 36)
    NBL = O("nbl", 33) if "noeb" not in OPT else 0
    hl = [n for n in range(Q2NH, 48) if not (24 + max(0, (117 - p) // 2) <= n < NBL)]
    S = [[([h2_hload(n)], max(5 * (n - Q2NH) + 5, (p if n < NBL or not NBL else 120) if n >= 24 else 0), 5 * n) for n in hl], [(g, max(QS, PB0) + 1, 60) for g in g2_xdma()],
         [(wl[n], 0, 10 * (n // 5) + n / 100) for n in range(nw, 60)]]
    pos = sc.streams(S, O("p2", 3.0), wt=None if "noeb" in OPT else [0.7, 1, 1])
    assert all(len(x) == len(y) for x, y in zip(pos, S)) and all(x < 5 * n for x, n in zip(pos[0], hl)) and all(x < 10 * (n // 5) for x, n in zip(pos[2], range(nw, 60))), pos
    wr = lambda sg: [f"ds_write_b128 v{220+sg}, {vr(ACC2[sg]+4*T,4)} offset:{T*1024}" for T in range(5)]
    q = sc.chain(g2_setup(S_I2, S_J2) + hflags(FHL) + g2_gsetup(), 0, QS - 1)
    pg = sc.vm(g2_gdma(), max(q, PB0) + 2, max(q, PB0) + 12)[0]
    q = sc.at(BAR("xi", "gi"), max(pos[1][-1], pg) + O("xw", 40))
    q = sc.chain(g2_xreads() + g2_greads(), q, q + 12)
    qx = sc.chain(g2_xform(), q + 2, min(q + 34, 116) if "noeb" not in OPT else q + 34)
    rdp = lambda dst, v, off: [f"ds_read_b128 {vr(dst+4*T,4)}, v{v} offset:{off+1024*T}" for T in range(3)]
    add = lambda x, y: [f"v_add_f32 v{x+i}, v{x+i}, v{y+i}" for i in range(12)]
    if "noeb" not in OPT:
        padd = lambda x, y: [f"v_pk_add_f32 {vr(x+i,2)}, {vr(x+i,2)}, {vr(y+i,2)}" for i in range(0, 12, 2)]
        sc.chain(wr(0), 116, 119)
        blk = [h2_hload(n) for n in range(24, NBL) if n not in hl] + wr(1) + ["s_waitcnt lgkmcnt(0)\ns_barrier"] + rdp(PT, 224, 0) + rdp(PT + 12, 224, 5120) + rdp(PT + 24, 224, 10240) + padd(PT, PT + 12) + rdp(PT + 12, 224, 15360) + padd(PT, PT + 24) + padd(PT, PT + 12)
        blk += [f"v_pk_fma_f32 {vr(XE+i,2)}, {vr(PT+i,2)}, {vr(gb(i),2)}, {vr(XE+i,2)}" for i in range(0, 12, 2)] + h2_out(XE, PT + 12, 13)
        assert qx < 119 and all(x < 119 for x, n in zip(pos[0], hl) if n < NBL), (qx, pos[0])
        q = sc.force(119, [costed(lambda a: put(a, blk), "m", 2)])
    else:
        q = sc.chain(wr(0) + wr(1), 118, 142, 2)
        q = sc.at("s_waitcnt lgkmcnt(0)\ns_barrier", max(q + O("g2d", 8), qx + 1))
        rdp = lambda dst, v, off: [f"ds_read_b128 {vr(dst+4*T,4)}, v{v} offset:{off+1024*T}" for T in range(3)]
        add = lambda x, y: [f"v_add_f32 v{x+i}, v{x+i}, v{y+i}" for i in range(12)]
        q = sc.chain(rdp(PT, 224, 0) + rdp(PT + 12, 224, 5120) + rdp(PT + 24, 224, 10240), q, q + 10)
        q = sc.chain(add(PT, PT + 12) + rdp(PT + 12, 224, 15360) + add(PT, PT + 24) + add(PT, PT + 12), q + 1, q + 26)
        q = sc.chain([f"v_fma_f32 v{XE+i}, v{PT+i}, v{gb(i)}, v{XE+i}" for i in range(12)] + h2_out(XE, PT + 12, 13), q, q + 18)
    qe = q
    q = sc.chain(wr(2), 183, 195, 2)
    q = sc.at("s_waitcnt lgkmcnt(0)\ns_barrier", q + O("g2d", 8))
    q = sc.chain(rdp(PT, 225, 0) + rdp(PT + 24, 225, 10240), max(q, qe), max(q, qe) + 8) + 7
    tail = add(PT, PT + 24) + [f"v_fma_f32 v{XL+i}, v{PT+i}, v{gb(i)}, v{XL+i}" for i in range(12)]
    while tail and any(sc.extra(n, tail[0]) == 0 for n in range(q, 240)): q = sc.chain([tail.pop(0)], q, 239)
    print(f"gemm2: wd {pos[2]}, residual formed at {qx}, early rows stored at {qe}, left over {len(tail)}, overflow {sc.over()}", file=sys.stderr)
    TM = O("tm", 4)
    M = [(n, T) for n in range(48 - TM) for T in range(5)] + [(n, T) for T in range(5) for n in range(48 - TM, 48)]
    w3 = wr(3)
    if TM:
        for T in range(4): sc.force(min(239, 240 - 5 * TM + TM * (T + 1) + 2), [w3[T]])
        w3 = w3[4:]
    for g, (n, T) in enumerate(M):
        sg, ks = G2O[n]
        if g % 60 == 0: stamp(a, f"h{g // 60}")
        ac = ACC2[sg] + 4*T
        a(f"v_mfma_f32_16x16x32_bf16 {vr(ac,4)}, {wdreg(5*ks+T)}, {vr(Q2H+4*(n%Q2NH),4)}, {vr(ac,4) if ks else '0'}")
        sc.emit(a, g)
    stamp(a, "h4")
    put(a, tail)
    put(a, w3)
    a("s_waitcnt lgkmcnt(0)\ns_barrier")
    put(a, [f"ds_read_b128 {vr(PT+12*k+4*T,4)}, v226 offset:{10240*k+1024*T}" for k in range(2) for T in range(3)])
    for i in range(0, 12, 2): a(f"v_pk_add_f32 {vr(PT+i,2)}, {vr(PT+i,2)}, {vr(PT+12+i,2)}")
    for i in range(0, 12, 2): a(f"v_pk_fma_f32 {vr(XL+i,2)}, {vr(PT+i,2)}, {vr(gb(i),2)}, {vr(XL+i,2)}")
    put(a, h2_out(XL, PT, 14))
    if "xcct" in OPT and X == "c":
        a(f"""
        s_cmp_eq_u32 s2, 8
        s_cbranch_scc0 L_xt_x
        v_mov_b32 v2, 0
        global_load_dword v3, v2, {sp(DBG)} sc1
        s_getreg_b32 s50, hwreg(HW_REG_XCC_ID, 0, 4)
        s_add_u32 s50, s50, 1
        s_waitcnt vmcnt(0)
        v_readfirstlane_b32 s51, v3
        s_cmp_eq_u32 s50, s51
        s_cbranch_scc1 L_xt_x
        s_memrealtime s[52:53]
        L_xt:
        s_sleep 4
        s_memrealtime s[50:51]
        s_waitcnt lgkmcnt(0)
        s_sub_u32 s50, s50, s52
        s_cmp_lt_u32 s50, 2000
        s_cbranch_scc1 L_xt
        L_xt_x:
        """)
    if "enc" in OPT:
        a("s_waitcnt vmcnt(0)"); stamp(a, "end")
        if OPT.get("encp", "c") == X:
            k = 0; A_, B_ = [78 + 2 * SNAMES.index(x) for x in OPT["enc"].split(",")]
            a(f"s_waitcnt lgkmcnt(0)\ns_sub_u32 s52, s{B_}, s{A_}\ns_mul_i32 s52, s52, {O('encm', 5)}\ns_lshr_b32 s52, s52, {O('encs', 0)}\ns_add_u32 s52, s52, 3000")
            if "encw" in OPT: a(f"s_cmp_eq_u32 s2, {OPT['encw']}\ns_cbranch_scc0 L_enc_x{X}")
            a(f"""
            L_enc{X}:
            s_sleep 4
            s_memrealtime s[50:51]
            s_waitcnt lgkmcnt(0)
            s_sub_u32 s50, s50, s{78+2*k}
            s_cmp_lt_u32 s50, s52
            s_cbranch_scc1 L_enc{X}
            L_enc_x{X}:
            """)
    elif STAMPS:
        a("s_waitcnt vmcnt(0)")
        stamp(a, "end")
        a("s_waitcnt lgkmcnt(0)")
        a(f"s_lshl_b32 s50, s2, 2\ns_add_u32 s50, s50, s3\ns_lshl_b32 s50, s50, 6\ns_add_u32 s50, s50, {STAMP}\nv_mov_b32 v2, 0")
        for n in range(12): a(f"v_mov_b32 v{8+n}, s{78+2*n}")
        a("s_mov_b64 exec, 1")
        for n in range(3): a(f"buffer_store_dwordx4 v[{8+4*n}:{11+4*n}], v2, {WSR}, s50 offen offset:{16*n}")
        a("s_mov_b64 exec, -1")

    a("s_endpgm")

def body(a):
    PROT = sum(int(x) << (5 * k) for k, x in enumerate(O('prot', '1,1,4,4,7,7,10,10,13,13,16,16').split(',')))
    def eload(a, tag=None):
        srd(a, 36, WS, WS_BYTES)
        a(f"v_mov_b32 v2, 0\ns_mov_b32 s57, {EPOCH}\nbuffer_load_dword v246, v2, {WSR}, s57 offen sc1", tag=tag)
    if "oldpf" not in OPT:
        a(f"""
        s_getpc_b64 s[40:41]
        L_pc0:
        s_lshr_b32 s51, s2, 3
        s_mul_i32 s51, s51, {O("pfl", 17) * 128}
        s_mov_b32 s42, L_code_end-L_pc0
        s_mov_b32 s43, 0x20000
        v_min_u32 v2, {O("pfl", 17) - 1}, v1
        v_lshlrev_b32 v2, 7, v2
        s_cmp_eq_u32 s3, 3
        s_cbranch_scc0 L_pf0
        """)
        a("buffer_load_dword v252, v2, s[40:43], s51 offen", nowait=True)
        a.label("L_pf0"); a.reset()
    a(f"""
    s_mov_b32 s{BUDGET}, {0 if "xnopoll" in OPT else 400000}
    s_and_b32 s50, s2, 7               ; xcd (speed only)
    s_lshr_b32 s51, s2, 3              ; slot
    s_lshr_b32 s52, s50, {4-LJ}         ; gemm1: 2^(5-LJ) row tiles x 2^LJ column tiles per xcd
    s_lshl_b32 s52, s52, {5-LJ}
    s_lshr_b32 s53, s51, {LJ}
    s_add_u32 s{S_I}, s52, s53
    """ + (f"""
    s_lshl_b32 s53, s53, 3              ; k rotation by row tile (speed only: spreads first touches of the weights)
    s_mov_b32 s54, {hex(sum(int(x) << (8*k) for k, x in enumerate(O("rot", "0,2,4,6,8,1,5,9").split(",")[:4])))}
    s_mov_b32 s55, {hex(sum(int(x) << (8*k) for k, x in enumerate(O("rot", "0,2,4,6,8,1,5,9").split(",")[4:])))}
    s_lshr_b64 s[54:55], s[54:55], s53
    s_and_b32 s{R1}, s54, 255
    s_lshr_b32 s54, s50, 2              ; the two groups of XCDs that share a column tile start half way apart
    s_mul_i32 s54, s54, {O("goff", 10)}
    s_add_u32 s{R1}, s{R1}, s54
    s_sub_u32 s54, s{R1}, 20
    s_min_u32 s{R1}, s{R1}, s54
    """ if LJ == 2 else f"""
    s_mul_i32 s{R1}, s53, {O("rm", 2)}      ; k rotation (speed only: spreads first touches of the weights)
    s_sub_u32 s56, s51, 20
    s_mul_i32 s56, s56, 5
    s_mov_b32 s54, {hex(PROT & 0xffffffff)}
    s_mov_b32 s55, {hex(PROT >> 32)}
    s_lshr_b64 s[54:55], s[54:55], s56
    s_and_b32 s54, s54, 31
    s_cmp_lt_u32 s53, 10
    s_cselect_b32 s{R1}, s{R1}, s54
    """) + f"""
    s_and_b32 s52, s50, {(1 << (4-LJ)) - 1}
    s_lshl_b32 s52, s52, {LJ}
    s_and_b32 s53, s51, {(1 << LJ) - 1}
    s_add_u32 s{S_J}, s52, s53
    s_and_b32 s{S_J2}, s51, 7
    s_lshr_b32 s53, s51, 3
    s_lshl_b32 s52, s50, 2
    s_add_u32 s{S_I2}, s52, s53
    s_mul_i32 s{S_CU}, s50, 20
    s_add_u32 s{S_CU}, s{S_CU}, s51
    s_sub_u32 s{S_PU}, s2, 160
    s_lshl_b32 s52, s50, 1             ; phase-A unit 16g + j: j = 2*xcd + (slot >= 10), g = slot mod 10
    s_cmp_ge_u32 s51, 10
    s_addc_u32 s52, s52, 0
    s_cmp_ge_u32 s51, 10
    s_cselect_b32 s53, 10, 0
    s_sub_u32 s53, s51, s53
    s_lshl_b32 s53, s53, 4
    s_add_u32 s76, s52, s53
    s_lshl_b32 s58, s{S_CU}, 2
    s_add_u32 s58, s58, s3             ; channel of this wave
    v_lshlrev_b32 v248, 4, v1
    """)
    def ptrs(a):
        a("s_waitcnt lgkmcnt(0)")
        if "entry" not in OPT: stamp(a, "start")
        else: a.comment("stamp 0 start"); stamp(a, "pro")
        a("s_cmp_ge_u32 s2, 160\ns_cbranch_scc1 L_prep")
        if "xnoconv" in OPT: a("s_branch L_end")
    def gettag():
        a(f"""
        v_readfirstlane_b32 s{TAG}, v246
        s_mul_i32 s{TAG}, s{TAG}, 0x9E3779B1
        s_add_u32 s{TAG}, s{TAG}, 0x7F4A7C15
        """)
    QM, KM = O("qm", "first"), O("km", "mid")
    WV = 224
    def wdma(n, slot=None, V=WV, each=False, nt=False):
        L = wdir_dma(n, SL[n % 5] if slot is None else slot, V, each=each)
        return [((x[0].replace(" lds", " nt lds"), x[1]) if isinstance(x, tuple) and (nt or n < O("wnt", 2)) else x) for x in L]
    wrd = lambda n: wdir_reads2(n, SL[n % 5], WV)
    NB = O("nb", 2); N2 = O("n2", 0); NC = O("nc", 15)
    first_loads(a, 76, ptrs, lambda a: (stamp(a, "kviss"), eload(a, "kv")))
    if QM == "first": phaseA_qload(a)
    if KM == "first": kload(a)
    a("v_mov_b32 v243, v3")
    PK, PQ, PH = O("prk", ""), O("prq", ""), O("prh", "")
    if PK == "r1": preT(a, KVT, True, 238)
    if PQ == "r1": preT(a, QT, False, 239)
    if PH == "r1": preH(a, 237)
    WM = O("wm", "mid")
    if PP:
        if "wpnt" not in OPT: WPNT[0] = " nt"
        put(a, wf_setup(S_J)); wp_setup(a)
    else: wdir_setup2(a, S_J, WV)
    kzero(a, 223)
    esetup(a)
    conv_addr(a)
    put(a, h1_vsetup(S_J, S_J2) + xflags(219, 0)[:-1])
    a("v_mov_b32 v3, v243")
    if QM == "late": phaseA_qload(a)
    if KM == "late": kload(a)
    if PP and WM == "late": wp_issue(a)
    if PK == "late": preT(a, KVT, True, 238, 8)
    if PQ == "late": preT(a, QT, False, 239, 8)
    stamp(a, "setup")
    phaseA_read(a)
    stamp(a, "kvland")
    if QM == "mid": phaseA_qload(a)
    if PQ == "mid": preT(a, QT, False, 239)
    if KM == "mid": kload(a)
    if PP and WM == "mid": wp_issue(a)
    NM = O("nm", 0); assert NM <= min(2, NB)
    for n in range(NM): put(a, wdma(n))
    phaseA_compute(a)
    stamp(a, "Acomp")
    if KM == "post": kload(a)
    if QM != "mid":
        a.waitv("q"); a("s_barrier")
        phaseA_q(a, 184)
    if PP and WM == "post": wp_issue(a)
    if "kcl" not in OPT: kcopies(a, 223)
    signal(a, 76, FA, gettag, tag="kvst")
    stamp(a, "Asig")
    if QM == "mid": phaseA_q(a, 184)
    if PH == "sig": preH(a, 237)
    if KM == "sig": kload(a)
    if PP:
        if WM == "post": a.waitv("wp"); a("s_barrier")
        wp_finish(a, S_CU, 128, 0)
    for n in range(NM, NB): put(a, wdma(n))
    if "kcl" in OPT: kcopies(a, 223)
    if "xcct" in OPT:
        a(f"s_cmp_eq_u32 s2, 0\ns_cbranch_scc0 L_xt0\ns_getreg_b32 s50, hwreg(HW_REG_XCC_ID, 0, 4)\ns_add_u32 s50, s50, 1\nv_mov_b32 v2, 0\nv_mov_b32 v3, s50")
        a(f"global_store_dword v2, v3, {sp(DBG)} sc1", cond=True); a.label("L_xt0")
    conv_dfrag(a)
    a(f"v_mov_b32 v4, v{AA}\nv_mov_b32 v5, v{AF}")
    if NB: a.waitv(f"w{NB-1}")
    FWL = PP and "fwl" in OPT
    if PP and not FWL: a.waitv("wpst")
    a.waitv("qst"); a("s_barrier"); wflag(a, 76, FT)
    if PP and not FWL: wflag(a, S_CU, FW)
    stamp(a, "kcop")
    for n in range(NB): put(a, wrd(n))
    poll(a, 242, 59)
    stamp(a, "kvseen")
    xload(a)
    if FWL: a("s_barrier"); wflag(a, S_CU, FW)
    C2 = O("c2", 10); CL = O("cl", 40); PE = O("pe", 95); PF = O("pf", 45)
    nr = nd = NB
    if C2 - CL < 0: poll_issue(a, 240, 69, 243)
    if NB + N2 > 5: a("s_waitcnt lgkmcnt(0)\ns_barrier")
    while nd < min(NC, nr + N2): put(a, wdma(nd)); nd += 1
    sc = c2_sched(); N = sc.N
    if C2 - CL >= 0: sc.vm(PI(240, 69, 243), C2 - CL)
    p2 = sc.at(costed(lambda a: (poll_check(a, 240, 69, 243), a.waitl(f"wr{NB-1}"), a("s_barrier"), stamp(a, "qseen")), "v", 2), C2)
    ml = f"buffer_load_dwordx2 v[{ET}:{ET+1}], v253, {WSR}, s55 offen sc1"
    sc.vm([small(ml)], PE - O("ml", 45))
    def mslow(a):
        a.label("L_m_slow"); a.reset()
        a(ml)
        a(f"v_cmp_ne_u32 vcc, s{TAG}, v{ET+1}\ns_cbranch_vccz L_m_back\ns_cmp_eq_u32 s{BUDGET}, 0\ns_cbranch_scc1 L_m_back\ns_sub_u32 s{BUDGET}, s{BUDGET}, 1\ns_sleep 1\ns_branch L_m_slow")
    slow2.append(mslow)
    def mcheck(a):
        a(f"v_cmp_ne_u32 vcc, s{TAG}, v{ET+1}\ns_cbranch_vccnz L_m_slow"); a.label("L_m_back")
        a(f"""
        v_mov_b32_dpp v252, v{ET} quad_perm:[3,3,3,3] row_mask:0xf bank_mask:0xf
        v_mul_f32_dpp v251, v{ET}, v252 quad_perm:[2,2,2,2] row_mask:0xf bank_mask:0xf
        v_mul_f32_dpp v250, v{ET}, v251 quad_perm:[1,1,1,1] row_mask:0xf bank_mask:0xf
        v_mul_f32_dpp v251, v{ET}, v251 quad_perm:[0,0,0,0] row_mask:0xf bank_mask:0xf
        """)
    sc.force(PE - 12, [BAR("st1")])
    sc.chain(streads(0), PE - 12, PE - 4, 1)
    sc.force(PE, [costed(lambda a: (mcheck(a), stamp(a, "e1"), pre_pk(a), fin_pk(a, 0), stamp(a, "e1done")), "v", 2)])
    sc.force(PE + PF, [BAR("a1st0", then=lambda a: (wflag(a, S_CU, FXE), stamp(a, "fxe")), c=3)])
    XC = O("xc", 250)
    sc.vm(PI(219, 17, 223), XC - O("xl", 30))
    XC = sc.at(PC(219, 17, 223, "xseen"), XC)
    pfp = sc.vm(PI(241, 60, 243), PE + 10)[0]
    sl = sc.chain(streads(1), PE + 2, PE + 14, 1)
    LEAD = O("lead", 50); W0 = O("w0", 84); W1 = O("w1", 270); bp = {}; sfree = [0] * 5; q = 0
    WG = O("wg", 1); rl = {}
    for n in range(nr, NC, WG):
        last = min(n + WG, NC) - 1
        p = max(q + 1, W0 + (W1 - W0) * (n - nr) // max(1, NC - 1 - nr))
        if PE - 13 <= p <= PE + 1: p = PE + 2
        b_ = sc.at(BAR(f"w{last}", f"l:wr{n-1}"), p, 2)
        q = sc.chain([x for m in range(n, last + 1) for x in wrd(m)], b_, b_ + 7 * (last - n + 1), 1)
        for m in range(n, last + 1): bp[m] = b_
        for m in range(max(nr, n - WG), n): sfree[m % 5] = b_; rl[m + 5] = b_ + 1
    pw = 0
    pw = sc.at(BAR(f"l:wr{NC-1}"), q + 4)
    for m in range(n, NC): sfree[m % 5] = pw
    pre5 = nr + 5; wf = groups_of(wf_loads())
    SW = [(wf[n], p2 + 1, N - O("wdl", 100) + 4 * n) for n in range(60)] if PP else [(g, max(p2 + 1, O("d0", 30)) if n < pre5 else rl[n], bp[n] - LEAD) for n in range(nd, NC) for g in groups_of(wdma(n, each=True))]
    erel = lambda ks: max([XC + 1] + [sfree[k] + 1 for k in range(5) if SL[k] < 4096 * (ks + 1) and 4096 * ks < SL[k] + WSLOT2])
    S = [SW, [(g, p2 + 1, PE - 70) for g in st1dma() + qloads(0)], [(g, PE + 1, PE + 20) for g in qloads(1)],
         [(h1_dma(0, ks), erel(ks), N - 60 + (12 * (gate_of(GE, ks) - 1) if ks >= GE[0] else 0) + ks / 100) for ks in range(O("npre", 15))]]
    pos = sc.streams(S, O("pc", 4.0), 0, N - 2, wt=[O("ww", 1.3), 1, 1, 1])
    assert all(len(x) == len(y) for x, y in list(zip(pos, S))[PP:3]), [(len(x), len(y)) for x, y in zip(pos, S)]
    assert pos[1][-1] < PE - 14
    log = [(n, bp[n], bp[n] - pos[0][3 * (n - nd) + 2]) for n in range(nd, NC)] if not PP else [(len(pos[0]), 0, 1)]; nwf = len(pos[0])
    assert all(x[2] > 0 for x in log), log
    npre = len(pos[3]); ql = pos[2][-1]
    b = Asm(); h1_ssetup(b, S_I, S_J); put(b, [f"s_mov_b32 s17, {FLG}"])
    SS = [re.sub(r"\bs50\b", "s53", re.sub(r"\bs35\b", "s52", re.sub(r"\bs62\b", "s16", x.text))) for k, x in b.items if k == "ins"]
    SS = SS[-1:] + SS[:-1] + [y for x in h2_wsetup(S_J2) for y in x.split("\n")]
    q = sc.chain(SS, 1, XC - 40, 1)
    pl = sc.chain(pre_list(), max(ql + 50, sl + 4), O("pld", 270))
    pi = sc.at(PC(241, 60, 243), pfp + 50)
    b = Asm(); h1_icb(b); IL = [x.text.replace("s50", "s56") for k, x in b.items if k == "ins"]
    pi = sc.chain(IL[:2] + [IL[2] + "\n" + IL[3]] + IL[4:6], pi + 1, pi + 8)
    for x in IL[6:]: pi = sc.vm([small(x)], pi + 1)[0]
    print(f"conv: weights {log} done {pw}; stats/q {pos[1]}; late pre {pl}; x seen {XC}; early {pos[3]}; overflow {sc.over()}", file=sys.stderr)
    for c in range(8): fstamp(sc, c2_start(1, c), f"c{c}")
    a.waitv("xdma")
    stamp(a, "cstart")
    for l in c2_loads(0, 0): a(l)
    seen = set()
    for n, (part, c, u, w, dterm) in enumerate(C2M):
        t = u + w; bb = c & 1
        A = vr(DFR, 4) if dterm else vr(AB[bb] + 4*u, 4)
        a(f"v_mfma_f32_16x16x32_bf16 {vr(ACC+4*t,4)}, {A}, {vr(FB[bb]+4*w,4)}, {vr(ACC + 4*t, 4) if t in seen else '0'}")
        seen.add(t)
        sc.emit(a, n)
    stamp(a, "cdone")
    order = sorted(range(4), key=lambda t: max(n for n, m in enumerate(C2M) if m[2] + m[3] == 4 + t))
    NP2 = max(npre, min(GE[0] if GE else 20, 15))
    for ks in range(npre, NP2): put(a, h1_dma(0, ks))
    V2 = 200; WB = 163840 - WSLOT2 * (20 - NC)
    tb = {n: O("t0", 90) + O("tp", 18) * (n - NC) for n in range(NC, 21)}
    wrest = [(g, 0, tb[n] - LEAD) for n in range(NC, 20) for g in groups_of(wdma(n, WB + WSLOT2 * (n - NC), V2, True))]
    if PP: wrest = [(wf[n], 0, 12 * (n // 3) - 60 + n / 100) for n in range(nwf, 60)]
    def conv_extra(sc, conv=True):
        q = 0; fr = {}
        for n in range(NC, 21):
            if NC == 20: break
            q = sc.at(BAR(*([f"w{n}"] if n < 20 else []), *([f"l:wr{n-1}"] if n > NC else [])), max(q + 1, tb[n]), 2); fr[n - 1] = q + 1
            if n < 20:
                q = sc.chain(wdir_reads2(n, WSLOT2 * (n - NC), V2), q, q + 10, 1, keep=G1B)
                assert q + 6 < 12 * n, (n, q)
        if conv: sc.at(BAR("a1st1", then=lambda a: wflag(a, S_CU, FXL), c=3), O("pl", 35))
        return lambda ks: max([0] + [fr[n] for n in range(NC, 20) if WB + WSLOT2 * (n - NC) < IMG + 4096 * (ks + 1) and IMG + 4096 * ks < WB + WSLOT2 * (n - NC + 1)])
    def head(a):
        fin_pk(a, 1, order)
        if NC < 20:
            for k in range(3): a(f"v_mov_b32 v{200+k}, v{WV+k}")
            for k in (3, 4): a(f"v_add_u32 v{200+k}, {WB}, v{WV+k}")
    passA(a, NP2, head, wrest, conv_extra)
    rest(a, 'c')
    a.label("L_prep"); a.reset()
    if "xnoprep" in OPT: a("s_branch L_end")
    eload(a)
    if 'oldpf' in OPT:
        CN = " nt" if "cnt" in OPT else ""
        a(f"""
        s_lshr_b32 s51, s2, 3
        s_cmp_eq_u32 s51, {O("pfs", 31)}
        s_cbranch_scc0 L_nopf
        s_getpc_b64 s[40:41]
        L_pc:
        s_sub_u32 s40, s40, L_pc-{NAME}_kernel
        s_subb_u32 s41, s41, 0
        s_mov_b32 s42, L_code_end-{NAME}_kernel
        s_mov_b32 s43, 0x20000
        v_lshlrev_b32 v2, 7, v0
        s_mov_b32 s52, 0x8000
        buffer_load_dword v250, v2, s[40:43], 0 offen{CN}
        buffer_load_dword v251, v2, s[40:43], s52 offen{CN}
        s_mov_b32 s52, 0x10000
        buffer_load_dword v252, v2, s[40:43], s52 offen{CN}
        L_nopf:
        """, nowait=True)
        a.reset()
    a.reset()
    V = 230; slot = lambda m: WLB + (m % 8) * WSLOT2
    def wpipe(a, n0, n1, mid=None, first=None, at=None, nt=False):
        nd = min(n0 + 6, n1)
        wdir_dma = lambda n, sl, V: wdma(n, sl, V, nt=nt)
        for n in range(n0, nd): put(a, wdir_dma(n, slot(n), V))
        if mid: mid(a)
        for n in range(n0, n1, 2):
            last = min(n + 1, n1 - 1)
            a.waitv(f"w{last}")
            if n > n0: a.waitl(f"wr{n-1}")
            a("s_barrier")
            if first and n == n0: first(a)
            for m in range(n, last + 1): put(a, wdir_reads2(m, (m % 4) * WSLOT2, V + (5 if m % 8 >= 4 else 0)))
            for _ in range(2):
                if nd < n1:
                    put(a, wdir_dma(nd, slot(nd), V)); nd += 1
                    if at and nd == at[0]: at[1](a)
        if at: a.waitv("wst")
        a("s_waitcnt lgkmcnt(0)\ns_barrier")
    NFN = O("nfn", 0)
    def wset(a):
        wdir_setup2(a, S_J, V)
        a(f"v_add_u32 v{V+3}, {WLB}, v{V+3}\nv_add_u32 v{V+4}, {WLB}, v{V+4}\nv_add_u32 v{V+8}, {4*WSLOT2}, v{V+3}\nv_add_u32 v{V+9}, {4*WSLOT2}, v{V+4}")
    if NFN:
        assert LJ == 1
        a(f"s_sub_u32 s50, s{S_PU}, 40\ns_cmp_lt_u32 s50, 40\ns_cbranch_scc0 L_p_m")
        wset(a); wpipe(a, 0, NFN, nt=True)
        a.label("L_p_m"); a.reset()
        stamp(a, "qseen")
    else: wset(a)
    a(f"""
    s_add_u32 s50, s{S_PU}, 10
    s_cmp_lt_u32 s{S_PU}, 30
    s_cselect_b32 s77, s{S_PU}, s50
    s_sub_u32 s50, s{S_PU}, 10
    s_cmp_lt_u32 s{S_PU}, 50
    s_cselect_b32 s50, s50, s{S_PU}          ; 30..39, 50..63
    s_cmp_lt_u32 s{S_PU}, 40
    s_cselect_b32 s77, s77, s50
    s_mov_b32 s76, 0
    s_cmp_ge_u32 s{S_PU}, 60
    s_cbranch_scc1 L_p_q
    """)
    mod_cloads(a, 80)
    if "modlate" not in OPT: mod_loads(a, 77, 80)
    mod_silu(a, 80, 180)
    if "modlate" in OPT: mod_loads(a, 77, 80)
    stamp(a, "kvland")
    mod_finish(a, 77, 80, 180, 0)
    stamp(a, "Acomp")
    gettag()
    mod_finish2(a, 77, 80, 180, 0, TAG)
    a(f"s_add_u32 s77, s77, {(FP2-FQ)//128}\ns_branch L_p_w")
    a.label("L_p_q"); a.reset()
    a(f"""
    s_and_b32 s50, s2, 7              ; slots 28..31: two workgroups per xcd take the statistics of the rows whose q tiles that xcd transposes (speed only),
    s_lshr_b32 s52, s2, 3             ; the other two have no job: they start on the weights and publish cw / sw of their column tile
    """ + ("s_lshr_b32 s53, s50, 2\ns_xor_b32 s53, s53, s52\n" if LJ == 2 else "s_lshr_b32 s53, s52, 1\ns_lshl_b32 s52, s52, 1\n") + f"""
    s_and_b32 s53, s53, 1
    s_xor_b32 s76, s53, 1
    s_cmp_ge_u32 s{S_PU}, 64
    s_cselect_b32 s76, s76, 0
    s_cselect_b32 s53, s53, 0
    s_lshl_b32 s50, s50, 2
    s_and_b32 s52, s52, 2
    s_add_u32 s77, s50, s52
    s_add_u32 s69, s77, 1
    s_cmp_eq_u32 s53, 0
    s_cbranch_scc0 L_p_s
    s_waitcnt vmcnt(0)
    """)
    gettag()
    a(f"s_add_u32 s77, s{S_PU}, {(FY-FQ)//128}\ns_branch L_p_w")
    a.label("L_p_s"); a.reset()
    if "qnt" not in OPT: phases.NT = ""
    st1_loads(a, 77, 16); st1_loads(a, 69, 96)
    phases.NT = " nt"
    stamp(a, "kvland")
    st1_finish(a, 77, 16, 180); st1_finish(a, 69, 96, 180)
    stamp(a, "Acomp")
    signal(a, 77, FQ, lambda: (gettag(), wflag(a, 69, FQ, 2)))
    a.label("L_p_w"); a.reset()
    stamp(a, "Asig")
    srd(a, 56, WD_, 1536 * 640 * 2)
    WDH = WLB + 8 * WSLOT2
    if NFN:
        a(f"s_sub_u32 s50, s{S_PU}, 40\ns_cmp_lt_u32 s50, 40\ns_cbranch_scc1 L_p_w2")
        wset(a); wpipe(a, 0, NFN, None, lambda a: (wflag(a, 77, FQ, 2), wflag(a, S_PU, FY, 2)))
        a.label("L_p_w2"); a.reset()
    def psetup(a):
        h1_ssetup(a, S_I, S_J)
        put(a, h1_vsetup(S_J, S_J2) + xflags(219, 0) + h2_wsetup(S_J2))
    wpipe(a, NFN, NC, psetup, lambda a: (wflag(a, 77, FQ, 2), wflag(a, S_PU, FY, 2)), (min(NC, O("wdp", 15)), lambda a: wdh_loads(a, S_PU, WDH)))
    wdh_finish(a, S_PU, WDH, 16)
    stamp(a, "kcop")
    a(f"s_cmp_eq_u32 s76, 1\ns_cbranch_scc0 L_nobias\ns_mov_b32 s69, s64")
    def tab(a):
        poll_lines(a, f"s_mov_b32 s52, {FP2+30*128}", 20)
        put(a, g1_table_load(WDH + 20480))
    wpipe(a, NC, 20, tab)
    a("s_mov_b32 s64, s69")
    g1_bias(a, 0, 20, 40, WDH + 20480)
    h1_biasstore(a)
    a.label("L_nobias"); a.reset()
    a("s_waitcnt vmcnt(0)\ns_barrier")
    wflag(a, S_PU, FP3, 2)
    a(f"s_cmp_eq_u32 s76, 1\ns_cbranch_scc0 L_nobias2")
    wflag(a, S_J, FB_, 2)
    a.label("L_nobias2")
    a("s_cmp_eq_u32 s2, 223\ns_cbranch_scc0 L_p_x")
    a(f"""
    v_lshlrev_b32 v5, 7, v0
    v_add_u32 v6, {FY-FA-160*128}, v5
    v_cmp_lt_u32 vcc, 159, v0
    v_cndmask_b32 v5, v5, v6, vcc
    s_mov_b32 s52, {FA}
    """)
    poll(a, 5, 52)
    a("s_barrier")
    a(f"s_cmp_eq_u32 s3, 0\ns_cbranch_scc0 L_p_x\ns_mov_b32 s50, {EPOCH}\nv_mov_b32 v2, 0\nv_mov_b32 v3, s{TAG}\ns_mov_b64 exec, 1")
    a(f"buffer_store_dword v3, v2, {WSR}, s50 offen sc1", cond=True)
    a("s_mov_b64 exec, -1")
    a.label("L_p_x"); a.reset()
    stamp(a, "cdone")
    a(f"""
    v_min_u32 v2, 49, v1
    v_lshlrev_b32 v2, 7, v2
    v_add_u32 v2, {FP2-FLG}, v2
    v_cmp_lt_u32 vcc, 39, v1
    v_cndmask_b32 v219, v219, v2, vcc
    """)
    for k in range(3): a(f"v_mov_b32 v{200+k}, v{V+k}")
    for k in (3, 4): a(f"v_add_u32 v{200+k}, {WB-WLB}, v{V+k}")
    NPW = O("npw", 2)
    for n in range(NC, min(20, NC + NPW)): put(a, wdma(n, WB + WSLOT2 * (n - NC), V2))
    poll(a, 219, 17, 223)
    stamp(a, "xseen")
    NPP = O("npp", 12)
    for ks in range(NPP): put(a, h1_dma(0, ks))
    h1_icb(a)
    passA(a, NPP, None, wrest[3 * NPW:], lambda sc: conv_extra(sc, False))
    rest(a, 'p')

def build():
    name = NAME + "_kernel"
    a = Asm()
    a.raw(f".globl {name}\n.p2align 8\n.type {name},@function\n{name}:")
    if "entry" in OPT: a(f"{STI} s[78:79]")
    prologue(a, 256, "L_end", wait=False)
    body(a)
    a.label("L_end")
    a("s_endpgm")
    emit_slow(a)
    a.label("L_code_end")
    hdr = open("cdna_kernels/" + NAME + ".s.ref").read().split("; Override")[0]
    txt = hdr + "; @launch grid=(256,1,1) block=(256,1,1) lds=163840\n"
    txt += '.amdgcn_target "amdgcn-amd-amdhsa--gfx950"\n.text\n' + a.finish()
    txt += f""".section .rodata,"a"
.p2align 6
.amdhsa_kernel {name}
  .amdhsa_next_free_vgpr 512
  .amdhsa_next_free_sgpr 102
  .amdhsa_accum_offset 256
  .amdhsa_group_segment_fixed_size 0
  .amdhsa_kernarg_size 120
  .amdhsa_user_sgpr_count 2
  .amdhsa_user_sgpr_kernarg_segment_ptr 1
  .amdhsa_system_sgpr_workgroup_id_x 1
.end_amdhsa_kernel
"""
    return txt
if __name__ == "__main__":
    out = [x for x in sys.argv[1:] if not x.startswith("--")][0]
    open(out, "w").write(build())
```

```python
import sys, re
from halves import *
import phases, halves
NAME = "adaLN_cond__ssm_conv_h3__glu_gated_bilinear__prompt"
OPT = {"modlate": "1"}
OPT.update({x.split("=")[0][2:]: (x.split("=") + ["1"])[1] for x in sys.argv[1:] if x.startswith("--")})
OPT = {k: v for k, v in OPT.items() if v != "off"}
def O(k, d): return type(d)(OPT.get(k, d))
FA, FQ, FP2, FP3, FXE, FXL, FB_, FHE, FHL, FY, FT, FW = [FLG + 128 * n for n in (0, 160, 200, 264, 360, 520, 680, 696, 952, 1208, 1368, 1528)]
TAG, BUDGET, T16 = 48, 49, 77
S_CU, S_PU, S_I, S_J, S_I2, S_J2 = 70, 71, 72, 73, 74, 75
PP = "pp" in OPT
if PP: OPT.update(rot="0,0,0,0,0,0,0,0", goff="0", nb="0", n2="0", nc="20")
STAMPS = "stamps" in OPT
SNAMES = OPT["stamps"].split(",") if STAMPS else ["start"]
assert len(SNAMES) <= 12 and SNAMES[0] == "start"
STI = "s_memtime" if "cyc" in OPT else "s_memrealtime"
def stamp(a, name):
    if STAMPS and name in SNAMES:
        n = SNAMES.index(name)
        a(f"{'s_memrealtime' if n == 0 and 'enc' in OPT else STI} s[{78+2*n}:{79+2*n}]")
def fstamp(sc, n, name):
    if STAMPS and name in SNAMES: sc.fill.setdefault(n, []).insert(0, costed(lambda a: stamp(a, name), 's', 0))

lab = [0]
def poll(a, voff, sbase, tmp=2, TAG=TAG):
    lab[0] += 1; L = f"L_poll{lab[0]}"
    a.label(L)
    a(f"""
    buffer_load_dword v{tmp}, v{voff}, {WSR}, s{sbase} offen sc1
    s_waitcnt vmcnt(0)
    v_cmp_ne_u32 vcc, s{TAG}, v{tmp}
    s_cbranch_vccz {L}_ok
    s_cmp_eq_u32 s{BUDGET}, 0
    s_cbranch_scc1 {L}_ok
    s_sub_u32 s{BUDGET}, s{BUDGET}, 1
    s_sleep {O('psl', 1)}
    s_branch {L}
    {L}_ok:
    """)
def flagstore(a, sline, base, v=2, sr=50, TAG=TAG):
    a(f"""
    s_lshl_b32 s{sr}, s{sline}, 7
    s_add_u32 s{sr}, s{sr}, {base}
    v_mov_b32 v{v}, 0
    v_mov_b32 v{v+1}, s{TAG}
    s_mov_b64 exec, 1
    buffer_store_dword v{v+1}, v{v}, {WSR}, s{sr} offen sc1
    s_mov_b64 exec, -1
    """, cond=True)
def wflag(a, sline, base, v=254, TAG=TAG):
    lab[0] += 1; L = f"L_wf{lab[0]}"
    a(f"s_cmp_eq_u32 s3, 0\ns_cbranch_scc0 {L}")
    flagstore(a, sline, base, v, 54, TAG)
    a.label(L)
def wcount(a, base, v=254):
    lab[0] += 1; L = f"L_wf{lab[0]}"
    a(f"s_cmp_eq_u32 s3, 0\ns_cbranch_scc0 {L}")
    a(f"""
    s_lshr_b32 s54, s{S_CU}, 4
    s_lshl_b32 s54, s54, 7
    s_add_u32 s54, s54, {base}
    v_mov_b32 v{v}, 0
    v_mov_b32 v{v+1}, 1
    s_mov_b64 exec, 1
    buffer_atomic_add v{v+1}, v{v}, {WSR}, s54 offen sc1
    s_mov_b64 exec, -1
    """, cond=True)
    a.label(L)
def signal(a, sline, base, pre=None, tag=None, TAG=TAG):
    if tag: a.waitv(tag); a("s_waitcnt lgkmcnt(0)")
    else: a("s_waitcnt vmcnt(0) lgkmcnt(0)")
    a("s_barrier")
    if pre: pre()
    wflag(a, sline, base, 2, TAG)
slow = []; slow2 = []; pending = {}
def poll_issue(a, voff, sbase, tmp):
    pending[tmp] = (voff, sbase)
    a(f"buffer_load_dword v{tmp}, v{voff}, {WSR}, s{sbase} offen sc1")
def poll_check(a, voff, sbase, tmp, TAG=TAG):
    lab[0] += 1; L = f"L_chk{lab[0]}"
    assert pending.pop(tmp, None) == (voff, sbase), "poll_check without a preceding poll_issue"
    a(f"v_cmp_ne_u32 vcc, s{TAG}, v{tmp}\ns_cbranch_vccnz {L}_slow")
    a.label(L + "_back")
    slow.append((L, voff, sbase, tmp, TAG))
def emit_slow(a):
    for f in slow2: f(a)
    for L, voff, sbase, tmp, TG in slow:
        a.label(L + "_slow"); a.reset()
        poll(a, voff, sbase, tmp, TG)
        a(f"s_branch {L}_back")
def poll_lines(a, sfirst_expr, n):
    a(sfirst_expr)
    a(f"v_min_u32 v5, {n-1}, v1\nv_lshlrev_b32 v5, 7, v5")
    poll(a, 5, 52)
def small(x, tag=None): return costed(lambda a: a(x, tag=tag), "m", 1)
PI = lambda v, s, t: [costed(lambda a: poll_issue(a, v, s, t), "m", 1)]
PC = lambda v, s, t, st=None, TG=TAG: costed(lambda a: (poll_check(a, v, s, t, TG), st and stamp(a, st)), "v", 1)
def BAR(*waits, then=None, c=2):
    def f(a):
        for w in waits: (a.waitl(w[2:]) if w.startswith("l:") else a.waitv(w))
        a("s_barrier")
        if then: then(a)
    return costed(f, "s", c)

from sched2 import Gaps
halves.Sched = Gaps

if "noalias" not in OPT: A1T = halves.A1T = KVT
def preH(a, v=245, t=2):
    a(f"""
    v_min_u32 v{t}, 47, v1
    v_cmp_lt_u32 vcc, 23, v{t}
    v_cndmask_b32 v{t+1}, 0, 1, vcc
    v_mul_u32_u24 v{t+1}, {49152 - 24*128}, v{t+1}
    v_lshl_add_u32 v{t}, v{t}, 7, v{t+1}
    s_and_b32 s50, s3, 1
    s_lshl_b32 s50, s50, 1
    s_lshr_b32 s51, s3, 1
    s_lshl_b32 s51, s51, 6
    s_add_u32 s50, s50, s51
    s_lshl_b32 s51, s{S_I}, 2
    s_add_u32 s50, s50, s51
    s_mul_i32 s50, s50, 49152
    s_mul_i32 s51, s{S_J}, 3072
    s_add_u32 s50, s50, s51
    s_add_u32 s50, s50, {HB}
    """)
    a(f"buffer_load_dword v{v}, v{t}, {WSR}, s50 offen", tag="pre")
def preT(a, base, rev, v, t=2):
    a(f"""
    s_lshr_b32 s50, s76, 4
    s_mul_i32 s50, s50, {64*PT_}
    s_and_b32 s51, s76, 15
    s_lshl_b32 s51, s51, 8
    """ + (f"s_sub_u32 s51, {4096-256}, s51\n" if rev else "") + f"""
    s_add_u32 s50, s50, s51
    s_lshl_b32 s51, s3, 4
    s_mul_i32 s51, s51, {PT_}
    s_add_u32 s50, s50, s51
    s_add_u32 s50, s50, {base}
    v_bfe_u32 v{t}, v1, 1, 4
    v_mul_u32_u24 v{t}, {PT_}, v{t}
    v_and_b32 v{t+1}, 1, v1
    v_lshl_add_u32 v{t}, v{t+1}, 7, v{t}
    """)
    a(f"buffer_load_dword v{v}, v{t}, {WSR}, s50 offen nt", tag="pre")
SL = [WSLOT2 * n for n in range(5)]
phases.PA = 25536
ST1L = 62464
KB = 78848
XOFF = KB + 4 * KCH
assert XOFF + 4 * XSTR == 163840
def kload(a):
    a(f"s_lshl_b32 s50, s58, 12\ns_mul_i32 s51, s3, {KCH}\ns_add_u32 m0, s51, {KB+32}")
    srd(a, 44, SSMK, S * D * 2)
    for n in range(4): a(f"buffer_load_dwordx4 v248, s[44:47], s50 offen offset:{1024*n}{' nt' if 'knt' not in OPT else ''} lds", tag="kdma")
def kzero(a, keep):
    a(f"""
    s_mul_i32 s51, s3, {KCH}
    s_add_u32 s51, s51, {KB}
    v_add_u32 v{keep}, s51, v248
    v_lshrrev_b32 v8, 1, v1
    v_mul_u32_u24 v8, {KSTR}, v8
    v_and_b32 v4, 1, v1
    v_lshl_add_u32 v8, v4, 4, v8
    v_add_u32 v8, s51, v8
    v_mov_b32 v4, 0
    v_mov_b32 v5, 0
    v_mov_b32 v6, 0
    v_mov_b32 v7, 0
    s_mov_b64 exec, 0xff
    ds_write_b128 v8, v[4:7]
    s_mul_i32 s52, s3, {XSTR}
    s_add_u32 s52, s52, {XOFF+4096}
    s_mov_b64 exec, 0x3fffffff
    v_add_u32 v8, s52, v248
    ds_write_b128 v8, v[4:7]
    s_mov_b64 exec, -1
    """)
def kcopies(a, keep, R=8):
    a.waitv("kdma")
    for n in range(4):
        a(f"ds_read_b128 {vr(R+6*n,4)}, v{keep} offset:{32+1024*n}")
        a(f"ds_read_b64 {vr(R+4+6*n,2)}, v{keep} offset:{48+1024*n}")
    a(f"""
    s_mov_b64 exec, 1
    v_lshlrev_b32 v80, 16, v{R}
    v_alignbit_b32 v81, v{R+1}, v{R}, 16
    ds_write_b32 v{keep}, v80 offset:{KSTR+28}
    ds_write_b32 v{keep}, v{R} offset:{2*KSTR+28}
    ds_write_b32 v{keep}, v80 offset:{3*KSTR+24}
    ds_write_b32 v{keep}, v81 offset:{3*KSTR+28}
    s_mov_b64 exec, -1
    """)
    for n in range(4):
        c = R + 6*n; t = 56 + 12*(n & 1)
        for d in range(4): a(f"v_alignbit_b32 v{t+d}, v{c+d+1}, v{c+d}, 16")
        a(f"v_pk_mov_b32 {vr(t+4,2)}, {vr(c,2)}, {vr(c+2,2)} op_sel:[1,0]")
        a(f"v_pk_mov_b32 {vr(t+6,2)}, {vr(c+2,2)}, {vr(c+4,2)} op_sel:[1,0]")
        for d in range(4): a(f"v_alignbit_b32 v{t+8+d}, v{c+d+2}, v{c+d+1}, 16")
        for j in range(1, 4):
            a(f"ds_write_b128 v{keep}, {vr(t+4*(j-1),4)} offset:{j*KSTR+32+1024*n}")
def xload(a):
    a(f"s_mul_i32 s50, s58, {PT_}\ns_mul_i32 s52, s3, {XSTR}\ns_add_u32 m0, s52, {XOFF}")
    for n in range(4): a(f"buffer_load_dwordx4 v248, {WSR}, s50 offen offset:{n*1024}{SC} lds", tag="xdma")
AA, AF = 229, 230
def conv_addr(a):
    a(f"""
    v_and_b32 v2, 15, v1                ; r / a
    v_lshrrev_b32 v8, 4, v1             ; h
    v_add_u32 v4, 1, v2
    v_and_b32 v5, 3, v4                 ; copy j
    v_sub_u32 v4, v4, v5                ; r+1-j
    v_add_u32 v4, 24, v4
    v_lshlrev_b32 v4, 1, v4
    v_mul_u32_u24 v5, {KSTR}, v5
    v_add_u32 v4, v4, v5
    v_lshlrev_b32 v5, 4, v8
    v_sub_u32 v4, v4, v5
    s_mul_i32 s51, s3, {KCH}
    s_add_u32 s51, s51, {KB}
    v_add_u32 v{AA}, s51, v4
    v_lshlrev_b32 v2, 5, v2
    v_add_u32 v2, v2, v5
    s_mul_i32 s52, s3, {XSTR}
    s_add_u32 s52, s52, {XOFF+2*(2056-1792)}
    v_sub_u32 v{AF}, s52, v2
    """)
def conv_dfrag(a):
    a(f"""
    v_lshrrev_b32 v3, 4, v1
    v_lshlrev_b32 v2, 3, v3
    v_and_b32 v3, 15, v1
    v_sub_u32 v2, v2, v3
    v_subrev_u32 v2, 9, v2              ; p = 8h - r - 9: position of filter tap 0 inside this lane's fragment
    v_and_b32 v3, 1, v2
    v_cmp_eq_u32 vcc, 1, v3
    v_lshrrev_b32 v3, 16, v250
    v_cndmask_b32 v3, v3, v250, vcc
    v_lshrrev_b32 v2, 1, v2
    """)
    for d in range(4): a(f"v_cmp_eq_u32 vcc, {d}, v2\nv_cndmask_b32 v{DFR+d}, 0, v3, vcc")
QR, SR, SM, ET = 176, 184, 200, 232
def esetup(a):
    a(f"""
    v_and_b32 v2, 15, v1
    v_lshrrev_b32 v8, 4, v1
    v_lshlrev_b32 v249, 6, v2
    v_lshl_add_u32 v249, v8, 4, v249
    v_add_u32 v249, {ST1L}, v249
    v_and_b32 v231, 1, v8
    v_lshlrev_b32 v231, 9, v231
    v_lshl_add_u32 v231, v2, 5, v231
    v_lshrrev_b32 v8, 1, v8
    v_lshl_add_u32 v231, v8, 4, v231
    s_mul_i32 s68, s58, {PT_}
    s_add_u32 s65, s68, {QT}
    s_add_u32 s68, s68, {A1T}
    s_lshl_b32 s66, s3, 12
    s_add_u32 s67, s66, {ST1}
    s_lshl_b32 s59, s58, 1
    v_mov_b32 v250, 0
    v_mov_b32 v251, s59
    global_load_short_d16_hi v250, v251, {sp(SSD)}
    v_min_u32 v240, 11, v1             ; lanes 0..7: statistics units 8w.., lanes 8..11: q tiles 4w.. of this channel group
    v_lshlrev_b32 v240, 7, v240
    s_lshr_b32 s52, s{S_CU}, 4
    s_lshl_b32 s52, s52, 11
    s_add_u32 s59, s52, {FA}
    s_lshl_b32 s69, s3, 9
    s_sub_u32 s52, s52, s69
    s_add_u32 s52, s52, {FT-FQ-8*128}
    v_cmp_lt_u32 vcc, 7, v1
    v_mov_b32 v241, s52
    v_cndmask_b32 v241, 0, v241, vcc
    v_add_u32 v240, v240, v241
    """ + ("" if not PP else f"""
    v_min_u32 v241, 16, v1             ; lanes 12..16: weight pieces of k-steps 5w..
    v_lshlrev_b32 v241, 10, v241
    s_lshr_b32 s52, s{S_J}, 1
    s_lshl_b32 s52, s52, 7
    s_lshl_b32 s69, s3, 12
    s_add_u32 s52, s52, s69
    s_add_u32 s52, s52, {FW-FQ-12*1024}
    v_add_u32 v241, s52, v241
    v_cmp_lt_u32 vcc, 11, v1
    v_cndmask_b32 v240, v240, v241, vcc
    """) + f"""
    s_lshl_b32 s69, s3, 10
    s_add_u32 s69, s69, {FQ}
    s_lshl_b32 s55, s58, 3
    s_add_u32 s55, s55, {MODT}
    v_and_b32 v253, 3, v1              ; granules sa, ca1, ga, cb1
    v_cmp_eq_u32 vcc, 3, v253
    v_addc_co_u32 v253, vcc, 0, v253, vcc
    v_mul_u32_u24 v253, 5120, v253
    v_min_u32 v241, 9, v1              ; 1+cb units (reciprocal table)
    v_lshlrev_b32 v241, 7, v241
    s_mov_b32 s60, {FP2+40*128}
    v_min_u32 v242, 15, v1
    v_lshlrev_b32 v242, 7, v242
    """)
def st1dma(): return [[f"s_add_u32 m0, s66, {ST1L}", (f"buffer_load_dwordx4 v248, {WSR}, s67 offen offset:{n*1024}{SC} lds", "st1")] for n in range(4)]
def qloads(h): return [[f"buffer_load_dwordx4 {vr(QR+4*p,4)}, v231, {WSR}, s65 offen offset:{2048*h+1024*p}{SC}"] for p in range(2)]
def streads(h): return [f"ds_read_b128 {vr((SM if m else SR)+4*t,4)}, v249 offset:{8192*m+1024*(4*h+t)}" for t in range(4) for m in range(2)]
sw = lambda t, c=2: costed(lambda a: a(t), "v", c)
def qswaps(): return [f"v_permlane16_swap_b32 v{QR+4*p+k}, v{QR+4*p+2+k}" for p in range(2) for k in range(2)]
def pre_pk(a):
    put(a, qswaps())
    for t in range(4):
        r, m, q = SR + 4*t, SM + 4*t, ET + 4*(t & 1)
        unpack(a, q, q + 1, QR + 2*t); unpack(a, q + 2, q + 3, QR + 2*t + 1)
        for p in (0, 2): a(f"v_pk_fma_f32 {vr(r+p,2)}, {vr(q+p,2)}, {vr(r+p,2)}, {vr(m+p,2)}")
        for p in (0, 2): a(f"v_pk_mul_f32 {vr(m+p,2)}, {vr(q+p,2)}, v[252:253] op_sel_hi:[1,0]")
        for p in (0, 2): a(f"v_pk_fma_f32 {vr(r+p,2)}, {vr(r+p,2)}, v[250:251], v[250:251] op_sel:[0,0,1] op_sel_hi:[1,0,1]")
def pre_list():
    L = [sw(x) for x in qswaps()]
    for t in range(4):
        for i in range(4):
            r, m, q = SR + 4*t + i, SM + 4*t + i, ET + (i & 1)
            L += [f"v_lshlrev_b32 v{q}, 16, v{QR+2*t+(i>>1)}" if i % 2 == 0 else f"v_and_b32 v{q}, 0xffff0000, v{QR+2*t+(i>>1)}",
                  f"v_fma_f32 v{r}, v{q}, v{r}, v{m}", f"v_mul_f32 v{m}, v252, v{q}", f"v_fma_f32 v{r}, v{r}, v250, v251"]
    return L
def fin_pk(a, h, order=range(4)):
    done = set()
    for t in order:
        x = ACC + 4*(4*h + t)
        for p in (0, 2): a(f"v_pk_fma_f32 {vr(SR+4*t+p,2)}, {vr(SR+4*t+p,2)}, {vr(x+p,2)}, {vr(SM+4*t+p,2)}")
        for p in range(2): a(f"v_cvt_pk_bf16_f32 v{ET+2*t+p}, v{SR+4*t+2*p}, v{SR+4*t+2*p+1}")
        done.add(t)
        if t ^ 1 in done:
            p = t >> 1
            for k in range(2): a(f"v_permlane16_swap_b32 v{ET+4*p+k}, v{ET+4*p+2+k}")
            a(f"buffer_store_dwordx4 {vr(ET+4*p,4)}, v231, {WSR}, s68 offen offset:{2048*h+1024*p}{SC}", tag=f"a1st{h}")

def wp_setup(a):
    b = Asm(); wp_loads(b, S_CU, 0)
    for k, x in b.items:
        if x.kind != "vmem" and "m0" not in x.text and x.text != f"s_add_u32 s52, s52, {8*3072}": a(x.text)
    a("s_mov_b32 s56, s52\ns_mul_i32 s57, s3, 6144")
def wp_issue(a):
    for n in range(6):
        if n % 3 == 0: a(f"s_add_u32 m0, s57, {n*1024}")
        a(f"buffer_load_dwordx4 v{233+n%3}, s[40:43], s56 offen offset:{1024*(n%3)}{WPNT[0]} lds", tag="wp")
        if n == 2: a(f"s_add_u32 s56, s56, {8*3072}")
def first_loads(a, su, before_ptr, after_dma):
    PA = phases.PA
    a(f"""
    s_lshr_b32 s50, s{su}, 4          ; g
    s_and_b32 s51, s{su}, 15          ; j
    s_mul_i32 s52, s51, {128*1280}
    s_lshl_b32 s53, s50, 7
    s_add_u32 s52, s52, s53           ; tile byte offset
    v_lshrrev_b32 v3, 3, v1
    v_mul_u32_u24 v3, 1280, v3
    v_and_b32 v4, 7, v1
    v_lshl_add_u32 v3, v4, 4, v3      ; DMA lane offset
    s_mul_i32 s53, s3, {32*1280}
    s_add_u32 s53, s53, s52           ; wave soffset
    s_mul_i32 s54, s3, {4*GS}
    v_add_u32 v10, {8*1280-GS}, v3
    v_add_u32 v11, {2*(8*1280-GS)}, v3
    v_add_u32 v12, {3*(8*1280-GS)}, v3
    s_sub_u32 s55, s52, {8*1280}
    v_add_u32 v5, s55, v3
    s_add_u32 s56, s54, {PA + 17*GS}
    s_add_u32 m0, s54, {PA + GS}
    s_mov_b32 s42, {S*D*2}
    s_mov_b32 s43, 0x20000
    s_mov_b32 s46, {S*D*2}
    s_mov_b32 s47, 0x20000
    """)
    before_ptr(a)
    a(f"s_mov_b64 s[40:41], s[{K}:{K+1}]\ns_mov_b64 s[44:45], s[{V}:{V+1}]")
    for n in range(4): a(f"buffer_load_dwordx4 v{9+n if n else 3}, s[40:43], s53 offen offset:{n*GS} nt lds", tag="kv")
    a("s_mov_b32 m0, s56\ns_cmp_eq_u32 s3, 0")
    for n in range(4): a(f"buffer_load_dwordx4 v{9+n if n else 3}, s[44:47], s53 offen offset:{n*GS} nt lds", tag="kv")
    a(f"s_cbranch_scc0 L_nohalo\ns_mov_b32 m0, {PA}")
    a(f"buffer_load_dwordx4 v5, s[40:43], 0 offen nt lds", cond=True)
    a.label("L_nohalo")
    after_dma(a)
    b = Asm(); phaseA_loads(b, su, lambda b: None, lambda b: b.comment("CUT"))
    k = [i for i, (t, x) in enumerate(b.items) if t == "raw" and "CUT" in x][0]
    a.items += b.items[k + 1:]
WDH0 = 81920
def wdh_loads(a, su, WDH):
    a(f"""
    s_lshr_b32 s52, s{su}, 1
    s_lshl_b32 s52, s52, 2
    s_add_u32 s52, s52, s3
    s_mul_i32 s52, s52, {8*1280}
    s_and_b32 s53, s{su}, 1
    s_mul_i32 s53, s53, 640
    s_add_u32 s52, s52, s53
    s_mul_i32 s53, s3, 5120
    """)
    for n in range(5):
        a(f"""
        v_add_u32 v5, {64*n}, v1
        v_mul_u32_u24 v6, 205, v5
        v_lshrrev_b32 v6, 13, v6
        v_mul_u32_u24 v6, 640, v6
        v_lshl_add_u32 v5, v5, 4, v6
        s_add_u32 m0, s53, {WDH + n*1024}
        """)
        a(f"buffer_load_dwordx4 v5, s[56:59], s52 offen nt lds", tag="wst")
def wdh_finish(a, su, WDH, R):
    a(f"""
    v_lshrrev_b32 v2, 4, v1           ; h
    v_bfe_u32 v3, v1, 2, 2            ; r
    v_lshl_add_u32 v3, v2, 3, v3
    v_mul_u32_u24 v3, 640, v3
    v_and_b32 v2, 3, v1
    v_lshl_add_u32 v2, v2, 3, v3
    s_mul_i32 s50, s3, 160
    s_add_u32 s50, s50, {WDH}
    v_add_u32 v2, s50, v2
    s_lshr_b32 s53, s{su}, 1
    s_mov_b32 s50, 0x15555556
    s_mul_hi_u32 s51, s53, s50
    s_mul_i32 s52, s51, 12
    s_sub_u32 s52, s53, s52           ; ks
    s_and_b32 s50, s{su}, 1
    s_lshl_b32 s50, s50, 2
    s_add_u32 s50, s50, s3
    s_lshl_b32 s50, s50, 2
    s_add_u32 s50, s50, s51
    s_mul_i32 s50, s50, 60
    s_mul_i32 s52, s52, 5
    s_add_u32 s50, s50, s52
    s_lshl_b32 s50, s50, 10
    s_add_u32 s50, s50, {WD}
    s_add_u32 s51, s50, 4096
    """)
    for n in range(5):
        for half in range(2): a(f"ds_read_b64_tr_b16 {vr(R+4*n+2*half,2)}, v2 offset:{32*n+half*4*640}")
    for n in range(5): a(f"buffer_store_dwordx4 {vr(R+4*n,4)}, v248, {WSR}, s{50+n//4} offen offset:{(n%4)*1024}{SC}", tag="wout")

halves.HACC = HACC = (56, 8)
halves.Q2H = Q2H = 56; halves.Q2NH = Q2NH = O("nh", 12); halves.Q2ACC = Q2ACC = (8, 28)
XE, XL, GB, PT, IC, XR = 120, 232, (48, 52, 132), 168, 168, 180
XI = 81920
def xflags(v, late, t=2, sr=50):
    L = ["v_lshrrev_b32 v2, 1, v1", "v_lshlrev_b32 v2, 10, v2", "v_and_b32 v3, 1, v1", f"v_lshl_add_u32 v{v}, v3, 7, v2",
         f"s_lshl_b32 s50, s3, 8\ns_add_u32 s50, s50, {(FXL if late else FXE)-FLG}", f"v_add_u32 v{v}, s50, v{v}"]
    if late: L += [f"s_lshl_b32 s50, s{S_J}, 7\ns_add_u32 s50, s50, {FB_-FLG}", "v_mov_b32 v2, s50"]
    else: L += [f"s_add_u32 s50, s50, {19*1024}", "v_mov_b32 v2, s50"]
    L += [f"v_cmp_lt_u32 vcc, 39, v1\nv_cndmask_b32 v{v}, v{v}, v2, vcc", f"s_mov_b32 s17, {FLG}"]
    return [re.sub(r"\bs50\b", f"s{sr}", re.sub(r"\bv3\b", f"v{t+1}", re.sub(r"\bv2\b", f"v{t}", x))) for x in L]
WG3 = [int(x) for x in O("wg", "0,9,13,20").split(",")]
def wflags():
    L = [f"s_lshr_b32 s61, s{S_J}, 1\ns_lshl_b32 s61, s61, 7\ns_add_u32 s61, s61, {FW}"]
    for g, (lo, n) in enumerate((WG3[k], WG3[k+1] - WG3[k]) for k in range(3)):
        L += [f"v_min_u32 v{224+g}, {n-1}, v1", f"v_add_lshl_u32 v{224+g}, v{224+g}, {lo}, 10"]
    return L
def hflags(base, gbu=False):
    return [f"s_lshr_b32 s50, s{S_I2}, 1\ns_lshl_b32 s50, s50, 2", f"s_add_u32 s50, s50, s3\ns_lshl_b32 s50, s50, 9", f"s_add_u32 s50, s50, {base-FLG}",
            f"v_min_u32 v246, {13 if gbu else 3}, v1", "v_lshlrev_b32 v246, 7, v246"] + \
           ([f"v_mov_b32 v2, s50", f"v_mov_b32 v3, {FP2+50*128-FLG-4*128}", "v_cmp_lt_u32 vcc, 3, v1\nv_cndmask_b32 v2, v2, v3, vcc", "v_add_u32 v246, v246, v2"] if gbu else ["v_add_u32 v246, s50, v246"])
def g2_setup(si2, sj2):
    return ["s_and_b32 s50, s3, 1\ns_lshr_b32 s51, s3, 1", "s_mul_i32 s52, s50, 20480\ns_mul_i32 s53, s3, 5120", "s_add_u32 s52, s52, s53",
         "v_add_u32 v220, s52, v248", "v_add_u32 v222, 40960, v220",
         "s_xor_b32 s52, s50, 1\ns_mul_i32 s52, s52, 20480", "s_add_u32 s52, s52, s53", "v_add_u32 v221, s52, v248", "v_add_u32 v223, 40960, v221",
         "s_mul_i32 s52, s51, 20480\ns_lshl_b32 s53, s50, 11", "s_add_u32 s52, s52, s53", "v_add_u32 v224, s52, v248",
         "s_mul_i32 s53, s51, 5120\ns_add_u32 s53, s53, 40960", "v_add_u32 v225, s53, v224",
         "s_xor_b32 s53, s51, 1\ns_mul_i32 s53, s53, 5120", "s_add_u32 s53, s53, 40960", "v_add_u32 v226, s53, v224",
         f"s_lshl_b32 s52, s{si2}, 1\ns_add_u32 s52, s52, s51", f"s_mul_i32 s12, s{sj2}, 320\ns_add_u32 s15, s12, {ICB}",
         f"s_add_u32 s12, s12, {MOD+5*2560}\ns_mul_i32 s13, s52, {16*1280}", f"s_mul_i32 s53, s{sj2}, 160\ns_add_u32 s13, s13, s53",
         f"s_lshl_b32 s53, s50, 6\ns_add_u32 s13, s13, s53", f"s_add_u32 s14, s13, {1024*1280}",
         f"s_mul_i32 s10, s{sj2}, 10\ns_add_u32 s10, s10, s3", f"s_mul_i32 s10, s10, {8*PT_}\ns_lshl_b32 s53, s{si2}, 6", f"s_add_u32 s10, s10, s53\ns_add_u32 s10, s10, {A1T}",
         f"s_lshl_b32 s11, s3, 10\ns_add_u32 s11, s11, {XI}",
         "v_lshrrev_b32 v2, 3, v1", f"v_mul_u32_u24 v229, {PT_}, v2", "v_bfe_u32 v2, v1, 2, 1", "v_lshl_add_u32 v229, v2, 11, v229", "v_and_b32 v2, 3, v1", "v_lshl_add_u32 v229, v2, 4, v229",
         "v_lshrrev_b32 v3, 2, v1", "v_lshlrev_b32 v231, 7, v3", "v_lshl_add_u32 v231, v2, 3, v231", f"s_lshl_b32 s53, s50, 12\ns_lshl_b32 s52, s51, 5", f"s_add_u32 s53, s53, s52\ns_add_u32 s53, s53, {XI}", "v_add_u32 v231, s53, v231",
         "v_and_b32 v2, 15, v1", "v_lshrrev_b32 v3, 4, v1",
         "v_lshlrev_b32 v230, 4, v3", "s_lshl_b32 s53, s50, 7", "v_add_u32 v230, s53, v230",
         "v_mul_u32_u24 v2, 1280, v2", "v_lshl_add_u32 v228, v3, 3, v2", "v_and_b32 v227, 1, v3", "v_lshl_add_u32 v2, v227, 5, v2", "v_lshrrev_b32 v3, 1, v3", "v_lshl_add_u32 v227, v3, 4, v2"]
def g2_xdma():
    return [[f"s_add_u32 m0, s11, {4096*n}", (f"buffer_load_dwordx4 v229, {WSR}, s10 offen{SC} lds", "xi")] + ([f"s_add_u32 s10, s10, {32*PT_}"] if n < 2 else []) for n in range(3)]
def g2_gloads(): return [[f"buffer_load_dwordx4 {vr(GB[T],4)}, v230, {WSR}, s12 offen offset:{64*T}{SC}"] for T in range(3)] + \
                        [[f"buffer_load_dwordx4 {vr(IC+4*T,4)}, v230, {WSR}, s15 offen offset:{64*T}{SC}"] for T in range(3)]
def g2_xreads(): return [f"ds_read_b64_tr_b16 {vr(XR+6*h+2*T,2)}, v231 offset:{2048*T+64*h}" for h in range(2) for T in range(3)]
def g2_xform():
    L = []
    for h, X in enumerate((XE, XL)):
        for i in range(12):
            r = XR + 6*h + i // 2
            L += [f"v_lshlrev_b32 v{X+i}, 16, v{r}" if i % 2 == 0 else f"v_and_b32 v{X+i}, 0xffff0000, v{r}", f"v_mul_f32 v{X+i}, v{X+i}, v{IC+i}"]
    return L
gb = lambda i: GB[i // 4] + i % 4

LJ = O("lj", 2); S_ = S
_h2_out = h2_out
def h2_out(R, O_, so): return [(x + " " + OPT["ost"].replace("_", " ") if isinstance(x, str) and x.startswith("buffer_store") and "ost" in OPT else x) for x in _h2_out(R, O_, so)]
GE = [int(x) for x in O("ge", "3,8").split(",") if x]
GLs = [int(x) for x in O("gl", "0,2,5").split(",")]
GATES = {}
for k, g in enumerate(GE): GATES[g] = f"a0_{(GE[k+1] if k + 1 < len(GE) else 20) - 1}"
for k, g in enumerate(GLs): GATES[20 + g] = f"a1_{(GLs[k+1] if k + 1 < len(GLs) else 20) - 1}"
LDONE = [0]; WDONE = [0]
G1B = lambda n: n % 12 in (3, 7, 11)
G1S = lambda n: n % 12 == 10
G1K = lambda n: n % 12 in (3, 7, 10, 11)
gate_of = lambda G, ks: max([x for x in G if x <= ks], default=0)
def smalls(sc, groups, p, step=1):
    for g in groups: p = sc.vm(g, p, p + 14, lambda n: G1K(n) and not sc.m[n])[1] + step
    return p
GBF = []
def passA(a, npre, head=None, wrest=None, extra=None):
    sc = h1_sched(0, GATES)
    LQ = O("lq", 160); LI = LQ - O("lql", 40)
    q = sc.chain(xflags(219, 1, 238, 55), LI - 30, LI - 2, keep=G1K)
    smalls(sc, [PI(219, 17, 240)], LI)
    p = sc.at(PC(219, 17, 240, "Lx"), LQ) + 1
    W0 = O("wa0", 110)
    q3 = sc.chain(["v_min_u32 v243, 11, v1", "v_lshlrev_b32 v243, 8, v243", f"s_mul_i32 s58, s3, 24\ns_lshr_b32 s57, s{S_J2}, 2", f"s_add_u32 s58, s58, s57\ns_lshl_b32 s58, s58, 7", f"s_add_u32 s58, s58, {FP3}"] + GBF, max(0, W0 - 56), W0 - 46, keep=G1K)
    q3 = smalls(sc, [PI(243, 58, 244)], q3 + 1)
    n = sc.at(PC(243, 58, 244), max(W0, q3 + 30)) + 1
    wl = groups_of(h2_wloads())
    bl = h1_biasloads()
    smalls(sc, [[bl[0], small(bl[1])]] + [[small(x)] for x in bl[2:]], O("lb", LQ + 4), 6)
    lfree = extra(sc) if extra else (lambda ks: 0)
    S = [[(h1_dma(0, ks), 0, 12 * (gate_of(GE, ks) - 1) - 40 + ks / 100) for ks in range(npre, 20)],
         [(h1_dma(1, ks), max(p, lfree(ks)), 190 + 12 * (gate_of(GLs, ks) - 1) + ks / 100) for ks in range(20)], [(g, n, 300) for g in wl[:12]], wrest or []]
    pos = sc.streams(S, O("pa", 4.0), 0, 238, lambda n: G1B(n) or (n < O("pad", 0) and G1S(n)), wt=[1, 1, 1, O("ww", 1.0 if PP else 1.5)])
    assert len(pos[0]) == len(S[0]) and len(pos[3]) == len(S[3]), [(len(x), len(y)) for x, y in zip(pos, S)]
    for ks, x in zip(range(npre, 20), pos[0]): assert x <= 12 * (gate_of(GE, ks) - 1), (ks, x)
    if wrest: print("   weights: slack", [int(y[2] - x) for x, y in zip(pos[3], wrest)][2::3], file=sys.stderr); assert all(x < y[2] + O("lead", 50) - 10 for x, y in zip(pos[3], wrest))
    assert len(pos[1]) >= (GLs[1] if len(GLs) > 1 else 20)
    LDONE[0] = len(pos[1]); WDONE[0] = len(pos[2])
    pre, rd = h1_st_reads(0)
    q = max(12 * (GE[-1] - 1) + 1 if GE else 1, O("sa", 20), sc.wdone if hasattr(sc, "wdone") else 0)
    q = sc.chain(rd, q, q + 4, 1, keep=G1B)
    q = sc.chain(h1_st_list(0, 0, TAG), q + 6, q + O("sl", 70), keep=G1K)
    print(f"pass A: early dma {pos[0]}, wd {WDONE[0]}, stats at {q}, late slots issued {LDONE[0]}, overflow {sc.over()}", file=sys.stderr)
    for ks in range(20): fstamp(sc, 12 * ks, f"a{ks}")
    if "gbar" in OPT:
        if head: head(a); head = None
        lab[0] += 1; L = f"L_gb{lab[0]}"
        a(f"""
        s_waitcnt vmcnt(0)
        s_barrier
        v_mov_b32 v254, 0
        v_mov_b32 v255, 1
        s_cmp_eq_u32 s3, 0
        s_cbranch_scc0 {L}
        s_mov_b64 exec, 1
        global_atomic_add v254, v255, {sp(DBG)} sc1
        s_mov_b64 exec, -1
        {L}:
        global_load_dword v255, v254, {sp(DBG)} sc1
        s_waitcnt vmcnt(0)
        v_cmp_ne_u32 vcc, 256, v255
        s_cbranch_vccz {L}x
        s_sleep 2
        s_branch {L}
        {L}x:
        """)
        stamp(a, "gb")
    a.waitv(f"a0_{(GE[0] if GE else 20) - 1}")
    a("s_waitcnt lgkmcnt(0)\ns_barrier")
    put(a, h1_reads(0))
    if head: head(a)
    h1_pass(a, 0, sc)

def rest(a, X):
    stamp(a, "pB")
    sc = h1_sched(1, GATES)
    wl = groups_of(h2_wloads())
    def stslow(h):
        def f(a):
            a.label(f"L_st{X}{h}_slow"); a.reset()
            put(a, h1_stloads()); put(a, h1_stcheck(TAG))
            a(f"v_cmp_ne_u32 vcc, 0, v3\ns_cbranch_vccz L_st{X}{h}_back\ns_cmp_eq_u32 s{BUDGET}, 0\ns_cbranch_scc1 L_st{X}{h}_back\ns_sub_u32 s{BUDGET}, s{BUDGET}, 1\ns_branch L_st{X}{h}_slow")
        slow2.append(f)
        def chk(a):
            a(f"v_cmp_ne_u32 vcc, 0, v3\ns_cbranch_vccnz L_st{X}{h}_slow"); a.label(f"L_st{X}{h}_back")
        return costed(chk, "v", 1)
    EA = O("ea", 44)
    smalls(sc, [[small(x)] for x in h1_stloads()], max(0, EA - 44))
    p = sc.chain(h1_stcheck(TAG) + [stslow(0)], EA - 10, EA - 2, keep=G1K)
    p = sc.force(p + 1, [costed(lambda a: (stamp(a, "eA"), h1_epi(a, 0), a(f"s_add_u32 s{S_STL}, s{S_STL}, {1024*16}\ns_lshl_b32 s76, s{S_I}, 4\ns_add_u32 s76, s76, s{S_J}")), "v", 2)])
    pf = sc.at(BAR("hst0", then=lambda a: wflag(a, 76, FHE), c=3), p + O("ph", 40))
    SB = O("sb", 228); HC = O("hc", 190)
    smalls(sc, [[small(x)] for x in h1_stloads()], SB - 48)
    smalls(sc, [PI(246, 17, 247)], HC - 36)
    q2 = sc.at(PC(246, 17, 247, "Hseen"), HC)
    S = [[(h1_dma(1, ks), 0, 12 * (gate_of(GLs, ks) - 1) - 40 + ks / 100) for ks in range(LDONE[0], 20)],
         [(wl[n], 12 * ((n - 12) // 3 + 1) if n >= 12 else 0, 200 + n) for n in range(WDONE[0], 60)],
         [([h2_hload(n)], q2 + 1, O("hd", 180) + 5 * n) for n in range(12)]]
    pos = sc.streams(S, O("pb", 4.0), 0, 238, lambda n: G1B(n) or (n >= O("pbd", 240) and G1S(n)))
    assert len(pos[0]) == len(S[0])
    for ks, x in zip(range(LDONE[0], 20), pos[0]): assert x <= 12 * (gate_of(GLs, ks) - 1), (ks, x)
    nw = WDONE[0] + len(pos[1]); nh = len(pos[2])
    g = max(k for k in GATES if k >= 20)
    pre, rd = h1_st_reads(1)
    q = sc.chain(pre, 0, 10, keep=G1K)
    q = max(q, 12 * (g - 21) + 1, p + 1)
    q = sc.chain(rd, q, q + 4, 1, keep=G1B)
    q = sc.chain(h1_st_list(1, 0, TAG), q + 6, q + O("sl", 70), keep=G1K)
    assert q + 30 < SB - 48, q
    q3 = sc.chain(h2_hsetup(S_I2) + hflags(FHE, True), q + 1, HC - 38, keep=G1K)
    assert q3 < HC - 36, q3
    sc.chain(h1_stcheck(TAG) + [stslow(1)], SB, 238)
    print(f"pass B: epilogue A at {p}, FHE at {pf}, stats B done {q}, wd {nw}, h {nh}, overflow {sc.over()}", file=sys.stderr)
    for ks in range(20): fstamp(sc, 12 * ks, f"b{ks}")
    h1_pass(a, 1, sc)
    stamp(a, "g1done")
    for n in range(nh, 12): a(h2_hload(n))
    for g_ in wl[nw:]: put(a, g_)
    h1_epi(a, 1)
    for n in range(12, Q2NH): a(h2_hload(n))
    stamp(a, "g1epi")
    sc = Gaps(240)
    srd(a, 40, OUT, S_ * D * 2)
    PB1 = O("pb1", 40)
    sc.force(PB1, [BAR("hst1", then=lambda a: wflag(a, 76, FHL), c=3)])
    LC = O("lc", 110)
    sc.vm(PI(246, 17, 247), LC - O("ll", 30))
    p = sc.at(PC(246, 17, 247, "Lseen"), LC) + 1
    QS = O("qs", 46)
    pos = sc.streams([[([h2_hload(n)], max(5 * (n - Q2NH) + 5, p if n >= 24 else 0), 5 * n) for n in range(Q2NH, 48)], [(g, max(QS, PB1) + 1, 100) for g in g2_xdma()]], O("p2", 3.0))
    assert len(pos[0]) == 48 - Q2NH and all(x < 5 * n for x, n in zip(pos[0], range(Q2NH, 48))), pos
    wr = lambda sg: [f"ds_write_b128 v{220+sg}, {vr(Q2ACC[sg&1]+4*T,4)} offset:{T*1024}" for T in range(5)]
    assert PB1 < 62
    sc.chain(wr(0), 64, 76, 2)
    q = sc.chain(g2_setup(S_I2, S_J2) + hflags(FHL), 0, QS - 1)
    pg = q + 1
    for x in g2_gloads(): pg = sc.vm([small(x[0])], pg)[0] + 1
    q = sc.at(BAR("xi"), max(pos[1][-1], pg) + O("xw", 40))
    q = sc.chain(g2_xreads(), q, q + 8)
    qx = sc.chain(g2_xform(), q + 4, q + 36)
    q = sc.chain(wr(1), 123, 135, 2)
    q = sc.at("s_waitcnt lgkmcnt(0)\ns_barrier", max(q + O("g2d", 8), qx + 1))
    q = sc.chain([f"ds_read_b128 {vr(PT+12*sr+4*T,4)}, v224 offset:{5120*sr+1024*T}" for sr in range(4) for T in range(3)], q, q + 14)
    add = lambda x, y: [f"v_add_f32 v{x+i}, v{x+i}, v{y+i}" for i in range(12)]
    q = sc.chain(add(PT, PT + 12) + add(PT + 24, PT + 36) + add(PT, PT + 24), q + 2, q + 26)
    ho = h2_out(XE, PT + 12, 13)
    q = sc.chain([f"v_fma_f32 v{XE+i}, v{PT+i}, v{gb(i)}, v{XE+i}" for i in range(12)] + ho, q, q + 18)
    qe = q
    q = sc.chain(wr(2), 183, 195, 2)
    q = sc.at("s_waitcnt lgkmcnt(0)\ns_barrier", q + O("g2d", 8))
    q = sc.chain([f"ds_read_b128 {vr(PT+24+12*k+4*T,4)}, v225 offset:{10240*k+1024*T}" for k in range(2) for T in range(3)], max(q, qe), max(q, qe) + 8) + 7
    tail = add(PT + 24, PT + 36) + [f"v_fma_f32 v{XL+i}, v{PT+24+i}, v{gb(i)}, v{XL+i}" for i in range(12)]
    while tail and any(sc.extra(n, tail[0]) == 0 for n in range(q, 240)): q = sc.chain([tail.pop(0)], q, 239)
    print(f"gemm2: residual formed at {qx}, early rows stored at {qe}, left over {len(tail)}, overflow {sc.over()}", file=sys.stderr)
    for sg in range(4):
        stamp(a, f"h{sg}")
        for ks in range(12):
            n = 12 * sg + ks
            for T in range(5):
                ac = Q2ACC[sg & 1] + 4*T
                a(f"v_mfma_f32_16x16x32_bf16 {vr(ac,4)}, {wdreg(5*ks+T)}, {vr(Q2H+4*(n%Q2NH),4)}, {vr(ac,4) if ks else '0'}")
                sc.emit(a, 5*n + T)
    stamp(a, "h4")
    put(a, tail)
    put(a, wr(3))
    a("s_waitcnt lgkmcnt(0)\ns_barrier")
    put(a, [f"ds_read_b128 {vr(PT+12*k+4*T,4)}, v226 offset:{10240*k+1024*T}" for k in range(2) for T in range(3)])
    for i in range(0, 12, 2): a(f"v_pk_add_f32 {vr(PT+i,2)}, {vr(PT+i,2)}, {vr(PT+12+i,2)}")
    for i in range(0, 12, 2): a(f"v_pk_fma_f32 {vr(XL+i,2)}, {vr(PT+i,2)}, {vr(gb(i),2)}, {vr(XL+i,2)}")
    put(a, h2_out(XL, PT, 14))
    if "xcct" in OPT and X == "c":
        a(f"""
        s_cmp_eq_u32 s2, 8
        s_cbranch_scc0 L_xt_x
        v_mov_b32 v2, 0
        global_load_dword v3, v2, {sp(DBG)} sc1
        s_getreg_b32 s50, hwreg(HW_REG_XCC_ID, 0, 4)
        s_add_u32 s50, s50, 1
        s_waitcnt vmcnt(0)
        v_readfirstlane_b32 s51, v3
        s_cmp_eq_u32 s50, s51
        s_cbranch_scc1 L_xt_x
        s_memrealtime s[52:53]
        L_xt:
        s_sleep 4
        s_memrealtime s[50:51]
        s_waitcnt lgkmcnt(0)
        s_sub_u32 s50, s50, s52
        s_cmp_lt_u32 s50, 2000
        s_cbranch_scc1 L_xt
        L_xt_x:
        """)
    if "enc" in OPT:
        a("s_waitcnt vmcnt(0)"); stamp(a, "end")
        if OPT.get("encp", "c") == X:
            k = 0; A_, B_ = [78 + 2 * SNAMES.index(x) for x in OPT["enc"].split(",")]
            a(f"s_waitcnt lgkmcnt(0)\ns_sub_u32 s52, s{B_}, s{A_}\ns_mul_i32 s52, s52, {O('encm', 5)}\ns_lshr_b32 s52, s52, {O('encs', 0)}\ns_add_u32 s52, s52, 3000")
            if "encw" in OPT: a(f"s_cmp_eq_u32 s2, {OPT['encw']}\ns_cbranch_scc0 L_enc_x{X}")
            a(f"""
            L_enc{X}:
            s_sleep 4
            s_memrealtime s[50:51]
            s_waitcnt lgkmcnt(0)
            s_sub_u32 s50, s50, s{78+2*k}
            s_cmp_lt_u32 s50, s52
            s_cbranch_scc1 L_enc{X}
            L_enc_x{X}:
            """)
    elif STAMPS:
        a("s_waitcnt vmcnt(0)")
        stamp(a, "end")
        a("s_waitcnt lgkmcnt(0)")
        a(f"s_lshl_b32 s50, s2, 2\ns_add_u32 s50, s50, s3\ns_lshl_b32 s50, s50, 6\ns_add_u32 s50, s50, {STAMP}\nv_mov_b32 v2, 0")
        for n in range(12): a(f"v_mov_b32 v{8+n}, s{78+2*n}")
        a("s_mov_b64 exec, 1")
        for n in range(3): a(f"buffer_store_dwordx4 v[{8+4*n}:{11+4*n}], v2, {WSR}, s50 offen offset:{16*n}")
        a("s_mov_b64 exec, -1")

    a("s_endpgm")

def body(a):
    def eload(a, tag=None):
        WB0 = int(O("wsb", "0"), 16)
        srd(a, 36, WS, WS_BYTES - WB0)
        if WB0: a(f"s_add_u32 s36, s36, {hex(WB0)}\ns_addc_u32 s37, s37, 0")
        a(f"v_mov_b32 v2, 0\ns_mov_b32 s57, {EPOCH}\nbuffer_load_dword v246, v2, {WSR}, s57 offen sc1", tag=tag)
    if "oldpf" not in OPT:
        a(f"""
        s_getpc_b64 s[40:41]
        L_pc0:
        s_lshr_b32 s51, s2, 3
        s_mul_i32 s51, s51, {O("pfl", 17) * 128}
        s_mov_b32 s42, L_code_end-L_pc0
        s_mov_b32 s43, 0x20000
        v_min_u32 v2, {O("pfl", 17) - 1}, v1
        v_lshlrev_b32 v2, 7, v2
        s_cmp_eq_u32 s3, 3
        s_cbranch_scc0 L_pf0
        """)
        a("buffer_load_dword v252, v2, s[40:43], s51 offen", nowait=True)
        a.label("L_pf0"); a.reset()
    a(f"""
    s_mov_b32 s{BUDGET}, {0 if "xnopoll" in OPT else 400000}
    s_and_b32 s50, s2, 7               ; xcd (speed only)
    s_lshr_b32 s51, s2, 3              ; slot
    s_lshr_b32 s52, s50, {4-LJ}         ; gemm1: 2^(5-LJ) row tiles x 2^LJ column tiles per xcd
    s_lshl_b32 s52, s52, {5-LJ}
    s_lshr_b32 s53, s51, {LJ}
    s_add_u32 s{S_I}, s52, s53
    """ + (f"""
    s_lshl_b32 s53, s53, 3              ; k rotation by row tile (speed only: spreads first touches of the weights)
    s_mov_b32 s54, {hex(sum(int(x) << (8*k) for k, x in enumerate(O("rot", "0,2,4,6,8,1,5,9").split(",")[:4])))}
    s_mov_b32 s55, {hex(sum(int(x) << (8*k) for k, x in enumerate(O("rot", "0,2,4,6,8,1,5,9").split(",")[4:])))}
    s_lshr_b64 s[54:55], s[54:55], s53
    s_and_b32 s{R1}, s54, 255
    s_lshr_b32 s54, s50, 2              ; the two groups of XCDs that share a column tile start half way apart
    s_mul_i32 s54, s54, {O("goff", 10)}
    s_add_u32 s{R1}, s{R1}, s54
    s_sub_u32 s54, s{R1}, 20
    s_min_u32 s{R1}, s{R1}, s54
    """ if LJ == 2 else f"""
    s_mul_i32 s{R1}, s53, {O("rm", 2)}      ; k rotation by row tile (speed only: spreads first touches of the weights)
    s_mul_i32 s54, s53, 3
    s_sub_u32 s54, s54, 29
    s_cmp_lt_u32 s53, 10
    s_cselect_b32 s{R1}, s{R1}, s54
    """) + f"""
    s_and_b32 s52, s50, {(1 << (4-LJ)) - 1}
    s_lshl_b32 s52, s52, {LJ}
    s_and_b32 s53, s51, {(1 << LJ) - 1}
    s_add_u32 s{S_J}, s52, s53
    s_and_b32 s{S_J2}, s51, 7
    s_lshr_b32 s53, s51, 3
    s_lshl_b32 s52, s50, 2
    s_add_u32 s{S_I2}, s52, s53
    s_mul_i32 s{S_CU}, s50, 20
    s_add_u32 s{S_CU}, s{S_CU}, s51
    s_sub_u32 s{S_PU}, s2, 160
    s_lshl_b32 s52, s50, 1             ; phase-A unit 16g + j: j = 2*xcd + (slot >= 10), g = slot mod 10
    s_cmp_ge_u32 s51, 10
    s_addc_u32 s52, s52, 0
    s_cmp_ge_u32 s51, 10
    s_cselect_b32 s53, 10, 0
    s_sub_u32 s53, s51, s53
    s_lshl_b32 s53, s53, 4
    s_add_u32 s76, s52, s53
    s_lshl_b32 s58, s{S_CU}, 2
    s_add_u32 s58, s58, s3             ; channel of this wave
    v_lshlrev_b32 v248, 4, v1
    """)
    def ptrs(a):
        a("s_waitcnt lgkmcnt(0)")
        if "entry" not in OPT: stamp(a, "start")
        else: a.comment("stamp 0 start"); stamp(a, "pro")
        a("s_cmp_ge_u32 s2, 160\ns_cbranch_scc1 L_prep")
        if "xnoconv" in OPT: a("s_branch L_end")
    def gettag():
        a(f"""
        v_readfirstlane_b32 s{TAG}, v246
        s_mul_i32 s{TAG}, s{TAG}, 0x9E3779B1
        s_add_u32 s{TAG}, s{TAG}, 0x7F4A7C15
        """)
    QM, KM = O("qm", "first"), O("km", "mid")
    WV = 224
    def wdma(n, slot=None, V=WV, each=False):
        L = wdir_dma(n, SL[n % 5] if slot is None else slot, V, each=each)
        return [((x[0].replace(" lds", " nt lds"), x[1]) if isinstance(x, tuple) and n < O("wnt", 0) else x) for x in L]
    wrd = lambda n: wdir_reads2(n, SL[n % 5], WV)
    NB = O("nb", 4); N2 = O("n2", 0); NC = O("nc", 15)
    first_loads(a, 76, ptrs, lambda a: (stamp(a, "kviss"), eload(a, "kv")))
    if QM == "first": phaseA_qload(a)
    if KM == "first": kload(a)
    a("v_mov_b32 v243, v3")
    PK, PQ, PH = O("prk", ""), O("prq", ""), O("prh", "")
    if PK == "r1": preT(a, KVT, True, 238)
    if PQ == "r1": preT(a, QT, False, 239)
    if PH == "r1": preH(a, 237)
    WM = O("wm", "mid")
    if PP:
        if "wpnt" not in OPT: WPNT[0] = " nt"
        put(a, wf_setup(S_J)); wp_setup(a)
    else: wdir_setup2(a, S_J, WV)
    kzero(a, 223)
    esetup(a)
    conv_addr(a)
    put(a, h1_vsetup(S_J, S_J2) + xflags(219, 0)[:-1])
    a("v_mov_b32 v3, v243")
    if QM == "late": phaseA_qload(a)
    if KM == "late": kload(a)
    if PP and WM == "late": wp_issue(a)
    if PK == "late": preT(a, KVT, True, 238, 8)
    if PQ == "late": preT(a, QT, False, 239, 8)
    stamp(a, "setup")
    phaseA_read(a)
    stamp(a, "kvland")
    if QM == "mid": phaseA_qload(a)
    if PQ == "mid": preT(a, QT, False, 239)
    if KM == "mid": kload(a)
    if PP and WM == "mid": wp_issue(a)
    NM = O("nm", 0); assert NM <= min(2, NB)
    for n in range(NM): put(a, wdma(n))
    phaseA_compute(a)
    stamp(a, "Acomp")
    if KM == "post": kload(a)
    if QM != "mid":
        a.waitv("q"); a("s_barrier")
        phaseA_q(a, 184)
    if PP and WM == "post": wp_issue(a)
    if "kcl" not in OPT: kcopies(a, 223)
    signal(a, 76, FA, gettag, tag="kvst")
    stamp(a, "Asig")
    if QM == "mid": phaseA_q(a, 184)
    if PH == "sig": preH(a, 237)
    if KM == "sig": kload(a)
    if PP:
        if WM == "post": a.waitv("wp"); a("s_barrier")
        wp_finish(a, S_CU, 128, 0)
    for n in range(NM, NB): put(a, wdma(n))
    if "kcl" in OPT: kcopies(a, 223)
    if "xcct" in OPT:
        a(f"s_cmp_eq_u32 s2, 0\ns_cbranch_scc0 L_xt0\ns_getreg_b32 s50, hwreg(HW_REG_XCC_ID, 0, 4)\ns_add_u32 s50, s50, 1\nv_mov_b32 v2, 0\nv_mov_b32 v3, s50")
        a(f"global_store_dword v2, v3, {sp(DBG)} sc1", cond=True); a.label("L_xt0")
    conv_dfrag(a)
    a(f"v_mov_b32 v4, v{AA}\nv_mov_b32 v5, v{AF}")
    if NB: a.waitv(f"w{NB-1}")
    FWL = PP and "fwl" in OPT
    if PP and not FWL: a.waitv("wpst")
    a.waitv("qst"); a("s_barrier"); wflag(a, 76, FT)
    if PP and not FWL: wflag(a, S_CU, FW)
    stamp(a, "kcop")
    for n in range(NB): put(a, wrd(n))
    poll(a, 242, 59)
    stamp(a, "kvseen")
    xload(a)
    if FWL: a("s_barrier"); wflag(a, S_CU, FW)
    C2 = O("c2", 10); CL = O("cl", 40); PE = O("pe", 95); PF = O("pf", 45)
    nr = nd = NB
    if C2 - CL < 0: poll_issue(a, 240, 69, 243)
    if NB + N2 > 5: a("s_waitcnt lgkmcnt(0)\ns_barrier")
    while nd < min(NC, nr + N2): put(a, wdma(nd)); nd += 1
    sc = c2_sched(); N = sc.N
    if C2 - CL >= 0: sc.vm(PI(240, 69, 243), C2 - CL)
    p2 = sc.at(costed(lambda a: (poll_check(a, 240, 69, 243), a.waitl(f"wr{NB-1}"), a("s_barrier"), stamp(a, "qseen")), "v", 2), C2)
    ml = f"buffer_load_dwordx2 v[{ET}:{ET+1}], v253, {WSR}, s55 offen sc1"
    sc.vm([small(ml)], PE - O("ml", 45))
    def mslow(a):
        a.label("L_m_slow"); a.reset()
        a(ml)
        a(f"v_cmp_ne_u32 vcc, s{TAG}, v{ET+1}\ns_cbranch_vccz L_m_back\ns_cmp_eq_u32 s{BUDGET}, 0\ns_cbranch_scc1 L_m_back\ns_sub_u32 s{BUDGET}, s{BUDGET}, 1\ns_sleep 1\ns_branch L_m_slow")
    slow2.append(mslow)
    def mcheck(a):
        a(f"v_cmp_ne_u32 vcc, s{TAG}, v{ET+1}\ns_cbranch_vccnz L_m_slow"); a.label("L_m_back")
        a(f"""
        v_mov_b32_dpp v252, v{ET} quad_perm:[3,3,3,3] row_mask:0xf bank_mask:0xf
        v_mul_f32_dpp v251, v{ET}, v252 quad_perm:[2,2,2,2] row_mask:0xf bank_mask:0xf
        v_mul_f32_dpp v250, v{ET}, v251 quad_perm:[1,1,1,1] row_mask:0xf bank_mask:0xf
        v_mul_f32_dpp v251, v{ET}, v251 quad_perm:[0,0,0,0] row_mask:0xf bank_mask:0xf
        """)
    sc.force(PE - 12, [BAR("st1")])
    sc.chain(streads(0), PE - 12, PE - 4, 1)
    sc.force(PE, [costed(lambda a: (mcheck(a), stamp(a, "e1"), pre_pk(a), fin_pk(a, 0), stamp(a, "e1done")), "v", 2)])
    sc.force(PE + PF, [BAR("a1st0", then=lambda a: (wflag(a, S_CU, FXE), stamp(a, "fxe")), c=3)])
    XC = O("xc", 250)
    sc.vm(PI(219, 17, 223), XC - O("xl", 30))
    XC = sc.at(PC(219, 17, 223, "xseen"), XC)
    pfp = sc.vm(PI(241, 60, 243), PE + 10)[0]
    sl = sc.chain(streads(1), PE + 2, PE + 14, 1)
    LEAD = O("lead", 50); W0 = O("w0", 102); W1 = O("w1", 270); bp = {}; sfree = [0] * 5; q = 0
    for n in range(nr, NC if not PP else 0):
        p = max(q + 1, W0 + (W1 - W0) * (n - nr) // max(1, NC - 1 - nr))
        if PE - 13 <= p <= PE + 1: p = PE + 2
        bp[n] = sc.at(BAR(f"w{n}", f"l:wr{n-1}"), p, 2)
        q = sc.chain(wrd(n), bp[n], bp[n] + 7, 1)
        sfree[(n - 1) % 5] = bp[n]
    pw = 0
    if not PP: pw = sc.at(BAR(f"l:wr{NC-1}"), q + 4); sfree[(NC - 1) % 5] = pw
    pre5 = nr + 5; wf = groups_of(wf_loads())
    SW = [(wf[n], p2 + 1, N - O("wdl", 100) + 4 * n) for n in range(60)] if PP else [(g, max(p2 + 1, O("d0", 30)) if n < pre5 else bp[max(n - 4, nr)] + 1, bp[n] - LEAD) for n in range(nd, NC) for g in groups_of(wdma(n, each=True))]
    erel = lambda ks: max([XC + 1] + [sfree[k] + 1 for k in range(5) if SL[k] < 4096 * (ks + 1) and 4096 * ks < SL[k] + WSLOT2])
    S = [SW, [(g, p2 + 1, PE - 70) for g in st1dma() + qloads(0)], [(g, PE + 1, PE + 20) for g in qloads(1)],
         [(h1_dma(0, ks), erel(ks), N - 60 + (12 * (gate_of(GE, ks) - 1) if ks >= GE[0] else 0) + ks / 100) for ks in range(O("npre", 15))]]
    pos = sc.streams(S, O("pc", 4.0), 0, N - 2, wt=[O("ww", 1.0 if PP else 1.5), 1, 1, 1])
    assert all(len(x) == len(y) for x, y in list(zip(pos, S))[PP:3]), [(len(x), len(y)) for x, y in zip(pos, S)]
    assert pos[1][-1] < PE - 14
    log = [(n, bp[n], bp[n] - pos[0][3 * (n - nd) + 2]) for n in range(nd, NC)] if not PP else [(len(pos[0]), 0, 1)]; nwf = len(pos[0])
    assert all(x[2] > 0 for x in log), log
    npre = len(pos[3]); ql = pos[2][-1]
    b = Asm(); h1_ssetup(b, S_I, S_J); put(b, [f"s_mov_b32 s17, {FLG}"])
    SS = [re.sub(r"\bs50\b", "s53", re.sub(r"\bs35\b", "s52", re.sub(r"\bs62\b", "s16", x.text))) for k, x in b.items if k == "ins"]
    SS = SS[-1:] + SS[:-1] + [y for x in h2_wsetup(S_J2) for y in x.split("\n")]
    q = sc.chain(SS, 1, XC - 40, 1)
    pl = sc.chain(pre_list(), max(ql + 50, sl + 4), O("pld", 270))
    pi = sc.at(PC(241, 60, 243), pfp + 50)
    b = Asm(); h1_icb(b); IL = [x.text.replace("s50", "s56") for k, x in b.items if k == "ins"]
    pi = sc.chain(IL[:2] + [IL[2] + "\n" + IL[3]] + IL[4:6], pi + 1, pi + 8)
    for x in IL[6:]: pi = sc.vm([small(x)], pi + 1)[0]
    print(f"conv: weights {log} done {pw}; stats/q {pos[1]}; late pre {pl}; x seen {XC}; early {pos[3]}; overflow {sc.over()}", file=sys.stderr)
    for c in range(8): fstamp(sc, c2_start(1, c), f"c{c}")
    a.waitv("xdma")
    stamp(a, "cstart")
    for l in c2_loads(0, 0): a(l)
    seen = set()
    for n, (part, c, u, w, dterm) in enumerate(C2M):
        t = u + w; bb = c & 1
        A = vr(DFR, 4) if dterm else vr(AB[bb] + 4*u, 4)
        a(f"v_mfma_f32_16x16x32_bf16 {vr(ACC+4*t,4)}, {A}, {vr(FB[bb]+4*w,4)}, {vr(ACC + 4*t, 4) if t in seen else '0'}")
        seen.add(t)
        sc.emit(a, n)
    stamp(a, "cdone")
    order = sorted(range(4), key=lambda t: max(n for n, m in enumerate(C2M) if m[2] + m[3] == 4 + t))
    NP2 = max(npre, min(GE[0] if GE else 20, 15))
    for ks in range(npre, NP2): put(a, h1_dma(0, ks))
    V2 = 200; WB = 163840 - WSLOT2 * (20 - NC)
    tb = {n: O("t0", 90) + O("tp", 18) * (n - NC) for n in range(NC, 21)}
    wrest = [(g, 0, tb[n] - LEAD) for n in range(NC, 20) for g in groups_of(wdma(n, WB + WSLOT2 * (n - NC), V2, True))]
    if PP: wrest = [(wf[n], 0, 12 * (n // 3) - 60 + n / 100) for n in range(nwf, 60)]
    def conv_extra(sc, conv=True):
        q = 0; fr = {}
        for n in range(NC, 21):
            if NC == 20: break
            q = sc.at(BAR(*([f"w{n}"] if n < 20 else []), *([f"l:wr{n-1}"] if n > NC else [])), max(q + 1, tb[n]), 2); fr[n - 1] = q + 1
            if n < 20:
                q = sc.chain(wdir_reads2(n, WSLOT2 * (n - NC), V2), q, q + 10, 1, keep=G1B)
                assert q + 6 < 12 * n, (n, q)
        if conv: sc.at(BAR("a1st1", then=lambda a: wflag(a, S_CU, FXL), c=3), O("pl", 35))
        return lambda ks: max([0] + [fr[n] for n in range(NC, 20) if WB + WSLOT2 * (n - NC) < IMG + 4096 * (ks + 1) and IMG + 4096 * ks < WB + WSLOT2 * (n - NC + 1)])
    def head(a):
        fin_pk(a, 1, order)
        if NC < 20:
            for k in range(3): a(f"v_mov_b32 v{200+k}, v{WV+k}")
            for k in (3, 4): a(f"v_add_u32 v{200+k}, {WB}, v{WV+k}")
    passA(a, NP2, head, wrest, conv_extra)
    rest(a, 'c')
    a.label("L_prep"); a.reset()
    if "xnoprep" in OPT: a("s_branch L_end")
    eload(a)
    if 'oldpf' in OPT:
        CN = " nt" if "cnt" in OPT else ""
        a(f"""
        s_lshr_b32 s51, s2, 3
        s_cmp_eq_u32 s51, {O("pfs", 31)}
        s_cbranch_scc0 L_nopf
        s_getpc_b64 s[40:41]
        L_pc:
        s_sub_u32 s40, s40, L_pc-{NAME}_kernel
        s_subb_u32 s41, s41, 0
        s_mov_b32 s42, L_code_end-{NAME}_kernel
        s_mov_b32 s43, 0x20000
        v_lshlrev_b32 v2, 7, v0
        s_mov_b32 s52, 0x8000
        buffer_load_dword v250, v2, s[40:43], 0 offen{CN}
        buffer_load_dword v251, v2, s[40:43], s52 offen{CN}
        s_mov_b32 s52, 0x10000
        buffer_load_dword v252, v2, s[40:43], s52 offen{CN}
        L_nopf:
        """, nowait=True)
        a.reset()
    a.reset()
    V = 230; slot = lambda m: WLB + (m % 8) * WSLOT2
    def wpipe(a, n0, n1, mid=None, first=None, at=None):
        nd = min(n0 + 6, n1)
        wdir_dma = lambda n, sl, V: wdma(n, sl, V)
        for n in range(n0, nd): put(a, wdir_dma(n, slot(n), V))
        if mid: mid(a)
        for n in range(n0, n1, 2):
            last = min(n + 1, n1 - 1)
            a.waitv(f"w{last}")
            if n > n0: a.waitl(f"wr{n-1}")
            a("s_barrier")
            if first and n == n0: first(a)
            for m in range(n, last + 1): put(a, wdir_reads2(m, (m % 4) * WSLOT2, V + (5 if m % 8 >= 4 else 0)))
            for _ in range(2):
                if nd < n1:
                    put(a, wdir_dma(nd, slot(nd), V)); nd += 1
                    if at and nd == at[0]: at[1](a)
        if at: a.waitv("wst")
        a("s_waitcnt lgkmcnt(0)\ns_barrier")
    a(f"""
    s_add_u32 s50, s{S_PU}, 10
    s_cmp_lt_u32 s{S_PU}, 30
    s_cselect_b32 s77, s{S_PU}, s50
    s_sub_u32 s50, s{S_PU}, 10
    s_cmp_lt_u32 s{S_PU}, 50
    s_cselect_b32 s50, s50, s{S_PU}          ; 30..39, 50..63
    s_cmp_lt_u32 s{S_PU}, 40
    s_cselect_b32 s77, s77, s50
    s_mov_b32 s76, 0
    s_cmp_ge_u32 s{S_PU}, 60
    s_cbranch_scc1 L_p_q
    """)
    mod_cloads(a, 80)
    if "modlate" not in OPT: mod_loads(a, 77, 80)
    mod_silu(a, 80, 180)
    if "modlate" in OPT: mod_loads(a, 77, 80)
    stamp(a, "kvland")
    mod_finish(a, 77, 80, 180, 0)
    stamp(a, "Acomp")
    gettag()
    mod_finish2(a, 77, 80, 180, 0, TAG)
    a(f"s_add_u32 s77, s77, {(FP2-FQ)//128}\ns_branch L_p_w")
    a.label("L_p_q"); a.reset()
    a(f"""
    s_and_b32 s50, s2, 7              ; slots 28..31: two workgroups per xcd take the statistics of the rows whose q tiles that xcd transposes (speed only),
    s_lshr_b32 s52, s2, 3             ; the other two have no job: they start on the weights and publish cw / sw of their column tile
    """ + ("s_lshr_b32 s53, s50, 2\ns_xor_b32 s53, s53, s52\n" if LJ == 2 else "s_lshr_b32 s53, s52, 1\ns_lshl_b32 s52, s52, 1\n") + f"""
    s_and_b32 s53, s53, 1
    s_xor_b32 s76, s53, 1
    s_cmp_ge_u32 s{S_PU}, 64
    s_cselect_b32 s76, s76, 0
    s_cselect_b32 s53, s53, 0
    s_lshl_b32 s50, s50, 2
    s_and_b32 s52, s52, 2
    s_add_u32 s77, s50, s52
    s_add_u32 s69, s77, 1
    s_cmp_eq_u32 s53, 0
    s_cbranch_scc0 L_p_s
    s_waitcnt vmcnt(0)
    """)
    gettag()
    a(f"s_add_u32 s77, s{S_PU}, {(FY-FQ)//128}\ns_branch L_p_w")
    a.label("L_p_s"); a.reset()
    if "qnt" not in OPT: phases.NT = ""
    st1_loads(a, 77, 16); st1_loads(a, 69, 96)
    phases.NT = " nt"
    stamp(a, "kvland")
    st1_finish(a, 77, 16, 180); st1_finish(a, 69, 96, 180)
    stamp(a, "Acomp")
    signal(a, 77, FQ, lambda: (gettag(), wflag(a, 69, FQ, 2)))
    a.label("L_p_w"); a.reset()
    stamp(a, "Asig")
    srd(a, 56, WD_, 1536 * 640 * 2)
    WDH = WLB + 8 * WSLOT2
    wdir_setup2(a, S_J, V)
    a(f"v_add_u32 v{V+3}, {WLB}, v{V+3}\nv_add_u32 v{V+4}, {WLB}, v{V+4}\nv_add_u32 v{V+8}, {4*WSLOT2}, v{V+3}\nv_add_u32 v{V+9}, {4*WSLOT2}, v{V+4}")
    def psetup(a):
        h1_ssetup(a, S_I, S_J)
        put(a, h1_vsetup(S_J, S_J2) + xflags(219, 0) + h2_wsetup(S_J2))
    wpipe(a, 0, NC, psetup, lambda a: (wflag(a, 77, FQ, 2), wflag(a, S_PU, FY, 2)), (min(NC, O("wdp", 15)), lambda a: wdh_loads(a, S_PU, WDH)))
    wdh_finish(a, S_PU, WDH, 16)
    stamp(a, "kcop")
    a(f"s_cmp_eq_u32 s76, 1\ns_cbranch_scc0 L_nobias\ns_mov_b32 s69, s64")
    def tab(a):
        poll_lines(a, f"s_mov_b32 s52, {FP2+30*128}", 20)
        put(a, g1_table_load(WDH + 20480))
    wpipe(a, NC, 20, tab)
    a("s_mov_b32 s64, s69")
    g1_bias(a, 0, 20, 40, WDH + 20480)
    h1_biasstore(a)
    a.label("L_nobias"); a.reset()
    a("s_waitcnt vmcnt(0)\ns_barrier")
    wflag(a, S_PU, FP3, 2)
    a(f"s_cmp_eq_u32 s76, 1\ns_cbranch_scc0 L_nobias2")
    wflag(a, S_J, FB_, 2)
    a.label("L_nobias2")
    a("s_cmp_eq_u32 s2, 223\ns_cbranch_scc0 L_p_x")
    a(f"""
    v_lshlrev_b32 v5, 7, v0
    v_add_u32 v6, {FY-FA-160*128}, v5
    v_cmp_lt_u32 vcc, 159, v0
    v_cndmask_b32 v5, v5, v6, vcc
    s_mov_b32 s52, {FA}
    """)
    poll(a, 5, 52)
    a("s_barrier")
    a(f"s_cmp_eq_u32 s3, 0\ns_cbranch_scc0 L_p_x\ns_mov_b32 s50, {EPOCH}\nv_mov_b32 v2, 0\nv_mov_b32 v3, s{TAG}\ns_mov_b64 exec, 1")
    a(f"buffer_store_dword v3, v2, {WSR}, s50 offen sc1", cond=True)
    a("s_mov_b64 exec, -1")
    a.label("L_p_x"); a.reset()
    stamp(a, "cdone")
    a(f"""
    v_min_u32 v2, 49, v1
    v_lshlrev_b32 v2, 7, v2
    v_add_u32 v2, {FP2-FLG}, v2
    v_cmp_lt_u32 vcc, 39, v1
    v_cndmask_b32 v219, v219, v2, vcc
    """)
    for k in range(3): a(f"v_mov_b32 v{200+k}, v{V+k}")
    for k in (3, 4): a(f"v_add_u32 v{200+k}, {WB-WLB}, v{V+k}")
    NPW = O("npw", 2)
    for n in range(NC, min(20, NC + NPW)): put(a, wdma(n, WB + WSLOT2 * (n - NC), V2))
    poll(a, 219, 17, 223)
    stamp(a, "xseen")
    NPP = O("npp", 12)
    for ks in range(NPP): put(a, h1_dma(0, ks))
    h1_icb(a)
    passA(a, NPP, None, wrest[3 * NPW:], lambda sc: conv_extra(sc, False))
    rest(a, 'p')

def build():
    name = NAME + "_kernel"
    a = Asm()
    a.raw(f".globl {name}\n.p2align 8\n.type {name},@function\n{name}:")
    if "entry" in OPT: a(f"{STI} s[78:79]")
    prologue(a, 256, "L_end", wait=False)
    body(a)
    a.label("L_end")
    a("s_endpgm")
    emit_slow(a)
    a.label("L_code_end")
    hdr = open("cdna_kernels/" + NAME + ".s.ref").read().split("; Override")[0]
    txt = hdr + "; @launch grid=(256,1,1) block=(256,1,1) lds=163840\n"
    txt += '.amdgcn_target "amdgcn-amd-amdhsa--gfx950"\n.text\n' + a.finish()
    txt += f""".section .rodata,"a"
.p2align 6
.amdhsa_kernel {name}
  .amdhsa_next_free_vgpr 512
  .amdhsa_next_free_sgpr 102
  .amdhsa_accum_offset 256
  .amdhsa_group_segment_fixed_size 0
  .amdhsa_kernarg_size 120
  .amdhsa_user_sgpr_count 2
  .amdhsa_user_sgpr_kernarg_segment_ptr 1
  .amdhsa_system_sgpr_workgroup_id_x 1
.end_amdhsa_kernel
"""
    return txt
if __name__ == "__main__":
    out = [x for x in sys.argv[1:] if not x.startswith("--")][0]
    open(out, "w").write(build())
```

```python
import sys, re
from halves import *
import phases
NAME = "adaLN_cond__ssm_conv_h3__glu_gated_bilinear__prompt"
OPT = dict(early="1", modlate="1", p3sep="1", hoist="1", pe="135", npre="5", ge="1,2,4,7,9", wa0="80", pf="34", capa="3", nowarm="1", lj="2", nokeep="1", w0="3", wsa="8", wsb="4", gl="9", c2="80", c4="220", estep="7", lead="36", pl="28", qloc="2", wp="15", npw="3", np0="0", qm="mid", vov="1", dstep="3", nrd="15")
OPT.update({x.split("=")[0][2:]: (x.split("=") + ["1"])[1] for x in sys.argv[1:] if x.startswith("--")})
OPT = {k: v for k, v in OPT.items() if v != "off"}
FA, FQ, FP2, FP3, FXE, FXL, FB_, FHE, FHL, FY, FT = [FLG + 128 * n for n in (0, 160, 200, 264, 360, 520, 680, 696, 952, 1208, 1368)]
TAG, BUDGET = 48, 49
S_CU, S_PU, S_I, S_J, S_I2, S_J2, S_W = 70, 71, 72, 73, 74, 75, 64
STAMPS = "stamps" in OPT
DEFAULT_STAMPS = "start,kvland,Asig,kvseen,cstart,cdone,x1sig,x1seen,g1done,Hsig,Hseen,end"
SNAMES = (OPT["stamps"] if STAMPS and OPT["stamps"] != "1" else DEFAULT_STAMPS).split(",")
assert len(SNAMES) <= 12 and SNAMES[0] == "start"
STI = "s_memtime" if "cyc" in OPT else "s_memrealtime"
def stamp(a, name):
    if STAMPS and name in SNAMES:
        n = SNAMES.index(name)
        a(f"{STI} s[{78+2*n}:{79+2*n}]")
def fstamp(sc, n, name):
    if STAMPS and name in SNAMES: sc.fill.setdefault(n, []).insert(0, costed(lambda a: stamp(a, name), 's', 0))

lab = [0]
def poll(a, voff, sbase, nload=1, stride=64*128, tmp=2):
    lab[0] += 1; L = f"L_poll{lab[0]}"
    a.label(L)
    for k in range(nload):
        a(f"buffer_load_dword v{tmp+k}, v{voff+k}, {WSR}, s{sbase} offen sc1")
    a("s_waitcnt vmcnt(0)")
    a(f"v_cmp_ne_u32 vcc, s{TAG}, v{tmp}")
    for k in range(1, nload):
        a(f"v_cmp_ne_u32 s[50:51], s{TAG}, v{tmp+k}\ns_or_b64 vcc, vcc, s[50:51]")
    a(f"""
    s_cbranch_vccz {L}_ok
    s_cmp_eq_u32 s{BUDGET}, 0
    s_cbranch_scc1 {L}_ok
    s_sub_u32 s{BUDGET}, s{BUDGET}, 1
    s_sleep {OPT.get('psl', 1)}
    s_branch {L}
    {L}_ok:
    """)

def pollp(a, voff, sbase, tmp=8):
    depth = int(OPT.get("pdepth", 1))
    if depth == 1: return poll(a, voff, sbase, tmp=tmp)
    lab[0] += 1; L = f"L_poll{lab[0]}"
    ld = lambda k: f"buffer_load_dword v{tmp+k}, v{voff}, {WSR}, s{sbase} offen sc1"
    for k in range(depth - 1): a(ld(k) + f"\ns_sleep {OPT.get('pstag', 4)}", nowait=True)
    a.label(L)
    for k in range(depth):
        a(ld((k + depth - 1) % depth), nowait=True)
        a(f"s_waitcnt vmcnt({depth-1})")
        a(f"v_cmp_ne_u32 vcc, s{TAG}, v{tmp+k}\ns_cbranch_vccz {L}_ok", nowait=True)
    a(f"""
    s_cmp_eq_u32 s{BUDGET}, 0
    s_cbranch_scc1 {L}_ok
    s_sub_u32 s{BUDGET}, s{BUDGET}, 1
    s_branch {L}
    {L}_ok:
    """)
    a.reset_v()

def signal(a, sline, base, pre=None, tag=None):
    lab[0] += 1; L = f"L_sig{lab[0]}"
    if tag: a.waitv(tag); a("s_waitcnt lgkmcnt(0)")
    else: a("s_waitcnt vmcnt(0) lgkmcnt(0)")
    a("s_barrier")
    if pre: pre()
    a(f"s_cmp_eq_u32 s3, 0\ns_cbranch_scc0 {L}")
    flagstore(a, sline, base)
    a.label(L)

def flagstore(a, sline, base, v=2, sr=50):
    a(f"""
    s_lshl_b32 s{sr}, s{sline}, 7
    s_add_u32 s{sr}, s{sr}, {base}
    v_mov_b32 v{v}, 0
    v_mov_b32 v{v+1}, s{TAG}
    s_mov_b64 exec, 1
    buffer_store_dword v{v+1}, v{v}, {WSR}, s{sr} offen sc1
    s_mov_b64 exec, -1
    """, cond=True)

slow = []
slow2 = []
pending = {}
def poll_issue(a, voff, sbase, tmp, tag, nload=1):
    pending[tmp] = (voff, sbase)
    for k in range(nload):
        a(f"buffer_load_dword v{tmp+k}, v{voff+k}, {WSR}, s{sbase} offen sc1", tag=tag)
def poll_check(a, voff, sbase, tmp, nload=1):
    lab[0] += 1; L = f"L_chk{lab[0]}"
    assert pending.pop(tmp, None) == (voff, sbase), "poll_check without a preceding poll_issue"
    a(f"v_cmp_ne_u32 vcc, s{TAG}, v{tmp}")
    for k in range(1, nload):
        a(f"v_cmp_ne_u32 s[50:51], s{TAG}, v{tmp+k}\ns_or_b64 vcc, vcc, s[50:51]")
    a(f"s_cbranch_vccnz {L}_slow")
    a.label(L + "_back")
    slow.append((L, voff, sbase, nload, tmp))
def emit_slow(a):
    for f in slow2: f(a)
    for L, voff, sbase, nload, tmp in slow:
        a.label(L + "_slow"); a.reset()
        poll(a, voff, sbase, nload=nload, tmp=tmp)
        a(f"s_branch {L}_back")

def poll_lines(a, sfirst_expr, n):
    a(sfirst_expr)
    a(f"v_min_u32 v5, {n-1}, v1\nv_lshlrev_b32 v5, 7, v5")
    poll(a, 5, 52)

def wgu_flags(a, v, sreg, kg0, n):
    a(f"s_lshr_b32 s{sreg}, s{S_J}, 1\ns_lshl_b32 s{sreg}, s{sreg}, 7\ns_add_u32 s{sreg}, s{sreg}, {FP1+1024*kg0}\nv_min_u32 v{v}, {n-1}, v1\nv_lshlrev_b32 v{v}, 10, v{v}")

def wloads(a):
    g1_wsetup(a, S_J, S_W)
    for g in groups_of(wfrag_load_list(S_W))[:60 - int(OPT.get("nwg", 12))]: put(a, g)

LJ = int(OPT.get("lj", 3)); PW = int(OPT.get("pw0", 0)); PW1 = int(OPT.get("pw1", 0))
phases.P3[0] = int(OPT.get('p3', 6))
if "xnowd" in OPT:
    import halves
    _h2w = h2_wloads
    def h2_wloads(): return [re.sub(r"^buffer_load_dwordx4 ([av])\[(\d+):\d+\], v248, \S+ s62 offen offset:\d+ sc1", r"buffer_load_dword \1\2, off, s[36:39], s4", x) if "xnowd2" not in OPT else x.replace("s62 offen", "s4 offen") for x in _h2w()]
if "xfakea" in OPT:
    _h1d = h1_dma
    def h1_dma(h, ks):
        L = _h1d(h, ks)
        return [((re.sub(r"v172, (\S+) s\d+", r"v248, \1 s4", x[0]), x[1]) if isinstance(x, tuple) else x) for x in L]
def body(a):
    def eload(a):
        srd(a, 36, WS, WS_BYTES)
        a(f"v_mov_b32 v2, 0\ns_mov_b32 s57, {EPOCH}\nbuffer_load_dword v246, v2, {WSR}, s57 offen sc1")
    a(f"""
    s_mov_b32 s{BUDGET}, {0 if "xnopoll" in OPT else 400000}
    s_and_b32 s50, s2, 7
    s_lshr_b32 s51, s2, 3              ; slot
    s_lshr_b32 s52, s50, {4-LJ}
    s_lshl_b32 s52, s52, {5-LJ}
    s_lshr_b32 s53, s51, {LJ}
    s_add_u32 s{S_I}, s52, s53
    s_mul_i32 s{R1}, s53, {20 >> (5-LJ) if LJ >= 3 else 5}   ; k rotation by row tile (speed only: spreads first touches of the weights)
    s_lshr_b32 s{R1}, s{R1}, {0 if LJ >= 3 else 1}
    s_and_b32 s52, s50, {(1 << (4-LJ)) - 1}
    s_lshl_b32 s52, s52, {LJ}
    s_and_b32 s53, s51, {(1 << LJ) - 1}
    s_add_u32 s{S_J}, s52, s53
    s_and_b32 s{S_J2}, s51, 7
    s_lshr_b32 s53, s51, 3
    s_lshl_b32 s52, s50, 2
    s_add_u32 s{S_I2}, s52, s53
    s_mul_i32 s{S_CU}, s50, 20
    s_add_u32 s{S_CU}, s{S_CU}, s51
    s_sub_u32 s{S_PU}, s2, 160
    s_lshl_b32 s52, s50, 1
    s_cmp_ge_u32 s51, 10
    s_addc_u32 s52, s52, 0
    s_cmp_ge_u32 s51, 10
    s_cselect_b32 s53, 10, 0
    s_sub_u32 s53, s51, s53
    s_lshl_b32 s53, s53, 4
    s_add_u32 s76, s52, s53
    """)
    if "norot" in OPT: a(f"s_mov_b32 s{R1}, 0")
    def ptrs(a):
        a("s_waitcnt lgkmcnt(0)")
        if "entry" not in OPT: stamp(a, "start")
        else: a.comment("stamp 0 start"); stamp(a, "pro")
        a("s_cmp_ge_u32 s2, 160\ns_cbranch_scc1 L_prep")
        if XS:
            eload(a)
            for n in range(4): a(f"buffer_store_dwordx4 v[8:11], v248, {WSR}, s35 offen offset:{1024*n} sc1", tag="pf")
    XS = "xs" in OPT
    if XS:
        a(f"s_lshl_b32 s35, s{S_CU}, 2\ns_add_u32 s35, s35, s3\ns_mul_i32 s35, s35, {PT_}\nv_lshlrev_b32 v248, 4, v1")
        for k in range(4): a(f"v_mov_b32 v{8+k}, -1")
    def gettag():
        a(f"""
        v_readfirstlane_b32 s{TAG}, v246
        s_mul_i32 s{TAG}, s{TAG}, 0x9E3779B1
        s_add_u32 s{TAG}, s{TAG}, 0x7F4A7C15
        """)
    if "knt" in OPT: phases.KNT = " nt"
    WV = 232
    SL = [138304, 150592, 101376, 113664, 125952]
    RB = 101376
    phaseA_loads(a, 76, ptrs, None if XS else eload)
    QM = OPT.get("qm", "mid")
    NF = int(OPT.get("nf", 0))
    KM = OPT.get("km", "first")
    if KM == "first": conv_kload(a, S_CU)
    if QM == "first": phaseA_qload(a)
    def wsetup(a):
        a("v_mov_b32 v231, v3")
        wdir_setup(a, S_J, WV)
        a(f"v_add_u32 v{WV+3}, {RB}, v{WV+3}\nv_add_u32 v{WV+4}, {RB}, v{WV+4}\nv_mov_b32 v3, v231")
    EARLY = "early" in OPT
    def esetup(a):
        conv_esetup(a, 230 if EARLY else 6)
        a(f"""
        s_mul_i32 s68, s58, {PT_}
        s_add_u32 s59, s68, {X1T}
        s_add_u32 s68, s68, {A1T}
        v_min_u32 v238, 47, v1
        v_lshlrev_b32 v238, 7, v238
        s_lshr_b32 s52, s{S_CU}, 4
        s_lshl_b32 s52, s52, 11
        s_add_u32 s52, s52, {FT-FQ-32*128}
        v_cmp_lt_u32 vcc, 31, v1
        v_mov_b32 v239, s52
        v_cndmask_b32 v239, 0, v239, vcc
        v_add_u32 v238, v238, v239
        s_mov_b32 s69, {FQ}
        s_lshl_b32 s55, s58, 3
        s_add_u32 s55, s55, {MODT}
        s_add_u32 s56, s55, 5120
        s_add_u32 s57, s55, 10240
        s_add_u32 s60, s55, 20480
        v_min_u32 v239, 19, v1
        v_lshlrev_b32 v239, 7, v239
        v_add_u32 v239, {FP2-FQ+40*128}, v239
        """)
    if EARLY:
        wsetup(a)
        a("v_mov_b32 v229, v3")
        conv_kzero(a, 228)
        esetup(a)
        a("v_mov_b32 v3, v229")
    if NF:
        wsetup(a)
        for n in range(NF): put(a, wdir_dma(n, SL[n], WV))
    if XS:
        a(f"v_mov_b32 v225, v3\ns_lshr_b32 s63, s76, 4\ns_lshl_b32 s63, s63, 11\ns_add_u32 s63, s63, {FA}\nv_min_u32 v226, 15, v1\nv_lshlrev_b32 v226, 7, v226")
        signal(a, S_CU, FA, gettag, tag="pf")
        a("v_mov_b32 v3, v225")
        stamp(a, "pfsig")
    phaseA_read(a)
    stamp(a, "kvland")
    if XS: poll_issue(a, 226, 63, 227, None)
    if KM == "mid": conv_kload(a, S_CU)
    if QM == "mid": phaseA_qload(a)
    phaseA_compute(a, (lambda a: poll_check(a, 226, 63, 227)) if XS else None)
    stamp(a, "Acomp")
    if KM == "late": conv_kload(a, S_CU)
    if QM == "late": phaseA_qload(a)
    if KM == "first": conv_kcopies(a, 228 if EARLY else None)
    if not NF and not EARLY: wsetup(a)
    if XS: a.waitv("q"); a("s_waitcnt lgkmcnt(0)\ns_barrier")
    else: signal(a, 76, FA, gettag, tag="kvst")
    stamp(a, "Asig")
    for n in range(NF): put(a, wdir_reads(n, SL[n] - RB, WV))
    if KM != "first": conv_kcopies(a)
    if QM == "late": a.waitv("q"); a("s_barrier")
    phaseA_q(a, 184)
    NPW = int(OPT.get("npw", 3))
    for n in range(NF, min(NPW, 3)): put(a, wdir_dma(n, SL[n], WV))
    if NPW > 3:
        a("s_waitcnt lgkmcnt(0)\ns_barrier")
        for n in range(3, NPW): put(a, wdir_dma(n, SL[n % 5], WV))
    if not EARLY: esetup(a)
    else: a("v_mov_b32 v6, v230\nv_mov_b32 v7, v231")
    if not EARLY: h1_ssetup(a, S_I, S_J)
    STASH = [168, 169, 170, 171, 172, 173, 174, 175, 216, 217, 218, 219]
    if "stash" in OPT:
        put(a, h1_vsetup(S_J, S_J2) + xflags(219, 0) + h2_wsetup(S_J2))
        for k, r in enumerate(STASH): a(f"v_accvgpr_write_b32 a{240+k}, v{r}")
    if XS:
        stamp(a, "kcop")
        a(f"s_mul_i32 s52, s3, {XSTR}\ns_add_u32 s52, s52, {XOFF}\nv_add_u32 v2, s52, v248")
        a.label("L_x")
        conv_xload(a)
        a("s_waitcnt vmcnt(0)")
        for n in range(4): a(f"ds_read_b128 {vr(8+4*n,4)}, v2 offset:{1024*n}")
        a("""
        v_max3_u32 v3, v9, v11, v13
        v_max3_u32 v3, v3, v15, v17
        v_max3_u32 v3, v3, v19, v21
        v_max_u32 v3, v3, v23
        v_cmp_eq_u32 vcc, -1, v3
        """)
        a(f"s_cbranch_vccz L_x_ok\ns_cmp_eq_u32 s{BUDGET}, 0\ns_cbranch_scc1 L_x_ok\ns_sub_u32 s{BUDGET}, s{BUDGET}, 1\ns_branch L_x\nL_x_ok:")
        stamp(a, "kvseen")
        a("s_barrier")
        wflag(a, 76, FT, 242)
    else:
        if "ftlate" not in OPT:
            a.waitv("qst"); a("s_barrier"); wflag(a, 76, FT, 242)
        stamp(a, "kcop")
        a(f"s_lshr_b32 s52, s{S_CU}, 4\ns_lshl_b32 s52, s52, 11\ns_add_u32 s52, s52, {FA}\nv_min_u32 v5, 15, v1\nv_lshlrev_b32 v5, 7, v5")
        poll(a, 5, 52)
        stamp(a, "kvseen")
        conv_xload(a)
        a("s_barrier")
        if "ftlate" in OPT: wflag(a, 76, FT, 242)
    for n in range(NF, NPW): put(a, wdir_reads(n, SL[n % 5] - RB, WV))
    C2 = int(OPT.get("c2", 100)); CL = int(OPT.get("cl", 40)); PE = int(OPT["pe"]); LAST = c2_start(1, 7)
    sc = c2_sched(); sc.keep_s = False; sc.relax = int(OPT.get('rx', 1))
    def second(items, p, step=1):
        for it in items:
            while not (sc.d[p] <= 1 and sc.v[p] <= 1 and not sc.m[p]): p += 1
            sc.force(p, [it(p) if callable(it) else it]); last = p; p += step
        return last
    sc.vmem([[costed(lambda a: poll_issue(a, 238, 69, 240, None), "m", 2)]], C2 - CL, 2)
    p2 = sc.seq([costed(lambda a: poll_check(a, 238, 69, 240), "v", 1)], C2)
    el = groups_of(conv_eloads())
    ES = int(OPT.get("estep2", 2))
    n = sc.vmem(el[:4], p2 + 1, ES)
    n = sc.vmem(el[8:12], n + ES, ES)
    ml = [f"buffer_load_dwordx2 v[{176+2*k}:{177+2*k}], v252, {WSR}, s{sr} offen sc1" for k, sr in enumerate((56, 55, 57, 60))]
    mchk = [f"v_xor_b32 v241, s{TAG}, v177"] + [f"v_bitop3_b32 v241, v{177+2*k}, s{TAG}, v241 bitop3:0xbe" for k in range(1, 4)]
    n = max(n, sc.vmem([[x] for x in ml], max(n + ES, PE - int(OPT.get("ml", 50))), ES))
    def mslow(a):
        a.label("L_m_slow"); a.reset()
        put(a, ml + mchk)
        a(f"v_cmp_ne_u32 vcc, 0, v241\ns_cbranch_vccz L_m_back\ns_cmp_eq_u32 s{BUDGET}, 0\ns_cbranch_scc1 L_m_back\ns_sub_u32 s{BUDGET}, s{BUDGET}, 1\ns_branch L_m_slow")
    slow2.append(mslow)
    def mcheck(a):
        put(a, mchk)
        a("v_cmp_ne_u32 vcc, 0, v241\ns_cbranch_vccnz L_m_slow"); a.label("L_m_back")
        a("v_mov_b32 v255, v176\nv_mov_b32 v254, v178\nv_mov_b32 v249, v180\nv_mov_b32 v253, v182")
    assert n + 18 < PE, (n, PE)
    sc.relax = 1
    sc.force(PE - 12, [costed(lambda a: (a.waitv("st1"), a("s_barrier")), "s", 2)])
    second(c2_streads(0), PE - 12)
    sc.force(PE, [costed(lambda a: (mcheck(a), stamp(a, "e1"), c2_epi(a, 0, 240, None), stamp(a, "e1done")), "v", 2)])
    pfp = sc.vmem([[costed(lambda a: poll_issue(a, 239, 69, 237, None), "m", 2)]], PE + 2, 1)
    sc.vmem(el[12:], PE + 4, 6)
    sc.vmem([[(x[0], "x1e")] for x in c2_x1stores(0)], PE + int(OPT.get("pf", 40)) + 2, 4)
    sc.force(PE + int(OPT.get("pf", 40)), [costed(lambda a: (a.waitv("a1st0"), a("s_barrier"), wflag(a, S_CU, FXE, 242)), "s", 3)])
    WV2 = 224
    sc.force(PE + 1, [costed(lambda a: [a(f"v_mov_b32 v{WV2+k}, v{WV+k}") for k in range(5)], "v", 5)])
    wv = lambda p: WV if p <= PE else WV2
    if EARLY:
        b = Asm(); h1_ssetup(b, S_I, S_J)
        ss = [re.sub(r"\bs50\b", "s53", re.sub(r"\bs35\b", "s52", re.sub(r"\bs62\b", "s16", x.text))) for k, x in b.items if k == "ins"]
        SS = ss
    XC = len(C2M) - 2
    sc.vmem([[costed(lambda a: poll_issue(a, 219, 17, 223, None), "m", 2)]], XC - int(OPT.get("xl", 30)), 1)
    sc.force(XC, [costed(lambda a: poll_check(a, 219, 17, 223), "v", 1)])
    sc.seq(c2_streads(1), LAST + 1)
    DS = int(OPT.get("dstep", 3)); LEAD = int(OPT.get("lead", 36)); WP = int(OPT.get("wp", 14)); NRD = int(OPT.get("nrd", 15))
    issued = {}; dpos = 0; wt = 0
    def dmas(n, start):
        if start <= PE and start + 3 * DS + 6 > PE: start = PE + 2
        return sc.vmem(groups_of(wdir_dma(n, SL[n % 5], wv(start))), start, DS, wt)
    nd = NPW; nr = NPW; p = -WP; log = []; q = 0
    while nd < NF + 5: dpos = dmas(nd, dpos); wt = sc.tail; issued[nd] = dpos; dpos += 1; nd += 1
    if nd == NPW:
        p = sc.seq([costed(lambda a: (a.waitl(f"wr{NPW-1}"), a("s_barrier")), "s", 2)], 3); dpos = p + 1
        while nd < NPW + 4: dpos = dmas(nd, dpos); wt = sc.tail; issued[nd] = dpos; dpos += 1; nd += 1
    while nr < min(nd, NRD):
        p = max(p + WP, issued[nr] + LEAD, q + 1)
        if p > 280: break
        fb = costed(lambda a, n=nr: (a.waitv(f"w{n}"), a.waitl(f"wr{n-1}"), a("s_barrier")), "s", 2); fb.wbar = True
        p = sc.seq([fb], p)
        q = second([(lambda pp, i=i: wdir_reads(nr, SL[nr % 5] - RB, wv(pp))[i]) for i in range(6)], p)
        while nd < 20 and nd <= nr + 4 and max(dpos, p) < 275 and (nd <= nr + int(OPT.get('ah', 3)) or dpos < p + WP):
            dpos = dmas(nd, max(dpos, p + 1)); wt = sc.tail; issued[nd] = dpos; dpos += 1; nd += 1
        log.append((nr, p, p - issued[nr]))
        nr += 1
    assert nr >= 15, (dpos, nr, log)
    if EARLY:
        q = 1
        for x in SS:
            while sc.s[q] or sc.m[q]: q += 1
            sc.force(q, [x]); q += 1
        assert q < 280, q
    sc.cap = 3 if "tight" not in OPT else 2
    n = sc.seq([f"v_accvgpr_read_b32 v{r}, a{240+k}" for k, r in enumerate(STASH)] if "stash" in OPT else h1_vsetup(S_J, S_J2) + xflags(219, 0) + h2_wsetup(S_J2), PE + 2)
    assert n < XC - 40, n
    sc.force(max(n + 1, pfp + 45), [costed(lambda a: (poll_check(a, 239, 69, 237), h1_icb(a)), "v", 6)])
    sc.cap = 2
    print("conv schedule: steps read", nr, "fetched", nd, "overflow slots", sc.over(), log, file=sys.stderr)
    for c in range(8): fstamp(sc, c2_start(1, c), f"c{c}")
    fstamp(sc, 0, "c00")
    stamp(a, "cstart")
    if "xnodma" in OPT or "xnord" in OPT or "xnobar" in OPT:
        for k in list(sc.fill):
            def drop(it):
                t = txt_of(it)
                return ("xnodma" in OPT and "s[40:43]" in t) or ("xnord" in OPT and "tr_b16" in t) or ("xnobar" in OPT and getattr(it, "wbar", False))
            sc.fill[k] = [it for it in sc.fill[k] if not drop(it)]
    c2_main(a, sc)
    stamp(a, "cdone")
    a("s_waitcnt lgkmcnt(0)\ns_barrier")
    NPRE = int(OPT.get("npre", 8))
    for ks in range(NPRE): put(a, h1_dma(0, ks))
    while nd < 20: put(a, wdir_dma(nd, SL[nd % 5], WV2)); nd += 1
    c2_epi(a, 1, 40, 64)
    stamp(a, "cpost")
    def conv_extra(sc):
        p = 0; wt = 0
        for n in range(nd, 20): p = sc.vmem(groups_of(wdir_dma(n, SL[n % 5], WV2)), p, 1, wt) + 1; wt = sc.tail
        px = sc.vmem([[costed(lambda a, k=k: a(f"buffer_store_dwordx2 {vr(64+2*k,2)}, v6, {WSR}, s59 offen offset:{512*(4+k)}{SC}", tag="a1st1"), "v", 1)] for k in range(4)], p, 2)
        p = max(int(OPT.get("pw", 14)), p + (36 if nd < 20 else 0))
        while not (sc.d[p] and sc.s[p] == 0 and sc.v[p] == 1): p += 1
        sc.force(p, [costed(lambda a: (a.waitv("w19"), a("s_barrier")), "s", 2)])
        q = p
        for n in range(nr, 20):
            for l in wdir_reads(n, SL[n % 5] - RB, WV2):
                while not (sc.d[q] == 1 and sc.v[q] == 1 and not sc.m[q]): q += 1
                sc.force(q, [l])
        conv_extra.wdone = q + 1
        sc.force(sc.fit(px + int(OPT.get("pl", 36)), "s_nop 0"), [costed(lambda a: (a.waitv("a1st1"), a("s_barrier"), wflag(a, S_CU, FXL)), "s", 3)])
        qb = sc.seq([costed(lambda a: (a.waitl("wr19"), a("s_barrier")), "s", 2)], q + 6)
        print("pass A (conv): weights read by", q, file=sys.stderr)
        return qb
    passA(a, NPRE, conv_extra)
    a("s_branch L_passB")
    a.label("L_prep"); a.reset()
    eload(a)
    a("s_lshr_b32 s51, s2, 3")
    if "nopf" not in OPT:
        a(f"""
        s_cmp_eq_u32 s51, {OPT.get("pfslot", 31)}
        s_cbranch_scc0 L_nopf
        s_getpc_b64 s[40:41]
        L_pc:
        s_sub_u32 s40, s40, L_pc-{NAME}_kernel
        s_subb_u32 s41, s41, 0
        s_mov_b32 s42, L_code_end-{NAME}_kernel
        s_mov_b32 s43, 0x20000
        v_lshlrev_b32 v2, 7, v0
        s_mov_b32 s52, 0x8000
        buffer_load_dword v250, v2, s[40:43], 0 offen
        buffer_load_dword v251, v2, s[40:43], s52 offen
        L_nopf:
        """, nowait=True)
        a.reset()
    if "ewait" in OPT: a("s_waitcnt vmcnt(0)")
    a(f"v_lshlrev_b32 v248, 4, v1\ns_sub_u32 s77, s{S_PU}, 60")
    a(f"s_cmp_ge_u32 s{S_PU}, 60\ns_cbranch_scc1 L_p_q")
    mod_cloads(a, 80)
    if PW1: wdir_setup(a, S_J, 230); wdir_pre(a, 230, PW1)
    if "modlate" not in OPT: mod_loads(a, S_PU, 80)
    mod_silu(a, 80, 180)
    if "modlate" in OPT: mod_loads(a, S_PU, 80)
    if PW: wd_loads(a, S_PU); wdir_setup(a, S_J, 230); wdir_pre(a, 230, PW)
    stamp(a, "kvland")
    mod_finish(a, S_PU, 80, 180, 0)
    stamp(a, "p_fma")
    gettag()
    mod_finish2(a, S_PU, 80, 180, 0, TAG)
    signal(a, S_PU, FP2)
    a("s_branch L_p_w")
    a.label("L_p_q"); a.reset()
    if "qloc" in OPT:
        a(f"""
        s_and_b32 s50, s2, 7
        s_lshl_b32 s50, s50, 2
        s_lshr_b32 s52, s2, 3
        s_sub_u32 s52, s52, 28
        s_add_u32 s50, s50, s52
        s_add_u32 s77, s77, 32
        s_cmp_ge_u32 s{S_PU}, 64
        s_cselect_b32 s77, s50, s77
        """)
    if OPT.get("qloc") == "2": phases.NT = ""
    st1_loads(a, 77, 80)
    phases.NT = " nt"
    if PW1: wdir_setup(a, S_J, 230); wdir_pre(a, 230, PW1)
    if PW: wd_loads(a, S_PU); wdir_setup(a, S_J, 230); wdir_pre(a, 230, PW)
    stamp(a, "kvland")
    st1_finish(a, 77, 80, 180)
    signal(a, 77, FQ, gettag)
    a.label("L_p_w"); a.reset()
    stamp(a, "Asig")
    if not PW:
        wd_loads(a, S_PU)
        if not PW1: wdir_setup(a, S_J, 230)
    def pub3(a):
        a("s_cmp_eq_u32 s3, 0\ns_cbranch_scc0 L_p3")
        flagstore(a, S_PU, FP3)
        a.label("L_p3")
    def presetup(a):
        if "hoist" in OPT:
            h1_ssetup(a, S_I, S_J)
            put(a, h1_vsetup(S_J, S_J2) + xflags(219, 0) + h2_wsetup(S_J2))
    PST = int(OPT.get("pst", 20))
    assert PST in (15, 20)
    a(f"v_add_u32 v227, {RB}, v233\nv_add_u32 v228, {RB}, v234")
    ndp = wdir_all(a, 230, mid=lambda a: (wd_finish(a, S_PU, 16, own_barrier=False), presetup(a)), mid2=pub3, pre=PW or PW1, stop=PST, late=SL)
    a("s_waitcnt lgkmcnt(0)\ns_barrier")
    for n in range(ndp, 20): put(a, wdir_dma(n, SL[n % 5], 230))
    stamp(a, "kvseen")
    a.label("L_prep_done"); a.reset()
    a("s_cmp_eq_u32 s2, 255\ns_cbranch_scc0 L_noepoch")
    a(f"""
    v_lshlrev_b32 v5, 7, v0
    v_add_u32 v6, {FP2-FA-196*128}, v5
    v_cmp_lt_u32 vcc, 195, v0
    v_cndmask_b32 v5, v5, v6, vcc
    s_mov_b32 s52, {FA}
    """)
    poll(a, 5, 52)
    a("s_barrier")
    a(f"s_cmp_eq_u32 s3, 0\ns_cbranch_scc0 L_noepoch\ns_mov_b32 s50, {EPOCH}\nv_mov_b32 v2, 0\nv_mov_b32 v3, s{TAG}\ns_mov_b64 exec, 1")
    a(f"buffer_store_dword v3, v2, {WSR}, s50 offen sc1", cond=True)
    a("s_mov_b64 exec, -1")
    a.label("L_noepoch")
    if "hoist" not in OPT: h1_ssetup(a, S_I, S_J)
    a(f"s_cmp_eq_u32 s{S_I}, 7\ns_cbranch_scc0 L_nobias")
    poll_lines(a, f"s_mov_b32 s52, {FP2+30*128}", 20)
    put(a, g1_table_load())
    if PST < 20:
        a("s_waitcnt vmcnt(0)\ns_barrier")
        for n in range(PST, 20): put(a, wdir_reads(n, SL[n % 5] - RB, 224))
    g1_bias(a, 0, 20, 40)
    h1_biasstore(a)
    signal(a, S_J, FB_)
    a.label("L_nobias"); a.reset()
    stamp(a, "cdone")
    if "hoist" not in OPT: put(a, h1_vsetup(S_J, S_J2) + xflags(219, 0) + h2_wsetup(S_J2))
    if "p3sep" not in OPT: poll_lines(a, f"s_mov_b32 s52, {FP2+40*128}", 20)
    else: a(f"""
    v_min_u32 v2, 59, v1
    v_lshlrev_b32 v2, 7, v2
    v_add_u32 v2, {FP2-FLG}, v2
    v_cmp_lt_u32 vcc, 39, v1
    v_cndmask_b32 v219, v219, v2, vcc
    """)
    poll(a, 219, 17, tmp=223)
    stamp(a, "cpost")
    for ks in range(NPRE): put(a, h1_dma(0, ks))
    h1_icb(a)
    def prep_extra(sc):
        q = 1
        for n in range(PST, 20):
            for l in wdir_reads(n, SL[n % 5] - RB, 224):
                while not (sc.d[q] == 1 and sc.v[q] == 1 and not sc.m[q]): q += 1
                sc.force(q, [l])
        prep_extra.wdone = q + 1
        return sc.seq([costed(lambda a: (a.waitl("wr19"), a("s_barrier")), "s", 2)], q + 6)
    passA(a, NPRE, prep_extra if PST < 20 else None)
    a.label("L_passB")
    stamp(a, "pB")
    sc = h1_sched(1, GATES)
    wl = groups_of(h2_wloads())
    def stslow(h):
        def f(a):
            a.label(f"L_st{h}_slow"); a.reset()
            put(a, h1_stloads()); put(a, h1_stcheck(TAG))
            a(f"v_cmp_ne_u32 vcc, 0, v3\ns_cbranch_vccz L_st{h}_back\ns_cmp_eq_u32 s{BUDGET}, 0\ns_cbranch_scc1 L_st{h}_back\ns_sub_u32 s{BUDGET}, s{BUDGET}, 1\ns_branch L_st{h}_slow")
        slow2.append(f)
        def chk(a):
            a(f"v_cmp_ne_u32 vcc, 0, v3\ns_cbranch_vccnz L_st{h}_slow"); a.label(f"L_st{h}_back")
        return costed(chk, "v", 1)
    EA = int(OPT.get("ea", 44))
    nl = 0; at = 0
    for ks in range(LDONE[0], 20): nl = sc.vmem([h1_dma(1, ks)], nl, 1, at) + 1; at = sc.tail
    sc.vmem([[x] for x in h1_stloads()], max(0, EA - 44), 1)
    p = sc.seq(h1_stcheck(TAG) + [stslow(0)], EA - 10)
    p = sc.force(p + 1, [costed(lambda a: (stamp(a, "eA"), h1_epi(a, 0), a(f"s_add_u32 s{S_STL}, s{S_STL}, {1024*16}\ns_lshl_b32 s76, s{S_I}, 4\ns_add_u32 s76, s76, s{S_J}")), "v", 2)])
    pf = sc.force(sc.fit(p + int(OPT.get("ph", 40)), "s_nop 0"), [costed(lambda a: (a.waitv("hst0"), a("s_barrier"), wflag(a, 76, FHE)), "s", 3)])
    g = max(k for k in GATES if k >= 20)
    pre, rd = h1_st_reads(1)
    q = sc.seq(pre, 0)
    q = max(q, 12 * (g - 21) + 1, p + 1)
    for l in rd:
        while not (sc.d[q] == 1 and sc.v[q] == 1 and not sc.m[q]): q += 1
        sc.force(q, [l]); q += 1
    sc.keep = True
    q = sc.seq(h1_st_list(1, 0, TAG), q + 6)
    sc.keep = False
    SB = int(OPT.get("sb", 228))
    assert q + 40 < SB - 40, q
    sc.vmem([[x] for x in h1_stloads()], SB - 44, 1)
    sc.keep_s = False
    sc.seq(h1_stcheck(TAG) + [stslow(1)], SB)
    sc.keep_s = True
    HC = int(OPT.get("hc", 200))
    q2 = sc.seq(h2_hsetup(S_I2) + ([f"v_add_u32 v{216+k}, {WD}, v248" for k in range(4)] if "fakeh" in OPT else []) + hflags(FHE), q + 1)
    assert q2 < HC - 40, q2
    sc.vmem([[costed(lambda a: poll_issue(a, 246, 17, 247, None), "m", 2)]], HC - 36, 1)
    q2 = sc.seq([costed(lambda a: poll_check(a, 246, 17, 247), "v", 1)], HC)
    nh = 0
    while nh < 12 and any(sc.ok(n, h2_hload(nh)) for n in range(q2 + 1, 240)): q2 = sc.vmem([[h2_hload(nh)]], q2 + 1, 1); nh += 1
    nw = 12; n = 0
    while nw < 60:
        n = max(n, 12 * ((nw - 12) // 3 + 1))
        if not any(sc.ok(m, wl[nw][0]) for m in range(n, 236)): break
        n = sc.vmem([wl[nw]], n, 1, ) + 1; n = max(n, sc.tail); nw += 1
    print(f"pass B: epilogue A at {p}, FHE at {pf}, stats B done {q}, wd {nw}, h {nh}, overflow {sc.over()}", file=sys.stderr)
    for ks in range(20): fstamp(sc, 12 * ks, f"b{ks}")
    h1_pass(a, 1, sc)
    stamp(a, "g1done")
    for g_ in wl[nw:]: put(a, g_)
    for n in range(nh, 12): a(h2_hload(n))
    h1_epi(a, 1)
    stamp(a, "g1epi")
    sc = Sched(240); sc.keep_s = False
    srd(a, 40, OUT, S * D * 2)
    PB1 = int(OPT.get("pb1", 40))
    if "sent" in OPT:
        sc.force(PB1, ["s_barrier"])
        p = 0; hp = {}
        for nh in range(12, 48):
            p = sc.vmem([[h2_hload(nh)]], max(p, 5 * (nh - 12) + 4, int(OPT.get("lc", 64)) if nh >= 24 else 0), 1); hp[nh] = p; p += 1
        for nh in range(24, 48):
            r = Q2H + 4 * (nh % Q2NH); cp = 5 * nh - 1
            while sc.m[cp]: cp -= 1
            chk = f"v_max_u32 v231, v{r+1}, v{r+3}\nv_cmp_eq_u32 vcc, -1, v231"
            def hslow(a, nh=nh, chk=chk, cp=cp):
                a.label(f"L_h{nh}_slow"); a.reset()
                a(h2_hload(nh)); a(chk)
                a(f"s_cbranch_vccz L_h{nh}_ok\ns_cmp_eq_u32 s{BUDGET}, 0\ns_cbranch_scc1 L_h{nh}_ok\ns_sub_u32 s{BUDGET}, s{BUDGET}, 1\ns_branch L_h{nh}_slow\nL_h{nh}_ok:")
                for m in range(nh + 1, 48):
                    if hp[m] < cp: a(h2_hload(m), nowait=True)
                a(f"s_waitcnt vmcnt(0)\ns_branch L_h{nh}_back")
            slow2.append(hslow)
            def hchk(a, nh=nh, chk=chk):
                a(chk); a(f"s_cbranch_vccnz L_h{nh}_slow"); a.label(f"L_h{nh}_back")
            assert hp[nh] < cp
            sc.force(cp, [costed(hchk, "v", 2)])
        q = sc.seq(h2_setup(S_I2, S_J2), 0)
    else:
        sc.force(PB1, [costed(lambda a: (a.waitv("hst1"), a("s_barrier"), wflag(a, 76, FHL)), "s", 3)])
        p = 0
        for nh in range(12, 24): p = sc.vmem([[h2_hload(nh)]], max(p, 5 * (nh - 12) + int(OPT.get('hoff', 5))), 1) + 1
        q = sc.seq(h2_setup(S_I2, S_J2) + hflags(FHL), 0)
        LC = int(OPT.get("lc", 108))
        sc.vmem([[costed(lambda a: poll_issue(a, 246, 17, 247, None), "m", 2)]], LC - int(OPT.get("ll", 24)), 1)
        p = sc.seq([costed(lambda a: (poll_check(a, 246, 17, 247), stamp(a, "Lseen")), "v", 1)], LC) + 1
        for nh in range(24, 48): p = sc.vmem([[h2_hload(nh)]], max(p, 5 * (nh - 12) + int(OPT.get('hoff', 5))), 1) + 1
    Z, EL = h2_eloads()
    q = sc.seq(Z, q)
    if "xnoel" in OPT: EL = EL[:3]
    pe = sc.vmem(EL, max(q + 1, int(OPT.get("el0", 0))), int(OPT.get("els", 2)))
    wr = lambda sg: [f"ds_write_b128 v{220+sg}, {vr(Q2ACC[sg&1]+4*T,4)} offset:{T*1024}" for T in range(5)]
    assert PB1 < 62
    sc.seq(wr(0), 64, 2)
    q = sc.seq(wr(1), 123, 2)
    q = sc.seq(["s_waitcnt lgkmcnt(0)\ns_barrier"], q + int(OPT.get("g2d", 8)))
    q = sc.seq([f"ds_read_b128 {vr(Q2PT+12*sr+4*T,4)}, v224 offset:{5120*sr+1024*T}" for sr in range(4) for T in range(3)], q)
    add = lambda x, y: [f"v_add_f32 v{x+i}, v{x+i}, v{y+i}" for i in range(12)]
    q = sc.seq(add(Q2PT, Q2PT + 12) + add(Q2PT + 24, Q2PT + 36) + add(Q2PT, Q2PT + 24), q + 2)
    q = sc.seq([f"v_fma_f32 v{Q2XE+i}, v{Q2PT+i}, v{Q2GB+i}, v{Q2XE+i}" for i in range(12)] + h2_out(Q2XE, Q2PT + 12, 13), max(q, pe + 24))
    qe = q
    q = sc.seq(wr(2), 183, 2)
    q = sc.seq(["s_waitcnt lgkmcnt(0)\ns_barrier"], q + int(OPT.get("g2d", 8)))
    q = sc.seq([f"ds_read_b128 {vr(Q2PT+24+12*k+4*T,4)}, v225 offset:{10240*k+1024*T}" for k in range(2) for T in range(3)], max(q, qe)) + 7
    tail = add(Q2PT + 24, Q2PT + 36) + [f"v_fma_f32 v{Q2XL+i}, v{Q2PT+24+i}, v{Q2GB+i}, v{Q2XL+i}" for i in range(12)]
    while tail and any(sc.ok(n, tail[0]) for n in range(q, 240)): q = sc.seq([tail.pop(0)], q)
    print(f"gemm2: early rows stored at {qe}, left over {len(tail)}, overflow {sc.over()}", file=sys.stderr)
    for sg in range(4):
        stamp(a, f"h{sg}")
        for ks in range(12):
            n = 12 * sg + ks
            for T in range(5):
                ac = Q2ACC[sg & 1] + 4*T
                a(f"v_mfma_f32_16x16x32_bf16 {vr(ac,4)}, {wdreg(5*ks+T)}, {vr(Q2H+4*(n%Q2NH),4)}, {vr(ac,4) if ks else '0'}")
                sc.emit(a, 5*n + T)
    stamp(a, "h4")
    put(a, tail)
    put(a, wr(3))
    a("s_waitcnt lgkmcnt(0)\ns_barrier")
    put(a, [f"ds_read_b128 {vr(Q2PT+12*k+4*T,4)}, v226 offset:{10240*k+1024*T}" for k in range(2) for T in range(3)])
    for i in range(0, 12, 2): a(f"v_pk_add_f32 {vr(Q2PT+i,2)}, {vr(Q2PT+i,2)}, {vr(Q2PT+12+i,2)}")
    for i in range(0, 12, 2): a(f"v_pk_fma_f32 {vr(Q2XL+i,2)}, {vr(Q2PT+i,2)}, {vr(Q2GB+i,2)}, {vr(Q2XL+i,2)}")
    put(a, h2_out(Q2XL, Q2PT, 14))
    if "fixdur" in OPT:
        a(f"""
        s_cmp_eq_u32 s2, {OPT.get("fixwg", 0)}
        s_cbranch_scc0 L_nofix
        L_fix:
        s_memrealtime s[50:51]
        s_waitcnt lgkmcnt(0)
        s_sub_u32 s50, s50, s78
        s_cmp_lt_u32 s50, {OPT["fixdur"]}
        s_cbranch_scc1 L_fix
        L_nofix:
        """)
    if "enc" in OPT:
        a("s_waitcnt vmcnt(0)"); stamp(a, "end")
        A_, B_ = [78 + 2 * SNAMES.index(x) for x in OPT["enc"].split(",")]
        a(f"s_waitcnt lgkmcnt(0)\ns_sub_u32 s52, s{B_}, s{A_}\ns_mul_i32 s52, s52, {OPT.get('encm', 5)}\ns_add_u32 s52, s52, 3000")
        a(f"s_cmp_eq_u32 s2, {OPT['encw']}\ns_cbranch_scc0 L_enc_x")
        a("""
        L_enc:
        s_sleep 4
        s_memrealtime s[50:51]
        s_waitcnt lgkmcnt(0)
        s_sub_u32 s50, s50, s78
        s_cmp_lt_u32 s50, s52
        s_cbranch_scc1 L_enc
        L_enc_x:
        """)
    elif STAMPS:
        a("s_waitcnt vmcnt(0)")
        stamp(a, "end")
        a("s_waitcnt lgkmcnt(0)")
        a(f"s_lshl_b32 s50, s2, 2\ns_add_u32 s50, s50, s3\ns_lshl_b32 s50, s50, 6\ns_add_u32 s50, s50, {STAMP}\nv_mov_b32 v2, 0")
        for n in range(12): a(f"v_mov_b32 v{8+n}, s{78+2*n}")
        a("s_mov_b64 exec, 1")
        for n in range(3): a(f"buffer_store_dwordx4 v[{8+4*n}:{11+4*n}], v2, {WSR}, s50 offen offset:{16*n}")
        a("s_mov_b64 exec, -1")
        if "dbgwg" in OPT:
            a(f"s_cmp_eq_u32 s2, {OPT['dbgwg']}\ns_cbranch_scc0 L_nodbg\ns_cmp_eq_u32 s3, 0\ns_cbranch_scc0 L_nodbg")
            for n in range(11, -1, -1): a(f"v_subrev_u32 v{8+n}, v8, v{8+n}" if False else f"v_sub_u32 v{8+n}, v{8+n}, v8")
            a("s_mov_b64 exec, 1")
            for n in range(3): a(f"global_store_dwordx4 v2, v[{8+4*n}:{11+4*n}], {sp(DBG)} offset:{16*n}")
            a("s_mov_b64 exec, -1")
            a.label("L_nodbg")

def wflag(a, sline, base, v=254):
    lab[0] += 1; L = f"L_wf{lab[0]}"
    a(f"s_cmp_eq_u32 s3, 0\ns_cbranch_scc0 {L}")
    flagstore(a, sline, base, v, 54)
    a.label(L)
def xflags(v, late, t=2, sr=50):
    L = ["v_lshrrev_b32 v2, 1, v1", "v_lshlrev_b32 v2, 10, v2", "v_and_b32 v3, 1, v1", f"v_lshl_add_u32 v{v}, v3, 7, v2",
         f"s_lshl_b32 s50, s3, 8\ns_add_u32 s50, s50, {(FXL if late else FXE)-FLG}", f"v_add_u32 v{v}, s50, v{v}"]
    if late: L += [f"s_lshl_b32 s50, s{S_J}, 7\ns_add_u32 s50, s50, {FB_-FLG}", "v_mov_b32 v2, s50"]
    elif "p3sep" in OPT: L += [f"s_add_u32 s50, s50, {19*1024}", "v_mov_b32 v2, s50"]
    else: L += ["v_min_u32 v2, 51, v1", "v_lshlrev_b32 v2, 7, v2", f"s_mul_i32 s50, s3, {12*128}\ns_add_u32 s50, s50, {FP3-FLG-40*128}", "v_add_u32 v2, s50, v2"]
    L += [f"v_cmp_lt_u32 vcc, 39, v1\nv_cndmask_b32 v{v}, v{v}, v2, vcc", f"s_mov_b32 s17, {FLG}"]
    return [re.sub(r"\bs50\b", f"s{sr}", re.sub(r"\bv3\b", f"v{t+1}", re.sub(r"\bv2\b", f"v{t}", x))) for x in L]
def hflags(base, x1=False):
    L = [f"s_lshr_b32 s50, s{S_I2}, 1\ns_lshl_b32 s50, s50, 2", f"s_add_u32 s50, s50, s3\ns_lshl_b32 s50, s50, 9", f"s_add_u32 s50, s50, {base-FLG}",
         f"v_min_u32 v246, {23 if x1 else 3}, v1", "v_lshlrev_b32 v246, 7, v246"]
    if x1: L += [f"s_mul_i32 s51, s{S_J2}, {20*128}\ns_add_u32 s51, s51, {FY-FLG-4*128}", "v_mov_b32 v2, s50", "v_mov_b32 v3, s51",
                 "v_cmp_lt_u32 vcc, 3, v1\nv_cndmask_b32 v2, v2, v3, vcc", "v_add_u32 v246, v246, v2"]
    else: L += ["v_add_u32 v246, s50, v246"]
    return L
GE = [int(x) for x in OPT.get("ge", "1,2,4,8").split(",")]
GLs = [int(x) for x in OPT.get("gl2", "0,2,5").split(",")]
GATES = {}
for k, g in enumerate(GE): GATES[g] = f"a0_{(GE[k+1] if k + 1 < len(GE) else 20) - 1}"
for k, g in enumerate(GLs): GATES[20 + g] = f"a1_{(GLs[k+1] if k + 1 < len(GLs) else 20) - 1}"
LDONE = [0]
def passA(a, NPRE, extra):
    sc = h1_sched(0, GATES)
    LQ = int(OPT.get("lq", 140))
    na = 0; at = 0
    for ks in range(NPRE, 20): na = sc.vmem([h1_dma(0, ks)], na, 1, at) + int(OPT.get("astep2", 1)); at = sc.tail
    assert na + 24 < 12 * (GE[-1] - 1), na
    q = sc.seq(xflags(219, 1, 238, 55), LQ - 70)
    sc.vmem([[costed(lambda a: poll_issue(a, 219, 17, 240, None), "m", 2)]], max(q + 1, LQ - int(OPT.get("lql", 40))), 1)
    p = sc.seq([costed(lambda a: (poll_check(a, 219, 17, 240), stamp(a, "Lx")), "v", 1)], LQ) + 1
    if "sent" in OPT:
        pl, ps = h1_prefill()
        sc.vmem(ps, sc.seq(pl, p) + 1, int(OPT.get("pfs", 24)))
    ks = 0; at = 0
    while ks < 20 and any(sc.ok(n, h1_dma(1, ks)[1]) for n in range(max(p, at) + 2, 232)):
        if ks == int(OPT.get("lb", 8)):
            bl = h1_biasloads(); p = sc.vmem([bl[:2]] + [[x] for x in bl[2:]], p, 1) + 1
        p = sc.vmem([h1_dma(1, ks)], p, 1, at) + 1; at = sc.tail; ks += 1
    LDONE[0] = ks
    wl = groups_of(h2_wloads())
    n = int(OPT.get("wa0", 60))
    if "p3sep" in OPT:
        q3 = sc.seq(["v_min_u32 v243, 11, v1", "v_lshlrev_b32 v243, 7, v243", f"s_mul_i32 s58, s3, {12*128}\ns_add_u32 s58, s58, {FP3}"], n - 60)
        q3 = sc.vmem([[costed(lambda a: poll_issue(a, 243, 58, 244, None), "m", 2)]], max(q3 + 1, n - 44), 1)
        n = sc.seq([costed(lambda a: poll_check(a, 243, 58, 244), "v", 1)], max(n, q3 + 30)) + 1
    for nw in range(12): n = sc.vmem([wl[nw]], n, 1) + int(OPT.get('wsa2', 1)); n = max(n, sc.tail)
    if extra: assert extra(sc) < LQ
    pre, rd = h1_st_reads(0)
    q = max(12 * (GE[-1] - 1) + 1, extra.wdone if extra else 0)
    for l in rd:
        while not (sc.d[q] == 1 and sc.v[q] <= 1 and not sc.m[q]): q += 1
        sc.force(q, [l]); q += 1
    sc.cap = int(OPT.get("capa", 2))
    q = sc.seq(h1_st_list(0, 0, TAG), q + 6)
    sc.cap = 2
    print(f"pass A: early dma until {na}, stats at {q}, late slots issued {ks}, overflow {sc.over()}", file=sys.stderr)
    for ks in range(20): fstamp(sc, 12 * ks, f"a{ks}")
    a.waitv("a0_0")
    a("s_barrier")
    put(a, h1_reads(0))
    h1_pass(a, 0, sc)

def build():
    name = NAME + "_kernel"
    a = Asm()
    a.raw(f".globl {name}\n.p2align 8\n.type {name},@function\n{name}:")
    if "entry" in OPT: a("s_memrealtime s[78:79]")
    prologue(a, 256, "L_end", wait=False)
    body(a)
    a.label("L_end")
    a("s_endpgm")
    emit_slow(a)
    a.label("L_code_end")
    hdr = open("cdna_kernels/" + NAME + ".s.ref").read().split("; Override")[0]
    txt = hdr + "; @launch grid=(256,1,1) block=(256,1,1) lds=163840\n"
    txt += '.amdgcn_target "amdgcn-amd-amdhsa--gfx950"\n.text\n' + a.finish()
    txt += f""".section .rodata,"a"
.p2align 6
.amdhsa_kernel {name}
  .amdhsa_next_free_vgpr 512
  .amdhsa_next_free_sgpr 102
  .amdhsa_accum_offset 256
  .amdhsa_group_segment_fixed_size 0
  .amdhsa_kernarg_size 120
  .amdhsa_user_sgpr_count 2
  .amdhsa_user_sgpr_kernarg_segment_ptr 1
  .amdhsa_system_sgpr_workgroup_id_x 1
.end_amdhsa_kernel
"""
    return txt
if __name__ == "__main__":
    out = [x for x in sys.argv[1:] if not x.startswith("--")][0]
    open(out, "w").write(build())
```

```python
import sys, re
from halves import *
import phases, halves
NAME = "adaLN_cond__ssm_conv_h3__glu_gated_bilinear__prompt"
OPT = {"modlate": "1"}
OPT.update({x.split("=")[0][2:]: (x.split("=") + ["1"])[1] for x in sys.argv[1:] if x.startswith("--")})
OPT = {k: v for k, v in OPT.items() if v != "off"}
def O(k, d): return type(d)(OPT.get(k, d))
FA, FQ, FP2, FP3, FXE, FXL, FB_, FHE, FHL, FY, FT, FW = [FLG + 128 * n for n in (0, 160, 200, 264, 360, 520, 680, 696, 952, 1208, 1368, 1528)]
TAG, BUDGET, T16 = 48, 49, 77
S_CU, S_PU, S_I, S_J, S_I2, S_J2 = 70, 71, 72, 73, 74, 75
PP = "pp" in OPT
if PP: OPT.update(rot="0,0,0,0,0,0,0,0", goff="0", nb="0", n2="0", nc="20")
STAMPS = "stamps" in OPT
SNAMES = OPT["stamps"].split(",") if STAMPS else ["start"]
assert len(SNAMES) <= 12 and SNAMES[0] == "start"
STI = "s_memtime" if "cyc" in OPT else "s_memrealtime"
def stamp(a, name):
    if STAMPS and name in SNAMES:
        n = SNAMES.index(name)
        a(f"{'s_memrealtime' if n == 0 and 'enc' in OPT else STI} s[{78+2*n}:{79+2*n}]")
def fstamp(sc, n, name):
    if STAMPS and name in SNAMES: sc.fill.setdefault(n, []).insert(0, costed(lambda a: stamp(a, name), 's', 0))

lab = [0]
def poll(a, voff, sbase, tmp=2, TAG=TAG):
    lab[0] += 1; L = f"L_poll{lab[0]}"
    a.label(L)
    a(f"""
    buffer_load_dword v{tmp}, v{voff}, {WSR}, s{sbase} offen sc1
    s_waitcnt vmcnt(0)
    v_cmp_ne_u32 vcc, s{TAG}, v{tmp}
    s_cbranch_vccz {L}_ok
    s_cmp_eq_u32 s{BUDGET}, 0
    s_cbranch_scc1 {L}_ok
    s_sub_u32 s{BUDGET}, s{BUDGET}, 1
    s_sleep {O('psl', 1)}
    s_branch {L}
    {L}_ok:
    """)
def flagstore(a, sline, base, v=2, sr=50, TAG=TAG):
    a(f"""
    s_lshl_b32 s{sr}, s{sline}, 7
    s_add_u32 s{sr}, s{sr}, {base}
    v_mov_b32 v{v}, 0
    v_mov_b32 v{v+1}, s{TAG}
    s_mov_b64 exec, 1
    buffer_store_dword v{v+1}, v{v}, {WSR}, s{sr} offen sc1
    s_mov_b64 exec, -1
    """, cond=True)
def wflag(a, sline, base, v=254, TAG=TAG):
    lab[0] += 1; L = f"L_wf{lab[0]}"
    a(f"s_cmp_eq_u32 s3, 0\ns_cbranch_scc0 {L}")
    flagstore(a, sline, base, v, 54, TAG)
    a.label(L)
def wcount(a, base, v=254):
    lab[0] += 1; L = f"L_wf{lab[0]}"
    a(f"s_cmp_eq_u32 s3, 0\ns_cbranch_scc0 {L}")
    a(f"""
    s_lshr_b32 s54, s{S_CU}, 4
    s_lshl_b32 s54, s54, 7
    s_add_u32 s54, s54, {base}
    v_mov_b32 v{v}, 0
    v_mov_b32 v{v+1}, 1
    s_mov_b64 exec, 1
    buffer_atomic_add v{v+1}, v{v}, {WSR}, s54 offen sc1
    s_mov_b64 exec, -1
    """, cond=True)
    a.label(L)
def signal(a, sline, base, pre=None, tag=None, TAG=TAG):
    if tag: a.waitv(tag); a("s_waitcnt lgkmcnt(0)")
    else: a("s_waitcnt vmcnt(0) lgkmcnt(0)")
    a("s_barrier")
    if pre: pre()
    wflag(a, sline, base, 2, TAG)
slow = []; slow2 = []; pending = {}
def poll_issue(a, voff, sbase, tmp):
    pending[tmp] = (voff, sbase)
    a(f"buffer_load_dword v{tmp}, v{voff}, {WSR}, s{sbase} offen sc1")
def poll_check(a, voff, sbase, tmp, TAG=TAG):
    lab[0] += 1; L = f"L_chk{lab[0]}"
    assert pending.pop(tmp, None) == (voff, sbase), "poll_check without a preceding poll_issue"
    a(f"v_cmp_ne_u32 vcc, s{TAG}, v{tmp}\ns_cbranch_vccnz {L}_slow")
    a.label(L + "_back")
    slow.append((L, voff, sbase, tmp, TAG))
def emit_slow(a):
    for f in slow2: f(a)
    for L, voff, sbase, tmp, TG in slow:
        a.label(L + "_slow"); a.reset()
        poll(a, voff, sbase, tmp, TG)
        a(f"s_branch {L}_back")
def poll_lines(a, sfirst_expr, n):
    a(sfirst_expr)
    a(f"v_min_u32 v5, {n-1}, v1\nv_lshlrev_b32 v5, 7, v5")
    poll(a, 5, 52)
def small(x, tag=None): return costed(lambda a: a(x, tag=tag), "m", 1)
PI = lambda v, s, t: [costed(lambda a: poll_issue(a, v, s, t), "m", 1)]
PC = lambda v, s, t, st=None, TG=TAG: costed(lambda a: (poll_check(a, v, s, t, TG), st and stamp(a, st)), "v", 1)
def BAR(*waits, then=None, c=2):
    def f(a):
        for w in waits: (a.waitl(w[2:]) if w.startswith("l:") else a.waitv(w))
        a("s_barrier")
        if then: then(a)
    return costed(f, "s", c)

from sched2 import Gaps
halves.Sched = Gaps

if "noalias" not in OPT: A1T = halves.A1T = KVT
def preH(a, v=245, t=2):
    a(f"""
    v_min_u32 v{t}, 47, v1
    v_cmp_lt_u32 vcc, 23, v{t}
    v_cndmask_b32 v{t+1}, 0, 1, vcc
    v_mul_u32_u24 v{t+1}, {49152 - 24*128}, v{t+1}
    v_lshl_add_u32 v{t}, v{t}, 7, v{t+1}
    s_and_b32 s50, s3, 1
    s_lshl_b32 s50, s50, 1
    s_lshr_b32 s51, s3, 1
    s_lshl_b32 s51, s51, 6
    s_add_u32 s50, s50, s51
    s_lshl_b32 s51, s{S_I}, 2
    s_add_u32 s50, s50, s51
    s_mul_i32 s50, s50, 49152
    s_mul_i32 s51, s{S_J}, 3072
    s_add_u32 s50, s50, s51
    s_add_u32 s50, s50, {HB}
    """)
    a(f"buffer_load_dword v{v}, v{t}, {WSR}, s50 offen", tag="pre")
def preT(a, base, rev, v, t=2):
    a(f"""
    s_lshr_b32 s50, s76, 4
    s_mul_i32 s50, s50, {64*PT_}
    s_and_b32 s51, s76, 15
    s_lshl_b32 s51, s51, 8
    """ + (f"s_sub_u32 s51, {4096-256}, s51\n" if rev else "") + f"""
    s_add_u32 s50, s50, s51
    s_lshl_b32 s51, s3, 4
    s_mul_i32 s51, s51, {PT_}
    s_add_u32 s50, s50, s51
    s_add_u32 s50, s50, {base}
    v_bfe_u32 v{t}, v1, 1, 4
    v_mul_u32_u24 v{t}, {PT_}, v{t}
    v_and_b32 v{t+1}, 1, v1
    v_lshl_add_u32 v{t}, v{t+1}, 7, v{t}
    """)
    a(f"buffer_load_dword v{v}, v{t}, {WSR}, s50 offen nt", tag="pre")
SL = [WSLOT2 * n for n in range(5)]
phases.PA = 25536
ST1L = 62464
KB = 78848
XOFF = KB + 4 * KCH
assert XOFF + 4 * XSTR == 163840
def kload(a):
    a(f"s_lshl_b32 s50, s58, 12\ns_mul_i32 s51, s3, {KCH}\ns_add_u32 m0, s51, {KB+32}")
    srd(a, 44, SSMK, S * D * 2)
    for n in range(4): a(f"buffer_load_dwordx4 v248, s[44:47], s50 offen offset:{1024*n}{' nt' if 'knt' not in OPT else ''} lds", tag="kdma")
def kzero(a, keep):
    a(f"""
    s_mul_i32 s51, s3, {KCH}
    s_add_u32 s51, s51, {KB}
    v_add_u32 v{keep}, s51, v248
    v_lshrrev_b32 v8, 1, v1
    v_mul_u32_u24 v8, {KSTR}, v8
    v_and_b32 v4, 1, v1
    v_lshl_add_u32 v8, v4, 4, v8
    v_add_u32 v8, s51, v8
    v_mov_b32 v4, 0
    v_mov_b32 v5, 0
    v_mov_b32 v6, 0
    v_mov_b32 v7, 0
    s_mov_b64 exec, 0xff
    ds_write_b128 v8, v[4:7]
    s_mul_i32 s52, s3, {XSTR}
    s_add_u32 s52, s52, {XOFF+4096}
    s_mov_b64 exec, 0x3fffffff
    v_add_u32 v8, s52, v248
    ds_write_b128 v8, v[4:7]
    s_mov_b64 exec, -1
    """)
def kcopies(a, keep, R=8):
    a.waitv("kdma")
    for n in range(4):
        a(f"ds_read_b128 {vr(R+6*n,4)}, v{keep} offset:{32+1024*n}")
        a(f"ds_read_b64 {vr(R+4+6*n,2)}, v{keep} offset:{48+1024*n}")
    a(f"""
    s_mov_b64 exec, 1
    v_lshlrev_b32 v80, 16, v{R}
    v_alignbit_b32 v81, v{R+1}, v{R}, 16
    ds_write_b32 v{keep}, v80 offset:{KSTR+28}
    ds_write_b32 v{keep}, v{R} offset:{2*KSTR+28}
    ds_write_b32 v{keep}, v80 offset:{3*KSTR+24}
    ds_write_b32 v{keep}, v81 offset:{3*KSTR+28}
    s_mov_b64 exec, -1
    """)
    for n in range(4):
        c = R + 6*n; t = 56 + 12*(n & 1)
        for d in range(4): a(f"v_alignbit_b32 v{t+d}, v{c+d+1}, v{c+d}, 16")
        a(f"v_pk_mov_b32 {vr(t+4,2)}, {vr(c,2)}, {vr(c+2,2)} op_sel:[1,0]")
        a(f"v_pk_mov_b32 {vr(t+6,2)}, {vr(c+2,2)}, {vr(c+4,2)} op_sel:[1,0]")
        for d in range(4): a(f"v_alignbit_b32 v{t+8+d}, v{c+d+2}, v{c+d+1}, 16")
        for j in range(1, 4):
            a(f"ds_write_b128 v{keep}, {vr(t+4*(j-1),4)} offset:{j*KSTR+32+1024*n}")
def xload(a):
    a(f"s_mul_i32 s50, s58, {PT_}\ns_mul_i32 s52, s3, {XSTR}\ns_add_u32 m0, s52, {XOFF}")
    for n in range(4): a(f"buffer_load_dwordx4 v248, {WSR}, s50 offen offset:{n*1024}{SC} lds", tag="xdma")
AA, AF = 229, 230
def conv_addr(a):
    a(f"""
    v_and_b32 v2, 15, v1                ; r / a
    v_lshrrev_b32 v8, 4, v1             ; h
    v_add_u32 v4, 1, v2
    v_and_b32 v5, 3, v4                 ; copy j
    v_sub_u32 v4, v4, v5                ; r+1-j
    v_add_u32 v4, 24, v4
    v_lshlrev_b32 v4, 1, v4
    v_mul_u32_u24 v5, {KSTR}, v5
    v_add_u32 v4, v4, v5
    v_lshlrev_b32 v5, 4, v8
    v_sub_u32 v4, v4, v5
    s_mul_i32 s51, s3, {KCH}
    s_add_u32 s51, s51, {KB}
    v_add_u32 v{AA}, s51, v4
    v_lshlrev_b32 v2, 5, v2
    v_add_u32 v2, v2, v5
    s_mul_i32 s52, s3, {XSTR}
    s_add_u32 s52, s52, {XOFF+2*(2056-1792)}
    v_sub_u32 v{AF}, s52, v2
    """)
def conv_dfrag(a):
    a(f"""
    v_lshrrev_b32 v3, 4, v1
    v_lshlrev_b32 v2, 3, v3
    v_and_b32 v3, 15, v1
    v_sub_u32 v2, v2, v3
    v_subrev_u32 v2, 9, v2              ; p = 8h - r - 9: position of filter tap 0 inside this lane's fragment
    v_and_b32 v3, 1, v2
    v_cmp_eq_u32 vcc, 1, v3
    v_lshrrev_b32 v3, 16, v250
    v_cndmask_b32 v3, v3, v250, vcc
    v_lshrrev_b32 v2, 1, v2
    """)
    for d in range(4): a(f"v_cmp_eq_u32 vcc, {d}, v2\nv_cndmask_b32 v{DFR+d}, 0, v3, vcc")
QR, SR, SM, ET = 176, 184, 200, 232
def esetup(a):
    a(f"""
    v_and_b32 v2, 15, v1
    v_lshrrev_b32 v8, 4, v1
    v_lshlrev_b32 v249, 6, v2
    v_lshl_add_u32 v249, v8, 4, v249
    v_add_u32 v249, {ST1L}, v249
    v_and_b32 v231, 1, v8
    v_lshlrev_b32 v231, 9, v231
    v_lshl_add_u32 v231, v2, 5, v231
    v_lshrrev_b32 v8, 1, v8
    v_lshl_add_u32 v231, v8, 4, v231
    s_mul_i32 s68, s58, {PT_}
    s_add_u32 s65, s68, {QT}
    s_add_u32 s68, s68, {A1T}
    s_lshl_b32 s66, s3, 12
    s_add_u32 s67, s66, {ST1}
    s_lshl_b32 s59, s58, 1
    v_mov_b32 v250, 0
    v_mov_b32 v251, s59
    global_load_short_d16_hi v250, v251, {sp(SSD)}
    v_min_u32 v240, 11, v1             ; lanes 0..7: statistics units 8w.., lanes 8..11: q tiles 4w.. of this channel group
    v_lshlrev_b32 v240, 7, v240
    s_lshr_b32 s52, s{S_CU}, 4
    s_lshl_b32 s52, s52, 11
    s_add_u32 s59, s52, {FA}
    s_lshl_b32 s69, s3, 9
    s_sub_u32 s52, s52, s69
    s_add_u32 s52, s52, {FT-FQ-8*128}
    v_cmp_lt_u32 vcc, 7, v1
    v_mov_b32 v241, s52
    v_cndmask_b32 v241, 0, v241, vcc
    v_add_u32 v240, v240, v241
    """ + ("" if not PP else f"""
    v_min_u32 v241, 16, v1             ; lanes 12..16: weight pieces of k-steps 5w..
    v_lshlrev_b32 v241, 10, v241
    s_lshr_b32 s52, s{S_J}, 1
    s_lshl_b32 s52, s52, 7
    s_lshl_b32 s69, s3, 12
    s_add_u32 s52, s52, s69
    s_add_u32 s52, s52, {FW-FQ-12*1024}
    v_add_u32 v241, s52, v241
    v_cmp_lt_u32 vcc, 11, v1
    v_cndmask_b32 v240, v240, v241, vcc
    """) + f"""
    s_lshl_b32 s69, s3, 10
    s_add_u32 s69, s69, {FQ}
    s_lshl_b32 s55, s58, 3
    s_add_u32 s55, s55, {MODT}
    v_and_b32 v253, 3, v1              ; granules sa, ca1, ga, cb1
    v_cmp_eq_u32 vcc, 3, v253
    v_addc_co_u32 v253, vcc, 0, v253, vcc
    v_mul_u32_u24 v253, 5120, v253
    v_min_u32 v241, 9, v1              ; 1+cb units (reciprocal table)
    v_lshlrev_b32 v241, 7, v241
    s_mov_b32 s60, {FP2+40*128}
    v_min_u32 v242, 15, v1
    v_lshlrev_b32 v242, 7, v242
    """)
def st1dma(): return [[f"s_add_u32 m0, s66, {ST1L}", (f"buffer_load_dwordx4 v248, {WSR}, s67 offen offset:{n*1024}{SC} lds", "st1")] for n in range(4)]
def qloads(h): return [[f"buffer_load_dwordx4 {vr(QR+4*p,4)}, v231, {WSR}, s65 offen offset:{2048*h+1024*p}{SC}"] for p in range(2)]
def streads(h): return [f"ds_read_b128 {vr((SM if m else SR)+4*t,4)}, v249 offset:{8192*m+1024*(4*h+t)}" for t in range(4) for m in range(2)]
sw = lambda t, c=2: costed(lambda a: a(t), "v", c)
def qswaps(): return [f"v_permlane16_swap_b32 v{QR+4*p+k}, v{QR+4*p+2+k}" for p in range(2) for k in range(2)]
def pre_pk(a):
    put(a, qswaps())
    for t in range(4):
        r, m, q = SR + 4*t, SM + 4*t, ET + 4*(t & 1)
        unpack(a, q, q + 1, QR + 2*t); unpack(a, q + 2, q + 3, QR + 2*t + 1)
        for p in (0, 2): a(f"v_pk_fma_f32 {vr(r+p,2)}, {vr(q+p,2)}, {vr(r+p,2)}, {vr(m+p,2)}")
        for p in (0, 2): a(f"v_pk_mul_f32 {vr(m+p,2)}, {vr(q+p,2)}, v[252:253] op_sel_hi:[1,0]")
        for p in (0, 2): a(f"v_pk_fma_f32 {vr(r+p,2)}, {vr(r+p,2)}, v[250:251], v[250:251] op_sel:[0,0,1] op_sel_hi:[1,0,1]")
def pre_list():
    L = [sw(x) for x in qswaps()]
    for t in range(4):
        for i in range(4):
            r, m, q = SR + 4*t + i, SM + 4*t + i, ET + (i & 1)
            L += [f"v_lshlrev_b32 v{q}, 16, v{QR+2*t+(i>>1)}" if i % 2 == 0 else f"v_and_b32 v{q}, 0xffff0000, v{QR+2*t+(i>>1)}",
                  f"v_fma_f32 v{r}, v{q}, v{r}, v{m}", f"v_mul_f32 v{m}, v252, v{q}", f"v_fma_f32 v{r}, v{r}, v250, v251"]
    return L
def fin_pk(a, h, order=range(4)):
    done = set()
    for t in order:
        x = ACC + 4*(4*h + t)
        for p in (0, 2): a(f"v_pk_fma_f32 {vr(SR+4*t+p,2)}, {vr(SR+4*t+p,2)}, {vr(x+p,2)}, {vr(SM+4*t+p,2)}")
        for p in range(2): a(f"v_cvt_pk_bf16_f32 v{ET+2*t+p}, v{SR+4*t+2*p}, v{SR+4*t+2*p+1}")
        done.add(t)
        if t ^ 1 in done:
            p = t >> 1
            for k in range(2): a(f"v_permlane16_swap_b32 v{ET+4*p+k}, v{ET+4*p+2+k}")
            a(f"buffer_store_dwordx4 {vr(ET+4*p,4)}, v231, {WSR}, s68 offen offset:{2048*h+1024*p}{SC}", tag=f"a1st{h}")

def wp_setup(a):
    b = Asm(); wp_loads(b, S_CU, 0)
    for k, x in b.items:
        if x.kind != "vmem" and "m0" not in x.text and x.text != f"s_add_u32 s52, s52, {8*3072}": a(x.text)
    a("s_mov_b32 s56, s52\ns_mul_i32 s57, s3, 6144")
def wp_issue(a):
    for n in range(6):
        if n % 3 == 0: a(f"s_add_u32 m0, s57, {n*1024}")
        a(f"buffer_load_dwordx4 v{233+n%3}, s[40:43], s56 offen offset:{1024*(n%3)}{WPNT[0]} lds", tag="wp")
        if n == 2: a(f"s_add_u32 s56, s56, {8*3072}")
def first_loads(a, su, before_ptr, after_dma):
    PA = phases.PA
    a(f"""
    s_lshr_b32 s50, s{su}, 4          ; g
    s_and_b32 s51, s{su}, 15          ; j
    s_mul_i32 s52, s51, {128*1280}
    s_lshl_b32 s53, s50, 7
    s_add_u32 s52, s52, s53           ; tile byte offset
    v_lshrrev_b32 v3, 3, v1
    v_mul_u32_u24 v3, 1280, v3
    v_and_b32 v4, 7, v1
    v_lshl_add_u32 v3, v4, 4, v3      ; DMA lane offset
    s_mul_i32 s53, s3, {32*1280}
    s_add_u32 s53, s53, s52           ; wave soffset
    s_mul_i32 s54, s3, {4*GS}
    v_add_u32 v10, {8*1280-GS}, v3
    v_add_u32 v11, {2*(8*1280-GS)}, v3
    v_add_u32 v12, {3*(8*1280-GS)}, v3
    s_sub_u32 s55, s52, {8*1280}
    v_add_u32 v5, s55, v3
    s_add_u32 s56, s54, {PA + 17*GS}
    s_add_u32 m0, s54, {PA + GS}
    s_mov_b32 s42, {S*D*2}
    s_mov_b32 s43, 0x20000
    s_mov_b32 s46, {S*D*2}
    s_mov_b32 s47, 0x20000
    """)
    before_ptr(a)
    a(f"s_mov_b64 s[40:41], s[{K}:{K+1}]\ns_mov_b64 s[44:45], s[{V}:{V+1}]")
    for n in range(4): a(f"buffer_load_dwordx4 v{9+n if n else 3}, s[40:43], s53 offen offset:{n*GS} nt lds", tag="kv")
    a("s_mov_b32 m0, s56\ns_cmp_eq_u32 s3, 0")
    for n in range(4): a(f"buffer_load_dwordx4 v{9+n if n else 3}, s[44:47], s53 offen offset:{n*GS} nt lds", tag="kv")
    a(f"s_cbranch_scc0 L_nohalo\ns_mov_b32 m0, {PA}")
    a(f"buffer_load_dwordx4 v5, s[40:43], 0 offen nt lds", cond=True)
    a.label("L_nohalo")
    after_dma(a)
    b = Asm(); phaseA_loads(b, su, lambda b: None, lambda b: b.comment("CUT"))
    k = [i for i, (t, x) in enumerate(b.items) if t == "raw" and "CUT" in x][0]
    a.items += b.items[k + 1:]
WDH0 = 81920
def wdh_loads(a, su, WDH):
    a(f"""
    s_lshr_b32 s52, s{su}, 1
    s_lshl_b32 s52, s52, 2
    s_add_u32 s52, s52, s3
    s_mul_i32 s52, s52, {8*1280}
    s_and_b32 s53, s{su}, 1
    s_mul_i32 s53, s53, 640
    s_add_u32 s52, s52, s53
    s_mul_i32 s53, s3, 5120
    """)
    for n in range(5):
        a(f"""
        v_add_u32 v5, {64*n}, v1
        v_mul_u32_u24 v6, 205, v5
        v_lshrrev_b32 v6, 13, v6
        v_mul_u32_u24 v6, 640, v6
        v_lshl_add_u32 v5, v5, 4, v6
        s_add_u32 m0, s53, {WDH + n*1024}
        """)
        a(f"buffer_load_dwordx4 v5, s[56:59], s52 offen nt lds", tag="wst")
def wdh_finish(a, su, WDH, R):
    a(f"""
    v_lshrrev_b32 v2, 4, v1           ; h
    v_bfe_u32 v3, v1, 2, 2            ; r
    v_lshl_add_u32 v3, v2, 3, v3
    v_mul_u32_u24 v3, 640, v3
    v_and_b32 v2, 3, v1
    v_lshl_add_u32 v2, v2, 3, v3
    s_mul_i32 s50, s3, 160
    s_add_u32 s50, s50, {WDH}
    v_add_u32 v2, s50, v2
    s_lshr_b32 s53, s{su}, 1
    s_mov_b32 s50, 0x15555556
    s_mul_hi_u32 s51, s53, s50
    s_mul_i32 s52, s51, 12
    s_sub_u32 s52, s53, s52           ; ks
    s_and_b32 s50, s{su}, 1
    s_lshl_b32 s50, s50, 2
    s_add_u32 s50, s50, s3
    s_lshl_b32 s50, s50, 2
    s_add_u32 s50, s50, s51
    s_mul_i32 s50, s50, 60
    s_mul_i32 s52, s52, 5
    s_add_u32 s50, s50, s52
    s_lshl_b32 s50, s50, 10
    s_add_u32 s50, s50, {WD}
    s_add_u32 s51, s50, 4096
    """)
    for n in range(5):
        for half in range(2): a(f"ds_read_b64_tr_b16 {vr(R+4*n+2*half,2)}, v2 offset:{32*n+half*4*640}")
    for n in range(5): a(f"buffer_store_dwordx4 {vr(R+4*n,4)}, v248, {WSR}, s{50+n//4} offen offset:{(n%4)*1024}{SC}", tag="wout")

halves.HACC = HACC = (56, 8)
halves.Q2H = Q2H = 56; halves.Q2NH = Q2NH = O("nh", 12); halves.Q2ACC = Q2ACC = (8, 28)
XE, XL, GB, PT, IC, XR = 120, 232, (48, 52, 132), 168, 168, 180
XI = 81920
def xflags(v, late, t=2, sr=50):
    L = ["v_lshrrev_b32 v2, 1, v1", "v_lshlrev_b32 v2, 10, v2", "v_and_b32 v3, 1, v1", f"v_lshl_add_u32 v{v}, v3, 7, v2",
         f"s_lshl_b32 s50, s3, 8\ns_add_u32 s50, s50, {(FXL if late else FXE)-FLG}", f"v_add_u32 v{v}, s50, v{v}"]
    if late: L += [f"s_lshl_b32 s50, s{S_J}, 7\ns_add_u32 s50, s50, {FB_-FLG}", "v_mov_b32 v2, s50"]
    else: L += [f"s_add_u32 s50, s50, {19*1024}", "v_mov_b32 v2, s50"]
    L += [f"v_cmp_lt_u32 vcc, 39, v1\nv_cndmask_b32 v{v}, v{v}, v2, vcc", f"s_mov_b32 s17, {FLG}"]
    return [re.sub(r"\bs50\b", f"s{sr}", re.sub(r"\bv3\b", f"v{t+1}", re.sub(r"\bv2\b", f"v{t}", x))) for x in L]
WG3 = [int(x) for x in O("wg", "0,9,13,20").split(",")]
def wflags():
    L = [f"s_lshr_b32 s61, s{S_J}, 1\ns_lshl_b32 s61, s61, 7\ns_add_u32 s61, s61, {FW}"]
    for g, (lo, n) in enumerate((WG3[k], WG3[k+1] - WG3[k]) for k in range(3)):
        L += [f"v_min_u32 v{224+g}, {n-1}, v1", f"v_add_lshl_u32 v{224+g}, v{224+g}, {lo}, 10"]
    return L
def hflags(base, gbu=False):
    return [f"s_lshr_b32 s50, s{S_I2}, 1\ns_lshl_b32 s50, s50, 2", f"s_add_u32 s50, s50, s3\ns_lshl_b32 s50, s50, 9", f"s_add_u32 s50, s50, {base-FLG}",
            f"v_min_u32 v246, {13 if gbu else 3}, v1", "v_lshlrev_b32 v246, 7, v246"] + \
           ([f"v_mov_b32 v2, s50", f"v_mov_b32 v3, {FP2+50*128-FLG-4*128}", "v_cmp_lt_u32 vcc, 3, v1\nv_cndmask_b32 v2, v2, v3, vcc", "v_add_u32 v246, v246, v2"] if gbu else ["v_add_u32 v246, s50, v246"])
def g2_setup(si2, sj2):
    return ["s_and_b32 s50, s3, 1\ns_lshr_b32 s51, s3, 1", "s_mul_i32 s52, s50, 20480\ns_mul_i32 s53, s3, 5120", "s_add_u32 s52, s52, s53",
         "v_add_u32 v220, s52, v248", "v_add_u32 v222, 40960, v220",
         "s_xor_b32 s52, s50, 1\ns_mul_i32 s52, s52, 20480", "s_add_u32 s52, s52, s53", "v_add_u32 v221, s52, v248", "v_add_u32 v223, 40960, v221",
         "s_mul_i32 s52, s51, 20480\ns_lshl_b32 s53, s50, 11", "s_add_u32 s52, s52, s53", "v_add_u32 v224, s52, v248",
         "s_mul_i32 s53, s51, 5120\ns_add_u32 s53, s53, 40960", "v_add_u32 v225, s53, v224",
         "s_xor_b32 s53, s51, 1\ns_mul_i32 s53, s53, 5120", "s_add_u32 s53, s53, 40960", "v_add_u32 v226, s53, v224",
         f"s_lshl_b32 s52, s{si2}, 1\ns_add_u32 s52, s52, s51", f"s_mul_i32 s12, s{sj2}, 320\ns_add_u32 s15, s12, {ICB}",
         f"s_add_u32 s12, s12, {MOD+5*2560}\ns_mul_i32 s13, s52, {16*1280}", f"s_mul_i32 s53, s{sj2}, 160\ns_add_u32 s13, s13, s53",
         f"s_lshl_b32 s53, s50, 6\ns_add_u32 s13, s13, s53", f"s_add_u32 s14, s13, {1024*1280}",
         f"s_mul_i32 s10, s{sj2}, 10\ns_add_u32 s10, s10, s3", f"s_mul_i32 s10, s10, {8*PT_}\ns_lshl_b32 s53, s{si2}, 6", f"s_add_u32 s10, s10, s53\ns_add_u32 s10, s10, {A1T}",
         f"s_lshl_b32 s11, s3, 10\ns_add_u32 s11, s11, {XI}",
         "v_lshrrev_b32 v2, 3, v1", f"v_mul_u32_u24 v229, {PT_}, v2", "v_bfe_u32 v2, v1, 2, 1", "v_lshl_add_u32 v229, v2, 11, v229", "v_and_b32 v2, 3, v1", "v_lshl_add_u32 v229, v2, 4, v229",
         "v_lshrrev_b32 v3, 2, v1", "v_lshlrev_b32 v231, 7, v3", "v_lshl_add_u32 v231, v2, 3, v231", f"s_lshl_b32 s53, s50, 12\ns_lshl_b32 s52, s51, 5", f"s_add_u32 s53, s53, s52\ns_add_u32 s53, s53, {XI}", "v_add_u32 v231, s53, v231",
         "v_and_b32 v2, 15, v1", "v_lshrrev_b32 v3, 4, v1",
         "v_lshlrev_b32 v230, 4, v3", "s_lshl_b32 s53, s50, 7", "v_add_u32 v230, s53, v230",
         "v_mul_u32_u24 v2, 1280, v2", "v_lshl_add_u32 v228, v3, 3, v2", "v_and_b32 v227, 1, v3", "v_lshl_add_u32 v2, v227, 5, v2", "v_lshrrev_b32 v3, 1, v3", "v_lshl_add_u32 v227, v3, 4, v2"]
def g2_xdma():
    return [[f"s_add_u32 m0, s11, {4096*n}", (f"buffer_load_dwordx4 v229, {WSR}, s10 offen{SC} lds", "xi")] + ([f"s_add_u32 s10, s10, {32*PT_}"] if n < 2 else []) for n in range(3)]
def g2_gloads(): return [[f"buffer_load_dwordx4 {vr(GB[T],4)}, v230, {WSR}, s12 offen offset:{64*T}{SC}"] for T in range(3)] + \
                        [[f"buffer_load_dwordx4 {vr(IC+4*T,4)}, v230, {WSR}, s15 offen offset:{64*T}{SC}"] for T in range(3)]
def g2_xreads(): return [f"ds_read_b64_tr_b16 {vr(XR+6*h+2*T,2)}, v231 offset:{2048*T+64*h}" for h in range(2) for T in range(3)]
def g2_xform():
    L = []
    for h, X in enumerate((XE, XL)):
        for i in range(12):
            r = XR + 6*h + i // 2
            L += [f"v_lshlrev_b32 v{X+i}, 16, v{r}" if i % 2 == 0 else f"v_and_b32 v{X+i}, 0xffff0000, v{r}", f"v_mul_f32 v{X+i}, v{X+i}, v{IC+i}"]
    return L
gb = lambda i: GB[i // 4] + i % 4

LJ = O("lj", 2); S_ = S
_h2_out = h2_out
def h2_out(R, O_, so): return [(x + " " + OPT["ost"].replace("_", " ") if isinstance(x, str) and x.startswith("buffer_store") and "ost" in OPT else x) for x in _h2_out(R, O_, so)]
GE = [int(x) for x in O("ge", "3,8").split(",") if x]
GLs = [int(x) for x in O("gl", "0,2,5").split(",")]
GATES = {}
for k, g in enumerate(GE): GATES[g] = f"a0_{(GE[k+1] if k + 1 < len(GE) else 20) - 1}"
for k, g in enumerate(GLs): GATES[20 + g] = f"a1_{(GLs[k+1] if k + 1 < len(GLs) else 20) - 1}"
LDONE = [0]; WDONE = [0]
G1B = lambda n: n % 12 in (3, 7, 11)
G1S = lambda n: n % 12 == 10
G1K = lambda n: n % 12 in (3, 7, 10, 11)
gate_of = lambda G, ks: max([x for x in G if x <= ks], default=0)
def smalls(sc, groups, p, step=1):
    for g in groups: p = sc.vm(g, p, p + 14, lambda n: G1K(n) and not sc.m[n])[1] + step
    return p
GBF = []
def passA(a, npre, head=None, wrest=None, extra=None):
    sc = h1_sched(0, GATES)
    LQ = O("lq", 160); LI = LQ - O("lql", 40)
    q = sc.chain(xflags(219, 1, 238, 55), LI - 30, LI - 2, keep=G1K)
    smalls(sc, [PI(219, 17, 240)], LI)
    p = sc.at(PC(219, 17, 240, "Lx"), LQ) + 1
    W0 = O("wa0", 110)
    q3 = sc.chain(["v_min_u32 v243, 11, v1", "v_lshlrev_b32 v243, 8, v243", f"s_mul_i32 s58, s3, 24\ns_lshr_b32 s57, s{S_J2}, 2", f"s_add_u32 s58, s58, s57\ns_lshl_b32 s58, s58, 7", f"s_add_u32 s58, s58, {FP3}"] + GBF, max(0, W0 - 56), W0 - 46, keep=G1K)
    q3 = smalls(sc, [PI(243, 58, 244)], q3 + 1)
    n = sc.at(PC(243, 58, 244), max(W0, q3 + 30)) + 1
    wl = groups_of(h2_wloads())
    bl = h1_biasloads()
    smalls(sc, [[bl[0], small(bl[1])]] + [[small(x)] for x in bl[2:]], O("lb", LQ + 4), 6)
    lfree = extra(sc) if extra else (lambda ks: 0)
    S = [[(h1_dma(0, ks), 0, 12 * (gate_of(GE, ks) - 1) - 40 + ks / 100) for ks in range(npre, 20)],
         [(h1_dma(1, ks), max(p, lfree(ks)), 190 + 12 * (gate_of(GLs, ks) - 1) + ks / 100) for ks in range(20)], [(g, n, 300) for g in wl[:12]], wrest or []]
    pos = sc.streams(S, O("pa", 4.0), 0, 238, lambda n: G1B(n) or (n < O("pad", 0) and G1S(n)), wt=[1, 1, 1, O("ww", 1.0 if PP else 1.5)])
    assert len(pos[0]) == len(S[0]) and len(pos[3]) == len(S[3]), [(len(x), len(y)) for x, y in zip(pos, S)]
    for ks, x in zip(range(npre, 20), pos[0]): assert x <= 12 * (gate_of(GE, ks) - 1), (ks, x)
    if wrest: print("   weights: slack", [int(y[2] - x) for x, y in zip(pos[3], wrest)][2::3], file=sys.stderr); assert all(x < y[2] + O("lead", 50) - 10 for x, y in zip(pos[3], wrest))
    assert len(pos[1]) >= (GLs[1] if len(GLs) > 1 else 20)
    LDONE[0] = len(pos[1]); WDONE[0] = len(pos[2])
    pre, rd = h1_st_reads(0)
    q = max(12 * (GE[-1] - 1) + 1 if GE else 1, O("sa", 20), sc.wdone if hasattr(sc, "wdone") else 0)
    q = sc.chain(rd, q, q + 4, 1, keep=G1B)
    q = sc.chain(h1_st_list(0, 0, TAG), q + 6, q + O("sl", 70), keep=G1K)
    print(f"pass A: early dma {pos[0]}, wd {WDONE[0]}, stats at {q}, late slots issued {LDONE[0]}, overflow {sc.over()}", file=sys.stderr)
    for ks in range(20): fstamp(sc, 12 * ks, f"a{ks}")
    if "gbar" in OPT:
        if head: head(a); head = None
        lab[0] += 1; L = f"L_gb{lab[0]}"
        a(f"""
        s_waitcnt vmcnt(0)
        s_barrier
        v_mov_b32 v254, 0
        v_mov_b32 v255, 1
        s_cmp_eq_u32 s3, 0
        s_cbranch_scc0 {L}
        s_mov_b64 exec, 1
        global_atomic_add v254, v255, {sp(DBG)} sc1
        s_mov_b64 exec, -1
        {L}:
        global_load_dword v255, v254, {sp(DBG)} sc1
        s_waitcnt vmcnt(0)
        v_cmp_ne_u32 vcc, 256, v255
        s_cbranch_vccz {L}x
        s_sleep 2
        s_branch {L}
        {L}x:
        """)
        stamp(a, "gb")
    a.waitv(f"a0_{(GE[0] if GE else 20) - 1}")
    a("s_waitcnt lgkmcnt(0)\ns_barrier")
    put(a, h1_reads(0))
    if head: head(a)
    h1_pass(a, 0, sc)

def rest(a, X):
    stamp(a, "pB")
    sc = h1_sched(1, GATES)
    wl = groups_of(h2_wloads())
    def stslow(h):
        def f(a):
            a.label(f"L_st{X}{h}_slow"); a.reset()
            put(a, h1_stloads()); put(a, h1_stcheck(TAG))
            a(f"v_cmp_ne_u32 vcc, 0, v3\ns_cbranch_vccz L_st{X}{h}_back\ns_cmp_eq_u32 s{BUDGET}, 0\ns_cbranch_scc1 L_st{X}{h}_back\ns_sub_u32 s{BUDGET}, s{BUDGET}, 1\ns_branch L_st{X}{h}_slow")
        slow2.append(f)
        def chk(a):
            a(f"v_cmp_ne_u32 vcc, 0, v3\ns_cbranch_vccnz L_st{X}{h}_slow"); a.label(f"L_st{X}{h}_back")
        return costed(chk, "v", 1)
    EA = O("ea", 44)
    smalls(sc, [[small(x)] for x in h1_stloads()], max(0, EA - 44))
    p = sc.chain(h1_stcheck(TAG) + [stslow(0)], EA - 10, EA - 2, keep=G1K)
    p = sc.force(p + 1, [costed(lambda a: (stamp(a, "eA"), h1_epi(a, 0), a(f"s_add_u32 s{S_STL}, s{S_STL}, {1024*16}\ns_lshl_b32 s76, s{S_I}, 4\ns_add_u32 s76, s76, s{S_J}")), "v", 2)])
    pf = sc.at(BAR("hst0", then=lambda a: wflag(a, 76, FHE), c=3), p + O("ph", 40))
    SB = O("sb", 228); HC = O("hc", 190)
    smalls(sc, [[small(x)] for x in h1_stloads()], SB - 48)
    smalls(sc, [PI(246, 17, 247)], HC - 36)
    q2 = sc.at(PC(246, 17, 247, "Hseen"), HC)
    S = [[(h1_dma(1, ks), 0, 12 * (gate_of(GLs, ks) - 1) - 40 + ks / 100) for ks in range(LDONE[0], 20)],
         [(wl[n], 12 * ((n - 12) // 3 + 1) if n >= 12 else 0, 200 + n) for n in range(WDONE[0], 60)],
         [([h2_hload(n)], q2 + 1, O("hd", 180) + 5 * n) for n in range(12)]]
    pos = sc.streams(S, O("pb", 4.0), 0, 238, lambda n: G1B(n) or (n >= O("pbd", 240) and G1S(n)))
    assert len(pos[0]) == len(S[0])
    for ks, x in zip(range(LDONE[0], 20), pos[0]): assert x <= 12 * (gate_of(GLs, ks) - 1), (ks, x)
    nw = WDONE[0] + len(pos[1]); nh = len(pos[2])
    g = max(k for k in GATES if k >= 20)
    pre, rd = h1_st_reads(1)
    q = sc.chain(pre, 0, 10, keep=G1K)
    q = max(q, 12 * (g - 21) + 1, p + 1)
    q = sc.chain(rd, q, q + 4, 1, keep=G1B)
    q = sc.chain(h1_st_list(1, 0, TAG), q + 6, q + O("sl", 70), keep=G1K)
    assert q + 30 < SB - 48, q
    q3 = sc.chain(h2_hsetup(S_I2) + hflags(FHE, True), q + 1, HC - 38, keep=G1K)
    assert q3 < HC - 36, q3
    sc.chain(h1_stcheck(TAG) + [stslow(1)], SB, 238)
    print(f"pass B: epilogue A at {p}, FHE at {pf}, stats B done {q}, wd {nw}, h {nh}, overflow {sc.over()}", file=sys.stderr)
    for ks in range(20): fstamp(sc, 12 * ks, f"b{ks}")
    h1_pass(a, 1, sc)
    stamp(a, "g1done")
    for n in range(nh, 12): a(h2_hload(n))
    for g_ in wl[nw:]: put(a, g_)
    h1_epi(a, 1)
    for n in range(12, Q2NH): a(h2_hload(n))
    stamp(a, "g1epi")
    sc = Gaps(240)
    srd(a, 40, OUT, S_ * D * 2)
    PB1 = O("pb1", 40)
    sc.force(PB1, [BAR("hst1", then=lambda a: wflag(a, 76, FHL), c=3)])
    LC = O("lc", 110)
    sc.vm(PI(246, 17, 247), LC - O("ll", 30))
    p = sc.at(PC(246, 17, 247, "Lseen"), LC) + 1
    QS = O("qs", 46)
    pos = sc.streams([[([h2_hload(n)], max(5 * (n - Q2NH) + 5, p if n >= 24 else 0), 5 * n) for n in range(Q2NH, 48)], [(g, max(QS, PB1) + 1, 100) for g in g2_xdma()]], O("p2", 3.0))
    assert len(pos[0]) == 48 - Q2NH and all(x < 5 * n for x, n in zip(pos[0], range(Q2NH, 48))), pos
    wr = lambda sg: [f"ds_write_b128 v{220+sg}, {vr(Q2ACC[sg&1]+4*T,4)} offset:{T*1024}" for T in range(5)]
    assert PB1 < 62
    sc.chain(wr(0), 64, 76, 2)
    q = sc.chain(g2_setup(S_I2, S_J2) + hflags(FHL), 0, QS - 1)
    pg = q + 1
    for x in g2_gloads(): pg = sc.vm([small(x[0])], pg)[0] + 1
    q = sc.at(BAR("xi"), max(pos[1][-1], pg) + O("xw", 40))
    q = sc.chain(g2_xreads(), q, q + 8)
    qx = sc.chain(g2_xform(), q + 4, q + 36)
    q = sc.chain(wr(1), 123, 135, 2)
    q = sc.at("s_waitcnt lgkmcnt(0)\ns_barrier", max(q + O("g2d", 8), qx + 1))
    q = sc.chain([f"ds_read_b128 {vr(PT+12*sr+4*T,4)}, v224 offset:{5120*sr+1024*T}" for sr in range(4) for T in range(3)], q, q + 14)
    add = lambda x, y: [f"v_add_f32 v{x+i}, v{x+i}, v{y+i}" for i in range(12)]
    q = sc.chain(add(PT, PT + 12) + add(PT + 24, PT + 36) + add(PT, PT + 24), q + 2, q + 26)
    ho = h2_out(XE, PT + 12, 13)
    q = sc.chain([f"v_fma_f32 v{XE+i}, v{PT+i}, v{gb(i)}, v{XE+i}" for i in range(12)] + ho, q, q + 18)
    qe = q
    q = sc.chain(wr(2), 183, 195, 2)
    q = sc.at("s_waitcnt lgkmcnt(0)\ns_barrier", q + O("g2d", 8))
    q = sc.chain([f"ds_read_b128 {vr(PT+24+12*k+4*T,4)}, v225 offset:{10240*k+1024*T}" for k in range(2) for T in range(3)], max(q, qe), max(q, qe) + 8) + 7
    tail = add(PT + 24, PT + 36) + [f"v_fma_f32 v{XL+i}, v{PT+24+i}, v{gb(i)}, v{XL+i}" for i in range(12)]
    while tail and any(sc.extra(n, tail[0]) == 0 for n in range(q, 240)): q = sc.chain([tail.pop(0)], q, 239)
    print(f"gemm2: residual formed at {qx}, early rows stored at {qe}, left over {len(tail)}, overflow {sc.over()}", file=sys.stderr)
    for sg in range(4):
        stamp(a, f"h{sg}")
        for ks in range(12):
            n = 12 * sg + ks
            for T in range(5):
                ac = Q2ACC[sg & 1] + 4*T
                a(f"v_mfma_f32_16x16x32_bf16 {vr(ac,4)}, {wdreg(5*ks+T)}, {vr(Q2H+4*(n%Q2NH),4)}, {vr(ac,4) if ks else '0'}")
                sc.emit(a, 5*n + T)
    stamp(a, "h4")
    put(a, tail)
    put(a, wr(3))
    a("s_waitcnt lgkmcnt(0)\ns_barrier")
    put(a, [f"ds_read_b128 {vr(PT+12*k+4*T,4)}, v226 offset:{10240*k+1024*T}" for k in range(2) for T in range(3)])
    for i in range(0, 12, 2): a(f"v_pk_add_f32 {vr(PT+i,2)}, {vr(PT+i,2)}, {vr(PT+12+i,2)}")
    for i in range(0, 12, 2): a(f"v_pk_fma_f32 {vr(XL+i,2)}, {vr(PT+i,2)}, {vr(gb(i),2)}, {vr(XL+i,2)}")
    put(a, h2_out(XL, PT, 14))
    if "xcct" in OPT and X == "c":
        a(f"""
        s_cmp_eq_u32 s2, 8
        s_cbranch_scc0 L_xt_x
        v_mov_b32 v2, 0
        global_load_dword v3, v2, {sp(DBG)} sc1
        s_getreg_b32 s50, hwreg(HW_REG_XCC_ID, 0, 4)
        s_add_u32 s50, s50, 1
        s_waitcnt vmcnt(0)
        v_readfirstlane_b32 s51, v3
        s_cmp_eq_u32 s50, s51
        s_cbranch_scc1 L_xt_x
        s_memrealtime s[52:53]
        L_xt:
        s_sleep 4
        s_memrealtime s[50:51]
        s_waitcnt lgkmcnt(0)
        s_sub_u32 s50, s50, s52
        s_cmp_lt_u32 s50, 2000
        s_cbranch_scc1 L_xt
        L_xt_x:
        """)
    if "enc" in OPT:
        a("s_waitcnt vmcnt(0)"); stamp(a, "end")
        if "skew" in OPT:
            a(f"""
            s_cmp_lt_u32 s2, 8
            s_cbranch_scc0 L_sk{X}
            s_getreg_b32 s50, hwreg(HW_REG_XCC_ID, 0, 4)
            s_lshl_b32 s51, s2, 2
            v_mov_b32 v2, s51
            v_mov_b32 v3, s78
            v_mov_b32 v4, s50
            global_store_dword v2, v3, {sp(DBG)} sc1
            global_store_dword v2, v4, {sp(DBG)} offset:32 sc1
            L_sk{X}:
            s_waitcnt vmcnt(0)
            s_sleep 127
            s_sleep 127
            v_mov_b32 v2, 0
            global_load_dword v4, v2, {sp(DBG)} offset:{4*int(OPT["skew"])} sc1
            global_load_dword v5, v2, {sp(DBG)} sc1
            s_waitcnt vmcnt(0)
            v_readfirstlane_b32 s82, v4
            v_readfirstlane_b32 s80, v5
            s_add_u32 s82, s82, 200
            """)
        if "probe" in OPT:
            pr = OPT["probe"]
            if "encw" in OPT: a(f"s_cmp_eq_u32 s2, {OPT['encw']}\ns_cbranch_scc0 L_pr_x{X}")
            a("s_load_dwordx2 s[16:17], s[0:1], 48\ns_sleep 127\ns_waitcnt lgkmcnt(0)")
            if pr.startswith("bx"): srd(a, 44, 16, S_ * D * 2); R_, off = "s[44:47]", 0x100000
            else: R_, off = WSR, int(OPT.get("poff", "6000000"), 16)
            nb = O("pn", 1)
            a(f"s_lshl_b32 s50, s2, 2\ns_add_u32 s50, s50, s3\ns_and_b32 s50, s50, {3 if 'encw' in OPT else 1023}\ns_lshl_b32 s50, s50, 14\ns_add_u32 s50, s50, {off}\ns_add_u32 s51, s50, {OPT.get('pwarm', '0x20000')}\nbuffer_load_dword v3, v248, {R_}, s51 offen\ns_waitcnt vmcnt(0)")
            stamp(a, "p0")
            for k in range(nb):
                a(f"buffer_store_dwordx4 v[8:11], v248, {R_}, s50 offen sc1" if pr == "st" else f"buffer_load_dwordx4 v[{8+4*k}:{11+4*k}], v248, {R_}, s50 offen{' nt' if pr.endswith('nt') else ''}")
                a("s_add_u32 s50, s50, 1024")
            a("s_waitcnt vmcnt(0)")
            stamp(a, "p1")
            a.label(f"L_pr_x{X}")
        if OPT.get("encp", "c") in (X, "all"):
            k = 0; A_, B_ = [78 + 2 * SNAMES.index(x) for x in OPT["enc"].split(",")]
            a(f"s_waitcnt lgkmcnt(0)\ns_sub_u32 s52, s{B_}, s{A_}\ns_mul_i32 s52, s52, {O('encm', 5)}\ns_lshr_b32 s52, s52, {O('encs', 0)}\ns_min_u32 s52, s52, 15000\ns_add_u32 s52, s52, 3000")
            if "encw" in OPT: a(f"s_cmp_eq_u32 s2, {OPT['encw']}\ns_cbranch_scc0 L_enc_x{X}")
            a(f"""
            L_enc{X}:
            s_sleep 4
            s_memrealtime s[50:51]
            s_waitcnt lgkmcnt(0)
            s_sub_u32 s50, s50, s{78+2*k}
            s_cmp_lt_u32 s50, s52
            s_cbranch_scc1 L_enc{X}
            L_enc_x{X}:
            """)
    elif STAMPS:
        a("s_waitcnt vmcnt(0)")
        stamp(a, "end")
        a("s_waitcnt lgkmcnt(0)")
        a(f"s_lshl_b32 s50, s2, 2\ns_add_u32 s50, s50, s3\ns_lshl_b32 s50, s50, 6\ns_add_u32 s50, s50, {STAMP}\nv_mov_b32 v2, 0")
        for n in range(12): a(f"v_mov_b32 v{8+n}, s{78+2*n}")
        a("s_mov_b64 exec, 1")
        for n in range(3): a(f"buffer_store_dwordx4 v[{8+4*n}:{11+4*n}], v2, {WSR}, s50 offen offset:{16*n}")
        a("s_mov_b64 exec, -1")

    a("s_endpgm")

def body(a):
    def eload(a, tag=None):
        WB0 = int(O("wsb", "0"), 16)
        srd(a, 36, WS, WS_BYTES - WB0)
        if WB0: a(f"s_add_u32 s36, s36, {hex(WB0)}\ns_addc_u32 s37, s37, 0")
        a(f"v_mov_b32 v2, 0\ns_mov_b32 s57, {EPOCH}\nbuffer_load_dword v246, v2, {WSR}, s57 offen sc1", tag=tag)
    if "oldpf" not in OPT:
        a(f"""
        s_getpc_b64 s[40:41]
        L_pc0:
        s_lshr_b32 s51, s2, 3
        s_mul_i32 s51, s51, {O("pfl", 17) * 128}
        s_mov_b32 s42, L_code_end-L_pc0
        s_mov_b32 s43, 0x20000
        v_min_u32 v2, {O("pfl", 17) - 1}, v1
        v_lshlrev_b32 v2, 7, v2
        s_cmp_eq_u32 s3, 3
        s_cbranch_scc0 L_pf0
        """)
        a("buffer_load_dword v252, v2, s[40:43], s51 offen", nowait=True)
        a.label("L_pf0"); a.reset()
    a(f"""
    s_mov_b32 s{BUDGET}, {0 if "xnopoll" in OPT else 400000}
    s_and_b32 s50, s2, 7               ; xcd (speed only)
    s_lshr_b32 s51, s2, 3              ; slot
    s_lshr_b32 s52, s50, {4-LJ}         ; gemm1: 2^(5-LJ) row tiles x 2^LJ column tiles per xcd
    s_lshl_b32 s52, s52, {5-LJ}
    s_lshr_b32 s53, s51, {LJ}
    s_add_u32 s{S_I}, s52, s53
    """ + (f"""
    s_lshl_b32 s53, s53, 3              ; k rotation by row tile (speed only: spreads first touches of the weights)
    s_mov_b32 s54, {hex(sum(int(x) << (8*k) for k, x in enumerate(O("rot", "0,2,4,6,8,1,5,9").split(",")[:4])))}
    s_mov_b32 s55, {hex(sum(int(x) << (8*k) for k, x in enumerate(O("rot", "0,2,4,6,8,1,5,9").split(",")[4:])))}
    s_lshr_b64 s[54:55], s[54:55], s53
    s_and_b32 s{R1}, s54, 255
    s_lshr_b32 s54, s50, 2              ; the two groups of XCDs that share a column tile start half way apart
    s_mul_i32 s54, s54, {O("goff", 10)}
    s_add_u32 s{R1}, s{R1}, s54
    s_sub_u32 s54, s{R1}, 20
    s_min_u32 s{R1}, s{R1}, s54
    """ if LJ == 2 else f"""
    s_mul_i32 s{R1}, s53, {O("rm", 2)}      ; k rotation by row tile (speed only: spreads first touches of the weights)
    s_mul_i32 s54, s53, 3
    s_sub_u32 s54, s54, 29
    s_cmp_lt_u32 s53, 10
    s_cselect_b32 s{R1}, s{R1}, s54
    """) + f"""
    s_and_b32 s52, s50, {(1 << (4-LJ)) - 1}
    s_lshl_b32 s52, s52, {LJ}
    s_and_b32 s53, s51, {(1 << LJ) - 1}
    s_add_u32 s{S_J}, s52, s53
    s_and_b32 s{S_J2}, s51, 7
    s_lshr_b32 s53, s51, 3
    s_lshl_b32 s52, s50, 2
    s_add_u32 s{S_I2}, s52, s53
    s_mul_i32 s{S_CU}, s50, 20
    s_add_u32 s{S_CU}, s{S_CU}, s51
    s_sub_u32 s{S_PU}, s2, 160
    s_lshl_b32 s52, s50, 1             ; phase-A unit 16g + j: j = 2*xcd + (slot >= 10), g = slot mod 10
    s_cmp_ge_u32 s51, 10
    s_addc_u32 s52, s52, 0
    s_cmp_ge_u32 s51, 10
    s_cselect_b32 s53, 10, 0
    s_sub_u32 s53, s51, s53
    s_lshl_b32 s53, s53, 4
    s_add_u32 s76, s52, s53
    s_lshl_b32 s58, s{S_CU}, 2
    s_add_u32 s58, s58, s3             ; channel of this wave
    v_lshlrev_b32 v248, 4, v1
    """)
    def ptrs(a):
        a("s_waitcnt lgkmcnt(0)")
        if "entry" not in OPT: stamp(a, "start")
        else: a.comment("stamp 0 start"); stamp(a, "pro")
        a("s_cmp_ge_u32 s2, 160\ns_cbranch_scc1 L_prep")
        if "xnoconv" in OPT: a("s_branch L_end")
    def gettag():
        a(f"""
        v_readfirstlane_b32 s{TAG}, v246
        s_mul_i32 s{TAG}, s{TAG}, 0x9E3779B1
        s_add_u32 s{TAG}, s{TAG}, 0x7F4A7C15
        """)
    QM, KM = O("qm", "first"), O("km", "mid")
    WV = 224
    def wdma(n, slot=None, V=WV, each=False):
        L = wdir_dma(n, SL[n % 5] if slot is None else slot, V, each=each)
        return [((x[0].replace(" lds", " nt lds"), x[1]) if isinstance(x, tuple) and n < O("wnt", 0) else x) for x in L]
    wrd = lambda n: wdir_reads2(n, SL[n % 5], WV)
    NB = O("nb", 4); N2 = O("n2", 0); NC = O("nc", 15)
    first_loads(a, 76, ptrs, lambda a: (stamp(a, "kviss"), eload(a, "kv")))
    if QM == "first": phaseA_qload(a)
    if KM == "first": kload(a)
    a("v_mov_b32 v243, v3")
    PK, PQ, PH = O("prk", ""), O("prq", ""), O("prh", "")
    if PK == "r1": preT(a, KVT, True, 238)
    if PQ == "r1": preT(a, QT, False, 239)
    if PH == "r1": preH(a, 237)
    WM = O("wm", "mid")
    if PP:
        if "wpnt" not in OPT: WPNT[0] = " nt"
        put(a, wf_setup(S_J)); wp_setup(a)
    else: wdir_setup2(a, S_J, WV)
    kzero(a, 223)
    esetup(a)
    conv_addr(a)
    put(a, h1_vsetup(S_J, S_J2) + xflags(219, 0)[:-1])
    a("v_mov_b32 v3, v243")
    if QM == "late": phaseA_qload(a)
    if KM == "late": kload(a)
    if PP and WM == "late": wp_issue(a)
    if PK == "late": preT(a, KVT, True, 238, 8)
    if PQ == "late": preT(a, QT, False, 239, 8)
    stamp(a, "setup")
    phaseA_read(a)
    stamp(a, "kvland")
    if QM == "mid": phaseA_qload(a)
    if PQ == "mid": preT(a, QT, False, 239)
    if KM == "mid": kload(a)
    if PP and WM == "mid": wp_issue(a)
    NM = O("nm", 0); assert NM <= min(2, NB)
    for n in range(NM): put(a, wdma(n))
    phaseA_compute(a)
    stamp(a, "Acomp")
    if KM == "post": kload(a)
    if QM != "mid":
        a.waitv("q"); a("s_barrier")
        phaseA_q(a, 184)
    if PP and WM == "post": wp_issue(a)
    if "kcl" not in OPT: kcopies(a, 223)
    signal(a, 76, FA, gettag, tag="kvst")
    stamp(a, "Asig")
    if QM == "mid": phaseA_q(a, 184)
    if PH == "sig": preH(a, 237)
    if KM == "sig": kload(a)
    if PP:
        if WM == "post": a.waitv("wp"); a("s_barrier")
        wp_finish(a, S_CU, 128, 0)
    for n in range(NM, NB): put(a, wdma(n))
    if "kcl" in OPT: kcopies(a, 223)
    if "xcct" in OPT:
        a(f"s_cmp_eq_u32 s2, 0\ns_cbranch_scc0 L_xt0\ns_getreg_b32 s50, hwreg(HW_REG_XCC_ID, 0, 4)\ns_add_u32 s50, s50, 1\nv_mov_b32 v2, 0\nv_mov_b32 v3, s50")
        a(f"global_store_dword v2, v3, {sp(DBG)} sc1", cond=True); a.label("L_xt0")
    conv_dfrag(a)
    a(f"v_mov_b32 v4, v{AA}\nv_mov_b32 v5, v{AF}")
    if NB: a.waitv(f"w{NB-1}")
    FWL = PP and "fwl" in OPT
    if PP and not FWL: a.waitv("wpst")
    a.waitv("qst"); a("s_barrier"); wflag(a, 76, FT)
    if PP and not FWL: wflag(a, S_CU, FW)
    stamp(a, "kcop")
    for n in range(NB): put(a, wrd(n))
    poll(a, 242, 59)
    stamp(a, "kvseen")
    xload(a)
    if FWL: a("s_barrier"); wflag(a, S_CU, FW)
    C2 = O("c2", 10); CL = O("cl", 40); PE = O("pe", 95); PF = O("pf", 45)
    nr = nd = NB
    if C2 - CL < 0: poll_issue(a, 240, 69, 243)
    if NB + N2 > 5: a("s_waitcnt lgkmcnt(0)\ns_barrier")
    while nd < min(NC, nr + N2): put(a, wdma(nd)); nd += 1
    sc = c2_sched(); N = sc.N
    if C2 - CL >= 0: sc.vm(PI(240, 69, 243), C2 - CL)
    p2 = sc.at(costed(lambda a: (poll_check(a, 240, 69, 243), a.waitl(f"wr{NB-1}"), a("s_barrier"), stamp(a, "qseen")), "v", 2), C2)
    ml = f"buffer_load_dwordx2 v[{ET}:{ET+1}], v253, {WSR}, s55 offen sc1"
    sc.vm([small(ml)], PE - O("ml", 45))
    def mslow(a):
        a.label("L_m_slow"); a.reset()
        a(ml)
        a(f"v_cmp_ne_u32 vcc, s{TAG}, v{ET+1}\ns_cbranch_vccz L_m_back\ns_cmp_eq_u32 s{BUDGET}, 0\ns_cbranch_scc1 L_m_back\ns_sub_u32 s{BUDGET}, s{BUDGET}, 1\ns_sleep 1\ns_branch L_m_slow")
    slow2.append(mslow)
    def mcheck(a):
        a(f"v_cmp_ne_u32 vcc, s{TAG}, v{ET+1}\ns_cbranch_vccnz L_m_slow"); a.label("L_m_back")
        a(f"""
        v_mov_b32_dpp v252, v{ET} quad_perm:[3,3,3,3] row_mask:0xf bank_mask:0xf
        v_mul_f32_dpp v251, v{ET}, v252 quad_perm:[2,2,2,2] row_mask:0xf bank_mask:0xf
        v_mul_f32_dpp v250, v{ET}, v251 quad_perm:[1,1,1,1] row_mask:0xf bank_mask:0xf
        v_mul_f32_dpp v251, v{ET}, v251 quad_perm:[0,0,0,0] row_mask:0xf bank_mask:0xf
        """)
    sc.force(PE - 12, [BAR("st1")])
    sc.chain(streads(0), PE - 12, PE - 4, 1)
    sc.force(PE, [costed(lambda a: (mcheck(a), stamp(a, "e1"), pre_pk(a), fin_pk(a, 0), stamp(a, "e1done")), "v", 2)])
    sc.force(PE + PF, [BAR("a1st0", then=lambda a: (wflag(a, S_CU, FXE), stamp(a, "fxe")), c=3)])
    XC = O("xc", 250)
    sc.vm(PI(219, 17, 223), XC - O("xl", 30))
    XC = sc.at(PC(219, 17, 223, "xseen"), XC)
    pfp = sc.vm(PI(241, 60, 243), PE + 10)[0]
    sl = sc.chain(streads(1), PE + 2, PE + 14, 1)
    LEAD = O("lead", 50); W0 = O("w0", 102); W1 = O("w1", 270); bp = {}; sfree = [0] * 5; q = 0
    for n in range(nr, NC if not PP else 0):
        p = max(q + 1, W0 + (W1 - W0) * (n - nr) // max(1, NC - 1 - nr))
        if PE - 13 <= p <= PE + 1: p = PE + 2
        bp[n] = sc.at(BAR(f"w{n}", f"l:wr{n-1}"), p, 2)
        q = sc.chain(wrd(n), bp[n], bp[n] + 7, 1)
        sfree[(n - 1) % 5] = bp[n]
    pw = 0
    if not PP: pw = sc.at(BAR(f"l:wr{NC-1}"), q + 4); sfree[(NC - 1) % 5] = pw
    pre5 = nr + 5; wf = groups_of(wf_loads())
    SW = [(wf[n], p2 + 1, N - O("wdl", 100) + 4 * n) for n in range(60)] if PP else [(g, max(p2 + 1, O("d0", 30)) if n < pre5 else bp[max(n - 4, nr)] + 1, bp[n] - LEAD) for n in range(nd, NC) for g in groups_of(wdma(n, each=True))]
    erel = lambda ks: max([XC + 1] + [sfree[k] + 1 for k in range(5) if SL[k] < 4096 * (ks + 1) and 4096 * ks < SL[k] + WSLOT2])
    S = [SW, [(g, p2 + 1, PE - 70) for g in st1dma() + qloads(0)], [(g, PE + 1, PE + 20) for g in qloads(1)],
         [(h1_dma(0, ks), erel(ks), N - 60 + (12 * (gate_of(GE, ks) - 1) if ks >= GE[0] else 0) + ks / 100) for ks in range(O("npre", 15))]]
    pos = sc.streams(S, O("pc", 4.0), 0, N - 2, wt=[O("ww", 1.0 if PP else 1.5), 1, 1, 1])
    assert all(len(x) == len(y) for x, y in list(zip(pos, S))[PP:3]), [(len(x), len(y)) for x, y in zip(pos, S)]
    assert pos[1][-1] < PE - 14
    log = [(n, bp[n], bp[n] - pos[0][3 * (n - nd) + 2]) for n in range(nd, NC)] if not PP else [(len(pos[0]), 0, 1)]; nwf = len(pos[0])
    assert all(x[2] > 0 for x in log), log
    npre = len(pos[3]); ql = pos[2][-1]
    b = Asm(); h1_ssetup(b, S_I, S_J); put(b, [f"s_mov_b32 s17, {FLG}"])
    SS = [re.sub(r"\bs50\b", "s53", re.sub(r"\bs35\b", "s52", re.sub(r"\bs62\b", "s16", x.text))) for k, x in b.items if k == "ins"]
    SS = SS[-1:] + SS[:-1] + [y for x in h2_wsetup(S_J2) for y in x.split("\n")]
    q = sc.chain(SS, 1, XC - 40, 1)
    pl = sc.chain(pre_list(), max(ql + 50, sl + 4), O("pld", 270))
    pi = sc.at(PC(241, 60, 243), pfp + 50)
    b = Asm(); h1_icb(b); IL = [x.text.replace("s50", "s56") for k, x in b.items if k == "ins"]
    pi = sc.chain(IL[:2] + [IL[2] + "\n" + IL[3]] + IL[4:6], pi + 1, pi + 8)
    for x in IL[6:]: pi = sc.vm([small(x)], pi + 1)[0]
    print(f"conv: weights {log} done {pw}; stats/q {pos[1]}; late pre {pl}; x seen {XC}; early {pos[3]}; overflow {sc.over()}", file=sys.stderr)
    for c in range(8): fstamp(sc, c2_start(1, c), f"c{c}")
    a.waitv("xdma")
    stamp(a, "cstart")
    for l in c2_loads(0, 0): a(l)
    seen = set()
    for n, (part, c, u, w, dterm) in enumerate(C2M):
        t = u + w; bb = c & 1
        A = vr(DFR, 4) if dterm else vr(AB[bb] + 4*u, 4)
        a(f"v_mfma_f32_16x16x32_bf16 {vr(ACC+4*t,4)}, {A}, {vr(FB[bb]+4*w,4)}, {vr(ACC + 4*t, 4) if t in seen else '0'}")
        seen.add(t)
        sc.emit(a, n)
    stamp(a, "cdone")
    order = sorted(range(4), key=lambda t: max(n for n, m in enumerate(C2M) if m[2] + m[3] == 4 + t))
    NP2 = max(npre, min(GE[0] if GE else 20, 15))
    for ks in range(npre, NP2): put(a, h1_dma(0, ks))
    V2 = 200; WB = 163840 - WSLOT2 * (20 - NC)
    tb = {n: O("t0", 90) + O("tp", 18) * (n - NC) for n in range(NC, 21)}
    wrest = [(g, 0, tb[n] - LEAD) for n in range(NC, 20) for g in groups_of(wdma(n, WB + WSLOT2 * (n - NC), V2, True))]
    if PP: wrest = [(wf[n], 0, 12 * (n // 3) - 60 + n / 100) for n in range(nwf, 60)]
    def conv_extra(sc, conv=True):
        q = 0; fr = {}
        for n in range(NC, 21):
            if NC == 20: break
            q = sc.at(BAR(*([f"w{n}"] if n < 20 else []), *([f"l:wr{n-1}"] if n > NC else [])), max(q + 1, tb[n]), 2); fr[n - 1] = q + 1
            if n < 20:
                q = sc.chain(wdir_reads2(n, WSLOT2 * (n - NC), V2), q, q + 10, 1, keep=G1B)
                assert q + 6 < 12 * n, (n, q)
        if conv: sc.at(BAR("a1st1", then=lambda a: wflag(a, S_CU, FXL), c=3), O("pl", 35))
        return lambda ks: max([0] + [fr[n] for n in range(NC, 20) if WB + WSLOT2 * (n - NC) < IMG + 4096 * (ks + 1) and IMG + 4096 * ks < WB + WSLOT2 * (n - NC + 1)])
    def head(a):
        fin_pk(a, 1, order)
        if NC < 20:
            for k in range(3): a(f"v_mov_b32 v{200+k}, v{WV+k}")
            for k in (3, 4): a(f"v_add_u32 v{200+k}, {WB}, v{WV+k}")
    passA(a, NP2, head, wrest, conv_extra)
    rest(a, 'c')
    a.label("L_prep"); a.reset()
    if "xnoprep" in OPT: a("s_branch L_end")
    eload(a)
    if 'oldpf' in OPT:
        CN = " nt" if "cnt" in OPT else ""
        a(f"""
        s_lshr_b32 s51, s2, 3
        s_cmp_eq_u32 s51, {O("pfs", 31)}
        s_cbranch_scc0 L_nopf
        s_getpc_b64 s[40:41]
        L_pc:
        s_sub_u32 s40, s40, L_pc-{NAME}_kernel
        s_subb_u32 s41, s41, 0
        s_mov_b32 s42, L_code_end-{NAME}_kernel
        s_mov_b32 s43, 0x20000
        v_lshlrev_b32 v2, 7, v0
        s_mov_b32 s52, 0x8000
        buffer_load_dword v250, v2, s[40:43], 0 offen{CN}
        buffer_load_dword v251, v2, s[40:43], s52 offen{CN}
        s_mov_b32 s52, 0x10000
        buffer_load_dword v252, v2, s[40:43], s52 offen{CN}
        L_nopf:
        """, nowait=True)
        a.reset()
    a.reset()
    V = 230; slot = lambda m: WLB + (m % 8) * WSLOT2
    def wpipe(a, n0, n1, mid=None, first=None, at=None):
        nd = min(n0 + 6, n1)
        wdir_dma = lambda n, sl, V: wdma(n, sl, V)
        for n in range(n0, nd): put(a, wdir_dma(n, slot(n), V))
        if mid: mid(a)
        for n in range(n0, n1, 2):
            last = min(n + 1, n1 - 1)
            a.waitv(f"w{last}")
            if n > n0: a.waitl(f"wr{n-1}")
            a("s_barrier")
            if first and n == n0: first(a)
            for m in range(n, last + 1): put(a, wdir_reads2(m, (m % 4) * WSLOT2, V + (5 if m % 8 >= 4 else 0)))
            for _ in range(2):
                if nd < n1:
                    put(a, wdir_dma(nd, slot(nd), V)); nd += 1
                    if at and nd == at[0]: at[1](a)
        if at: a.waitv("wst")
        a("s_waitcnt lgkmcnt(0)\ns_barrier")
    a(f"""
    s_add_u32 s50, s{S_PU}, 10
    s_cmp_lt_u32 s{S_PU}, 30
    s_cselect_b32 s77, s{S_PU}, s50          ; urgent units 0..29, 40..49
    s_sub_u32 s50, s{S_PU}, 10
    s_cmp_lt_u32 s{S_PU}, 50
    s_cselect_b32 s50, s50, s{S_PU}          ; 30..39, 50..63
    s_cmp_lt_u32 s{S_PU}, 40
    s_cselect_b32 s77, s77, s50
    s_mov_b32 s76, 0
    s_cmp_ge_u32 s{S_PU}, 60
    s_cbranch_scc1 L_p_q
    """)
    mod_cloads(a, 80)
    if "modlate" not in OPT: mod_loads(a, 77, 80)
    mod_silu(a, 80, 180)
    if "modlate" in OPT: mod_loads(a, 77, 80)
    stamp(a, "kvland")
    mod_finish(a, 77, 80, 180, 0)
    stamp(a, "Acomp")
    gettag()
    mod_finish2(a, 77, 80, 180, 0, TAG)
    a(f"s_add_u32 s77, s77, {(FP2-FQ)//128}\ns_branch L_p_w")
    a.label("L_p_q"); a.reset()
    a(f"""
    s_and_b32 s50, s2, 7              ; slots 28..31: two workgroups per xcd take the statistics of the rows whose q tiles that xcd transposes (speed only),
    s_lshr_b32 s52, s2, 3             ; the other two have no job: they start on the weights and publish cw / sw of their column tile
    """ + ("s_lshr_b32 s53, s50, 2\ns_xor_b32 s53, s53, s52\n" if LJ == 2 else "s_lshr_b32 s53, s52, 1\ns_lshl_b32 s52, s52, 1\n") + f"""
    s_and_b32 s53, s53, 1
    s_xor_b32 s76, s53, 1
    s_cmp_ge_u32 s{S_PU}, 64
    s_cselect_b32 s76, s76, 0
    s_cselect_b32 s53, s53, 0
    s_lshl_b32 s50, s50, 2
    s_and_b32 s52, s52, 2
    s_add_u32 s77, s50, s52
    s_add_u32 s69, s77, 1
    s_cmp_eq_u32 s53, 0
    s_cbranch_scc0 L_p_s
    s_waitcnt vmcnt(0)
    """)
    gettag()
    a(f"s_add_u32 s77, s{S_PU}, {(FY-FQ)//128}\ns_branch L_p_w")
    a.label("L_p_s"); a.reset()
    if "qnt" not in OPT: phases.NT = ""
    st1_loads(a, 77, 16); st1_loads(a, 69, 96)
    phases.NT = " nt"
    stamp(a, "kvland")
    st1_finish(a, 77, 16, 180); st1_finish(a, 69, 96, 180)
    stamp(a, "Acomp")
    signal(a, 77, FQ, lambda: (gettag(), wflag(a, 69, FQ, 2)))
    a.label("L_p_w"); a.reset()
    stamp(a, "Asig")
    srd(a, 56, WD_, 1536 * 640 * 2)
    WDH = WLB + 8 * WSLOT2
    wdir_setup2(a, S_J, V)
    a(f"v_add_u32 v{V+3}, {WLB}, v{V+3}\nv_add_u32 v{V+4}, {WLB}, v{V+4}\nv_add_u32 v{V+8}, {4*WSLOT2}, v{V+3}\nv_add_u32 v{V+9}, {4*WSLOT2}, v{V+4}")
    def psetup(a):
        h1_ssetup(a, S_I, S_J)
        put(a, h1_vsetup(S_J, S_J2) + xflags(219, 0) + h2_wsetup(S_J2))
    wpipe(a, 0, NC, psetup, lambda a: (wflag(a, 77, FQ, 2), wflag(a, S_PU, FY, 2)), (min(NC, O("wdp", 15)), lambda a: wdh_loads(a, S_PU, WDH)))
    wdh_finish(a, S_PU, WDH, 16)
    stamp(a, "kcop")
    a(f"s_cmp_eq_u32 s76, 1\ns_cbranch_scc0 L_nobias\ns_mov_b32 s69, s64")
    def tab(a):
        poll_lines(a, f"s_mov_b32 s52, {FP2+30*128}", 20)
        put(a, g1_table_load(WDH + 20480))
    wpipe(a, NC, 20, tab)
    a("s_mov_b32 s64, s69")
    g1_bias(a, 0, 20, 40, WDH + 20480)
    h1_biasstore(a)
    a.label("L_nobias"); a.reset()
    a("s_waitcnt vmcnt(0)\ns_barrier")
    wflag(a, S_PU, FP3, 2)
    a(f"s_cmp_eq_u32 s76, 1\ns_cbranch_scc0 L_nobias2")
    wflag(a, S_J, FB_, 2)
    a.label("L_nobias2")
    a("s_cmp_eq_u32 s2, 223\ns_cbranch_scc0 L_p_x")
    a(f"""
    v_lshlrev_b32 v5, 7, v0
    v_add_u32 v6, {FY-FA-160*128}, v5
    v_cmp_lt_u32 vcc, 159, v0
    v_cndmask_b32 v5, v5, v6, vcc
    s_mov_b32 s52, {FA}
    """)
    poll(a, 5, 52)
    a("s_barrier")
    a(f"s_cmp_eq_u32 s3, 0\ns_cbranch_scc0 L_p_x\ns_mov_b32 s50, {EPOCH}\nv_mov_b32 v2, 0\nv_mov_b32 v3, s{TAG}\ns_mov_b64 exec, 1")
    a(f"buffer_store_dword v3, v2, {WSR}, s50 offen sc1", cond=True)
    a("s_mov_b64 exec, -1")
    a.label("L_p_x"); a.reset()
    stamp(a, "cdone")
    a(f"""
    v_min_u32 v2, 49, v1
    v_lshlrev_b32 v2, 7, v2
    v_add_u32 v2, {FP2-FLG}, v2
    v_cmp_lt_u32 vcc, 39, v1
    v_cndmask_b32 v219, v219, v2, vcc
    """)
    for k in range(3): a(f"v_mov_b32 v{200+k}, v{V+k}")
    for k in (3, 4): a(f"v_add_u32 v{200+k}, {WB-WLB}, v{V+k}")
    NPW = O("npw", 2)
    for n in range(NC, min(20, NC + NPW)): put(a, wdma(n, WB + WSLOT2 * (n - NC), V2))
    poll(a, 219, 17, 223)
    stamp(a, "xseen")
    NPP = O("npp", 12)
    for ks in range(NPP): put(a, h1_dma(0, ks))
    h1_icb(a)
    passA(a, NPP, None, wrest[3 * NPW:], lambda sc: conv_extra(sc, False))
    rest(a, 'p')

def build():
    name = NAME + "_kernel"
    a = Asm()
    a.raw(f".globl {name}\n.p2align 8\n.type {name},@function\n{name}:")
    if "entry" in OPT: a(f"{'s_memrealtime' if 'enc' in OPT else STI} s[78:79]")
    prologue(a, 256, "L_end", wait=False)
    body(a)
    a.label("L_end")
    a("s_endpgm")
    emit_slow(a)
    a.label("L_code_end")
    hdr = open("cdna_kernels/" + NAME + ".s.ref").read().split("; Override")[0]
    txt = hdr + "; @launch grid=(256,1,1) block=(256,1,1) lds=163840\n"
    txt += '.amdgcn_target "amdgcn-amd-amdhsa--gfx950"\n.text\n' + a.finish()
    txt += f""".section .rodata,"a"
.p2align 6
.amdhsa_kernel {name}
  .amdhsa_next_free_vgpr 512
  .amdhsa_next_free_sgpr 102
  .amdhsa_accum_offset 256
  .amdhsa_group_segment_fixed_size 0
  .amdhsa_kernarg_size 120
  .amdhsa_user_sgpr_count 2
  .amdhsa_user_sgpr_kernarg_segment_ptr 1
  .amdhsa_system_sgpr_workgroup_id_x 1
.end_amdhsa_kernel
"""
    return txt
if __name__ == "__main__":
    out = [x for x in sys.argv[1:] if not x.startswith("--")][0]
    open(out, "w").write(build())
```

```python
import sys, re
from halves import *
import phases, halves
NAME = "adaLN_cond__ssm_conv_h3__glu_gated_bilinear__prompt"
OPT = {"noeb": "1", "lj": "2", "wnt": "0", "nb": "5", "xc": "240", "xf": "1", "st32": "1", "ww": "1.3", "kcl": "1", "ost": "nt", "tm": "0", "hd": "230", "lql": "30", "xl": "24", "pc": "4.5", "km": "late", "n2": "2", "w0": "102", "ea": "30", "pb1": "40", "su": "11111", "mf": "0", "slate": "1", "qnt": "1", "qm": "late"}
OPT.update({x.split("=")[0][2:]: (x.split("=") + ["1"])[1] for x in sys.argv[1:] if x.startswith("--")})
OPT = {k: v for k, v in OPT.items() if v != "off"}
def O(k, d): return type(d)(OPT.get(k, d))
FA, FQ, FP2, FP3, FXE, FXL, FB_, FHE, FHL, FY, FT, FW = [FLG + 128 * n for n in (0, 160, 200, 264, 360, 520, 680, 696, 952, 1208, 1368, 1528)]
TAG, BUDGET, T16 = 48, 49, 77
S_CU, S_PU, S_I, S_J, S_I2, S_J2 = 70, 71, 72, 73, 74, 75
PP = "pp" in OPT
if PP: OPT.update(rot="0,0,0,0,0,0,0,0", goff="0", nb="0", n2="0", nc="20")
STAMPS = "stamps" in OPT
SNAMES = OPT["stamps"].split(",") if STAMPS else ["start"]
assert len(SNAMES) <= 12 and SNAMES[0] == "start"
STI = "s_memtime" if "cyc" in OPT else "s_memrealtime"
def stamp(a, name):
    if STAMPS and name in SNAMES:
        n = SNAMES.index(name)
        a(f"{'s_memrealtime' if n == 0 and 'enc' in OPT else STI} s[{78+2*n}:{79+2*n}]")
def fstamp(sc, n, name):
    if STAMPS and name in SNAMES: sc.fill.setdefault(n, []).insert(0, costed(lambda a: stamp(a, name), 's', 0))

lab = [0]
def poll(a, voff, sbase, tmp=2, TAG=TAG):
    lab[0] += 1; L = f"L_poll{lab[0]}"
    a.label(L)
    a(f"""
    buffer_load_dword v{tmp}, v{voff}, {WSR}, s{sbase} offen sc1
    s_waitcnt vmcnt(0)
    v_cmp_ne_u32 vcc, s{TAG}, v{tmp}
    s_cbranch_vccz {L}_ok
    s_cmp_eq_u32 s{BUDGET}, 0
    s_cbranch_scc1 {L}_ok
    s_sub_u32 s{BUDGET}, s{BUDGET}, 1
    s_sleep {O('psl', 1)}
    s_branch {L}
    {L}_ok:
    """)
def flagstore(a, sline, base, v=2, sr=50, TAG=TAG):
    a(f"""
    s_lshl_b32 s{sr}, s{sline}, 7
    s_add_u32 s{sr}, s{sr}, {base}
    v_mov_b32 v{v}, 0
    v_mov_b32 v{v+1}, s{TAG}
    s_mov_b64 exec, 1
    buffer_store_dword v{v+1}, v{v}, {WSR}, s{sr} offen sc1
    s_mov_b64 exec, -1
    """, cond=True)
def wflag(a, sline, base, v=254, TAG=TAG):
    lab[0] += 1; L = f"L_wf{lab[0]}"
    a(f"s_cmp_eq_u32 s3, 0\ns_cbranch_scc0 {L}")
    flagstore(a, sline, base, v, 54, TAG)
    a.label(L)
def wcount(a, base, v=254):
    lab[0] += 1; L = f"L_wf{lab[0]}"
    a(f"s_cmp_eq_u32 s3, 0\ns_cbranch_scc0 {L}")
    a(f"""
    s_lshr_b32 s54, s{S_CU}, 4
    s_lshl_b32 s54, s54, 7
    s_add_u32 s54, s54, {base}
    v_mov_b32 v{v}, 0
    v_mov_b32 v{v+1}, 1
    s_mov_b64 exec, 1
    buffer_atomic_add v{v+1}, v{v}, {WSR}, s54 offen sc1
    s_mov_b64 exec, -1
    """, cond=True)
    a.label(L)
def signal(a, sline, base, pre=None, tag=None, TAG=TAG):
    if tag: a.waitv(tag); a("s_waitcnt lgkmcnt(0)")
    else: a("s_waitcnt vmcnt(0) lgkmcnt(0)")
    a("s_barrier")
    if pre: pre()
    wflag(a, sline, base, 2, TAG)
slow = []; slow2 = []; pending = {}
def poll_issue(a, voff, sbase, tmp):
    pending[tmp] = (voff, sbase)
    a(f"buffer_load_dword v{tmp}, v{voff}, {WSR}, s{sbase} offen sc1")
def poll_check(a, voff, sbase, tmp, TAG=TAG):
    lab[0] += 1; L = f"L_chk{lab[0]}"
    assert pending.pop(tmp, None) == (voff, sbase), "poll_check without a preceding poll_issue"
    a(f"v_cmp_ne_u32 vcc, s{TAG}, v{tmp}\ns_cbranch_vccnz {L}_slow")
    a.label(L + "_back")
    slow.append((L, voff, sbase, tmp, TAG))
def emit_slow(a):
    for f in slow2: f(a)
    for L, voff, sbase, tmp, TG in slow:
        a.label(L + "_slow"); a.reset()
        poll(a, voff, sbase, tmp, TG)
        a(f"s_branch {L}_back")
def poll_lines(a, sfirst_expr, n):
    a(sfirst_expr)
    a(f"v_min_u32 v5, {n-1}, v1\nv_lshlrev_b32 v5, 7, v5")
    poll(a, 5, 52)
def small(x, tag=None): return costed(lambda a: a(x, tag=tag), "m", 1)
PI = lambda v, s, t: [costed(lambda a: poll_issue(a, v, s, t), "m", 1)]
PC = lambda v, s, t, st=None, TG=TAG: costed(lambda a: (poll_check(a, v, s, t, TG), st and stamp(a, st)), "v", 1)
def BAR(*waits, then=None, c=2):
    def f(a):
        for w in waits: (a.waitl(w[2:]) if w.startswith("l:") else a.waitv(w))
        a("s_barrier")
        if then: then(a)
    return costed(f, "s", c)

from sched2 import Gaps
halves.Sched = Gaps

if "noalias" not in OPT: A1T = halves.A1T = KVT
def preH(a, v=245, t=2):
    a(f"""
    v_min_u32 v{t}, 47, v1
    v_cmp_lt_u32 vcc, 23, v{t}
    v_cndmask_b32 v{t+1}, 0, 1, vcc
    v_mul_u32_u24 v{t+1}, {49152 - 24*128}, v{t+1}
    v_lshl_add_u32 v{t}, v{t}, 7, v{t+1}
    s_and_b32 s50, s3, 1
    s_lshl_b32 s50, s50, 1
    s_lshr_b32 s51, s3, 1
    s_lshl_b32 s51, s51, 6
    s_add_u32 s50, s50, s51
    s_lshl_b32 s51, s{S_I}, 2
    s_add_u32 s50, s50, s51
    s_mul_i32 s50, s50, 49152
    s_mul_i32 s51, s{S_J}, 3072
    s_add_u32 s50, s50, s51
    s_add_u32 s50, s50, {HB}
    """)
    a(f"buffer_load_dword v{v}, v{t}, {WSR}, s50 offen", tag="pre")
def preT(a, base, rev, v, t=2):
    a(f"""
    s_lshr_b32 s50, s76, 4
    s_mul_i32 s50, s50, {64*PT_}
    s_and_b32 s51, s76, 15
    s_lshl_b32 s51, s51, 8
    """ + (f"s_sub_u32 s51, {4096-256}, s51\n" if rev else "") + f"""
    s_add_u32 s50, s50, s51
    s_lshl_b32 s51, s3, 4
    s_mul_i32 s51, s51, {PT_}
    s_add_u32 s50, s50, s51
    s_add_u32 s50, s50, {base}
    v_bfe_u32 v{t}, v1, 1, 4
    v_mul_u32_u24 v{t}, {PT_}, v{t}
    v_and_b32 v{t+1}, 1, v1
    v_lshl_add_u32 v{t}, v{t+1}, 7, v{t}
    """)
    a(f"buffer_load_dword v{v}, v{t}, {WSR}, s50 offen nt", tag="pre")
SL = [WSLOT2 * n for n in range(5)]
phases.PA = 25536
ST1L = 62464
KB = 78848
XOFF = KB + 4 * KCH
assert XOFF + 4 * XSTR == 163840
def kload(a):
    a(f"s_lshl_b32 s50, s58, 12\ns_mul_i32 s51, s3, {KCH}\ns_add_u32 m0, s51, {KB+32}")
    srd(a, 44, SSMK, S * D * 2)
    for n in range(4): a(f"buffer_load_dwordx4 v248, s[44:47], s50 offen offset:{1024*n}{' nt' if 'knt' not in OPT else ''} lds", tag="kdma")
def kzero(a, keep):
    a(f"""
    s_mul_i32 s51, s3, {KCH}
    s_add_u32 s51, s51, {KB}
    v_add_u32 v{keep}, s51, v248
    v_lshrrev_b32 v8, 1, v1
    v_mul_u32_u24 v8, {KSTR}, v8
    v_and_b32 v4, 1, v1
    v_lshl_add_u32 v8, v4, 4, v8
    v_add_u32 v8, s51, v8
    v_mov_b32 v4, 0
    v_mov_b32 v5, 0
    v_mov_b32 v6, 0
    v_mov_b32 v7, 0
    s_mov_b64 exec, 0xff
    ds_write_b128 v8, v[4:7]
    s_mul_i32 s52, s3, {XSTR}
    s_add_u32 s52, s52, {XOFF+4096}
    s_mov_b64 exec, 0x3fffffff
    v_add_u32 v8, s52, v248
    ds_write_b128 v8, v[4:7]
    s_mov_b64 exec, -1
    """)
def kcopies(a, keep, R=8):
    a.waitv("kdma")
    for n in range(4):
        a(f"ds_read_b128 {vr(R+6*n,4)}, v{keep} offset:{32+1024*n}")
        a(f"ds_read_b64 {vr(R+4+6*n,2)}, v{keep} offset:{48+1024*n}")
    a(f"""
    s_mov_b64 exec, 1
    v_lshlrev_b32 v80, 16, v{R}
    v_alignbit_b32 v81, v{R+1}, v{R}, 16
    ds_write_b32 v{keep}, v80 offset:{KSTR+28}
    ds_write_b32 v{keep}, v{R} offset:{2*KSTR+28}
    ds_write_b32 v{keep}, v80 offset:{3*KSTR+24}
    ds_write_b32 v{keep}, v81 offset:{3*KSTR+28}
    s_mov_b64 exec, -1
    """)
    for n in range(4):
        c = R + 6*n; t = 56 + 12*(n & 1)
        for d in range(4): a(f"v_alignbit_b32 v{t+d}, v{c+d+1}, v{c+d}, 16")
        a(f"v_pk_mov_b32 {vr(t+4,2)}, {vr(c,2)}, {vr(c+2,2)} op_sel:[1,0]")
        a(f"v_pk_mov_b32 {vr(t+6,2)}, {vr(c+2,2)}, {vr(c+4,2)} op_sel:[1,0]")
        for d in range(4): a(f"v_alignbit_b32 v{t+8+d}, v{c+d+2}, v{c+d+1}, 16")
        for j in range(1, 4):
            a(f"ds_write_b128 v{keep}, {vr(t+4*(j-1),4)} offset:{j*KSTR+32+1024*n}")
def xload(a):
    a(f"s_mul_i32 s50, s58, {PT_}\ns_mul_i32 s52, s3, {XSTR}\ns_add_u32 m0, s52, {XOFF}")
    for n in range(4): a(f"buffer_load_dwordx4 v248, {WSR}, s50 offen offset:{n*1024}{SC} lds", tag="xdma")
AA, AF = 229, 230
def conv_addr(a):
    a(f"""
    v_and_b32 v2, 15, v1                ; r / a
    v_lshrrev_b32 v8, 4, v1             ; h
    v_add_u32 v4, 1, v2
    v_and_b32 v5, 3, v4                 ; copy j
    v_sub_u32 v4, v4, v5                ; r+1-j
    v_add_u32 v4, 24, v4
    v_lshlrev_b32 v4, 1, v4
    v_mul_u32_u24 v5, {KSTR}, v5
    v_add_u32 v4, v4, v5
    v_lshlrev_b32 v5, 4, v8
    v_sub_u32 v4, v4, v5
    s_mul_i32 s51, s3, {KCH}
    s_add_u32 s51, s51, {KB}
    v_add_u32 v{AA}, s51, v4
    v_lshlrev_b32 v2, 5, v2
    v_add_u32 v2, v2, v5
    s_mul_i32 s52, s3, {XSTR}
    s_add_u32 s52, s52, {XOFF+2*(2056-1792)}
    v_sub_u32 v{AF}, s52, v2
    """)
def conv_dfrag(a):
    a(f"""
    v_lshrrev_b32 v3, 4, v1
    v_lshlrev_b32 v2, 3, v3
    v_and_b32 v3, 15, v1
    v_sub_u32 v2, v2, v3
    v_subrev_u32 v2, 9, v2              ; p = 8h - r - 9: position of filter tap 0 inside this lane's fragment
    v_and_b32 v3, 1, v2
    v_cmp_eq_u32 vcc, 1, v3
    v_lshrrev_b32 v3, 16, v250
    v_cndmask_b32 v3, v3, v250, vcc
    v_lshrrev_b32 v2, 1, v2
    """)
    for d in range(4): a(f"v_cmp_eq_u32 vcc, {d}, v2\nv_cndmask_b32 v{DFR+d}, 0, v3, vcc")
QR, SR, SM, ET = 176, 184, 200, 232
def esetup(a):
    a(f"""
    v_and_b32 v2, 15, v1
    v_lshrrev_b32 v8, 4, v1
    v_lshlrev_b32 v249, 6, v2
    v_lshl_add_u32 v249, v8, 4, v249
    v_add_u32 v249, {ST1L}, v249
    v_and_b32 v231, 1, v8
    v_lshlrev_b32 v231, 9, v231
    v_lshl_add_u32 v231, v2, 5, v231
    v_lshrrev_b32 v8, 1, v8
    v_lshl_add_u32 v231, v8, 4, v231
    s_mul_i32 s68, s58, {PT_}
    s_add_u32 s65, s68, {QT}
    s_add_u32 s68, s68, {A1T}
    s_lshl_b32 s66, s3, 12
    s_add_u32 s67, s66, {ST1}
    s_lshl_b32 s59, s58, 1
    v_mov_b32 v250, 0
    v_mov_b32 v251, s59
    global_load_short_d16_hi v250, v251, {sp(SSD)}
    v_min_u32 v240, 11, v1             ; lanes 0..7: statistics units 8w.., lanes 8..11: q tiles 4w.. of this channel group
    v_lshlrev_b32 v240, 7, v240
    s_lshr_b32 s52, s{S_CU}, 4
    s_lshl_b32 s52, s52, 11
    s_add_u32 s59, s52, {FA}
    s_lshl_b32 s69, s3, 9
    s_sub_u32 s52, s52, s69
    s_add_u32 s52, s52, {FT-FQ-8*128}
    v_cmp_lt_u32 vcc, 7, v1
    v_mov_b32 v241, s52
    v_cndmask_b32 v241, 0, v241, vcc
    v_add_u32 v240, v240, v241
    """ + ("" if not PP else f"""
    v_min_u32 v241, 16, v1             ; lanes 12..16: weight pieces of k-steps 5w..
    v_lshlrev_b32 v241, 10, v241
    s_lshr_b32 s52, s{S_J}, 1
    s_lshl_b32 s52, s52, 7
    s_lshl_b32 s69, s3, 12
    s_add_u32 s52, s52, s69
    s_add_u32 s52, s52, {FW-FQ-12*1024}
    v_add_u32 v241, s52, v241
    v_cmp_lt_u32 vcc, 11, v1
    v_cndmask_b32 v240, v240, v241, vcc
    """) + f"""
    s_lshl_b32 s69, s3, 10
    s_add_u32 s69, s69, {FQ}
    s_lshl_b32 s55, s58, 3
    s_add_u32 s55, s55, {MODT}
    v_and_b32 v253, 3, v1              ; granules sa, ca1, ga, cb1
    v_cmp_eq_u32 vcc, 3, v253
    v_addc_co_u32 v253, vcc, 0, v253, vcc
    v_mul_u32_u24 v253, 5120, v253
    v_min_u32 v241, 9, v1              ; 1+cb units (reciprocal table)
    v_lshlrev_b32 v241, 7, v241
    s_mov_b32 s60, {FP2+40*128}
    v_min_u32 v242, 15, v1
    v_lshlrev_b32 v242, 7, v242
    """)
def st1dma(): return [[f"s_add_u32 m0, s66, {ST1L}", (f"buffer_load_dwordx4 v248, {WSR}, s67 offen offset:{n*1024}{SC} lds", "st1")] for n in range(4)]
def qloads(h): return [[f"buffer_load_dwordx4 {vr(QR+4*p,4)}, v231, {WSR}, s65 offen offset:{2048*h+1024*p}{SC}"] for p in range(2)]
def streads(h): return [f"ds_read_b128 {vr((SM if m else SR)+4*t,4)}, v249 offset:{8192*m+1024*(4*h+t)}" for t in range(4) for m in range(2)]
sw = lambda t, c=2: costed(lambda a: a(t), "v", c)
def qswaps(): return [f"v_permlane16_swap_b32 v{QR+4*p+k}, v{QR+4*p+2+k}" for p in range(2) for k in range(2)]
def pre_pk(a):
    put(a, qswaps())
    for t in range(4):
        r, m, q = SR + 4*t, SM + 4*t, ET + 4*(t & 1)
        unpack(a, q, q + 1, QR + 2*t); unpack(a, q + 2, q + 3, QR + 2*t + 1)
        for p in (0, 2): a(f"v_pk_fma_f32 {vr(r+p,2)}, {vr(q+p,2)}, {vr(r+p,2)}, {vr(m+p,2)}")
        for p in (0, 2): a(f"v_pk_mul_f32 {vr(m+p,2)}, {vr(q+p,2)}, v[252:253] op_sel_hi:[1,0]")
        for p in (0, 2): a(f"v_pk_fma_f32 {vr(r+p,2)}, {vr(r+p,2)}, v[250:251], v[250:251] op_sel:[0,0,1] op_sel_hi:[1,0,1]")
def pre_list():
    L = [sw(x) for x in qswaps()]
    for t in range(4):
        for i in range(4):
            r, m, q = SR + 4*t + i, SM + 4*t + i, ET + (i & 1)
            L += [f"v_lshlrev_b32 v{q}, 16, v{QR+2*t+(i>>1)}" if i % 2 == 0 else f"v_and_b32 v{q}, 0xffff0000, v{QR+2*t+(i>>1)}",
                  f"v_fma_f32 v{r}, v{q}, v{r}, v{m}", f"v_mul_f32 v{m}, v252, v{q}", f"v_fma_f32 v{r}, v{r}, v250, v251"]
    return L
def fin_pk(a, h, order=range(4)):
    done = set()
    for t in order:
        x = ACC + 4*(4*h + t)
        for p in (0, 2): a(f"v_pk_fma_f32 {vr(SR+4*t+p,2)}, {vr(SR+4*t+p,2)}, {vr(x+p,2)}, {vr(SM+4*t+p,2)}")
        for p in range(2): a(f"v_cvt_pk_bf16_f32 v{ET+2*t+p}, v{SR+4*t+2*p}, v{SR+4*t+2*p+1}")
        done.add(t)
        if t ^ 1 in done:
            p = t >> 1
            for k in range(2): a(f"v_permlane16_swap_b32 v{ET+4*p+k}, v{ET+4*p+2+k}")
            a(f"buffer_store_dwordx4 {vr(ET+4*p,4)}, v231, {WSR}, s68 offen offset:{2048*h+1024*p}{SC}", tag=f"a1st{h}")

def wp_setup(a):
    b = Asm(); wp_loads(b, S_CU, 0)
    for k, x in b.items:
        if x.kind != "vmem" and "m0" not in x.text and x.text != f"s_add_u32 s52, s52, {8*3072}": a(x.text)
    a("s_mov_b32 s56, s52\ns_mul_i32 s57, s3, 6144")
def wp_issue(a):
    for n in range(6):
        if n % 3 == 0: a(f"s_add_u32 m0, s57, {n*1024}")
        a(f"buffer_load_dwordx4 v{233+n%3}, s[40:43], s56 offen offset:{1024*(n%3)}{WPNT[0]} lds", tag="wp")
        if n == 2: a(f"s_add_u32 s56, s56, {8*3072}")
def entry(a):
    a(f"""
    s_load_dwordx16 s[4:19], s[0:1], 0
    s_load_dwordx8 s[20:27], s[0:1], 64
    s_load_dwordx4 s[28:31], s[0:1], 96
    s_load_dwordx2 s[32:33], s[0:1], 112
    s_cmp_ge_u32 s2, 256
    s_cbranch_scc1 L_end
    v_lshrrev_b32 v1, 6, v0
    s_lshr_b32 s51, s2, 3              ; slot
    s_mov_b32 s43, 0x20000
    v_readfirstlane_b32 s3, v1
    v_and_b32 v1, 63, v0
    s_and_b32 s50, s2, 7
    s_mov_b32 s47, s43
    s_sub_u32 s{S_PU}, s2, 160
    s_cbranch_scc0 L_e_prep
    """)
def code_pf(a):
    a(f"""
    s_getpc_b64 s[40:41]
    L_pc0:
    s_sub_u32 s52, s51, 20
    s_mov_b32 s42, L_code_end-L_pc0
    v_lshrrev_b32 v2, 2, v0
    s_lshl_b32 s52, s52, 13
    v_lshlrev_b32 v2, 7, v2
    """)
    a("buffer_load_dword v252, v2, s[40:43], s52 offen", nowait=True)
    a.reset()
def first_loads(a, ptrs, eload):
    PA = phases.PA
    a(f"""
    s_mul_i32 s52, s50, {2*128*1280}
    s_lshl_b32 s53, s51, 7
    s_add_u32 s52, s52, s53
    s_cmp_ge_u32 s51, 10
    s_cselect_b32 s53, {128*1280-1280}, 0
    s_add_u32 s52, s52, s53           ; tile byte offset
    v_lshrrev_b32 v3, 3, v1
    v_mul_u32_u24 v3, 1280, v3
    v_and_b32 v4, 7, v1
    v_lshl_add_u32 v3, v4, 4, v3      ; DMA lane offset
    s_mul_i32 s53, s3, {32*1280}
    s_add_u32 s53, s53, s52           ; wave soffset
    s_mul_i32 s54, s3, {4*GS}
    s_movk_i32 s55, {8*1280-GS}
    v_add_u32 v10, s55, v3
    v_add_u32 v11, s55, v10
    v_add_u32 v12, s55, v11
    s_add_u32 m0, s54, {PA + GS}
    s_mov_b32 s42, {S*D*2}
    s_mov_b32 s46, s42
    """)
    ptrs(a)
    a(f"s_mov_b64 s[40:41], s[{K}:{K+1}]\ns_mov_b64 s[44:45], s[{V}:{V+1}]")
    for n in range(4): a(f"buffer_load_dwordx4 v{9+n if n else 3}, s[40:43], s53 offen offset:{n*GS} nt lds", tag="kv")
    a(f"s_add_u32 m0, s54, {PA + 17*GS}\ns_sub_u32 s55, s52, {8*1280}")
    for n in range(4): a(f"buffer_load_dwordx4 v{9+n if n else 3}, s[44:47], s53 offen offset:{n*GS} nt lds", tag="kv")
    a(f"v_add_u32 v5, s55, v3\ns_cmp_eq_u32 s3, 0\ns_cbranch_scc0 L_nohalo\ns_mov_b32 m0, {PA}")
    a(f"buffer_load_dwordx4 v5, s[40:43], 0 offen nt lds", cond=True)
    a.label("L_nohalo")
    a(f"""
    s_cmp_ge_u32 s51, 10
    s_cselect_b32 s55, 10, 0
    s_sub_u32 s55, s51, s55
    s_lshl_b32 s55, s55, 1
    s_and_b32 s56, s3, 1
    s_add_u32 s55, s55, s56
    s_lshl_b32 s55, s55, 8
    v_lshl_add_u32 v8, v4, 5, s55
    global_load_dwordx4 v[48:51], v8, {sp(SHK)}
    global_load_dwordx4 v[52:55], v8, {sp(SHK)} offset:16
    """)
    eload(a, "kv")
def q_loads(a):
    a(f"s_add_u32 m0, s54, {phases.PA + 33*GS}\ns_mov_b64 s[44:45], s[{Q}:{Q+1}]")
    for n in range(4): a(f"buffer_load_dwordx4 v{9+n if n else 3}, s[44:47], s53 offen offset:{n*GS} nt lds", tag="q")
def first_rest(a, su):
    b = Asm(); phaseA_loads(b, su, lambda b: None, lambda b: b.comment("CUT"))
    k = [i for i, (t, x) in enumerate(b.items) if t == "raw" and "CUT" in x][0]
    a(f"s_lshr_b32 s50, s{su}, 4\ns_and_b32 s51, s{su}, 15")
    a.items += [x for x in b.items[k + 1:] if not (x[0] == "ins" and (x[1].mn.startswith("global_load") or x[1].text.startswith("v_lshlrev_b32 v8")))]
def mod_first(a, ptrs):
    a(f"""
    s_sub_u32 s52, s{S_PU}, 30
    s_sub_u32 s77, 79, s{S_PU}
    s_cmp_lt_u32 s52, 20
    s_cselect_b32 s77, s77, s{S_PU}     ; units sa, ca, ga, cb first (0..29, 49..40), then sb (39..30), gb
    v_lshrrev_b32 v8, 3, v0
    v_mul_u32_u24 v9, {20*7680}, v8
    v_and_b32 v8, 7, v0
    v_lshl_add_u32 v9, v8, 4, v9
    s_lshl_b32 s56, s77, 7
    s_movk_i32 s68, 7680
    s_mov_b32 s46, {640 * 3840 * 2}
    """)
    ptrs(a)
    a(f"s_mov_b64 s[44:45], s[{WMOD}:{WMOD+1}]")
    mod_cloads(a, 80)
def mod_loads(a, R, p0, p1):
    for p in range(p0, p1):
        a(f"buffer_load_dwordx4 {vr(R+10+4*p,4)}, v9, s[44:47], s56 offen nt")
        if p < 19: a(f"s_add_u32 s56, s56, s68")
def pre_dest(a, sh, which, v=240):
    a(f"""
    s_and_b32 s60, s2, 7
    s_lshl_b32 s60, s60, 9
    s_sub_u32 s61, {4096-512}, s60
    s_add_u32 s60, s60, {QT}
    v_lshl_add_u32 v{v}, s{sh}, 8, v0
    v_lshrrev_b32 v{v+1}, 2, v{v}
    v_mul_u32_u24 v{v+1}, {PT_}, v{v+1}
    v_and_b32 v{v}, 3, v{v}
    v_lshl_add_u32 v{v}, v{v}, 7, v{v+1}
    v_add_u32 v{v+1}, {320*PT_}, v{v}
    """)
    for k, c in enumerate(which):
        for h in range(2): a(f"buffer_load_dword v{v+2+2*k+h}, v{v+h}, {WSR}, s{61 if c == 'k' else 60} offen nt")
WDH0 = 81920
def wdh_loads(a, su, WDH):
    a(f"""
    s_lshr_b32 s52, s{su}, 1
    s_lshl_b32 s52, s52, 2
    s_add_u32 s52, s52, s3
    s_mul_i32 s52, s52, {8*1280}
    s_and_b32 s53, s{su}, 1
    s_mul_i32 s53, s53, 640
    s_add_u32 s52, s52, s53
    s_mul_i32 s53, s3, 5120
    """)
    for n in range(5):
        a(f"""
        v_add_u32 v5, {64*n}, v1
        v_mul_u32_u24 v6, 205, v5
        v_lshrrev_b32 v6, 13, v6
        v_mul_u32_u24 v6, 640, v6
        v_lshl_add_u32 v5, v5, 4, v6
        s_add_u32 m0, s53, {WDH + n*1024}
        """)
        a(f"buffer_load_dwordx4 v5, s[56:59], s52 offen nt lds", tag="wst")
def wdh_finish(a, su, WDH, R):
    a(f"""
    v_lshrrev_b32 v2, 4, v1           ; h
    v_bfe_u32 v3, v1, 2, 2            ; r
    v_lshl_add_u32 v3, v2, 3, v3
    v_mul_u32_u24 v3, 640, v3
    v_and_b32 v2, 3, v1
    v_lshl_add_u32 v2, v2, 3, v3
    s_mul_i32 s50, s3, 160
    s_add_u32 s50, s50, {WDH}
    v_add_u32 v2, s50, v2
    s_lshr_b32 s53, s{su}, 1
    s_mov_b32 s50, 0x15555556
    s_mul_hi_u32 s51, s53, s50
    s_mul_i32 s52, s51, 12
    s_sub_u32 s52, s53, s52           ; ks
    s_and_b32 s50, s{su}, 1
    s_lshl_b32 s50, s50, 2
    s_add_u32 s50, s50, s3
    s_lshl_b32 s50, s50, 2
    s_add_u32 s50, s50, s51
    s_mul_i32 s50, s50, 60
    s_mul_i32 s52, s52, 5
    s_add_u32 s50, s50, s52
    s_lshl_b32 s50, s50, 10
    s_add_u32 s50, s50, {WD}
    s_add_u32 s51, s50, 4096
    """)
    for n in range(5):
        for half in range(2): a(f"ds_read_b64_tr_b16 {vr(R+4*n+2*half,2)}, v2 offset:{32*n+half*4*640}")
    for n in range(5): a(f"buffer_store_dwordx4 {vr(R+4*n,4)}, v248, {WSR}, s{50+n//4} offen offset:{(n%4)*1024}{SC}", tag="wout")

halves.HACC = HACC = (56, 8)
halves.Q2H = Q2H = 56; halves.Q2NH = Q2NH = O("nh", 12); halves.Q2ACC = Q2ACC = (8, 28)
XE, XL, GB, PT, IC, XR = 204, 232, (48, 52, 124), 168, 168, 180
ACC2 = (8, 28, 104, 8)
XI = 81920
def xflags(v, late, t=2, sr=50):
    L = ["v_lshrrev_b32 v2, 1, v1", "v_lshlrev_b32 v2, 10, v2", "v_and_b32 v3, 1, v1", f"v_lshl_add_u32 v{v}, v3, 7, v2",
         f"s_lshl_b32 s50, s3, 8\ns_add_u32 s50, s50, {(FXL if late else FXE)-FLG}", f"v_add_u32 v{v}, s50, v{v}"]
    if late: L += [f"s_lshl_b32 s50, s{S_J}, 7\ns_add_u32 s50, s50, {FB_-FLG}", "v_mov_b32 v2, s50"]
    else: L += [f"s_add_u32 s50, s50, {19*1024}", "v_mov_b32 v2, s50"]
    L += [f"v_cmp_lt_u32 vcc, 39, v1\nv_cndmask_b32 v{v}, v{v}, v2, vcc", f"s_mov_b32 s17, {FLG}"]
    return [re.sub(r"\bs50\b", f"s{sr}", re.sub(r"\bv3\b", f"v{t+1}", re.sub(r"\bv2\b", f"v{t}", x))) for x in L]
WG3 = [int(x) for x in O("wg", "0,9,13,20").split(",")]
def wflags():
    L = [f"s_lshr_b32 s61, s{S_J}, 1\ns_lshl_b32 s61, s61, 7\ns_add_u32 s61, s61, {FW}"]
    for g, (lo, n) in enumerate((WG3[k], WG3[k+1] - WG3[k]) for k in range(3)):
        L += [f"v_min_u32 v{224+g}, {n-1}, v1", f"v_add_lshl_u32 v{224+g}, v{224+g}, {lo}, 10"]
    return L
def hflags(base, gbu=False):
    return [f"s_lshr_b32 s50, s{S_I2}, 1\ns_lshl_b32 s50, s50, 2", f"s_add_u32 s50, s50, s3\ns_lshl_b32 s50, s50, 9", f"s_add_u32 s50, s50, {base-FLG}",
            f"v_min_u32 v246, {13 if gbu else 3}, v1", "v_lshlrev_b32 v246, 7, v246"] + \
           ([f"v_mov_b32 v2, s50", f"v_mov_b32 v3, {FP2+50*128-FLG-4*128}", "v_cmp_lt_u32 vcc, 3, v1\nv_cndmask_b32 v2, v2, v3, vcc", "v_add_u32 v246, v246, v2"] if gbu else ["v_add_u32 v246, s50, v246"])
G2O = [(n & 1, n >> 1) for n in range(24)] + [(2 + n // 12, n % 12) for n in range(24)]
def h2_hload(n):
    sg, ks = G2O[n]
    return f"buffer_load_dwordx4 {vr(Q2H+4*(n%Q2NH),4)}, v{216+sg}, {WSR}, {['0','s4','s5'][ks//4]} offen offset:{(ks%4)*1024}{SC}"
def g2_setup(si2, sj2):
    return ["s_and_b32 s50, s3, 1\ns_lshr_b32 s51, s3, 1", "s_mul_i32 s52, s50, 20480\ns_mul_i32 s53, s3, 5120", "s_add_u32 s52, s52, s53",
         "v_add_u32 v220, s52, v248", "v_add_u32 v222, 40960, v220",
         "s_xor_b32 s52, s50, 1\ns_mul_i32 s52, s52, 20480", "s_add_u32 s52, s52, s53", "v_add_u32 v221, s52, v248", "v_add_u32 v223, 40960, v221",
         "s_mul_i32 s52, s51, 20480\ns_lshl_b32 s53, s50, 11", "s_add_u32 s52, s52, s53", "v_add_u32 v224, s52, v248",
         "s_mul_i32 s53, s51, 5120\ns_add_u32 s53, s53, 40960", "v_add_u32 v225, s53, v224",
         "s_xor_b32 s53, s51, 1\ns_mul_i32 s53, s53, 5120", "s_add_u32 s53, s53, 40960", "v_add_u32 v226, s53, v224",
         f"s_lshl_b32 s52, s{si2}, 1\ns_add_u32 s52, s52, s51", f"s_mul_i32 s12, s{sj2}, 320",
         f"s_add_u32 s12, s12, {MOD+5*2560}\ns_mul_i32 s13, s52, {16*1280}", f"s_mul_i32 s53, s{sj2}, 160\ns_add_u32 s13, s13, s53",
         f"s_lshl_b32 s53, s50, 6\ns_add_u32 s13, s13, s53", f"s_add_u32 s14, s13, {1024*1280}",
         f"s_mul_i32 s10, s{sj2}, 10\ns_add_u32 s10, s10, s3", f"s_mul_i32 s10, s10, {8*PT_}\ns_lshl_b32 s53, s{si2}, 6", f"s_add_u32 s10, s10, s53\ns_add_u32 s10, s10, {A1T}",
         f"s_lshl_b32 s11, s3, 10\ns_add_u32 s11, s11, {XI}",
         "v_lshrrev_b32 v2, 3, v1", f"v_mul_u32_u24 v229, {PT_}, v2", "v_bfe_u32 v2, v1, 2, 1", "v_lshl_add_u32 v229, v2, 11, v229", "v_and_b32 v2, 3, v1", "v_lshl_add_u32 v229, v2, 4, v229",
         "v_lshrrev_b32 v3, 2, v1", "v_lshlrev_b32 v231, 7, v3", "v_lshl_add_u32 v231, v2, 3, v231", f"s_lshl_b32 s53, s50, 12\ns_lshl_b32 s52, s51, 5", f"s_add_u32 s53, s53, s52\ns_add_u32 s53, s53, {XI}", "v_add_u32 v231, s53, v231",
         "v_and_b32 v2, 15, v1", "v_lshrrev_b32 v3, 4, v1",
         "v_mul_u32_u24 v2, 1280, v2", "v_lshl_add_u32 v228, v3, 3, v2", "v_and_b32 v227, 1, v3", "v_lshl_add_u32 v2, v227, 5, v2", "v_lshrrev_b32 v3, 1, v3", "v_lshl_add_u32 v227, v3, 4, v2"]
def g2_xdma():
    return [[f"s_add_u32 m0, s11, {4096*n}", (f"buffer_load_dwordx4 v229, {WSR}, s10 offen{SC} lds", "xi")] + ([f"s_add_u32 s10, s10, {32*PT_}"] if n < 2 else []) for n in range(3)]
def g2_gloads(): return [[f"buffer_load_dwordx4 {vr(GB[T],4)}, v230, {WSR}, s12 offen offset:{64*T}{SC}"] for T in range(3)] + \
                        [[f"buffer_load_dwordx4 {vr(IC+4*T,4)}, v230, {WSR}, s15 offen offset:{64*T}{SC}"] for T in range(3)]
GI = XI + 12288
def g2_gsetup(): return ["v_min_u32 v2, 23, v1", "v_lshlrev_b32 v244, 4, v2", f"v_mov_b32 v3, {ICB-(MOD+5*2560)-192}", "v_cmp_lt_u32 vcc, 11, v2\nv_cndmask_b32 v3, 0, v3, vcc",
                         "s_and_b32 s53, s3, 1\ns_lshl_b32 s53, s53, 7", "v_add3_u32 v244, v244, v3, s53", f"s_lshl_b32 s15, s3, 10\ns_add_u32 s15, s15, {GI}", "v_and_b32 v230, 48, v1", "v_add_u32 v230, s15, v230"]
def g2_gdma(): return ["s_mov_b32 m0, s15", small(f"buffer_load_dwordx4 v244, {WSR}, s12 offen{SC} lds", "gi")]
def g2_greads(): return [f"ds_read_b128 {vr(GB[T],4)}, v230 offset:{64*T}" for T in range(3)] + [f"ds_read_b128 {vr(IC+4*T,4)}, v230 offset:{192+64*T}" for T in range(3)]
SCR = 1024
def st_dma(): return [f"s_add_u32 m0, s63, {SCR}", small(f"buffer_load_dwordx4 v248, {WSR}, s{S_STL} offen{SC} lds", "st2")]
def st_reads(): return [f"ds_read_b128 {vr(HST+4*rt,4)}, v{HSO} offset:{SCR+256*rt}" for rt in range(4)]
def bi_dma(): return [f"s_add_u32 m0, s63, {SCR+4096}", small(f"buffer_load_dwordx4 v247, {WSR}, s{S_BI} offen{SC} lds", "bi")]
def bi_reads(): return [f"ds_read_b128 {vr(HCW+12*st+4*T,4)}, v247 offset:{SCR+4096+192*st+64*T}" for st in range(2) for T in range(3)]
WL = lambda tag: costed(lambda a: a.waitv(tag), "s", 1)
def g2_xreads(): return [f"ds_read_b64_tr_b16 {vr(XR+6*h+2*T,2)}, v231 offset:{2048*T+64*h}" for h in range(2) for T in range(3)]
def g2_xform():
    L = []
    for h, X in enumerate((XE, XL)):
        for i in range(12):
            r = XR + 6*h + i // 2
            L += [f"v_lshlrev_b32 v{X+i}, 16, v{r}" if i % 2 == 0 else f"v_and_b32 v{X+i}, 0xffff0000, v{r}", f"v_mul_f32 v{X+i}, v{X+i}, v{IC+i}"]
    return L
gb = lambda i: GB[i // 4] + i % 4

LJ = O("lj", 1); S_ = S
_h2_out = h2_out
def h2_out(R, O_, so): return [(x + " " + OPT["ost"].replace("_", " ") if isinstance(x, str) and x.startswith("buffer_store") and "ost" in OPT else x) for x in _h2_out(R, O_, so)]
GE = [int(x) for x in O("ge", "3,8").split(",") if x]
GLs = [int(x) for x in O("gl", "0,2,5").split(",")]
GATES = {}
for k, g in enumerate(GE): GATES[g] = f"a0_{(GE[k+1] if k + 1 < len(GE) else 20) - 1}"
for k, g in enumerate(GLs): GATES[20 + g] = f"a1_{(GLs[k+1] if k + 1 < len(GLs) else 20) - 1}"
LDONE = [0]; WDONE = [0]
G1B = lambda n: n % 12 in (3, 7, 11)
G1S = lambda n: n % 12 == 10
G1K = lambda n: n % 12 in (3, 7, 10, 11)
gate_of = lambda G, ks: max([x for x in G if x <= ks], default=0)
def smalls(sc, groups, p, step=1):
    for g in groups: p = sc.vm(g, p, p + 14, lambda n: G1K(n) and not sc.m[n])[1] + step
    return p
GBF = []
def preh(sc, h, p):
    L = ["v_min_u32 v245, 23, v1", "v_lshlrev_b32 v245, 7, v245", f"s_mul_i32 s56, s3, {49152 - 768}\ns_add_u32 s56, s56, s{S_H}"]
    if h: L.append(f"s_add_u32 s56, s56, {64*192*256}")
    q = sc.chain(L, p - 8, p - 1, keep=G1K)
    smalls(sc, [[small(f"buffer_load_dword v245, v245, {WSR}, s56 offen")]], q + 1)
pfn = [0]
def repf(sc, p):
    pfn[0] += 1; L = f"L_rp{pfn[0]}"
    def f(a):
        a(f"s_getpc_b64 s[96:97]"); a.label(L)
        a(f"s_sub_u32 s96, s96, {L}-L_pc0\ns_subb_u32 s97, s97, 0\ns_mov_b32 s98, L_code_end-L_pc0\ns_mov_b32 s99, 0x20000\ns_lshr_b32 s100, s2, 3\ns_lshl_b32 s100, s100, 11")
    q = sc.chain([costed(f, "s", 7), "v_lshrrev_b32 v245, 4, v0", "v_lshlrev_b32 v245, 7, v245"], p, p + 4)
    return sc.vm([small("buffer_load_dword v245, v245, s[96:99], s100 offen")], q + 1, q + 12)
_vsetup = h1_vsetup
def h1_vsetup(sj, sj2): return _vsetup(sj, sj2) + ["s_lshl_b32 s50, s3, 10", f"v_add_u32 v{HSO}, s50, v{HSO}"]
def passA(a, npre, head=None, wrest=None, extra=None):
    sc = h1_sched(0, GATES)
    LQ = O("lq", 160); LI = LQ - O("lql", 40)
    q = sc.chain(xflags(219, 1, 238, 55), LI - 30, LI - 2, keep=G1K)
    smalls(sc, [PI(219, 17, 240)], LI)
    p = sc.at(PC(219, 17, 240, "Lx"), LQ) + 1
    W0 = O("wa0", 110)
    q3 = sc.chain(["v_min_u32 v243, 11, v1", "v_lshlrev_b32 v243, 8, v243", f"s_mul_i32 s58, s3, 24\ns_lshr_b32 s57, s{S_J2}, 2", f"s_add_u32 s58, s58, s57\ns_lshl_b32 s58, s58, 7", f"s_add_u32 s58, s58, {FP3}"] + GBF, max(0, W0 - 56), W0 - 46, keep=G1K)
    q3 = smalls(sc, [PI(243, 58, 244)], q3 + 1)
    n = sc.at(PC(243, 58, 244), max(W0, q3 + 30)) + 1
    wl = groups_of(h2_wloads())
    pb = sc.chain(["v_min_u32 v247, 23, v1", "v_lshlrev_b32 v247, 4, v247"], LQ - 8, LQ, keep=G1K)
    pb = smalls(sc, [bi_dma()], max(pb + 1, O("lb", LQ + 4)))
    sc.chain(["v_and_b32 v247, 48, v1", "v_add_u32 v247, s63, v247", WL("bi")] + bi_reads(), pb + 50, pb + 62, keep=G1B)
    EA = O("ea", 30)
    if EA < 60: smalls(sc, [st_dma()], 240 + EA - 60)
    if O("ph0", 0): preh(sc, 0, O("ph0", 0))
    if O("rpa", 0): repf(sc, O("rpa", 0))
    lfree = extra(sc) if extra else (lambda ks: 0)
    S = [[(h1_dma(0, ks), 0, 12 * (gate_of(GE, ks) - 1) - 40 + ks / 100) for ks in range(npre, 20)],
         [(h1_dma(1, ks), max(p, lfree(ks)), 190 + 12 * (gate_of(GLs, ks) - 1) + ks / 100) for ks in range(20)], [(g, n, 300) for g in wl[:12]], wrest or []]
    pos = sc.streams(S, O("pa", 4.0), 0, 238, lambda n: G1B(n) or (n < O("pad", 0) and G1S(n)), wt=[1, 1, 1, O("ww", 1.3)])
    assert len(pos[0]) == len(S[0]) and len(pos[3]) == len(S[3]), [(len(x), len(y)) for x, y in zip(pos, S)]
    for ks, x in zip(range(npre, 20), pos[0]): assert x <= 12 * (gate_of(GE, ks) - 1), (ks, x)
    if wrest: print("   weights: slack", [int(y[2] - x) for x, y in zip(pos[3], wrest)][2::3], file=sys.stderr); assert all(x < y[2] + O("lead", 50) - 10 for x, y in zip(pos[3], wrest))
    assert len(pos[1]) >= (GLs[1] if len(GLs) > 1 else 20)
    LDONE[0] = len(pos[1]); WDONE[0] = len(pos[2])
    pre, rd = h1_st_reads(0)
    q = max(12 * (GE[-1] - 1) + 1 if GE else 1, O("sa", 20), sc.wdone if hasattr(sc, "wdone") else 0)
    q = sc.chain(rd, q, q + 4, 1, keep=G1B)
    q = sc.chain(h1_st_list(0, 0, TAG), q + 6, q + O("sl", 70), keep=G1K)
    print(f"pass A: early dma {pos[0]}, wd {WDONE[0]}, stats at {q}, late slots issued {LDONE[0]}, overflow {sc.over()}", file=sys.stderr)
    for ks in range(20): fstamp(sc, 12 * ks, f"a{ks}")
    if "gbar" in OPT:
        if head: head(a); head = None
        lab[0] += 1; L = f"L_gb{lab[0]}"
        a(f"""
        s_waitcnt vmcnt(0)
        s_barrier
        v_mov_b32 v254, 0
        v_mov_b32 v255, 1
        s_cmp_eq_u32 s3, 0
        s_cbranch_scc0 {L}
        s_mov_b64 exec, 1
        global_atomic_add v254, v255, {sp(DBG)} sc1
        s_mov_b64 exec, -1
        {L}:
        global_load_dword v255, v254, {sp(DBG)} sc1
        s_waitcnt vmcnt(0)
        v_cmp_ne_u32 vcc, 256, v255
        s_cbranch_vccz {L}x
        s_sleep 2
        s_branch {L}
        {L}x:
        """)
        stamp(a, "gb")
    a.waitv(f"a0_{(GE[0] if GE else 20) - 1}")
    a("s_waitcnt lgkmcnt(0)\ns_barrier")
    put(a, h1_reads(0))
    if head: head(a)
    h1_pass(a, 0, sc)

def rest(a, X):
    stamp(a, "pB")
    sc = h1_sched(1, GATES)
    wl = groups_of(h2_wloads())
    def stslow(h):
        def f(a):
            a.label(f"L_st{X}{h}_slow"); a.reset()
            put(a, st_dma()); a.waitv("st2"); put(a, st_reads()); put(a, h1_stcheck(TAG))
            a(f"v_cmp_ne_u32 vcc, 0, v3\ns_cbranch_vccz L_st{X}{h}_back\ns_cmp_eq_u32 s{BUDGET}, 0\ns_cbranch_scc1 L_st{X}{h}_back\ns_sub_u32 s{BUDGET}, s{BUDGET}, 1\ns_branch L_st{X}{h}_slow")
        slow2.append(f)
        def chk(a):
            a(f"v_cmp_ne_u32 vcc, 0, v3\ns_cbranch_vccnz L_st{X}{h}_slow"); a.label(f"L_st{X}{h}_back")
        return costed(chk, "v", 1)
    EA = O("ea", 30)
    if EA >= 60: smalls(sc, [st_dma()], EA - 60)
    p = sc.chain([WL("st2")] + st_reads(), max(0, EA - 16), max(4, EA - 11), keep=G1B)
    p = sc.chain(h1_stcheck(TAG) + [stslow(0)], p + 3, p + 10, keep=G1K)
    p = sc.force(p + 1, [costed(lambda a: (stamp(a, "eA"), h1_epi(a, 0), a(f"s_add_u32 s{S_STL}, s{S_STL}, {1024*16}\ns_lshl_b32 s76, s{S_I}, 4\ns_add_u32 s76, s76, s{S_J}")), "v", 2)])
    pf = sc.at(BAR("hst0", then=lambda a: wflag(a, 76, FHE), c=3), p + O("ph", 40))
    SB = O("sb", 228); HC = O("hc", 190)
    if O("ph1", 0): preh(sc, 1, O("ph1", 0))
    if O("rpb", 0): repf(sc, O("rpb", 0))
    smalls(sc, [st_dma()], SB - 56)
    smalls(sc, [PI(246, 17, 247)], HC - 36)
    q2 = sc.at(PC(246, 17, 247, "Hseen"), HC)
    S = [[(h1_dma(1, ks), 0, 12 * (gate_of(GLs, ks) - 1) - 40 + ks / 100) for ks in range(LDONE[0], 20)],
         [(wl[n], 12 * ((n - 12) // 3 + 1) if n >= 12 else 0, 200 + n) for n in range(WDONE[0], 60)],
         [([h2_hload(n)], q2 + 1, O("hd", 180) + 5 * n) for n in range(12)]]
    pos = sc.streams(S, O("pb", 4.0), 0, 238, lambda n: G1B(n) or (n >= O("pbd", 240) and G1S(n)))
    assert len(pos[0]) == len(S[0])
    for ks, x in zip(range(LDONE[0], 20), pos[0]): assert x <= 12 * (gate_of(GLs, ks) - 1), (ks, x)
    nw = WDONE[0] + len(pos[1]); nh = len(pos[2])
    g = max(k for k in GATES if k >= 20)
    pre, rd = h1_st_reads(1)
    q = sc.chain(pre, 0, 10, keep=G1K)
    q = max(q, 12 * (g - 21) + 1, p + 1)
    q = sc.chain(rd, q, q + 4, 1, keep=G1B)
    q = sc.chain(h1_st_list(1, 0, TAG), q + 6, q + O("sl", 70), keep=G1K)
    assert q + 20 < SB - 56, q
    q3 = sc.chain(h2_hsetup(S_I2) + hflags(FHE, True), q + 1, HC - 38, keep=G1K)
    assert q3 < HC - 36, q3
    q4 = sc.chain([WL("st2")] + st_reads(), SB - 6, SB - 1)
    sc.chain(h1_stcheck(TAG) + [stslow(1)], q4 + 3, 238)
    print(f"pass B: epilogue A at {p}, FHE at {pf}, stats B done {q}, wd {nw}, h {nh}, overflow {sc.over()}", file=sys.stderr)
    for ks in range(20): fstamp(sc, 12 * ks, f"b{ks}")
    h1_pass(a, 1, sc)
    stamp(a, "g1done")
    h1_epi(a, 1)
    for n in range(nh, 12): a(h2_hload(n))
    stamp(a, "g1epi")
    sc = Gaps(240)
    srd(a, 40, OUT, S_ * D * 2)
    PB1 = O("pb1", 55); PB0 = O("pb0", 20)
    sc.force(PB0, [BAR()])
    sc.force(PB1, [BAR("hst1", then=lambda a: wflag(a, 76, FHL), c=3)])
    LC = O("lc", 110)
    sc.vm(PI(246, 17, 247), LC - O("ll", 30))
    p = sc.at(PC(246, 17, 247, "Lseen"), LC) + 1
    QS = O("qs", 36)
    NBL = O("nbl", 33) if "noeb" not in OPT else 0
    hl = [n for n in range(Q2NH, 48) if not (24 + max(0, (117 - p) // 2) <= n < NBL)]
    S = [[([h2_hload(n)], max(5 * (n - Q2NH) + 5, (p if n < NBL or not NBL else 120) if n >= 24 else 0), 5 * n) for n in hl], [(g, max(QS, PB0) + 1, 60) for g in g2_xdma()],
         [(wl[n], 0, 10 * (n // 5) + n / 100) for n in range(nw, 60)]]
    pos = sc.streams(S, O("p2", 3.0), wt=None if "noeb" in OPT else [0.7, 1, 1])
    assert all(len(x) == len(y) for x, y in zip(pos, S)) and all(x < 5 * n for x, n in zip(pos[0], hl)) and all(x < 10 * (n // 5) for x, n in zip(pos[2], range(nw, 60))), pos
    wr = lambda sg: [f"ds_write_b128 v{220+sg}, {vr(ACC2[sg]+4*T,4)} offset:{T*1024}" for T in range(5)]
    q = sc.chain(g2_setup(S_I2, S_J2) + hflags(FHL) + g2_gsetup(), 0, QS - 1)
    pg = sc.vm(g2_gdma(), max(q, PB0) + 2, max(q, PB0) + 12)[0]
    q = sc.at(BAR("xi", "gi"), max(pos[1][-1], pg) + O("xw", 40))
    q = sc.chain(g2_xreads() + g2_greads(), q, q + 12)
    qx = sc.chain(g2_xform(), q + 2, min(q + 34, 116) if "noeb" not in OPT else q + 34)
    rdp = lambda dst, v, off: [f"ds_read_b128 {vr(dst+4*T,4)}, v{v} offset:{off+1024*T}" for T in range(3)]
    add = lambda x, y: [f"v_add_f32 v{x+i}, v{x+i}, v{y+i}" for i in range(12)]
    if "noeb" not in OPT:
        padd = lambda x, y: [f"v_pk_add_f32 {vr(x+i,2)}, {vr(x+i,2)}, {vr(y+i,2)}" for i in range(0, 12, 2)]
        sc.chain(wr(0), 116, 119)
        blk = [h2_hload(n) for n in range(24, NBL) if n not in hl] + wr(1) + ["s_waitcnt lgkmcnt(0)\ns_barrier"] + rdp(PT, 224, 0) + rdp(PT + 12, 224, 5120) + rdp(PT + 24, 224, 10240) + padd(PT, PT + 12) + rdp(PT + 12, 224, 15360) + padd(PT, PT + 24) + padd(PT, PT + 12)
        blk += [f"v_pk_fma_f32 {vr(XE+i,2)}, {vr(PT+i,2)}, {vr(gb(i),2)}, {vr(XE+i,2)}" for i in range(0, 12, 2)] + h2_out(XE, PT + 12, 13)
        assert qx < 119 and all(x < 119 for x, n in zip(pos[0], hl) if n < NBL), (qx, pos[0])
        q = sc.force(119, [costed(lambda a: put(a, blk), "m", 2)])
    else:
        q = sc.chain(wr(0) + wr(1), 118, 142, 2)
        q = sc.at("s_waitcnt lgkmcnt(0)\ns_barrier", max(q + O("g2d", 8), qx + 1))
        rdp = lambda dst, v, off: [f"ds_read_b128 {vr(dst+4*T,4)}, v{v} offset:{off+1024*T}" for T in range(3)]
        add = lambda x, y: [f"v_add_f32 v{x+i}, v{x+i}, v{y+i}" for i in range(12)]
        q = sc.chain(rdp(PT, 224, 0) + rdp(PT + 12, 224, 5120) + rdp(PT + 24, 224, 10240), q, q + 10)
        q = sc.chain(add(PT, PT + 12) + rdp(PT + 12, 224, 15360) + add(PT, PT + 24) + add(PT, PT + 12), q + 1, q + 26)
        q = sc.chain([f"v_fma_f32 v{XE+i}, v{PT+i}, v{gb(i)}, v{XE+i}" for i in range(12)] + h2_out(XE, PT + 12, 13), q, q + 18)
    qe = q
    q = sc.chain(wr(2), 183, 195, 2)
    q = sc.at("s_waitcnt lgkmcnt(0)\ns_barrier", q + O("g2d", 8))
    q = sc.chain(rdp(PT, 225, 0) + rdp(PT + 24, 225, 10240), max(q, qe), max(q, qe) + 8) + 7
    tail = add(PT, PT + 24) + [f"v_fma_f32 v{XL+i}, v{PT+i}, v{gb(i)}, v{XL+i}" for i in range(12)]
    while tail and any(sc.extra(n, tail[0]) == 0 for n in range(q, 240)): q = sc.chain([tail.pop(0)], q, 239)
    print(f"gemm2: wd {pos[2]}, residual formed at {qx}, early rows stored at {qe}, left over {len(tail)}, overflow {sc.over()}", file=sys.stderr)
    TM = O("tm", 4)
    M = [(n, T) for n in range(48 - TM) for T in range(5)] + [(n, T) for T in range(5) for n in range(48 - TM, 48)]
    w3 = wr(3)
    if TM:
        for T in range(4): sc.force(min(239, 240 - 5 * TM + TM * (T + 1) + 2), [w3[T]])
        w3 = w3[4:]
    for g, (n, T) in enumerate(M):
        sg, ks = G2O[n]
        if g % 60 == 0: stamp(a, f"h{g // 60}")
        ac = ACC2[sg] + 4*T
        a(f"v_mfma_f32_16x16x32_bf16 {vr(ac,4)}, {wdreg(5*ks+T)}, {vr(Q2H+4*(n%Q2NH),4)}, {vr(ac,4) if ks else '0'}")
        sc.emit(a, g)
    stamp(a, "h4")
    put(a, tail)
    put(a, w3)
    a("s_waitcnt lgkmcnt(0)\ns_barrier")
    put(a, [f"ds_read_b128 {vr(PT+12*k+4*T,4)}, v226 offset:{10240*k+1024*T}" for k in range(2) for T in range(3)])
    for i in range(0, 12, 2): a(f"v_pk_add_f32 {vr(PT+i,2)}, {vr(PT+i,2)}, {vr(PT+12+i,2)}")
    for i in range(0, 12, 2): a(f"v_pk_fma_f32 {vr(XL+i,2)}, {vr(PT+i,2)}, {vr(gb(i),2)}, {vr(XL+i,2)}")
    put(a, h2_out(XL, PT, 14))
    if "xcct" in OPT and X == "c":
        a(f"""
        s_cmp_eq_u32 s2, 8
        s_cbranch_scc0 L_xt_x
        v_mov_b32 v2, 0
        global_load_dword v3, v2, {sp(DBG)} sc1
        s_getreg_b32 s50, hwreg(HW_REG_XCC_ID, 0, 4)
        s_add_u32 s50, s50, 1
        s_waitcnt vmcnt(0)
        v_readfirstlane_b32 s51, v3
        s_cmp_eq_u32 s50, s51
        s_cbranch_scc1 L_xt_x
        s_memrealtime s[52:53]
        L_xt:
        s_sleep 4
        s_memrealtime s[50:51]
        s_waitcnt lgkmcnt(0)
        s_sub_u32 s50, s50, s52
        s_cmp_lt_u32 s50, 2000
        s_cbranch_scc1 L_xt
        L_xt_x:
        """)
    if "enc" in OPT:
        a("s_waitcnt vmcnt(0)"); stamp(a, "end")
        if OPT.get("encp", "c") in (X, "all"):
            if "encabs" in OPT:
                lo, hi, mk, vl = OPT["encabs"].split(",")
                a(f"""
                v_mov_b32 v2, 0
                global_load_dword v4, v2, {sp(DBG)} sc1
                s_waitcnt vmcnt(0)
                v_readfirstlane_b32 s80, v4
                s_mov_b32 s78, s80
                s_cmp_ge_u32 s2, {lo}
                s_cbranch_scc0 L_enc_x{X}
                s_cmp_lt_u32 s2, {hi}
                s_cbranch_scc0 L_enc_x{X}
                s_and_b32 s50, s2, {mk}
                s_cmp_eq_u32 s50, {vl}
                s_cbranch_scc0 L_enc_x{X}
                """)
            k = 0; A_, B_ = [78 + 2 * SNAMES.index(x) for x in OPT["enc"].split(",")]
            a(f"s_waitcnt lgkmcnt(0)\ns_sub_u32 s52, s{B_}, s{A_}\ns_mul_i32 s52, s52, {O('encm', 5)}\ns_lshr_b32 s52, s52, {O('encs', 0)}\ns_min_u32 s52, s52, 15000\ns_add_u32 s52, s52, 3000")
            if "encw" in OPT: a(f"s_cmp_eq_u32 s2, {OPT['encw']}\ns_cbranch_scc0 L_enc_x{X}")
            a(f"""
            s_movk_i32 s53, 2000
            L_enc{X}:
            s_sub_u32 s53, s53, 1
            s_cbranch_scc1 L_enc_x{X}
            s_sleep 4
            s_memrealtime s[50:51]
            s_waitcnt lgkmcnt(0)
            s_sub_u32 s50, s50, s{78+2*k}
            s_cmp_lt_u32 s50, s52
            s_cbranch_scc1 L_enc{X}
            L_enc_x{X}:
            """)
    elif STAMPS:
        a("s_waitcnt vmcnt(0)")
        stamp(a, "end")
        a("s_waitcnt lgkmcnt(0)")
        a(f"s_lshl_b32 s50, s2, 2\ns_add_u32 s50, s50, s3\ns_lshl_b32 s50, s50, 6\ns_add_u32 s50, s50, {STAMP}\nv_mov_b32 v2, 0")
        for n in range(12): a(f"v_mov_b32 v{8+n}, s{78+2*n}")
        a("s_mov_b64 exec, 1")
        for n in range(3): a(f"buffer_store_dwordx4 v[{8+4*n}:{11+4*n}], v2, {WSR}, s50 offen offset:{16*n}")
        a("s_mov_b64 exec, -1")

    a("s_endpgm")

def body(a):
    PROT = sum(int(x) << (5 * k) for k, x in enumerate(O('prot', '1,1,4,4,7,7,10,10,13,13,16,16').split(',')))
    def eload(a, tag=None):
        WB0 = int(O("wsb", "0"), 16)
        srd(a, 36, WS, WS_BYTES - WB0)
        if WB0: a(f"s_add_u32 s36, s36, {hex(WB0)}\ns_addc_u32 s37, s37, 0")
        a(f"v_mov_b32 v2, 0\ns_mov_b32 s57, {EPOCH}\nbuffer_load_dword v246, v2, {WSR}, s57 offen sc1", tag=tag)
    def roles(a):
        a(f"""
    s_mov_b32 s{BUDGET}, {0 if "xnopoll" in OPT else 400000}
    s_and_b32 s50, s2, 7               ; xcd (speed only)
    s_lshr_b32 s51, s2, 3              ; slot
    s_lshr_b32 s60, s50, {4-LJ}         ; gemm1: 2^(5-LJ) row tiles x 2^LJ column tiles per xcd
    s_lshl_b32 s60, s60, {5-LJ}
    s_lshr_b32 s61, s51, {LJ}
    s_add_u32 s{S_I}, s60, s61
        """ + (f"""
    s_lshl_b32 s61, s61, 3              ; k rotation by row tile (speed only: spreads first touches of the weights)
    s_mov_b32 s62, {hex(sum(int(x) << (8*k) for k, x in enumerate(O("rot", "0,2,4,6,8,3,7,0").split(",")[:4])))}
    s_mov_b32 s63, {hex(sum(int(x) << (8*k) for k, x in enumerate(O("rot", "0,2,4,6,8,3,7,0").split(",")[4:])))}
    s_lshr_b64 s[62:63], s[62:63], s61
    s_and_b32 s{R1}, s62, 255
    s_lshr_b32 s62, s50, 2              ; the two groups of XCDs that share a column tile start half way apart
    s_mul_i32 s62, s62, {O("goff", 10)}
    s_add_u32 s{R1}, s{R1}, s62
    s_sub_u32 s62, s{R1}, 20
    s_min_u32 s{R1}, s{R1}, s62
        """ if LJ == 2 else f"""
    s_mul_i32 s{R1}, s61, {O("rm", 2)}      ; k rotation (speed only: spreads first touches of the weights)
    s_sub_u32 s59, s51, 20
    s_mul_i32 s59, s59, 5
    s_mov_b32 s62, {hex(PROT & 0xffffffff)}
    s_mov_b32 s63, {hex(PROT >> 32)}
    s_lshr_b64 s[62:63], s[62:63], s59
    s_and_b32 s62, s62, 31
    s_cmp_lt_u32 s61, 10
    s_cselect_b32 s{R1}, s{R1}, s62
        """) + f"""
    s_and_b32 s60, s50, {(1 << (4-LJ)) - 1}
    s_lshl_b32 s60, s60, {LJ}
    s_and_b32 s61, s51, {(1 << LJ) - 1}
    s_add_u32 s{S_J}, s60, s61
    s_and_b32 s{S_J2}, s51, 7
    s_lshr_b32 s61, s51, 3
    s_lshl_b32 s60, s50, 2
    s_add_u32 s{S_I2}, s60, s61
    s_mul_i32 s{S_CU}, s50, 20
    s_add_u32 s{S_CU}, s{S_CU}, s51
    s_lshl_b32 s60, s50, 1             ; phase-A unit 16g + j: j = 2*xcd + (slot >= 10), g = slot mod 10
    s_cmp_ge_u32 s51, 10
    s_addc_u32 s60, s60, 0
    s_cmp_ge_u32 s51, 10
    s_cselect_b32 s61, 10, 0
    s_sub_u32 s61, s51, s61
    s_lshl_b32 s61, s61, 4
    s_add_u32 s76, s60, s61
    s_lshl_b32 s58, s{S_CU}, 2
    s_add_u32 s58, s58, s3             ; channel of this wave
    v_lshlrev_b32 v248, 4, v1
        """)
    def ptrs(a):
        a("s_waitcnt lgkmcnt(0)")
        if "entry" not in OPT: stamp(a, "start")
        else: a.comment("stamp 0 start"); stamp(a, "pro")
    def gettag():
        a(f"""
        v_readfirstlane_b32 s{TAG}, v246
        s_mul_i32 s{TAG}, s{TAG}, 0x9E3779B1
        s_add_u32 s{TAG}, s{TAG}, 0x7F4A7C15
        """)
    QM, KM = O("qm", "first"), O("km", "mid")
    WV = 224
    def wdma(n, slot=None, V=WV, each=False, nt=False):
        L = wdir_dma(n, SL[n % 5] if slot is None else slot, V, each=each)
        return [((x[0].replace(" lds", " nt lds"), x[1]) if isinstance(x, tuple) and (nt or n < O("wnt", 2)) else x) for x in L]
    wrd = lambda n: wdir_reads2(n, SL[n % 5], WV)
    NB = O("nb", 2); N2 = O("n2", 0); NC = O("nc", 15)
    first_loads(a, ptrs, eload)
    stamp(a, "kviss")
    if QM == "first": q_loads(a)
    a("s_branch L_conv")
    a.label("L_e_prep"); a.reset()
    code_pf(a)
    a(f"s_cmp_ge_u32 s{S_PU}, 60\ns_cbranch_scc1 L_e_q")
    mod_first(a, ptrs)
    MF = O("mf", 12)
    mod_loads(a, 80, 0, MF)
    a("s_branch L_prep")
    mod_state = list(a.items)
    a.label("L_e_q"); a.reset()
    ST32 = "st32" in OPT
    a(f"""
    ; slots 28..31: two workgroups per xcd take the statistics of the rows whose q tiles that xcd transposes (speed only),
    ; the other two have no job: they start on the weights and publish cw / sw of their column tile
    """ + ("s_lshr_b32 s53, s50, 2\ns_xor_b32 s53, s53, s51\n" if LJ == 2 else "s_lshr_b32 s53, s51, 1\ns_lshl_b32 s51, s51, 1\n") + f"""
    s_and_b32 s53, s53, 1
    s_xor_b32 s76, s53, 1
    s_cmp_ge_u32 s{S_PU}, 64
    s_cselect_b32 s65, s76, 0
    s_cselect_b32 s53, s53, 0
    s_lshl_b32 s50, s50, 2
    """ + ("""
    s_and_b32 s51, s51, 2
    s_add_u32 s77, s50, s51
    s_add_u32 s69, s77, 1
    s_cmp_eq_u32 s53, 0
    """ if not ST32 else f"""
    s_lshr_b32 s51, s2, 3
    s_and_b32 s51, s51, 3
    s_add_u32 s77, s50, s51
    s_cmp_lt_u32 s{S_PU}, 64
    """))
    ptrs(a)
    a("s_cbranch_scc1 L_p_b")
    def sloads(a):
        if "qnt" not in OPT: phases.NT = ""
        st1_loads(a, 77, 16); ST32 or st1_loads(a, 69, 96)
        phases.NT = " nt"
    if "slate" not in OPT: sloads(a)
    a("s_branch L_p_s")
    a.label("L_conv"); a.reset()
    for t in ["kv"] * 8: a.items.append(("vm", t))
    a.items += [("vm", None, "v[48:51]"), ("vm", None, "v[52:55]"), ("vm", "kv", "v246")]
    for t in ["q"] * 4 * (QM == "first"): a.items.append(("vm", t))
    roles(a)
    if QM == "late": q_loads(a)
    first_rest(a, 76)
    if KM == "first": kload(a)
    a("v_mov_b32 v243, v3")
    PK, PQ, PH = O("prk", ""), O("prq", ""), O("prh", "")
    if PK == "r1": preT(a, KVT, True, 238)
    if PQ == "r1": preT(a, QT, False, 239)
    if PH == "r1": preH(a, 237)
    WM = O("wm", "mid")
    if PP:
        if "wpnt" not in OPT: WPNT[0] = " nt"
        put(a, wf_setup(S_J)); wp_setup(a)
    SU = O("su", "11111")
    blocks = [lambda a: wdir_setup2(a, S_J, WV), lambda a: kzero(a, 223), esetup, conv_addr, lambda a: put(a, h1_vsetup(S_J, S_J2) + xflags(219, 0)[:-1])]
    for f, e in zip(blocks, SU):
        if e == "1": f(a)
    a("v_mov_b32 v3, v243")
    if KM == "late": kload(a)
    if PP and WM == "late": wp_issue(a)
    if PK == "late": preT(a, KVT, True, 238, 8)
    if PQ == "late": preT(a, QT, False, 239, 8)
    for c in range(4): unpack(a, 104 + c, 108 + c, 48 + 2*c); unpack(a, 112 + c, 116 + c, 49 + 2*c)
    stamp(a, "setup")
    phaseA_read(a)
    stamp(a, "kvland")
    if PQ == "mid": preT(a, QT, False, 239)
    if KM == "mid": kload(a)
    if PP and WM == "mid": wp_issue(a)
    NM = O("nm", 0); assert NM <= min(2, NB)
    for n in range(NM): put(a, wdma(n))
    phaseA_compute(a, taps=False)
    stamp(a, "Acomp")
    if KM == "post": kload(a)
    if QM != "mid":
        a.waitv("q"); a("s_barrier")
        phaseA_q(a, 184)
    if PP and WM == "post": wp_issue(a)
    if "kcl" not in OPT: kcopies(a, 223)
    signal(a, 76, FA, gettag, tag="kvst")
    stamp(a, "Asig")
    if QM == "mid": phaseA_q(a, 184)
    if SU[0] == "0": blocks[0](a)
    if KM == "sig": kload(a)
    if PP:
        if WM == "post": a.waitv("wp"); a("s_barrier")
        wp_finish(a, S_CU, 128, 0)
    for n in range(NM, NB): put(a, wdma(n))
    for f, e in list(zip(blocks, SU))[1:]:
        if e == "0": f(a)
    if "kcl" in OPT: kcopies(a, 223)
    if "xcct" in OPT:
        a(f"s_cmp_eq_u32 s2, 0\ns_cbranch_scc0 L_xt0\ns_getreg_b32 s50, hwreg(HW_REG_XCC_ID, 0, 4)\ns_add_u32 s50, s50, 1\nv_mov_b32 v2, 0\nv_mov_b32 v3, s50")
        a(f"global_store_dword v2, v3, {sp(DBG)} sc1", cond=True); a.label("L_xt0")
    if "encabs" in OPT:
        a(f"s_cmp_eq_u32 s2, 1\ns_cbranch_scc0 L_ea0\nv_mov_b32 v2, 0\nv_mov_b32 v3, s78")
        a(f"global_store_dword v2, v3, {sp(DBG)} sc1", cond=True); a.label("L_ea0")
    conv_dfrag(a)
    a(f"v_mov_b32 v4, v{AA}\nv_mov_b32 v5, v{AF}")
    EP = "ep" in OPT and "pq" not in OPT
    if EP: poll_issue(a, 242, 59, 243)
    if NB: a.waitv(f"w{NB-1}")
    FWL = PP and "fwl" in OPT
    if PP and not FWL: a.waitv("wpst")
    a.waitv("qst"); a("s_barrier"); wflag(a, 76, FT)
    if PP and not FWL: wflag(a, S_CU, FW)
    stamp(a, "kcop")
    if "xf" not in OPT:
        for n in range(NB): put(a, wrd(n))
    PQ_ = "pq" in OPT
    if PQ_:
        a(f"""
        v_subrev_u32 v243, 16, v1
        v_lshlrev_b32 v243, 2, v243
        ds_bpermute_b32 v243, v243, v240
        s_sub_u32 s52, s69, s59
        v_cmp_lt_u32 vcc, 15, v1
        v_add_u32 v243, s52, v243
        v_cndmask_b32 v242, v242, v243, vcc
        """)
    if EP: poll_check(a, 242, 59, 243)
    else: poll(a, 242, 59)
    stamp(a, "kvseen")
    xload(a)
    if "xf" in OPT:
        for n in range(NB): put(a, wrd(n))
    if PQ_:
        a("s_barrier")
        for g in st1dma() + qloads(0): put(a, g)
    if FWL: a("s_barrier"); wflag(a, S_CU, FW)
    C2 = O("c2", 10); CL = O("cl", 40); PE = O("pe", 95); PF = O("pf", 45)
    nr = nd = NB
    if C2 - CL < 0 and not PQ_: poll_issue(a, 240, 69, 243)
    if NB + N2 > 5: a("s_waitcnt lgkmcnt(0)\ns_barrier")
    while nd < min(NC, nr + N2): put(a, wdma(nd)); nd += 1
    sc = c2_sched(); N = sc.N
    if C2 - CL >= 0 and not PQ_: sc.vm(PI(240, 69, 243), C2 - CL)
    p2 = (sc.at(BAR(f"l:wr{NB-1}"), 4) if NB else 0) if PQ_ else sc.at(costed(lambda a: (poll_check(a, 240, 69, 243), a.waitl(f"wr{NB-1}"), a("s_barrier"), stamp(a, "qseen")), "v", 2), C2)
    ml = f"buffer_load_dwordx2 v[{ET}:{ET+1}], v253, {WSR}, s55 offen sc1"
    sc.vm([small(ml)], PE - O("ml", 45))
    def mslow(a):
        a.label("L_m_slow"); a.reset()
        a(ml)
        a(f"v_cmp_ne_u32 vcc, s{TAG}, v{ET+1}\ns_cbranch_vccz L_m_back\ns_cmp_eq_u32 s{BUDGET}, 0\ns_cbranch_scc1 L_m_back\ns_sub_u32 s{BUDGET}, s{BUDGET}, 1\ns_sleep 1\ns_branch L_m_slow")
    slow2.append(mslow)
    def mcheck(a):
        a(f"v_cmp_ne_u32 vcc, s{TAG}, v{ET+1}\ns_cbranch_vccnz L_m_slow"); a.label("L_m_back")
        a(f"""
        v_mov_b32_dpp v252, v{ET} quad_perm:[3,3,3,3] row_mask:0xf bank_mask:0xf
        v_mul_f32_dpp v251, v{ET}, v252 quad_perm:[2,2,2,2] row_mask:0xf bank_mask:0xf
        v_mul_f32_dpp v250, v{ET}, v251 quad_perm:[1,1,1,1] row_mask:0xf bank_mask:0xf
        v_mul_f32_dpp v251, v{ET}, v251 quad_perm:[0,0,0,0] row_mask:0xf bank_mask:0xf
        """)
    sc.force(PE - 12, [BAR("st1")])
    sc.chain(streads(0), PE - 12, PE - 4, 1)
    sc.force(PE, [costed(lambda a: (mcheck(a), stamp(a, "e1"), pre_pk(a), fin_pk(a, 0), stamp(a, "e1done")), "v", 2)])
    sc.force(PE + PF, [BAR("a1st0", then=lambda a: (wflag(a, S_CU, FXE), stamp(a, "fxe")), c=3)])
    XC = O("xc", 250)
    sc.vm(PI(219, 17, 223), XC - O("xl", 30))
    XC = sc.at(PC(219, 17, 223, "xseen"), XC)
    pfp = sc.vm(PI(241, 60, 243), PE + 10)[0]
    sl = sc.chain(streads(1), PE + 2, PE + 14, 1)
    LEAD = O("lead", 50); W0 = O("w0", 84); W1 = O("w1", 270); bp = {}; sfree = [0] * 5; q = 0
    WG = O("wg", 1); rl = {}
    for n in range(nr, NC, WG):
        last = min(n + WG, NC) - 1
        p = max(q + 1, W0 + (W1 - W0) * (n - nr) // max(1, NC - 1 - nr))
        if PE - 13 <= p <= PE + 1: p = PE + 2
        b_ = sc.at(BAR(f"w{last}", f"l:wr{n-1}"), p, 2)
        q = sc.chain([x for m in range(n, last + 1) for x in wrd(m)], b_, b_ + 7 * (last - n + 1), 1)
        for m in range(n, last + 1): bp[m] = b_
        for m in range(max(nr, n - WG), n): sfree[m % 5] = b_; rl[m + 5] = b_ + 1
    pw = 0
    pw = sc.at(BAR(f"l:wr{NC-1}"), q + 4)
    for m in range(n, NC): sfree[m % 5] = pw
    pre5 = nr + 5; wf = groups_of(wf_loads())
    SW = [(wf[n], p2 + 1, N - O("wdl", 100) + 4 * n) for n in range(60)] if PP else [(g, max(p2 + 1, O("d0", 30)) if n < pre5 else rl[n], bp[n] - LEAD) for n in range(nd, NC) for g in groups_of(wdma(n, each=True))]
    erel = lambda ks: max([XC + 1] + [sfree[k] + 1 for k in range(5) if SL[k] < 4096 * (ks + 1) and 4096 * ks < SL[k] + WSLOT2])
    S = [SW, [(g, p2 + 1, PE - 70) for g in (st1dma() + qloads(0)) * (not PQ_)], [(g, PE + 1, PE + 20) for g in qloads(1)],
         [(h1_dma(0, ks), erel(ks), N - 60 + (12 * (gate_of(GE, ks) - 1) if ks >= GE[0] else 0) + ks / 100) for ks in range(O("npre", 15))]]
    pos = sc.streams(S, O("pc", 4.0), 0, N - 2, wt=[O("ww", 1.3), 1, 1, 1])
    assert all(len(x) == len(y) for x, y in list(zip(pos, S))[PP:3]), [(len(x), len(y)) for x, y in zip(pos, S)]
    assert PQ_ or pos[1][-1] < PE - 14
    log = [(n, bp[n], bp[n] - pos[0][3 * (n - nd) + 2]) for n in range(nd, NC)] if not PP else [(len(pos[0]), 0, 1)]; nwf = len(pos[0])
    assert all(x[2] > 0 for x in log), log
    npre = len(pos[3]); ql = pos[2][-1]
    b = Asm(); h1_ssetup(b, S_I, S_J); put(b, [f"s_mov_b32 s17, {FLG}"])
    SS = [re.sub(r"\bs50\b", "s53", re.sub(r"\bs35\b", "s52", re.sub(r"\bs62\b", "s16", x.text))) for k, x in b.items if k == "ins"]
    SS = SS[-1:] + SS[:-1] + [y for x in h2_wsetup(S_J2) for y in x.split("\n")]
    q = sc.chain(SS, 1, XC - 40, 1)
    pl = sc.chain(pre_list(), max(ql + 50, sl + 4), O("pld", 270))
    pi = sc.at(PC(241, 60, 243), pfp + 50)
    b = Asm(); h1_icb(b); IL = [x.text.replace("s50", "s56") for k, x in b.items if k == "ins"]
    pi = sc.chain(IL[:2] + [IL[2] + "\n" + IL[3]] + IL[4:6], pi + 1, pi + 8)
    for x in IL[6:]: pi = sc.vm([small(x)], pi + 1)[0]
    print(f"conv: weights {log} done {pw}; stats/q {pos[1]}; late pre {pl}; x seen {XC}; early {pos[3]}; overflow {sc.over()}", file=sys.stderr)
    for c in range(8): fstamp(sc, c2_start(1, c), f"c{c}")
    a.waitv("xdma")
    stamp(a, "cstart")
    for l in c2_loads(0, 0): a(l)
    seen = set()
    for n, (part, c, u, w, dterm) in enumerate(C2M):
        t = u + w; bb = c & 1
        A = vr(DFR, 4) if dterm else vr(AB[bb] + 4*u, 4)
        a(f"v_mfma_f32_16x16x32_bf16 {vr(ACC+4*t,4)}, {A}, {vr(FB[bb]+4*w,4)}, {vr(ACC + 4*t, 4) if t in seen else '0'}")
        seen.add(t)
        sc.emit(a, n)
    stamp(a, "cdone")
    order = sorted(range(4), key=lambda t: max(n for n, m in enumerate(C2M) if m[2] + m[3] == 4 + t))
    NP2 = max(npre, min(GE[0] if GE else 20, 15))
    for ks in range(npre, NP2): put(a, h1_dma(0, ks))
    V2 = 200; WB = 163840 - WSLOT2 * (20 - NC)
    tb = {n: O("t0", 90) + O("tp", 18) * (n - NC) for n in range(NC, 21)}
    wrest = [(g, 0, tb[n] - LEAD) for n in range(NC, 20) for g in groups_of(wdma(n, WB + WSLOT2 * (n - NC), V2, True))]
    if PP: wrest = [(wf[n], 0, 12 * (n // 3) - 60 + n / 100) for n in range(nwf, 60)]
    def conv_extra(sc, conv=True):
        q = 0; fr = {}
        for n in range(NC, 21):
            if NC == 20: break
            q = sc.at(BAR(*([f"w{n}"] if n < 20 else []), *([f"l:wr{n-1}"] if n > NC else [])), max(q + 1, tb[n]), 2); fr[n - 1] = q + 1
            if n < 20:
                q = sc.chain(wdir_reads2(n, WSLOT2 * (n - NC), V2), q, q + 10, 1, keep=G1B)
                assert q + 6 < 12 * n, (n, q)
        if conv: sc.at(BAR("a1st1", then=lambda a: wflag(a, S_CU, FXL), c=3), O("pl", 35))
        return lambda ks: max([0] + [fr[n] for n in range(NC, 20) if WB + WSLOT2 * (n - NC) < IMG + 4096 * (ks + 1) and IMG + 4096 * ks < WB + WSLOT2 * (n - NC + 1)])
    def head(a):
        fin_pk(a, 1, order)
        if NC < 20:
            for k in range(3): a(f"v_mov_b32 v{200+k}, v{WV+k}")
            for k in (3, 4): a(f"v_add_u32 v{200+k}, {WB}, v{WV+k}")
    passA(a, NP2, head, wrest, conv_extra)
    rest(a, 'c')
    V = 230; slot = lambda m: WLB + (m % 8) * WSLOT2
    def wpipe(a, n0, n1, mid=None, first=None, at=None, nt=False, hook=None):
        nd = min(n0 + 6, n1)
        wdir_dma = lambda n, sl, V: wdma(n, sl, V, nt=nt)
        for n in range(n0, nd): put(a, wdir_dma(n, slot(n), V))
        if mid: mid(a)
        for n in range(n0, n1, 2):
            last = min(n + 1, n1 - 1)
            a.waitv(f"w{last}")
            if n > n0: a.waitl(f"wr{n-1}")
            a("s_barrier")
            if first and n == n0: first(a)
            for m in range(n, last + 1): put(a, wdir_reads2(m, (m % 4) * WSLOT2, V + (5 if m % 8 >= 4 else 0)))
            for _ in range(2):
                if nd < n1:
                    put(a, wdir_dma(nd, slot(nd), V)); nd += 1
                    if at and nd == at[0]: at[1](a)
                    if hook: hook(a, nd)
        if at: a.waitv("wst")
        a("s_waitcnt lgkmcnt(0)\ns_barrier")
    NFN = O("nfn", 0)
    def wset(a):
        wdir_setup2(a, S_J, V)
        a(f"v_add_u32 v{V+3}, {WLB}, v{V+3}\nv_add_u32 v{V+4}, {WLB}, v{V+4}\nv_add_u32 v{V+8}, {4*WSLOT2}, v{V+3}\nv_add_u32 v{V+9}, {4*WSLOT2}, v{V+4}")
    assert not NFN
    a.label("L_prep"); a.reset()
    for p in range(5): a.items.append(("vm", None, vr(80 + 2*p, 2)))
    for p in range(MF): a.items.append(("vm", None, vr(90 + 4*p, 4)))
    eload(a)
    PD = O("pd", "")
    if PD:
        a(f"s_cmp_ge_u32 s{S_PU}, 40\ns_cbranch_scc0 L_nopd\ns_lshr_b32 s62, s2, 3\ns_sub_u32 s62, s62, 25")
        b = Asm(); pre_dest(b, 62, PD)
        for k, x in b.items: a(x.text, nowait=True)
        a.label("L_nopd"); a.reset()
        a("s_waitcnt vmcnt(%d)" % 0 if False else "s_nop 0")
        for p in range(5): a.items.append(("vm", None, vr(80 + 2*p, 2)))
        a.items.append(("vm", None, "v246"))
    roles(a)
    a("s_mov_b32 s76, 0")
    mod_silu(a, 80, 180)
    mod_loads(a, 80, MF, 20)
    stamp(a, "kvland")
    mod_finish(a, 77, 80, 180, 0)
    stamp(a, "Acomp")
    gettag()
    mod_finish2(a, 77, 80, 180, 0, TAG)
    a(f"s_add_u32 s77, s77, {(FP2-FQ)//128}\ns_branch L_p_w")
    a.label("L_p_b"); a.reset()
    eload(a)
    if PD:
        a(f"s_lshr_b32 s62, s2, {4 if LJ == 2 else 3}\ns_and_b32 s62, s62, 1\ns_add_u32 s62, s62, 3\ns_cmp_ge_u32 s{S_PU}, 64\ns_cselect_b32 s62, s62, 2")
        pre_dest(a, 62, PD)
    roles(a); gettag()
    a(f"s_mov_b32 s76, s65\ns_add_u32 s77, s{S_PU}, {(FY-FQ)//128}\ns_branch L_p_w")
    a.label("L_p_s"); a.reset()
    for p in range((20 if ST32 else 40) * ("slate" not in OPT)): a.items.append(("vm", None, vr(16 + 4*p, 4)))
    eload(a); roles(a)
    if "slate" in OPT: sloads(a)
    a("s_mov_b32 s76, s65")
    stamp(a, "kvland")
    st1_finish(a, 77, 16, 180); ST32 or st1_finish(a, 69, 96, 180)
    stamp(a, "Acomp")
    signal(a, 77, FQ, lambda: (gettag(), ST32 or wflag(a, 69, FQ, 2)))
    a.label("L_p_w"); a.reset()
    stamp(a, "Asig")
    srd(a, 56, WD_, 1536 * 640 * 2)
    WDH = WLB + 8 * WSLOT2
    if NFN:
        a(f"s_sub_u32 s50, s{S_PU}, 40\ns_cmp_lt_u32 s50, 40\ns_cbranch_scc1 L_p_w2")
        wset(a); wpipe(a, 0, NFN, None, lambda a: (wflag(a, 77, FQ, 2), wflag(a, S_PU, FY, 2)))
        a.label("L_p_w2"); a.reset()
    else: wset(a)
    def psetup(a):
        h1_ssetup(a, S_I, S_J)
        put(a, h1_vsetup(S_J, S_J2) + xflags(219, 0) + h2_wsetup(S_J2))
    first = lambda a: (wflag(a, 77, FQ, 2), wflag(a, S_PU, FY, 2))
    a(f"s_cmp_eq_u32 s76, 1\ns_cbranch_scc1 L_bias")
    wpipe(a, 0, NC, psetup, first, (min(NC, O("wdp", 15)), lambda a: wdh_loads(a, S_PU, WDH)))
    wdh_finish(a, S_PU, WDH, 16)
    stamp(a, "kcop")
    a("s_branch L_nobias")
    a.label("L_bias"); a.reset()
    def hook(a, nd):
        if nd == NC: a("s_mov_b32 s69, s64")
        if nd == 14: a(f"s_mov_b32 s66, {FP2+30*128}\nv_min_u32 v240, 19, v1\nv_lshlrev_b32 v240, 7, v240"); poll_issue(a, 240, 66, 241)
        if nd == 20: poll_check(a, 240, 66, 241); put(a, g1_table_load(WDH + 20480)); wdh_loads(a, S_PU, WDH)
    wpipe(a, 0, 20, psetup, first, hook=hook)
    stamp(a, "kcop")
    if NC < 20: a("s_mov_b32 s64, s69")
    g1_bias(a, 0, 20, 40, WDH + 20480)
    h1_biasstore(a)
    a.waitv("wst"); a("s_barrier")
    wdh_finish(a, S_PU, WDH, 16)
    a.label("L_nobias"); a.reset()
    a("s_waitcnt vmcnt(0)\ns_barrier")
    wflag(a, S_PU, FP3, 2)
    a(f"s_cmp_eq_u32 s76, 1\ns_cbranch_scc0 L_nobias2")
    wflag(a, S_J, FB_, 2)
    a.label("L_nobias2")
    a("s_cmp_eq_u32 s2, 223\ns_cbranch_scc0 L_p_x")
    a(f"""
    v_lshlrev_b32 v5, 7, v0
    v_add_u32 v6, {FY-FA-160*128}, v5
    v_cmp_lt_u32 vcc, 159, v0
    v_cndmask_b32 v5, v5, v6, vcc
    s_mov_b32 s52, {FA}
    """)
    poll(a, 5, 52)
    a("s_barrier")
    a(f"s_cmp_eq_u32 s3, 0\ns_cbranch_scc0 L_p_x\ns_mov_b32 s50, {EPOCH}\nv_mov_b32 v2, 0\nv_mov_b32 v3, s{TAG}\ns_mov_b64 exec, 1")
    a(f"buffer_store_dword v3, v2, {WSR}, s50 offen sc1", cond=True)
    a("s_mov_b64 exec, -1")
    a.label("L_p_x"); a.reset()
    stamp(a, "cdone")
    a(f"""
    v_min_u32 v2, 49, v1
    v_lshlrev_b32 v2, 7, v2
    v_add_u32 v2, {FP2-FLG}, v2
    v_cmp_lt_u32 vcc, 39, v1
    v_cndmask_b32 v219, v219, v2, vcc
    """)
    for k in range(3): a(f"v_mov_b32 v{200+k}, v{V+k}")
    for k in (3, 4): a(f"v_add_u32 v{200+k}, {WB-WLB}, v{V+k}")
    NPW = O("npw", 2)
    for n in range(NC, min(20, NC + NPW)): put(a, wdma(n, WB + WSLOT2 * (n - NC), V2))
    poll(a, 219, 17, 223)
    stamp(a, "xseen")
    NPP = O("npp", 12)
    for ks in range(NPP): put(a, h1_dma(0, ks))
    h1_icb(a)
    passA(a, NPP, None, wrest[3 * NPW:], lambda sc: conv_extra(sc, False))
    rest(a, 'p')

def build():
    name = NAME + "_kernel"
    a = Asm()
    a.raw(f".globl {name}\n.p2align 8\n.type {name},@function\n{name}:")
    if "entry" in OPT: a(f"{'s_memrealtime' if 'enc' in OPT else STI} s[78:79]")
    entry(a)
    body(a)
    a.label("L_end")
    a("s_endpgm")
    emit_slow(a)
    a.label("L_code_end")
    a.raw('.if L_code_end-L_pc0 > 98304\n.error "the code prefetch does not cover the kernel"\n.endif')
    hdr = open("cdna_kernels/" + NAME + ".s.ref").read().split("; Override")[0]
    txt = hdr + "; @launch grid=(256,1,1) block=(256,1,1) lds=163840\n"
    txt += '.amdgcn_target "amdgcn-amd-amdhsa--gfx950"\n.text\n' + a.finish()
    txt += f""".section .rodata,"a"
.p2align 6
.amdhsa_kernel {name}
  .amdhsa_next_free_vgpr 512
  .amdhsa_next_free_sgpr 102
  .amdhsa_accum_offset 256
  .amdhsa_group_segment_fixed_size 0
  .amdhsa_kernarg_size 120
  .amdhsa_user_sgpr_count 2
  .amdhsa_user_sgpr_kernarg_segment_ptr 1
  .amdhsa_system_sgpr_workgroup_id_x 1
.end_amdhsa_kernel
"""
    return txt
if __name__ == "__main__":
    out = [x for x in sys.argv[1:] if not x.startswith("--")][0]
    open(out, "w").write(build())
```

```python
from emit import Asm
from layout import *

Q, K, V, SHK, SSMK, SSD, WG_, WU_, WD_, CC, WMOD, OUT, DBG, WS = 4, 6, 8, 10, 12, 14, 18, 20, 22, 24, 26, 28, 30, 32
WSR = "s[36:39]"
R1 = 34
def sp(n): return f"s[{n}:{n+1}]"
def vr(a, n): return f"v[{a}:{a+n-1}]" if n > 1 else f"v{a}"
def ar(a, n): return f"a[{a}:{a+n-1}]" if n > 1 else f"a{a}"

WLB = 8192
SC = " sc1"

def srd(a, r, base, nbytes):
    a(f"s_mov_b32 s{r}, s{base}\ns_mov_b32 s{r+1}, s{base+1}\ns_mov_b32 s{r+2}, {hex(nbytes)}\ns_mov_b32 s{r+3}, 0x20000")

def prologue(a, nwg, endlabel, wait=True):
    a(f"""
    s_cmp_ge_u32 s2, {nwg}
    s_cbranch_scc1 {endlabel}
    s_load_dwordx16 s[4:19], s[0:1], 0
    s_load_dwordx8 s[20:27], s[0:1], 64
    s_load_dwordx4 s[28:31], s[0:1], 96
    s_load_dwordx2 s[32:33], s[0:1], 112
    v_lshrrev_b32 v1, 6, v0
    v_readfirstlane_b32 s3, v1
    v_and_b32 v1, 63, v0
    """)
    if wait:
        a("s_waitcnt lgkmcnt(0)")
        srd(a, 36, WS, WS_BYTES)

def put(a, items):
    for it in items:
        if callable(it): it(a)
        elif isinstance(it, tuple): a(it[0], tag=it[1])
        else: a(it)
def groups_of(lst):
    out = []; cur = []
    for it in lst:
        t = it[0] if isinstance(it, tuple) else it
        cur.append(it)
        if t.startswith(("buffer_", "global_")): out.append(cur); cur = []
    if cur: out[-1].extend(cur)
    return out
def txt_of(it): return "" if callable(it) else (it[0] if isinstance(it, tuple) else it)
def cost_of(it):
    if callable(it): return getattr(it, "cost", ("v", 2))
    L = [l.strip() for l in txt_of(it).split("\n") if l.strip()]
    if all(l.startswith("s_") for l in L): return ("s", len(L))
    if len(L) == 1 and L[0].startswith("ds_"): return ("d", 1)
    if len(L) == 1 and L[0].startswith(("buffer_", "global_")): return ("m", 2)
    return ("v", sum(2 if l.startswith(("buffer_", "global_", "v_perml", "v_rsq", "v_exp", "v_rcp")) else 1 for l in L))
def costed(f, kind, c): f.cost = (kind, c); return f
class Sched:
    def __init__(self, N):
        self.N = N; self.fill = {}; self.s = [0] * N; self.v = [0] * N; self.d = [0] * N; self.m0 = []; self.cap = 2; self.relax = False; self.keep = False; self.keep_s = True; self.m = [0] * N
    def free(self, n): return self.cap - self.v[n] - max(0, self.s[n] - 1)
    def ok(self, n, it):
        k, c = cost_of(it)
        empty = self.v[n] == 0 and self.s[n] == 0
        if self.m[n]: return False
        if k == "m": return empty or (self.relax and self.v[n] + self.s[n] <= self.relax)
        if k == "s": return max(0, self.s[n] + c - 1) + self.v[n] <= self.cap and not (empty and self.keep_s)
        if k == "d": return self.d[n] == 0 and self.free(n) >= 1
        if self.keep and c == 1 and empty: return False
        return self.free(n) >= c or (c > 2 and self.v[n] == 0 and self.s[n] <= 1)
    def force(self, n, items):
        for it in items:
            k, c = cost_of(it)
            self.fill.setdefault(n, []).append(it)
            if k == "s": self.s[n] += c
            else: self.v[n] += c
            if k == "d": self.d[n] += 1
            if k == "m": self.m[n] += 1
        return n
    def fit(self, n, it):
        while n < self.N and not self.ok(n, it): n += 1
        if n >= self.N: raise RuntimeError(f"schedule overflow ({txt_of(it)})")
        return n
    def seq(self, items, start, step=0):
        n = start; last = None; rank = -1
        for it in items:
            r = "sdvm".index(cost_of(it)[0])
            if last is not None and n == last and r < rank: n += 1
            n = self.fit(n, it); self.force(n, [it]); last = n; rank = r; n += step
        return last
    def vmem(self, groups, start, step, after=0):
        lease = any("m0" in txt_of(x) for g in groups for x in g)
        while True:
            save = ({k: list(v) for k, v in self.fill.items()}, list(self.s), list(self.v), list(self.d), list(self.m))
            n = start; first = None
            for g in groups:
                k = [i for i, it in enumerate(g) if callable(it) or txt_of(it).lstrip().startswith(("buffer_", "global_"))][0]
                pre, op, post = g[:k], g[k], g[k+1:]
                if pre:
                    n = self.seq(pre, n, 1 if len(pre) > 1 else 0)
                    if first is None: first = n
                    if "m0" in txt_of(pre[-1]): n += 1
                n = self.fit(max(n, after), op); self.force(n, [op]); last = n; tail = n
                if first is None: first = n
                if post: tail = self.seq(post, n + 1, 1)
                n = max(n + step, tail)
            bad = [hi for lo, hi in self.m0 if lease and lo <= last and first <= hi]
            if not bad: break
            self.fill.clear(); self.fill.update(save[0]); self.s[:], self.v[:], self.d[:], self.m[:] = save[1:]
            start = max(bad) + 1
        if lease: self.m0.append((first, last))
        self.tail = tail
        return last
    def emit(self, a, n):
        put(a, sorted(self.fill.get(n, []), key=lambda it: "sdvm".index(cost_of(it)[0])))
    def over(self): return sum(max(0, -self.free(n)) + max(0, self.d[n] - 1) + (self.s[n] if self.m[n] else 0) for n in range(self.N))
def place(fill, groups, start, step):
    n = start
    for g in groups:
        fill.setdefault(n, []).extend(g); n += step
    return n
NT = " nt"
KNT = ""

PA = 84992
GS = 1088
def phaseA_loads(a, su, before_ptr=None, after_dma=None):
    a(f"""
    s_lshr_b32 s50, s{su}, 4          ; g
    s_and_b32 s51, s{su}, 15          ; j
    s_mul_i32 s52, s51, {128*1280}
    s_lshl_b32 s53, s50, 7
    s_add_u32 s52, s52, s53
    v_lshrrev_b32 v3, 3, v1
    v_mul_u32_u24 v3, 1280, v3
    v_and_b32 v4, 7, v1
    v_lshl_add_u32 v3, v4, 4, v3
    s_mul_i32 s53, s3, {32*1280}
    s_add_u32 s53, s53, s52
    s_mul_i32 s54, s3, {4*GS}
    """)
    if before_ptr:
        a(f"s_mov_b32 s42, {S*D*2}\ns_mov_b32 s43, 0x20000\ns_mov_b32 s46, {S*D*2}\ns_mov_b32 s47, 0x20000")
        before_ptr(a)
        a(f"s_mov_b32 s40, s{K}\ns_mov_b32 s41, s{K+1}\ns_mov_b32 s44, s{V}\ns_mov_b32 s45, s{V+1}")
    else: srd(a, 40, K, S * D * 2); srd(a, 44, V, S * D * 2)
    a(f"""
    s_cmp_eq_u32 s3, 0
    s_cbranch_scc0 L_nohalo
    s_sub_u32 s55, s52, {8*1280}
    v_add_u32 v5, s55, v3
    s_mov_b32 m0, {PA}
    """)
    a(f"buffer_load_dwordx4 v5, s[40:43], 0 offen{NT} lds", cond=True)
    a.label("L_nohalo")
    for base, sr in ((PA + GS, 40), (PA + 17 * GS, 44)):
        a("s_mov_b32 s55, s53")
        for n in range(4):
            a(f"s_add_u32 m0, s54, {base + n*GS}")
            a(f"buffer_load_dwordx4 v3, s[{sr}:{sr+3}], s55 offen{NT} lds", tag="kv")
            if n < 3: a(f"s_add_u32 s55, s55, {8*1280}")
    if after_dma: after_dma(a)
    a(f"""
    s_lshr_b32 s55, s3, 1
    s_and_b32 s56, s3, 1
    s_lshl_b32 s51, s51, 7
    s_lshl_b32 s57, s55, 6
    s_add_u32 s51, s51, s57
    s_lshl_b32 s50, s50, 6
    s_lshl_b32 s57, s56, 5
    s_add_u32 s50, s50, s57
    v_lshrrev_b32 v5, 3, v1           ; rg
    v_lshl_add_u32 v6, v5, 3, s51     ; row0
    v_lshl_add_u32 v7, v4, 2, s50     ; ch0
    v_lshlrev_b32 v8, 3, v7
    global_load_dwordx4 v[48:51], v8, {sp(SHK)}
    global_load_dwordx4 v[52:55], v8, {sp(SHK)} offset:16
    v_mul_u32_u24 v7, {PT_}, v7
    v_lshl_add_u32 v245, v6, 1, v7
    v_sub_u32 v6, 2040, v6
    v_lshl_add_u32 v247, v6, 1, v7
    s_mul_i32 s55, s55, {8*GS}
    s_lshl_b32 s56, s56, 6
    s_add_u32 s55, s55, s56
    s_add_u32 s55, s55, {PA}
    v_mul_u32_u24 v5, {GS}, v5
    v_lshl_add_u32 v5, v4, 3, v5
    v_add_u32 v244, s55, v5
    """)
def phaseA_qload(a):
    srd(a, 44, Q, S * D * 2)
    for n in range(4):
        a(f"s_add_u32 m0, s54, {PA + 33*GS + n*GS}")
        a(f"buffer_load_dwordx4 v3, s[44:47], s53 offen{NT} lds", tag="q")
        if n < 3: a(f"s_add_u32 s53, s53, {8*1280}")
def phaseA_q(a, O):
    a(f"s_mov_b32 s51, 0x05040100\ns_mov_b32 s52, 0x07060302\ns_mov_b32 s53, {QT}")
    for r in range(8): a(f"ds_read_b64 {vr(40+2*r,2)}, v244 offset:{33*GS+128*r}")
    for c in range(4):
        for e in range(4):
            a(f"v_perm_b32 v{O+4*c+e}, v{40+2*(2*e+1)+(c>>1)}, v{40+2*(2*e)+(c>>1)}, s{51+(c&1)}")
        a(f"buffer_store_dwordx4 {vr(O+4*c,4)}, v245, {WSR}, s53 offen{SC}", tag="qst")
        if c < 3: a(f"s_add_u32 s53, s53, {PT_}")
def phaseA_read(a):
    a.waitv("kv")
    a("s_barrier")
    for r in range(3): a(f"ds_read_b64 {vr(10+2*r,2)}, v244 offset:{640+128*r}")
    for r in range(8): a(f"ds_read_b64 {vr(16+2*r,2)}, v244 offset:{GS+128*r}")
    for r in range(8): a(f"ds_read_b64 {vr(32+2*r,2)}, v244 offset:{17*GS+128*r}")
def unpack(a, dst_lo, dst_hi, src):
    a(f"v_lshlrev_b32 v{dst_lo}, 16, v{src}")
    a(f"v_and_b32 v{dst_hi}, 0xffff0000, v{src}")

def phaseA_compute(a, before_store=None, taps=True):
    KF, WF, KV, VT, O = 60, 104, 120, 56, 152
    for r in range(11):
        unpack(a, KF + 4*r, KF + 4*r + 1, 10 + 2*r); unpack(a, KF + 4*r + 2, KF + 4*r + 3, 11 + 2*r)
    for c in range(4 if taps else 0):
        unpack(a, WF + c, WF + 4 + c, 48 + 2*c); unpack(a, WF + 8 + c, WF + 12 + c, 49 + 2*c)
    a(f"s_movk_i32 s16, {PT_}\ns_movk_i32 s17, {2*PT_}\ns_movk_i32 s62, {3*PT_}")
    for p in range(2):
        for r in range(8):
            d = KV + 4*r + 2*p
            a(f"v_pk_mul_f32 {vr(d,2)}, {vr(KF+4*r+2*p,2)}, {vr(WF+12+2*p,2)}")
            for j in (2, 1, 0):
                a(f"v_pk_fma_f32 {vr(d,2)}, {vr(KF+4*(r+3-j)+2*p,2)}, {vr(WF+4*j+2*p,2)}, {vr(d,2)}")
            t = VT + 2*(r & 1)
            unpack(a, t, t + 1, 32 + 2*r + p)
            a(f"v_pk_mul_f32 {vr(d,2)}, {vr(d,2)}, {vr(t,2)}")
        for c in (2*p, 2*p + 1):
            for e in range(4):
                a(f"v_cvt_pk_bf16_f32 v{O+4*c+e}, v{KV+4*(7-2*e)+c}, v{KV+4*(6-2*e)+c}")
            if c == 0 and before_store: before_store(a)
            so = ["0", "s16", "s17", "s62"][c]
            a(f"buffer_store_dwordx4 {vr(O+4*c,4)}, v247, {WSR}, {so} offen{SC}", tag="kvst")
    assert KVT == 0

WSLOT = 12288
def wdir_setup(a, sj, V):
    a(f"""
    s_and_b32 s50, s3, 1
    s_mul_i32 s50, s50, {16*3072}
    s_mul_i32 s64, s{sj}, 192
    s_add_u32 s64, s64, s50
    s_mul_i32 s50, s{R1}, {32*3072}
    s_add_u32 s64, s64, s50
    s_cmp_ge_u32 s3, 2
    s_cselect_b32 s40, s{WU_}, s{WG_}
    s_cselect_b32 s41, s{WU_+1}, s{WG_+1}
    s_mov_b32 s42, {640*1536*2}
    s_mov_b32 s43, 0x20000
    s_mul_i32 s61, s3, 3072
    """)
    for ph in range(3):
        a(f"""
        v_add_u32 v2, {64*ph}, v1
        v_mul_u32_u24 v3, 171, v2
        v_lshrrev_b32 v3, 11, v3
        v_mul_u32_u24 v4, 12, v3
        v_sub_u32 v4, v2, v4
        v_bfe_u32 v2, v3, 2, 1
        v_mad_u32_u24 v4, v2, 10, v4
        v_subrev_u32 v2, 12, v4
        v_min_u32 v4, v4, v2
        v_mul_u32_u24 v3, 3072, v3
        v_lshl_add_u32 v{V+ph}, v4, 4, v3
        """)
        if ph: a(f"v_subrev_u32 v{V+ph}, {1024*ph}, v{V+ph}")
    a(f"""
    v_lshrrev_b32 v2, 2, v1           ; 4h+r
    v_mul_u32_u24 v2, 192, v2
    v_and_b32 v3, 1, v1
    v_lshl_add_u32 v2, v3, 3, v2
    s_mul_i32 s50, s3, 3
    v_bfe_u32 v3, v1, 4, 1
    v_lshl_add_u32 v3, v3, 1, s50     ; 3w + 2(h&1)
    v_bfe_u32 v4, v1, 1, 1
    v_add_u32 v{V+3}, v3, v4
    v_subrev_u32 v{V+4}, 12, v{V+3}
    v_min_u32 v{V+3}, v{V+3}, v{V+4}
    v_lshl_add_u32 v{V+3}, v{V+3}, 4, v2
    v_add_u32 v3, 2, v3
    v_subrev_u32 v{V+4}, 12, v3
    v_min_u32 v3, v3, v{V+4}
    v_lshl_add_u32 v3, v3, 4, v2
    v_mul_u32_u24 v4, 6144, v4
    v_add_u32 v{V+4}, v3, v4
    """)
WP2 = (0, 3104, 6224, 9328); WSLOT2 = 12416
def wdir_setup2(a, sj, V):
    a(f"""
    s_and_b32 s50, s3, 1
    s_mul_i32 s61, s50, {WP2[1]}
    s_mul_i32 s50, s50, {4*3072}
    s_mul_i32 s64, s{sj}, 192
    s_add_u32 s64, s64, s50
    s_mul_i32 s50, s{R1}, {32*3072}
    s_add_u32 s64, s64, s50
    s_cmp_ge_u32 s3, 2
    s_cselect_b32 s40, s{WU_}, s{WG_}
    s_cselect_b32 s41, s{WU_+1}, s{WG_+1}
    s_cselect_b32 s50, {WP2[2]}, 0
    s_add_u32 s61, s61, s50
    s_mov_b32 s42, {640*1536*2}
    s_mov_b32 s43, 0x20000
    """)
    for ph in range(3):
        a(f"""
        v_add_u32 v2, {64*ph}, v1
        v_mul_u32_u24 v3, 171, v2
        v_lshrrev_b32 v3, 11, v3
        v_mul_u32_u24 v4, 12, v3
        v_sub_u32 v4, v2, v4
        v_and_b32 v2, 12, v3
        v_add_u32 v3, v3, v2              ; 8*(i>>2) + (i&3)
        v_mul_u32_u24 v3, 3072, v3
        v_lshl_add_u32 v{V+ph}, v4, 4, v3
        """)
        if ph: a(f"v_subrev_u32 v{V+ph}, {1024*ph}, v{V+ph}")
    a(f"""
    v_lshrrev_b32 v2, 5, v1           ; h>>1
    v_bfe_u32 v3, v1, 2, 2            ; r
    v_lshl_add_u32 v2, v2, 2, v3
    v_mul_u32_u24 v2, 192, v2
    v_bfe_u32 v3, v1, 4, 1
    v_mad_u32_u24 v2, v3, s61, v2
    s_mul_i32 s50, s3, 48
    """.replace("v_mad_u32_u24 v2, v3, s61, v2", f"v_mul_u32_u24 v3, {WP2[1]}, v3\n    v_add3_u32 v2, v2, v3, s50").replace("    s_mul_i32 s50, s3, 48\n", "").replace("v_lshrrev_b32 v2, 5, v1", "s_mul_i32 s50, s3, 48\n    v_lshrrev_b32 v2, 5, v1"))
    a(f"""
    v_and_b32 v3, 3, v1
    v_lshl_add_u32 v{V+3}, v3, 3, v2
    v_and_b32 v3, 1, v1
    v_lshl_add_u32 v2, v3, 3, v2
    v_bfe_u32 v3, v1, 1, 1
    v_mul_u32_u24 v3, {WP2[2]}, v3
    v_add3_u32 v{V+4}, v2, v3, 32
    """)
def wdir_reads2(n, rel, V):
    L = []
    for T in range(3):
        for half in range(2):
            off = rel + 8*192*half + (WP2[2] if T == 1 else 0)
            L.append((f"ds_read_b64_tr_b16 {ar(12*n+4*T+2*half,2)}, v{V+(4 if T == 2 else 3)} offset:{off}", f"wr{n}"))
    return L
WO_U = 3072 + 16; WO_SLOT = 6176
def wown_setup(a, sj, V, U=96):
    a(f"""
    s_mul_i32 s64, s{sj}, 192
    s_mul_i32 s50, s3, 48
    s_add_u32 s64, s64, s50
    s_mul_i32 s50, s{R1}, {32*3072}
    s_add_u32 s64, s64, s50
    s_mov_b64 s[40:41], s[{WG_}:{WG_+1}]
    s_mov_b32 s42, {640*1536*2}
    s_mov_b32 s43, 0x20000
    s_mov_b64 s[{U}:{U+1}], s[{WU_}:{WU_+1}]
    s_mov_b64 s[{U+2}:{U+3}], s[42:43]
    """)
    for ph in range(3):
        a(f"""
        v_add_u32 v2, {64*ph}, v1
        v_mul_u32_u24 v3, 171, v2
        v_lshrrev_b32 v3, 9, v3
        v_mul_u32_u24 v4, 3, v3
        v_sub_u32 v4, v2, v4
        v_and_b32 v2, 1, v3
        v_lshlrev_b32 v2, 3, v2
        v_and_or_b32 v2, v3, 48, v2
        v_bfe_u32 v3, v3, 1, 3
        v_add_u32 v3, v3, v2              ; row = 16*(P>>4) + 8*(P&1) + ((P>>1)&7)
        v_mul_u32_u24 v3, 3072, v3
        v_lshl_add_u32 v{V+ph}, v4, 4, v3
        """)
        if ph: a(f"v_subrev_u32 v{V+ph}, {1024*ph}, v{V+ph}")
    a(f"""
    v_bfe_u32 v2, v1, 2, 3            ; 4*(h&1) + r
    v_lshrrev_b32 v3, 5, v1           ; h>>1
    v_lshl_add_u32 v2, v2, 1, v3
    v_mul_u32_u24 v2, 48, v2
    v_and_b32 v3, 3, v1
    v_lshl_add_u32 v{V+3}, v3, 3, v2
    v_and_b32 v3, 1, v1
    v_lshl_add_u32 v2, v3, 3, v2
    v_bfe_u32 v3, v1, 1, 1
    v_mul_u32_u24 v3, {WO_U}, v3
    v_add3_u32 v{V+4}, v2, v3, 32
    """)
def wown_dma(d, slot, V, sw=61, U=96):
    G = []
    for m in range(2):
        for ph in range(3):
            G.append([f"s_add_u32 m0, s{sw}, {slot + m*WO_U}", (f"buffer_load_dwordx4 v{V+ph}, s[{U if m else 40}:{(U if m else 40)+3}], s64 offen offset:{1024*ph} lds", f"w{d}")])
    G[-1] += [f"s_add_u32 s64, s64, {64*3072}", f"s_sub_u32 s35, s64, {640*3072}", "s_min_u32 s64, s64, s35"]
    return G
def wown_reads(d, rel, V):
    L = []
    for st in range(2):
        for T in range(3):
            for half in range(2):
                off = rel + 48 * 16 * (2*st + half) + (WO_U if T == 1 else 0)
                L.append((f"ds_read_b64_tr_b16 {ar(12*(2*d+st)+4*T+2*half,2)}, v{V+(4 if T == 2 else 3)} offset:{off}", f"wr{d}"))
    return L
def wdir_dma(n, slot, V, each=False):
    L = []
    for ph in range(3):
        if ph == 0 or each: L.append(f"s_add_u32 m0, s61, {slot}")
        L.append((f"buffer_load_dwordx4 v{V+ph}, s[40:43], s64 offen offset:{1024*ph} lds", f"w{n}"))
    L += [f"s_add_u32 s64, s64, {32*3072}", f"s_sub_u32 s35, s64, {640*3072}", "s_min_u32 s64, s64, s35"]
    return L
def wdir_reads(n, rel, V):
    L = []
    for T in range(3):
        for half in range(2):
            off = rel + 16*half*192 + (6144 if T == 1 else 0)
            L.append((f"ds_read_b64_tr_b16 {ar(12*n+4*T+2*half,2)}, v{V+(4 if T == 2 else 3)} offset:{off}", f"wr{n}"))
    return L
P3 = [6]
def wdir_pre(a, V, n0, nslot=8):
    for n in range(n0): put(a, wdir_dma(n, WLB + (n % nslot)*WSLOT, V))
def wdir_all(a, V, mid=None, mid2=None, nslot=8, ahead=6, pre=0, stop=20, late=None):
    slot = lambda m: WLB + (m % nslot)*WSLOT if m < stop else late[m % 5]
    a(f"v_add_u32 v{V+3}, {WLB}, v{V+3}\nv_add_u32 v{V+4}, {WLB}, v{V+4}\nv_add_u32 v{V+8}, {4*WSLOT}, v{V+3}\nv_add_u32 v{V+9}, {4*WSLOT}, v{V+4}")
    for n in range(pre, ahead): put(a, wdir_dma(n, slot(n), V))
    nd = ahead
    for n in range(0, stop, 2):
        last = min(n + 1, stop - 1)
        a.waitv(f"w{last}")
        if n == 0: a.waitv("wst")
        if n >= 2: a.waitl(f"wr{n-1}")
        if n == P3[0]: a.waitv("wout")
        a("s_barrier")
        for m in range(n, last + 1):
            sl = m % nslot
            put(a, wdir_reads(m, (sl % 4)*WSLOT, V + (5 if sl >= 4 else 0)))
        for _ in range(2):
            if nd < 20 and (nd < stop or n + 2 >= stop - 6): put(a, wdir_dma(nd, slot(nd), V)); nd += 1
        if n == 0 and mid: mid(a)
        if n == P3[0] and mid2: mid2(a)
    return nd
WDL = WLB + 8 * WSLOT

def wd_loads(a, su):
    srd(a, 44, WD_, 1536 * 640 * 2)
    a(f"""
    s_mul_i32 s52, s{su}, {32*1280}
    s_mul_i32 s53, s3, 10240
    s_add_u32 s52, s52, s53
    v_lshlrev_b32 v5, 4, v1
    """)
    for n in range(10):
        if n % 4 == 0: a(f"s_add_u32 m0, s53, {WDL + n*1024}")
        a(f"buffer_load_dwordx4 v5, s[44:47], s52 offen offset:{(n%4)*1024}{NT} lds", tag="wst")
        if n % 4 == 3: a("s_add_u32 s52, s52, 4096")

def wd_finish(a, su, R, own_barrier=True):
    a(f"""
    v_lshrrev_b32 v2, 4, v1           ; h
    v_bfe_u32 v3, v1, 2, 2            ; r
    v_lshl_add_u32 v3, v2, 3, v3
    v_mul_u32_u24 v3, 1280, v3
    v_and_b32 v2, 3, v1
    v_lshl_add_u32 v2, v2, 3, v3
    s_mul_i32 s50, s3, 320
    s_add_u32 s50, s50, {WDL}
    v_add_u32 v2, s50, v2
    s_mov_b32 s50, 0x15555556
    s_mul_hi_u32 s51, s{su}, s50
    s_mul_i32 s52, s51, 12
    s_sub_u32 s52, s{su}, s52         ; ks
    s_lshl_b32 s50, s3, 3
    s_add_u32 s50, s50, s51
    s_mul_i32 s50, s50, 60
    s_mul_i32 s52, s52, 5
    s_add_u32 s50, s50, s52
    s_lshl_b32 s50, s50, 10
    s_add_u32 s50, s50, {WD}
    s_cmp_lt_u32 s{su}, 48
    s_cselect_b32 s50, s50, {WS_BYTES}
    s_add_u32 s51, s50, 4096
    s_add_u32 s52, s50, {4*61440}
    s_add_u32 s53, s52, 4096
    v_lshlrev_b32 v3, 4, v1
    """)
    if own_barrier:
        a.waitv("wst")
        a("s_barrier")
    for n in range(10):
        for half in range(2):
            a(f"ds_read_b64_tr_b16 {vr(R+4*n+2*half,2)}, v2 offset:{32*n+half*4*1280}")
    for n in range(10):
        jj, T = divmod(n, 5)
        a(f"buffer_store_dwordx4 {vr(R+4*n,4)}, v3, {WSR}, s{50+2*jj+T//4} offen offset:{(T%4)*1024}{SC}", tag="wout")

def mod_cloads(a, R):
    a(f"""
    v_lshrrev_b32 v2, 3, v0           ; kr
    v_mul_u32_u24 v3, 40, v2
    """)
    for p in range(5):
        a(f"global_load_dwordx2 {vr(R+2*p,2)}, v3, {sp(CC)} offset:{8*p}")
def mod_loads(a, su, R):
    srd(a, 44, WMOD, 640 * 3840 * 2)
    a(f"""
    v_lshrrev_b32 v8, 3, v0           ; kr
    s_mov_b32 s57, {20*7680}
    v_mul_lo_u32 v9, v8, s57
    v_and_b32 v8, 7, v0
    v_lshl_add_u32 v9, v8, 4, v9
    s_lshl_b32 s56, s{su}, 7
    """)
    for p in range(20):
        a(f"buffer_load_dwordx4 {vr(R+10+4*p,4)}, v9, s[44:47], s56 offen{NT}")
        if p < 19: a(f"s_add_u32 s56, s56, 7680")

def mod_silu(a, R, T):
    SI, ACC, TMP = T, T + 20, T + 28
    a("s_mov_b32 s50, 0xbfb8aa3b")
    for p in range(10):
        unpack(a, SI + 2*p, SI + 2*p + 1, R + p)
    for p in range(20):
        a(f"v_mul_f32 v{TMP+(p&1)}, s50, v{SI+p}")
        a(f"v_exp_f32 v{TMP+(p&1)}, v{TMP+(p&1)}")
        a(f"v_add_f32 v{TMP+(p&1)}, 1.0, v{TMP+(p&1)}")
        a(f"v_rcp_f32 v{TMP+(p&1)}, v{TMP+(p&1)}")
        a(f"v_mul_f32 v{SI+p}, v{SI+p}, v{TMP+(p&1)}")
    for p in range(10):
        a(f"v_cvt_pk_bf16_f32 v{TMP}, v{SI+2*p}, v{SI+2*p+1}")
        unpack(a, SI + 2*p, SI + 2*p + 1, TMP)
def mod_finish(a, su, R, T, ldsoff):
    SI, ACC, TMP = T, T + 20, T + 28
    for p in range(20):
        for i in range(4):
            t = TMP + 2*(i & 1)
            unpack(a, t, t + 1, R + 10 + 4*p + i)
            sel = "op_sel_hi:[1,0,1]" if p % 2 == 0 else "op_sel:[0,1,0] op_sel_hi:[1,1,1]"
            sel2 = "op_sel_hi:[1,0]" if p % 2 == 0 else "op_sel:[0,1] op_sel_hi:[1,1]"
            if p == 0: a(f"v_pk_mul_f32 {vr(ACC+2*i,2)}, {vr(t,2)}, {vr(SI+(p&~1),2)} {sel2}")
            else: a(f"v_pk_fma_f32 {vr(ACC+2*i,2)}, {vr(t,2)}, {vr(SI+(p&~1),2)}, {vr(ACC+2*i,2)} {sel}")
def mod_finish2(a, su, R, T, ldsoff, tag=None, sfx=''):
    SI, ACC, TMP = T, T + 20, T + 28
    a(f"""
    v_lshlrev_b32 v2, 5, v0
    ds_write_b128 v2, {vr(ACC,4)} offset:{ldsoff}
    ds_write_b128 v2, {vr(ACC+4,4)} offset:{ldsoff+16}
    s_waitcnt lgkmcnt(0)
    s_barrier
    s_cmp_eq_u32 s3, 0
    s_cbranch_scc0 L_mod_done{sfx}
    v_lshlrev_b32 v2, 2, v1
    """)
    for r in range(32):
        a(f"ds_read_b32 v{R+r}, v2 offset:{ldsoff+256*r}")
    for st in (16, 8, 4, 2, 1):
        for r in range(st):
            a(f"v_add_f32 v{R+r}, v{R+r}, v{R+r+st}")
    a(f"""
    s_mov_b32 s50, 429496730
    s_mul_hi_u32 s51, s{su}, s50       ; type
    s_mul_i32 s52, s51, 10
    s_sub_u32 s52, s{su}, s52
    v_cvt_pk_bf16_f32 v3, v{R}, v{R}
    v_lshlrev_b32 v3, 16, v3
    v_add_f32 v4, 1.0, v3
    v_cvt_pk_bf16_f32 v4, v4, v4
    v_lshlrev_b32 v4, 16, v4
    s_cmp_eq_u32 s51, 1
    s_cselect_b64 vcc, -1, 0
    s_cmp_eq_u32 s51, 4
    s_cselect_b64 vcc, -1, vcc
    v_cndmask_b32 v3, v3, v4, vcc
    s_cmp_eq_u32 s51, 4
    s_cbranch_scc0 L_mod_noicb{sfx}
    v_cmp_eq_f32 vcc, 0, v3
    v_mov_b32 v4, 0x2b800000
    v_cndmask_b32 v3, v3, v4, vcc
    v_rcp_f32 v4, v3
    s_lshl_b32 s53, s52, 8
    s_add_u32 s53, s53, {ICB}
    v_fma_f32 v5, -v3, v4, 1.0
    v_fmac_f32 v4, v5, v4
    buffer_store_dword v4, v2, {WSR}, s53 offen{SC}
    buffer_store_dword v4, v2, {WSR}, s53 offen offset:2560{SC}
    L_mod_noicb{sfx}:
    """)
    if tag:
        a(f"""
        v_mov_b32 v4, v3
        v_mov_b32 v5, s{tag}
        v_lshlrev_b32 v6, 3, v1
        s_lshl_b32 s53, s{su}, 9
        s_add_u32 s53, s53, {MODT}
        buffer_store_dwordx2 v[4:5], v6, {WSR}, s53 offen{SC}
        """)
    a(f"""
    s_lshl_b32 s53, s{su}, 8
    s_add_u32 s53, s53, {MOD}
    buffer_store_dword v3, v2, {WSR}, s53 offen{SC}
    s_sub_u32 s53, s51, 3
    s_cmp_lt_u32 s53, 2
    s_cbranch_scc0 L_mod_done{sfx}
    v_mov_b32_dpp v4, v3 quad_perm:[1,0,3,2] row_mask:0xf bank_mask:0xf
    v_lshrrev_b32 v5, 16, v3
    v_or_b32 v5, v5, v4
    v_lshrrev_b32 v6, 5, v1
    v_lshlrev_b32 v6, 7, v6
    v_bfe_u32 v7, v1, 2, 2             ; h
    v_lshl_add_u32 v6, v7, 4, v6
    v_bfe_u32 v7, v1, 4, 1             ; half
    v_lshl_add_u32 v6, v7, 3, v6
    v_and_b32 v7, 2, v1
    v_lshl_add_u32 v6, v7, 1, v6
    s_xor_b32 s53, s53, 1
    s_lshl_b32 s53, s53, 6
    s_lshl_b32 s52, s52, 8
    s_add_u32 s53, s53, s52
    s_add_u32 s53, s53, {MODB}
    s_mov_b32 exec_lo, 0x55555555
    s_mov_b32 exec_hi, 0x55555555
    buffer_store_dword v5, v6, {WSR}, s53 offen{SC}
    buffer_store_dword v5, v6, {WSR}, s53 offen offset:2560{SC}
    s_mov_b64 exec, -1
    L_mod_done{sfx}:
    """)

def st_finalize(a, s, q, r_out, nmr_out, t):
    a(f"""
    v_mul_f32 v{s}, {hex(0x3acccccd)}, v{s}         ; 1/640
    v_mul_f32 v{t}, v{s}, v{s}
    v_mov_b32 v{r_out}, {hex(0x3acccccd)}
    v_fma_f32 v{q}, v{q}, v{r_out}, -v{t}
    v_max_f32 v{q}, 0, v{q}
    v_add_f32 v{q}, {hex(0x3727c5ac)}, v{q}         ; 1e-5
    v_rsq_f32 v{r_out}, v{q}
    v_mul_f32 v{nmr_out}, -v{s}, v{r_out}
    """.replace(f"v_mul_f32 v{nmr_out}, -v{s}", f"v_mul_f32_e64 v{nmr_out}, -v{s}"))

def st1_loads(a, su, R):
    srd(a, 44, Q, S * D * 2)
    a(f"""
    s_lshl_b32 s50, s{su}, 2
    s_add_u32 s50, s50, s3
    s_mul_i32 s56, s50, {16*1280}
    v_lshrrev_b32 v2, 4, v1
    v_mul_u32_u24 v2, 1280, v2
    v_and_b32 v3, 15, v1
    v_lshl_add_u32 v2, v3, 4, v2
    """)
    for sg in range(4):
        for p in range(5):
            a(f"buffer_load_dwordx4 {vr(R+20*sg+4*p,4)}, v2, s[44:47], s56 offen offset:{256*p}{NT}")
        if sg < 3: a("s_add_u32 s56, s56, 5120")
def st1_finish(a, su, R, T):
    a("s_mov_b32 s50, 0x3f803f80")
    for i in range(8): a(f"v_mov_b32 v{T+i}, 0")
    for sg in range(4):
        for d in range(20):
            a(f"v_dot2_f32_bf16 v{T+sg}, v{R+20*sg+d}, s50, v{T+sg}")
            a(f"v_dot2_f32_bf16 v{T+4+sg}, v{R+20*sg+d}, v{R+20*sg+d}, v{T+4+sg}")
    a("s_nop 2")
    for sh in (8, 4, 2, 1):
        for i in range(8):
            a(f"v_add_f32_dpp v{T+i}, v{T+i}, v{T+i} row_ror:{sh} row_mask:0xf bank_mask:0xf")
    a("v_and_b32 v3, 15, v1")
    for sg in range(1, 4):
        a(f"v_cmp_eq_u32 vcc, {sg}, v3\nv_cndmask_b32 v{T}, v{T}, v{T+sg}, vcc\nv_cndmask_b32 v{T+4}, v{T+4}, v{T+4+sg}, vcc")
    st_finalize(a, T, T + 4, T + 8, T + 9, T + 10)
    a(f"""
    v_lshrrev_b32 v2, 4, v1
    v_lshl_add_u32 v2, v3, 2, v2
    v_lshlrev_b32 v2, 2, v2
    s_lshl_b32 s50, s{su}, 2
    s_add_u32 s50, s50, s3
    s_lshl_b32 s50, s50, 6
    s_add_u32 s50, s50, {ST1}
    s_cmp_lt_u32 s{su}, 32
    s_cselect_b32 s50, s50, {WS_BYTES}
    s_add_u32 s51, s50, 8192
    s_mov_b32 exec_lo, 0x000f000f
    s_mov_b32 exec_hi, 0x000f000f
    buffer_store_dword v{T+8}, v2, {WSR}, s50 offen{SC}
    buffer_store_dword v{T+9}, v2, {WSR}, s51 offen{SC}
    s_mov_b64 exec, -1
    """)

KSTR = 4160
KCH = 4 * KSTR
XOFF = 4 * KCH
XSTR = 4608
CONV_LDS = XOFF + 4 * XSTR
def conv_kload(a, sq):
    a(f"""
    s_lshl_b32 s58, s{sq}, 2
    s_add_u32 s58, s58, s3
    s_lshl_b32 s50, s58, 12
    s_mul_i32 s51, s3, {KCH}
    s_add_u32 m0, s51, 32
    v_lshlrev_b32 v248, 4, v1
    """)
    srd(a, 40, SSMK, S * D * 2)
    for n in range(4):
        a(f"buffer_load_dwordx4 v248, s[40:43], s50 offen offset:{1024*n}{NT} lds", tag="kdma")

def conv_kzero(a, keep=None):
    a(f"""
    s_mul_i32 s51, s3, {KCH}
    v_add_u32 v2, s51, v248
    v_lshrrev_b32 v3, 1, v1
    v_mul_u32_u24 v3, {KSTR}, v3
    v_and_b32 v4, 1, v1
    v_lshl_add_u32 v3, v4, 4, v3
    v_add_u32 v3, s51, v3
    v_mov_b32 v4, 0
    v_mov_b32 v5, 0
    v_mov_b32 v6, 0
    v_mov_b32 v7, 0
    s_mov_b64 exec, 0xff
    ds_write_b128 v3, v[4:7]
    s_mul_i32 s52, s3, {XSTR}
    s_add_u32 s52, s52, {XOFF+4096}
    s_mov_b64 exec, 0x3fffffff
    v_add_u32 v3, s52, v248
    ds_write_b128 v3, v[4:7]
    s_mov_b64 exec, -1
    """)
    if keep: a(f"v_mov_b32 v{keep}, v2")
def conv_kcopies(a, keep=None):
    if keep: a(f"v_mov_b32 v2, v{keep}")
    else: conv_kzero(a)
    a.waitv("kdma")
    for n in range(4):
        a(f"ds_read_b128 {vr(168+6*n,4)}, v2 offset:{32+1024*n}")
        a(f"ds_read_b64 {vr(172+6*n,2)}, v2 offset:{48+1024*n}")
    a(f"""
    s_mov_b64 exec, 1
    v_lshlrev_b32 v4, 16, v168
    v_alignbit_b32 v5, v169, v168, 16
    ds_write_b32 v2, v4 offset:{KSTR+28}
    ds_write_b32 v2, v168 offset:{2*KSTR+28}
    ds_write_b32 v2, v4 offset:{3*KSTR+24}
    ds_write_b32 v2, v5 offset:{3*KSTR+28}
    s_mov_b64 exec, -1
    """)
    for n in range(4):
        c = 168 + 6*n; t = 56 + 12*(n & 1)
        for d in range(4): a(f"v_alignbit_b32 v{t+d}, v{c+d+1}, v{c+d}, 16")
        a(f"v_pk_mov_b32 {vr(t+4,2)}, {vr(c,2)}, {vr(c+2,2)} op_sel:[1,0]")
        a(f"v_pk_mov_b32 {vr(t+6,2)}, {vr(c+2,2)}, {vr(c+4,2)} op_sel:[1,0]")
        for d in range(4): a(f"v_alignbit_b32 v{t+8+d}, v{c+d+2}, v{c+d+1}, 16")
        for j in range(1, 4):
            a(f"ds_write_b128 v2, {vr(t+4*(j-1),4)} offset:{j*KSTR+32+1024*n}")

def conv_xload(a):
    a(f"""
    s_mul_i32 s50, s58, {PT_}
    s_mul_i32 s52, s3, {XSTR}
    s_add_u32 m0, s52, {XOFF}
    """)
    for n in range(4):
        a(f"buffer_load_dwordx4 v248, {WSR}, s50 offen offset:{n*1024}{SC} lds", tag="xdma")
    assert KVT == 0

ACC, AB, FB, QR, SR, SM = 8, (40, 72), (104, 136), 168, 184, 216
SCAL = 250
ST1L = 84992
def conv_esetup(a, R):
    a(f"""
    v_and_b32 v{R}, 15, v1
    v_lshrrev_b32 v{R+1}, 4, v1
    v_lshlrev_b32 v{R}, 4, v{R}
    v_lshl_add_u32 v{R}, v{R+1}, 2, v{R}        ; 16a+4h
    v_lshlrev_b32 v{R+1}, 2, v{R}
    v_add_u32 v{R+1}, {ST1L}, v{R+1}
    v_lshlrev_b32 v{R}, 1, v{R}
    s_mul_i32 s65, s58, {PT_}
    s_add_u32 s65, s65, {QT}
    s_lshl_b32 s66, s3, 12
    s_add_u32 s67, s66, {ST1}
    s_lshl_b32 s55, s58, 2
    s_add_u32 s55, s55, {MOD}
    s_add_u32 s56, s55, 5120
    s_add_u32 s57, s55, 10240
    s_lshl_b32 s59, s58, 1
    v_mov_b32 v250, 0
    v_mov_b32 v251, s59
    v_mov_b32 v252, 0
    global_load_short_d16_hi v250, v251, {sp(SSD)}
    """)
def conv_eloads():
    L = []
    L = [f"s_add_u32 m0, s66, {ST1L}"] + [(f"buffer_load_dwordx4 v248, {WSR}, s67 offen offset:{n*1024}{SC} lds", "st1") for n in range(4)]
    L += [f"buffer_load_dword v254, v252, {WSR}, s55 offen{SC}", f"buffer_load_dword v255, v252, {WSR}, s55 offen offset:2560{SC}",
          f"buffer_load_dword v249, v252, {WSR}, s56 offen{SC}", f"buffer_load_dword v253, v252, {WSR}, s57 offen{SC}"]
    L += [f"buffer_load_dwordx2 {vr(QR+2*t,2)}, v6, {WSR}, s65 offen offset:{512*t}{SC}" for t in range(8)]
    return L
def conv_streads():
    L = []
    for t in range(8):
        L.append(f"ds_read_b128 {vr(SR+4*t,4)}, v7 offset:{1024*t}")
        L.append(f"ds_read_b128 {vr(SM+4*t,4)}, v7 offset:{8192+1024*t}")
    return L

def conv_loads(c):
    L = []
    b = c & 1
    for u in range(8):
        L.append(f"ds_read_b128 {vr(FB[b]+4*u,4)}, v5 offset:{512*(7-u)+64*c}")
        L.append(f"ds_read_b64 {vr(AB[b]+4*u,2)}, v4 offset:{512*u+64*c}")
        L.append(f"ds_read_b64 {vr(AB[b]+4*u+2,2)}, v4 offset:{512*u+64*c+8}")
    return L
CONV_RD = [k for k in range(2, 34) if k % 4 != 1]
def conv_sched():
    sc = Sched(288)
    for c in range(7):
        for k, l in zip(CONV_RD, conv_loads(c + 1)): sc.force(36*c + k, [l])
        sc.force(36*c + 35, ["s_waitcnt lgkmcnt(6)"])
    return sc
def conv_main(a, sc):
    a(f"""
    v_and_b32 v2, 15, v1                ; r / a
    v_lshrrev_b32 v3, 4, v1             ; h
    v_add_u32 v4, 1, v2
    v_and_b32 v5, 3, v4                 ; copy j
    v_sub_u32 v4, v4, v5                ; r+1-j
    v_add_u32 v4, 24, v4                ; +8 +16
    v_lshlrev_b32 v4, 1, v4
    v_mul_u32_u24 v5, {KSTR}, v5
    v_add_u32 v4, v4, v5
    v_lshlrev_b32 v5, 4, v3
    v_sub_u32 v4, v4, v5
    s_mul_i32 s51, s3, {KCH}
    v_add_u32 v4, s51, v4               ; A address
    v_lshlrev_b32 v2, 5, v2
    v_add_u32 v2, v2, v5
    s_mul_i32 s52, s3, {XSTR}
    s_add_u32 s52, s52, {XOFF+2*(2056-1792)}
    v_sub_u32 v5, s52, v2               ; F address (w'=7, c=0)
    """)
    a(f"""
    v_lshlrev_b32 v2, 3, v3
    v_and_b32 v3, 15, v1
    v_sub_u32 v2, v2, v3
    v_subrev_u32 v2, 9, v2              ; p = 8h - r - 9: position of filter tap 0 inside this lane's fragment
    v_and_b32 v3, 1, v2
    v_cmp_eq_u32 vcc, 1, v3
    v_lshrrev_b32 v3, 16, v250
    v_cndmask_b32 v3, v3, v250, vcc
    v_lshrrev_b32 v2, 1, v2
    """)
    for d in range(4):
        a(f"v_cmp_eq_u32 vcc, {d}, v2\nv_cndmask_b32 v{QR+d}, 0, v3, vcc")
    a.waitv("xdma")
    for l in conv_loads(0): a(l)
    n = 0
    for c in range(8):
        b = c & 1
        pairs = sorted([(u, w) for u in range(8) for w in range(8 - u)], key=lambda p: (max(p), p[0] + p[1]))
        seen = set()
        for k, (u, w) in enumerate(pairs):
            t = u + w
            cin = vr(ACC + 4*t, 4) if (c > 0 or t in seen) else "0"
            seen.add(t)
            a(f"v_mfma_f32_16x16x32_bf16 {vr(ACC+4*t,4)}, {vr(AB[b]+4*u,4)}, {vr(FB[b]+4*w,4)}, {cin}")
            if c == 0 and u == 0:
                a(f"v_mfma_f32_16x16x32_bf16 {vr(ACC+4*t,4)}, {vr(QR,4)}, {vr(FB[b]+4*w,4)}, {vr(ACC+4*t,4)}")
            sc.emit(a, n)
            n += 1

def conv_post(a):
    T, QF = 104, 40
    a(f"""
    s_mul_i32 s50, s58, {PT_}
    s_add_u32 s51, s50, {A1T}
    v_mul_f32 v251, v249, v255
    v_mul_f32 v252, v249, v254
    """)
    for t in range(8):
        q = QF + 4*t
        unpack(a, q, q + 1, QR + 2*t); unpack(a, q + 2, q + 3, QR + 2*t + 1)
        for p in range(2):
            r, m = SR + 4*t + 2*p, SM + 4*t + 2*p
            a(f"v_pk_fma_f32 {vr(r,2)}, {vr(q+2*p,2)}, {vr(r,2)}, {vr(m,2)}")
        for p in range(2):
            r = SR + 4*t + 2*p
            a(f"v_pk_fma_f32 {vr(r,2)}, {vr(r,2)}, v[250:251], v[252:253] op_sel:[0,1,0] op_sel_hi:[1,1,0]")
        for p in range(2):
            x = ACC + 4*t + 2*p
            a(f"v_pk_fma_f32 {vr(x,2)}, {vr(x,2)}, {vr(SR+4*t+2*p,2)}, {vr(q+2*p,2)}")
        for p in range(2):
            x = ACC + 4*t + 2*p
            a(f"v_pk_mul_f32 {vr(SR+4*t+2*p,2)}, {vr(x,2)}, v[252:253] op_sel:[0,1] op_sel_hi:[1,1]")
        for p in range(2):
            a(f"v_cvt_pk_bf16_f32 v{T+2*t+p}, v{SR+4*t+2*p}, v{SR+4*t+2*p+1}")
        a(f"buffer_store_dwordx2 {vr(T+2*t,2)}, v6, {WSR}, s51 offen offset:{512*t}{SC}", tag="a1st")
    for t in range(8):
        for p in range(2):
            a(f"v_cvt_pk_bf16_f32 v{136+2*t+p}, v{ACC+4*t+2*p}, v{ACC+4*t+2*p+1}")
XBL = 40960
XBS = 144
def conv_x1lds(a):
    a(f"""
    v_and_b32 v2, 15, v1
    v_mul_u32_u24 v2, {XBS}, v2
    v_lshrrev_b32 v3, 4, v1
    v_lshl_add_u32 v2, v3, 3, v2
    s_lshl_b32 s50, s3, 5
    s_add_u32 s50, s50, {XBL}
    v_add_u32 v2, s50, v2
    """)
    for t in range(8): a(f"ds_write_b64 v2, {vr(136+2*t,2)} offset:{16*XBS*t}")
def conv_post2(a, sq):
    a(f"""
    v_lshrrev_b32 v2, 3, v0
    v_mul_u32_u24 v4, {XBS}, v2
    v_bfe_u32 v3, v0, 2, 1
    v_lshl_add_u32 v4, v3, 6, v4
    v_and_b32 v3, 3, v0
    v_lshl_add_u32 v4, v3, 3, v4
    v_add_u32 v4, {XBL}, v4
    v_and_b32 v3, 7, v0
    v_mul_u32_u24 v2, {640*32}, v2
    v_lshl_add_u32 v2, v3, 4, v2
    s_lshl_b32 s50, s{sq}, 7
    s_add_u32 s50, s50, {X1T}
    s_mov_b32 s51, 0x05040100
    s_mov_b32 s52, 0x07060302
    """)
    for n in range(4):
        a(f"ds_read_b64 {vr(8+4*n,2)}, v4 offset:{32*XBS*n}")
        a(f"ds_read_b64 {vr(10+4*n,2)}, v4 offset:{32*XBS*n+32}")
    for n in range(4):
        for r in range(4): a(f"v_perm_b32 v{136+4*n+r}, v{10+4*n+(r>>1)}, v{8+4*n+(r>>1)}, s{51+(r&1)}")
        a(f"buffer_store_dwordx4 {vr(136+4*n,4)}, v2, {WSR}, s50 offen{SC}", tag="x1st")
        if n < 3: a(f"s_add_u32 s50, s50, {32*640*32}")

def st2_setup(a, sj):
    a(f"""
    v_and_b32 v2, 7, v0
    v_lshlrev_b32 v2, 1, v2
    v_xor_b32 v2, s{sj}, v2
    v_lshlrev_b32 v2, 4, v2
    v_lshl_add_u32 v218, v0, 8, v2
    v_add_u32 v219, 0x10000, v218
    v_add_u32 v220, 0x20000, v218
    v_lshlrev_b32 v2, 2, v0
    v_mov_b32 v3, 0x80000000
    v_cmp_gt_u32 vcc, 128, v0
    v_cndmask_b32 v220, v219, v220, vcc
    v_cndmask_b32 v3, v3, v2, vcc
    s_lshl_b32 s50, s{R1}, 7
    s_add_u32 s50, s50, {ICB}
    buffer_load_dword v221, v2, {WSR}, s50 offen{SC}
    buffer_load_dword v222, v2, {WSR}, s50 offen offset:1024{SC}
    buffer_load_dword v223, v3, {WSR}, s50 offen offset:2048{SC}
    """)
def st2_reads(R): return [f"ds_read_b128 {vr(R+4*n,4)}, v{218+n}" for n in range(3)]
def st2_partial_list(R, T, ldsoff):
    SUM, SQ = T, T + 8
    B = []
    for n in range(3):
        for d in range(4):
            x = SUM + 2*d if n == 0 else 2
            sel = "op_sel:[0,1] op_sel_hi:[1,1]" if n != 1 else "op_sel_hi:[1,0]"
            sc = f"v[{220 if n == 0 else 222}:{221 if n == 0 else 223}]"
            B += [f"v_lshlrev_b32 v{x}, 16, v{R+4*n+d}", f"v_and_b32 v{x+1}, 0xffff0000, v{R+4*n+d}", f"v_pk_mul_f32 {vr(x,2)}, {vr(x,2)}, {sc} {sel}"]
            if n == 0: B.append(f"v_pk_mul_f32 {vr(SQ+2*d,2)}, {vr(x,2)}, {vr(x,2)}")
            else: B += [f"v_pk_add_f32 {vr(SUM+2*d,2)}, {vr(SUM+2*d,2)}, {vr(x,2)}", f"v_pk_fma_f32 {vr(SQ+2*d,2)}, {vr(x,2)}, {vr(x,2)}, {vr(SQ+2*d,2)}"]
    L = ["\n".join(B)]
    sw = lambda t: costed(lambda a: a(t), "v", 1)
    L += [sw(f"v_permlane32_swap_b32 v{SUM+i}, v{SQ+i}") for i in range(8)]
    L += [f"v_add_f32 v{SUM+i}, v{SUM+i}, v{SQ+i}" for i in range(8)]
    L += [sw(f"v_permlane16_swap_b32 v{SUM+i}, v{SUM+4+i}") for i in range(4)]
    L += [f"v_add_f32 v{SUM+i}, v{SUM+i}, v{SUM+4+i}" for i in range(4)]
    for sh in (8, 4, 2, 1):
        L += [f"v_add_f32_dpp v{SUM+i}, v{SUM+i}, v{SUM+i} row_ror:{sh} row_mask:0xf bank_mask:0xf" for i in range(4)]
    L += [f"s_lshl_b32 s50, s3, 6\ns_add_u32 s50, s50, {ldsoff}", "v_and_b32 v2, 48, v1", "v_add_u32 v2, s50, v2",
          f"s_mov_b32 exec_lo, 0x00010001\ns_mov_b32 exec_hi, 0x00010001\nds_write_b128 v2, {vr(SUM,4)}\ns_mov_b64 exec, -1"]
    return L

def st2_final_list(sb, T, ldsoff, tag):
    L = ["v_lshlrev_b32 v2, 2, v1", "v_and_b32 v2, 28, v2", f"v_add_u32 v2, {ldsoff}, v2"]
    L += [costed(lambda a, w=w: a(f"ds_read2_b32 {vr(T+2*w,2)}, v2 offset0:{16*w} offset1:{16*w+8}"), "v", 1) for w in range(4)]
    L += [f"s_lshl_b32 s50, s{sb}, 7\ns_add_u32 s50, s50, {ST2}", "v_lshlrev_b32 v2, 4, v1", f"v_mov_b32 v{T+9}, s{tag}", f"v_mov_b32 v{T+11}, s{tag}"]
    for x, y in ((0, 2), (1, 3), (4, 6), (5, 7), (0, 4), (1, 5)): L.append(f"v_add_f32 v{T+x}, v{T+x}, v{T+y}")
    b = Asm(); st_finalize(b, T, T + 1, T + 8, T + 10, T + 4)
    L += [(costed(lambda a, t=x.text: a(t), "v", 1) if "rsq" in x.text else x.text) for k, x in b.items if k == "ins"]
    L += [f"s_mov_b64 exec, 0xff\nbuffer_store_dwordx4 {vr(T+8,4)}, v2, {WSR}, s50 offen{SC}\ns_mov_b64 exec, -1"]
    return L

G1ACC, G1X, G1AD, G1CW, G1SW, G1ST, G1DA = 8, (104, 136), 168, 176, 188, 200, 216
MBL = 67584
def g1_table_load(MBL=MBL):
    return [f"s_mul_i32 s52, s3, 2560\ns_add_u32 m0, s52, {MBL}", f"s_lshl_b32 s52, s{R1}, 7\ns_add_u32 s52, s52, {MODB}",
            (f"buffer_load_dwordx4 v248, {WSR}, s52 offen{SC} lds", "tab"), (f"buffer_load_dwordx4 v248, {WSR}, s52 offen offset:1024{SC} lds", "tab"),
            "s_mov_b32 exec_hi, 0", (f"buffer_load_dwordx4 v248, {WSR}, s52 offen offset:2048{SC} lds", "tab"), "s_mov_b32 exec_hi, -1"]
G1BC = 176
def g1_bias(a, k0, k1, R, MBL=MBL, AV=165):
    if k0 == 0:
        a(f"""
        v_and_b32 v{AV}, 1, v1
        v_lshlrev_b32 v{AV}, 6, v{AV}
        v_and_b32 v{AV+1}, 48, v1
        s_mul_i32 s57, s3, 2560
        s_add_u32 s57, s57, {MBL}
        v_add3_u32 v{AV}, v{AV}, v{AV+1}, s57
        """)
        a.waitv("tab")
    if k0 >= k1: return
    rd = [f"ds_read_b128 {vr(R+4*(ks%8),4)}, v{AV} offset:{128*ks}" for ks in range(k0, k1)]
    for k in range(min(6, len(rd))): a(rd.pop(0))
    for ks in range(k0, k1):
        for T in range(3):
            cin = vr(G1BC + 4*T, 4) if ks else "0"
            a(f"v_mfma_f32_16x16x32_bf16 {vr(G1BC+4*T,4)}, {ar(12*ks+4*T,4)}, {vr(R+4*(ks%8),4)}, {cin}")
            if T == 0 and rd: a(rd.pop(0))
def g1_bias_end():
    L = []
    for i in range(12):
        L.append(f"v_mov_b32_dpp v{G1SW+i}, v{G1BC+i} quad_perm:[1,1,3,3] row_mask:0xf bank_mask:0xf")
        L.append(f"v_mov_b32_dpp v{G1CW+i}, v{G1BC+i} quad_perm:[0,0,2,2] row_mask:0xf bank_mask:0xf")
    return L

def g1_asetup(a, si):
    a(f"""
    v_lshrrev_b32 v2, 4, v1             ; k_local
    v_and_b32 v3, 15, v1                ; c'
    v_lshlrev_b32 v4, 1, v2
    v_xor_b32 v4, v3, v4                ; c (parity 0)
    v_xor_b32 v5, 8, v4
    v_mul_u32_u24 v2, {PT_}, v2
    v_lshl_add_u32 v{G1DA}, v4, 4, v2
    v_lshl_add_u32 v{G1DA+1}, v5, 4, v2
    v_add_u32 v{G1DA}, {A1T}, v{G1DA}
    v_add_u32 v{G1DA+1}, {A1T+4*PT_}, v{G1DA+1}
    s_mul_i32 s62, s3, {8*PT_}
    s_lshl_b32 s50, s{si}, 8
    s_add_u32 s62, s62, s50
    s_mul_i32 s50, s{R1}, {32*PT_}
    s_add_u32 s62, s62, s50
    s_lshl_b32 s63, s3, 11
    v_lshlrev_b32 v251, 4, v3
    v_lshrrev_b32 v2, 2, v1             ; 4h+r
    v_and_b32 v3, 7, v2                 ; y
    v_lshlrev_b32 v2, 8, v2
    v_and_b32 v4, 3, v1
    v_lshl_add_u32 v2, v4, 3, v2        ; + b*16 + (c4&1)*8
    """)
    for rt in range(8):
        a(f"v_xor_b32 v4, {rt}, v3\nv_lshl_add_u32 v{G1AD+rt}, v4, 5, v2")

def g1_dma(ks):
    return [f"s_add_u32 m0, s63, {ks*8192}",
            f"buffer_load_dwordx4 v{G1DA}, {WSR}, s62 offen{SC} lds",
            f"s_add_u32 m0, s63, {ks*8192+1024}",
            f"buffer_load_dwordx4 v{G1DA+1}, {WSR}, s62 offen{SC} lds",
            f"s_add_u32 s62, s62, {32*PT_}", f"s_sub_u32 s35, s62, {640*PT_}", "s_min_u32 s62, s62, s35"]

def g1_stloads(sreg):
    return [f"buffer_load_dwordx4 {vr(G1ST+4*rt,4)}, v251, {WSR}, s{sreg} offen offset:{256*rt}{SC}" for rt in range(8)]
def g1_stcheck(tag):
    L = [f"v_xor_b32 v2, s{tag}, v{G1ST+1}"]
    L += [f"v_bitop3_b32 v2, v{G1ST+1+2*k}, s{tag}, v2 bitop3:0xbe" for k in range(1, 16)]
    return L

def g1_epilogue(a, si, sj):
    P, B = 104, 136
    a(f"""
    s_lshl_b32 s50, s{si}, 3
    s_mul_i32 s50, s50, 192
    s_mul_i32 s51, s{sj}, 12
    s_mul_i32 s52, s3, 3
    s_add_u32 s50, s50, s51
    s_add_u32 s50, s50, s52
    s_lshl_b32 s50, s50, 8
    s_add_u32 s50, s50, {HB}
    v_bfe_u32 v4, v1, 4, 1
    v_lshrrev_b32 v5, 5, v1
    v_and_b32 v3, 15, v1
    v_lshlrev_b32 v3, 4, v3
    v_mul_u32_u24 v2, {192*256}, v4
    v_lshl_add_u32 v2, v5, 8, v2
    v_add_u32 v2, v2, v3
    v_lshl_add_u32 v4, v4, 1, v5
    v_mul_u32_u24 v4, {192*256}, v4
    v_add_u32 v3, v4, v3
    """)
    def fix(rt, T):
        ac = G1ACC + 12*rt + 4*T; st = G1ST + 4*rt; b = B + 4*((rt + T) & 1)
        for p in range(2):
            a(f"v_pk_fma_f32 {vr(b+2*p,2)}, {vr(G1CW+4*T+2*p,2)}, {vr(st+2,2)}, {vr(G1SW+4*T+2*p,2)} op_sel_hi:[1,0,1]")
        for p in range(2):
            a(f"v_pk_fma_f32 {vr(ac+2*p,2)}, {vr(ac+2*p,2)}, {vr(st,2)}, {vr(b+2*p,2)} op_sel_hi:[1,0,1]")
    def prod(x, y, d):
        for p in range(2): a(f"v_pk_mul_f32 {vr(x+2*p,2)}, {vr(x+2*p,2)}, {vr(y+2*p,2)}")
        for p in range(2): a(f"v_cvt_pk_bf16_f32 v{d+p}, v{x+2*p}, v{x+2*p+1}")
    for G in range(2):
        for pp in range(2):
            p0 = P + 12*G + 4*pp
            for k in range(2):
                rt = 4*G + 2*pp + k
                fix(rt, 0); fix(rt, 1)
                prod(G1ACC + 12*rt, G1ACC + 12*rt + 4, p0 + 2*k)
            a(f"v_permlane16_swap_b32 v{p0}, v{p0+2}\nv_permlane16_swap_b32 v{p0+1}, v{p0+3}")
            a(f"buffer_store_dwordx4 {vr(p0,4)}, v2, {WSR}, s50 offen{SC}")
            if pp == 0: a(f"s_add_u32 s50, s50, {2*192*256}")
        p0 = P + 12*G + 8
        for pp in range(2):
            ra, rb = G1ACC + 12*(4*G + 2*pp) + 8, G1ACC + 12*(4*G + 2*pp + 1) + 8
            fix(4*G + 2*pp, 2); fix(4*G + 2*pp + 1, 2)
            for i in range(4): a(f"v_permlane32_swap_b32 v{ra+i}, v{rb+i}")
            prod(ra, rb, p0 + 2*pp)
        a(f"v_permlane16_swap_b32 v{p0}, v{p0+2}\nv_permlane16_swap_b32 v{p0+1}, v{p0+3}")
        a(f"s_sub_u32 s51, s50, {2*192*256}")
        a(f"buffer_store_dwordx4 {vr(p0,4)}, v3, {WSR}, s51 offen offset:512{SC}")
        if G == 0: a(f"s_add_u32 s50, s50, {2*192*256}")

G2ACC, G2X1, G2GB, G2H, G2NH, G2PT = (8, 28), 48, 68, 88, 16, 160
def g2_rot(a, sr2):
    a(f"s_lshl_b32 s4, s{sr2}, 10")
    for n in range(1, 12):
        a(f"s_add_u32 s{4+n}, s{3+n}, 1024\ns_sub_u32 s35, s{4+n}, {12*1024}\ns_min_u32 s{4+n}, s{4+n}, s35")
def g2_wsetup(a, sj2):
    a(f"""
    s_lshl_b32 s50, s{sj2}, 2
    s_add_u32 s50, s50, s3
    s_mul_i32 s50, s50, 61440
    s_add_u32 s50, s50, {WD}
    v_add_u32 v252, s50, v248
    v_add_u32 v253, 4096, v252
    """)
def g2_wloads():
    L = []
    for n in range(60):
        ks, T = divmod(n, 5)
        if T == 0: L.append(f"s_mul_i32 s64, s{4+ks}, 5")
        L.append(f"buffer_load_dwordx4 {ar(4*n,4)}, v{253 if T == 4 else 252}, {WSR}, s64 offen offset:{(T%4)*1024}{SC}")
    return L

def g2_setup(a, si2, sj2):
    a(f"s_lshl_b32 s50, s{si2}, 2\ns_mul_i32 s51, s3, 48")
    for sg in range(4):
        a(f"""
        s_add_u32 s52, s3, {1+sg}
        s_and_b32 s52, s52, 3
        s_mul_i32 s53, s52, {3*5120}
        s_add_u32 s52, s52, s50
        s_mul_i32 s52, s52, 192
        s_add_u32 s52, s52, s51
        s_lshl_b32 s52, s52, 8
        s_add_u32 s52, s52, {HB}
        v_add_u32 v{240+sg}, s52, v248
        """)
        if sg < 3: a(f"v_add_u32 v{4+sg}, s53, v248")
    a(f"""
    s_mul_i32 s53, s3, {3*5120}
    v_add_u32 v246, s53, v248
    s_lshl_b32 s50, s{si2}, 6
    s_lshl_b32 s51, s3, 4
    s_add_u32 s50, s50, s51
    v_and_b32 v245, 15, v1
    v_add_u32 v7, s50, v245
    v_mul_u32_u24 v7, 1280, v7
    v_lshrrev_b32 v247, 4, v1
    v_lshl_add_u32 v7, v247, 3, v7
    s_mul_i32 s51, s{sj2}, 160
    v_add_u32 v7, s51, v7
    v_lshlrev_b32 v244, 7, v247
    v_lshl_add_u32 v244, v245, 2, v244
    v_lshlrev_b32 v245, 4, v247
    v_lshlrev_b32 v2, 3, v247
    v_sub_u32 v2, v7, v2
    v_and_b32 v3, 1, v247
    v_lshl_add_u32 v2, v3, 5, v2
    v_lshrrev_b32 v3, 1, v247
    v_lshl_add_u32 v247, v3, 4, v2
    s_mul_i32 s65, s{sj2}, {80*32}
    s_mul_i32 s50, s50, {640*2}
    s_add_u32 s65, s65, s50
    s_add_u32 s65, s65, {X1T}
    s_mul_i32 s66, s{sj2}, 320
    s_add_u32 s66, s66, {MOD+5*2560}
    """)
def g2_eloads():
    L = []
    for T in range(5):
        L.append(f"buffer_load_dwordx4 {vr(G2GB+4*T,4)}, v245, {WSR}, s66 offen offset:{64*T}{SC}")
        for e in range(2):
            L.append(f"buffer_load_dword v{G2X1+4*T+2*e+1}, v244, {WSR}, s65 offen offset:{512*T+64*e}{SC}")
    return L

def g2_main(a, stamp=lambda a, n: None, npre=12, extra=(), ostore="", e0=40):
    def hload(n):
        sg, ks = divmod(n, 12)
        return f"buffer_load_dwordx4 {vr(G2H+4*(n%G2NH),4)}, v{240+sg}, {WSR}, s{4+ks} offen{SC}"
    for n in range(npre): a(hload(n))
    sc = Sched(240); sc.keep_s = False
    p = 0
    for nh in range(npre, 48):
        p = sc.vmem([[hload(nh)]], max(p, 5 * (nh - G2NH) + 4 if nh >= G2NH else 0), 1) + 2
    p = sc.vmem(list(extra), e0, 4)
    for i in range(0, 20, 2):
        p = sc.seq([f"v_lshlrev_b32 v{G2X1+i}, 16, v{G2X1+i+1}", f"v_and_b32 v{G2X1+i+1}, 0xffff0000, v{G2X1+i+1}"], max(p, 150))
    assert p < 190
    PT = G2PT
    for sg in range(1, 4):
        prev = G2ACC[(sg - 1) & 1]
        q = sc.seq([f"ds_write_b128 v{4+sg-1}, {vr(prev+4*T,4)} offset:{(sg-1)*5120+T*1024}" for T in range(5)], 60 * sg + 4, 2)
    post = ["s_waitcnt lgkmcnt(0)\ns_barrier"]
    rd = [f"ds_read_b128 {vr(PT+4*m,4)}, v246 offset:{m*1024}" for m in range(15)]
    q = sc.seq(post, q + 4)
    q1 = sc.seq(rd, q)
    q = sc.seq([f"v_add_f32 v{PT+i}, v{PT+i}, v{PT+20+i}" for i in range(20)], q + 14)
    q = sc.seq([f"v_add_f32 v{PT+i}, v{PT+i}, v{PT+40+i}" for i in range(20)], max(q, q1 + 3))
    fm = [f"v_fma_f32 v{G2X1+i}, v{PT+i}, v{G2GB+i}, v{G2X1+i}" for i in range(20)]
    while fm and any(sc.ok(n, fm[0]) for n in range(q, 240)): q = sc.seq([fm.pop(0)], q)
    for sg in range(4):
        acc = G2ACC[sg & 1]
        stamp(a, f"h{sg}")
        for ks in range(12):
            n = sg * 12 + ks
            for T in range(5):
                cin = vr(acc + 4*T, 4) if ks else "0"
                a(f"v_mfma_f32_16x16x32_bf16 {vr(acc+4*T,4)}, {ar(20*ks+4*T,4)}, {vr(G2H+4*(n%G2NH),4)}, {cin}")
                sc.emit(a, 5*n + T)
    put(a, fm)
    stamp(a, "h4")
    acc = G2ACC[1]; O = G2ACC[0]
    for T in range(5):
        for p in range(2):
            x = acc + 4*T + 2*p
            a(f"v_pk_fma_f32 {vr(x,2)}, {vr(x,2)}, {vr(G2GB+4*T+2*p,2)}, {vr(G2X1+4*T+2*p,2)}")
        a(f"v_cvt_pk_bf16_f32 v{O+2*T}, v{acc+4*T}, v{acc+4*T+1}")
        a(f"v_cvt_pk_bf16_f32 v{O+2*T+1}, v{acc+4*T+2}, v{acc+4*T+3}")
        if T in (1, 3):
            a(f"v_permlane16_swap_b32 v{O+2*T-2}, v{O+2*T}\nv_permlane16_swap_b32 v{O+2*T-1}, v{O+2*T+1}")
            a(f"global_store_dwordx4 v247, {vr(O+2*T-2,4)}, {sp(OUT)} offset:{32*(T-1)}{ostore}")
    a(f"global_store_dwordx2 v7, {vr(O+8,2)}, {sp(OUT)} offset:128{ostore}")
```

```python
from phases import cost_of, costed, txt_of, put
RANK = "sdvm"
class Gaps:
    def __init__(self, N):
        self.N = N; self.fill = {}; self.s = [0] * N; self.v = [0] * N; self.d = [0] * N; self.m = [0] * N
        self.bulk = []
        self.m0 = []
    def cost(self, n, s=0, v=0, d=0):
        return max(0, self.v[n] + v + max(0, self.s[n] + s - 1) - 2) + max(0, self.d[n] + d - 1)
    def extra(self, n, it):
        k, c = cost_of(it)
        if k == "m": c = 2
        e = self.cost(n, c if k == "s" else 0, 0 if k == "s" else c, 1 if k == "d" else 0) - self.cost(n)
        if self.m[n] and k != "s": e += 1
        if k == "m" and self.m[n]: e += 4
        return e
    def force(self, n, items):
        for it in items:
            k, c = cost_of(it)
            if k == "m": c = 2; self.m[n] += 1
            self.fill.setdefault(n, []).append(it)
            if k == "s": self.s[n] += c
            else: self.v[n] += c
            if k == "d": self.d[n] += 1
        return n
    def best(self, it, lo, hi, keep=None):
        hi = max(lo, min(hi, self.N - 1))
        assert lo < self.N, f"schedule overflow ({txt_of(it)})"
        return min(range(lo, hi + 1), key=lambda n: (self.extra(n, it) + (0.5 if keep and keep(n) else 0), n))
    def chain(self, items, lo, hi=None, step=0, keep=None):
        hi = self.N - 1 if hi is None else hi
        p = lo; rank = -1; last = None
        for i, it in enumerate(items):
            r = RANK.index(cost_of(it)[0])
            if last is not None and p == last and r < rank: p += 1
            dl = lo + (hi - lo) * (i + 1) // len(items)
            p = self.best(it, min(p, self.N - 1), max(p, dl), keep); self.force(p, [it]); last = p; rank = r; p += step
        return last
    def at(self, it, n, slack=3): return self.chain([it], n, n + slack)
    def vm(self, g, lo, hi=None, cand=None):
        k = [i for i, it in enumerate(g) if cost_of(it)[0] == "m"][0]
        pre, op, post = g[:k], g[k], g[k+1:]
        m0 = any("m0" in txt_of(x) for x in pre)
        lo = max(lo, 1 if pre else 0)
        def okm0(n): return not m0 or not any(w <= n and n - 1 <= u for w, u in self.m0)
        hi = min(self.N - 1, lo + 6 if hi is None else hi)
        c = [n for n in range(lo, max(hi, lo) + 1) if okm0(n) and (cand is None or cand(n))]
        n = lo
        while not c:
            n += 1; assert n < self.N, f"schedule overflow ({txt_of(op)})"
            if okm0(n): c = [n]
        n = min(c, key=lambda n: (self.extra(n, op), n))
        if pre: self.force(n - 1, pre)
        if m0: self.m0.append((n - 1, n))
        self.force(n, [op]); tail = n
        for x in post:
            tail = self.best(x, min(tail + 1, self.N - 1), tail + 2); self.force(tail, [x])
        return n, tail
    def streams(self, S, pace, lo=0, hi=None, cand=None, wt=None):
        hi = self.N - 1 if hi is None else hi
        pos = [[] for _ in S]; after = [0] * len(S); t = float(lo)
        while True:
            n = int(t + 0.5)
            while n <= hi and ((cand and not cand(n)) or self.m[n] or any(abs(n - b) < 2 for b in self.bulk)): n += 1
            live = [i for i in range(len(S)) if len(pos[i]) < len(S[i])]
            if n > hi or not live: break
            rel = lambda i: max(S[i][len(pos[i])][1]() if callable(S[i][len(pos[i])][1]) else S[i][len(pos[i])][1], after[i])
            ready = [i for i in live if rel(i) <= n]
            if not ready:
                t = float(min(rel(i) for i in live))
                if t > hi: break
                continue
            i = min(ready, key=lambda i: S[i][len(pos[i])][2])
            g = S[i][len(pos[i])][0]
            p, tail = self.vm(g, n, n)
            pos[i].append(p); after[i] = tail + 2; self.bulk.append(p)
            t = max(t + pace * (wt[i] if wt else 1), p + 2.0)
        return pos
    def emit(self, a, n): put(a, sorted(self.fill.get(n, []), key=lambda it: RANK.index(cost_of(it)[0])))
    def over(self): return sum(self.cost(n) for n in range(self.N))
```

```python
import sys, re
from halves import *
import phases, halves
NAME = "adaLN_cond__ssm_conv_h3__glu_gated_bilinear__prompt"
OPT = {"noeb": "1", "lj": "2", "wnt": "0", "nb": "5", "xc": "240", "xf": "1", "st32": "1", "ww": "1.3", "kcl": "1", "ost": "nt", "tm": "0", "hd": "230", "lql": "30", "xl": "24", "pc": "4.5", "km": "late", "n2": "2", "ssh": "1", "pld": "285", "w0": "102", "ea": "30", "pb1": "40", "su": "11111", "mf": "0", "slate": "1", "qnt": "1", "qm": "late"}
OPT.update({x.split("=")[0][2:]: (x.split("=") + ["1"])[1] for x in sys.argv[1:] if x.startswith("--")})
OPT = {k: v for k, v in OPT.items() if v != "off"}
def O(k, d): return type(d)(OPT.get(k, d))
FA, FQ, FP2, FP3, FXE, FXL, FB_, FHE, FHL, FY, FT, FW = [FLG + 128 * n for n in (0, 160, 200, 264, 360, 520, 680, 696, 952, 1208, 1368, 1528)]
TAG, BUDGET, T16 = 48, 49, 77
S_CU, S_PU, S_I, S_J, S_I2, S_J2 = 70, 71, 72, 73, 74, 75
PP = "pp" in OPT
if PP: OPT.update(rot="0,0,0,0,0,0,0,0", goff="0", nb="0", n2="0", nc="20")
STAMPS = "stamps" in OPT
SNAMES = OPT["stamps"].split(",") if STAMPS else ["start"]
assert len(SNAMES) <= 12 and SNAMES[0] == "start"
STI = "s_memtime" if "cyc" in OPT else "s_memrealtime"
def stamp(a, name):
    if STAMPS and name in SNAMES:
        n = SNAMES.index(name)
        a(f"{'s_memrealtime' if n == 0 and 'enc' in OPT else STI} s[{78+2*n}:{79+2*n}]")
def fstamp(sc, n, name):
    if STAMPS and name in SNAMES: sc.fill.setdefault(n, []).insert(0, costed(lambda a: stamp(a, name), 's', 0))

lab = [0]
def poll(a, voff, sbase, tmp=2, TAG=TAG):
    lab[0] += 1; L = f"L_poll{lab[0]}"
    a.label(L)
    a(f"""
    buffer_load_dword v{tmp}, v{voff}, {WSR}, s{sbase} offen sc1
    s_waitcnt vmcnt(0)
    v_cmp_ne_u32 vcc, s{TAG}, v{tmp}
    s_cbranch_vccz {L}_ok
    s_cmp_eq_u32 s{BUDGET}, 0
    s_cbranch_scc1 {L}_ok
    s_sub_u32 s{BUDGET}, s{BUDGET}, 1
    s_sleep {O('psl', 1)}
    s_branch {L}
    {L}_ok:
    """)
def flagstore(a, sline, base, v=2, sr=50, TAG=TAG):
    a(f"""
    s_lshl_b32 s{sr}, s{sline}, 7
    s_add_u32 s{sr}, s{sr}, {base}
    v_mov_b32 v{v}, 0
    v_mov_b32 v{v+1}, s{TAG}
    s_mov_b64 exec, 1
    buffer_store_dword v{v+1}, v{v}, {WSR}, s{sr} offen sc1
    s_mov_b64 exec, -1
    """, cond=True)
def wflag(a, sline, base, v=254, TAG=TAG):
    lab[0] += 1; L = f"L_wf{lab[0]}"
    a(f"s_cmp_eq_u32 s3, 0\ns_cbranch_scc0 {L}")
    flagstore(a, sline, base, v, 54, TAG)
    a.label(L)
def wcount(a, base, v=254):
    lab[0] += 1; L = f"L_wf{lab[0]}"
    a(f"s_cmp_eq_u32 s3, 0\ns_cbranch_scc0 {L}")
    a(f"""
    s_lshr_b32 s54, s{S_CU}, 4
    s_lshl_b32 s54, s54, 7
    s_add_u32 s54, s54, {base}
    v_mov_b32 v{v}, 0
    v_mov_b32 v{v+1}, 1
    s_mov_b64 exec, 1
    buffer_atomic_add v{v+1}, v{v}, {WSR}, s54 offen sc1
    s_mov_b64 exec, -1
    """, cond=True)
    a.label(L)
def signal(a, sline, base, pre=None, tag=None, TAG=TAG):
    if tag: a.waitv(tag); a("s_waitcnt lgkmcnt(0)")
    else: a("s_waitcnt vmcnt(0) lgkmcnt(0)")
    a("s_barrier")
    if pre: pre()
    wflag(a, sline, base, 2, TAG)
slow = []; slow2 = []; pending = {}
def poll_issue(a, voff, sbase, tmp):
    pending[tmp] = (voff, sbase)
    a(f"buffer_load_dword v{tmp}, v{voff}, {WSR}, s{sbase} offen sc1")
def poll_check(a, voff, sbase, tmp, TAG=TAG):
    lab[0] += 1; L = f"L_chk{lab[0]}"
    assert pending.pop(tmp, None) == (voff, sbase), "poll_check without a preceding poll_issue"
    a(f"v_cmp_ne_u32 vcc, s{TAG}, v{tmp}\ns_cbranch_vccnz {L}_slow")
    a.label(L + "_back")
    slow.append((L, voff, sbase, tmp, TAG))
def emit_slow(a):
    for f in slow2: f(a)
    for L, voff, sbase, tmp, TG in slow:
        a.label(L + "_slow"); a.reset()
        poll(a, voff, sbase, tmp, TG)
        a(f"s_branch {L}_back")
def poll_lines(a, sfirst_expr, n):
    a(sfirst_expr)
    a(f"v_min_u32 v5, {n-1}, v1\nv_lshlrev_b32 v5, 7, v5")
    poll(a, 5, 52)
def small(x, tag=None): return costed(lambda a: a(x, tag=tag), "m", 1)
PI = lambda v, s, t: [costed(lambda a: poll_issue(a, v, s, t), "m", 1)]
PC = lambda v, s, t, st=None, TG=TAG: costed(lambda a: (poll_check(a, v, s, t, TG), st and stamp(a, st)), "v", 1)
def BAR(*waits, then=None, c=2):
    def f(a):
        for w in waits: (a.waitl(w[2:]) if w.startswith("l:") else a.waitv(w))
        a("s_barrier")
        if then: then(a)
    return costed(f, "s", c)

from sched2 import Gaps
halves.Sched = Gaps
MV = [(1, 3), (2, 2), (3, 1), (2, 3), (3, 2), (3, 3)][:O("mv", 0)]
_pairs = c2_pairs
halves.c2_pairs = lambda part: (_pairs(0) + MV) if part == 0 else [p for p in _pairs(1) if p not in MV]
C2M = halves.C2M = c2_list()

if "noalias" not in OPT: A1T = halves.A1T = KVT
def preH(a, v=245, t=2):
    a(f"""
    v_min_u32 v{t}, 47, v1
    v_cmp_lt_u32 vcc, 23, v{t}
    v_cndmask_b32 v{t+1}, 0, 1, vcc
    v_mul_u32_u24 v{t+1}, {49152 - 24*128}, v{t+1}
    v_lshl_add_u32 v{t}, v{t}, 7, v{t+1}
    s_and_b32 s50, s3, 1
    s_lshl_b32 s50, s50, 1
    s_lshr_b32 s51, s3, 1
    s_lshl_b32 s51, s51, 6
    s_add_u32 s50, s50, s51
    s_lshl_b32 s51, s{S_I}, 2
    s_add_u32 s50, s50, s51
    s_mul_i32 s50, s50, 49152
    s_mul_i32 s51, s{S_J}, 3072
    s_add_u32 s50, s50, s51
    s_add_u32 s50, s50, {HB}
    """)
    a(f"buffer_load_dword v{v}, v{t}, {WSR}, s50 offen", tag="pre")
def preT(a, base, rev, v, t=2):
    a(f"""
    s_lshr_b32 s50, s76, 4
    s_mul_i32 s50, s50, {64*PT_}
    s_and_b32 s51, s76, 15
    s_lshl_b32 s51, s51, 8
    """ + (f"s_sub_u32 s51, {4096-256}, s51\n" if rev else "") + f"""
    s_add_u32 s50, s50, s51
    s_lshl_b32 s51, s3, 4
    s_mul_i32 s51, s51, {PT_}
    s_add_u32 s50, s50, s51
    s_add_u32 s50, s50, {base}
    v_bfe_u32 v{t}, v1, 1, 4
    v_mul_u32_u24 v{t}, {PT_}, v{t}
    v_and_b32 v{t+1}, 1, v1
    v_lshl_add_u32 v{t}, v{t+1}, 7, v{t}
    """)
    a(f"buffer_load_dword v{v}, v{t}, {WSR}, s50 offen nt", tag="pre")
SL = [WSLOT2 * n for n in range(5)]
phases.PA = 25536
ST1L = 62464
KB = 78848
XOFF = KB + 4 * KCH
assert XOFF + 4 * XSTR == 163840
def kload(a):
    a(f"s_lshl_b32 s50, s58, 12\ns_mul_i32 s51, s3, {KCH}\ns_add_u32 m0, s51, {KB+32}")
    srd(a, 44, SSMK, S * D * 2)
    for n in range(4): a(f"buffer_load_dwordx4 v248, s[44:47], s50 offen offset:{1024*n}{' nt' if 'knt' not in OPT else ''} lds", tag="kdma")
def kzero(a, keep):
    a(f"""
    s_mul_i32 s51, s3, {KCH}
    s_add_u32 s51, s51, {KB}
    v_add_u32 v{keep}, s51, v248
    v_lshrrev_b32 v8, 1, v1
    v_mul_u32_u24 v8, {KSTR}, v8
    v_and_b32 v4, 1, v1
    v_lshl_add_u32 v8, v4, 4, v8
    v_add_u32 v8, s51, v8
    v_mov_b32 v4, 0
    v_mov_b32 v5, 0
    v_mov_b32 v6, 0
    v_mov_b32 v7, 0
    s_mov_b64 exec, 0xff
    ds_write_b128 v8, v[4:7]
    s_mul_i32 s52, s3, {XSTR}
    s_add_u32 s52, s52, {XOFF+4096}
    s_mov_b64 exec, 0x3fffffff
    v_add_u32 v8, s52, v248
    ds_write_b128 v8, v[4:7]
    s_mov_b64 exec, -1
    """)
def kcopies(a, keep, R=8):
    a.waitv("kdma")
    for n in range(4):
        a(f"ds_read_b128 {vr(R+6*n,4)}, v{keep} offset:{32+1024*n}")
        a(f"ds_read_b64 {vr(R+4+6*n,2)}, v{keep} offset:{48+1024*n}")
    a(f"""
    s_mov_b64 exec, 1
    v_lshlrev_b32 v80, 16, v{R}
    v_alignbit_b32 v81, v{R+1}, v{R}, 16
    ds_write_b32 v{keep}, v80 offset:{KSTR+28}
    ds_write_b32 v{keep}, v{R} offset:{2*KSTR+28}
    ds_write_b32 v{keep}, v80 offset:{3*KSTR+24}
    ds_write_b32 v{keep}, v81 offset:{3*KSTR+28}
    s_mov_b64 exec, -1
    """)
    for n in range(4):
        c = R + 6*n; t = 56 + 12*(n & 1)
        for d in range(4): a(f"v_alignbit_b32 v{t+d}, v{c+d+1}, v{c+d}, 16")
        a(f"v_pk_mov_b32 {vr(t+4,2)}, {vr(c,2)}, {vr(c+2,2)} op_sel:[1,0]")
        a(f"v_pk_mov_b32 {vr(t+6,2)}, {vr(c+2,2)}, {vr(c+4,2)} op_sel:[1,0]")
        for d in range(4): a(f"v_alignbit_b32 v{t+8+d}, v{c+d+2}, v{c+d+1}, 16")
        for j in range(1, 4):
            a(f"ds_write_b128 v{keep}, {vr(t+4*(j-1),4)} offset:{j*KSTR+32+1024*n}")
def xload(a):
    a(f"s_mul_i32 s50, s58, {PT_}\ns_mul_i32 s52, s3, {XSTR}\ns_add_u32 m0, s52, {XOFF}")
    for n in range(4): a(f"buffer_load_dwordx4 v248, {WSR}, s50 offen offset:{n*1024}{SC} lds", tag="xdma")
AA, AF = 229, 230
def conv_addr(a):
    a(f"""
    v_and_b32 v2, 15, v1                ; r / a
    v_lshrrev_b32 v8, 4, v1             ; h
    v_add_u32 v4, 1, v2
    v_and_b32 v5, 3, v4                 ; copy j
    v_sub_u32 v4, v4, v5                ; r+1-j
    v_add_u32 v4, 24, v4
    v_lshlrev_b32 v4, 1, v4
    v_mul_u32_u24 v5, {KSTR}, v5
    v_add_u32 v4, v4, v5
    v_lshlrev_b32 v5, 4, v8
    v_sub_u32 v4, v4, v5
    s_mul_i32 s51, s3, {KCH}
    s_add_u32 s51, s51, {KB}
    v_add_u32 v{AA}, s51, v4
    v_lshlrev_b32 v2, 5, v2
    v_add_u32 v2, v2, v5
    s_mul_i32 s52, s3, {XSTR}
    s_add_u32 s52, s52, {XOFF+2*(2056-1792)}
    v_sub_u32 v{AF}, s52, v2
    """)
def conv_dfrag(a):
    a(f"""
    v_lshrrev_b32 v3, 4, v1
    v_lshlrev_b32 v2, 3, v3
    v_and_b32 v3, 15, v1
    v_sub_u32 v2, v2, v3
    v_subrev_u32 v2, 9, v2              ; p = 8h - r - 9: position of filter tap 0 inside this lane's fragment
    v_and_b32 v3, 1, v2
    v_cmp_eq_u32 vcc, 1, v3
    v_lshrrev_b32 v3, 16, v250
    v_cndmask_b32 v3, v3, v250, vcc
    v_lshrrev_b32 v2, 1, v2
    """)
    for d in range(4): a(f"v_cmp_eq_u32 vcc, {d}, v2\nv_cndmask_b32 v{DFR+d}, 0, v3, vcc")
QR, SR, SM, ET = 176, 184, 200, 232
def esetup(a):
    a(f"""
    v_and_b32 v2, 15, v1
    v_lshrrev_b32 v8, 4, v1
    v_lshlrev_b32 v249, 6, v2
    v_lshl_add_u32 v249, v8, 4, v249
    v_add_u32 v249, {ST1L}, v249
    v_and_b32 v231, 1, v8
    v_lshlrev_b32 v231, 9, v231
    v_lshl_add_u32 v231, v2, 5, v231
    v_lshrrev_b32 v8, 1, v8
    v_lshl_add_u32 v231, v8, 4, v231
    s_mul_i32 s68, s58, {PT_}
    s_add_u32 s65, s68, {QT}
    s_add_u32 s68, s68, {A1T}
    s_lshl_b32 s66, s3, 12
    s_add_u32 s67, s66, {ST1}
    s_lshl_b32 s59, s58, 1
    v_mov_b32 v250, 0
    v_mov_b32 v251, s59
    global_load_short_d16_hi v250, v251, {sp(SSD)}
    v_min_u32 v240, 11, v1             ; lanes 0..7: statistics units 8w.., lanes 8..11: q tiles 4w.. of this channel group
    v_lshlrev_b32 v240, 7, v240
    s_lshr_b32 s52, s{S_CU}, 4
    s_lshl_b32 s52, s52, 11
    s_add_u32 s59, s52, {FA}
    s_lshl_b32 s69, s3, 9
    s_sub_u32 s52, s52, s69
    s_add_u32 s52, s52, {FT-FQ-8*128}
    v_cmp_lt_u32 vcc, 7, v1
    v_mov_b32 v241, s52
    v_cndmask_b32 v241, 0, v241, vcc
    v_add_u32 v240, v240, v241
    """ + ("" if not PP else f"""
    v_min_u32 v241, 16, v1             ; lanes 12..16: weight pieces of k-steps 5w..
    v_lshlrev_b32 v241, 10, v241
    s_lshr_b32 s52, s{S_J}, 1
    s_lshl_b32 s52, s52, 7
    s_lshl_b32 s69, s3, 12
    s_add_u32 s52, s52, s69
    s_add_u32 s52, s52, {FW-FQ-12*1024}
    v_add_u32 v241, s52, v241
    v_cmp_lt_u32 vcc, 11, v1
    v_cndmask_b32 v240, v240, v241, vcc
    """) + f"""
    s_lshl_b32 s69, s3, 10
    s_add_u32 s69, s69, {FQ}
    s_lshl_b32 s55, s58, 3
    s_add_u32 s55, s55, {MODT}
    v_and_b32 v253, 3, v1              ; granules sa, ca1, ga, cb1
    v_cmp_eq_u32 vcc, 3, v253
    v_addc_co_u32 v253, vcc, 0, v253, vcc
    v_mul_u32_u24 v253, 5120, v253
    v_min_u32 v241, 9, v1              ; 1+cb units (reciprocal table)
    v_lshlrev_b32 v241, 7, v241
    s_mov_b32 s60, {FP2+40*128}
    v_min_u32 v242, 15, v1
    v_lshlrev_b32 v242, 7, v242
    """)
def st1dma(): return [[f"s_add_u32 m0, s66, {ST1L}", (f"buffer_load_dwordx4 v248, {WSR}, s67 offen offset:{n*1024}{SC} lds", "st1")] for n in range(4)]
def qloads(h): return [[f"buffer_load_dwordx4 {vr(QR+4*p,4)}, v231, {WSR}, s65 offen offset:{2048*h+1024*p}{SC}"] for p in range(2)]
def streads(h): return [f"ds_read_b128 {vr((SM if m else SR)+4*t,4)}, v249 offset:{8192*m+1024*(4*h+t)}" for t in range(4) for m in range(2)]
sw = lambda t, c=2: costed(lambda a: a(t), "v", c)
def qswaps(): return [f"v_permlane16_swap_b32 v{QR+4*p+k}, v{QR+4*p+2+k}" for p in range(2) for k in range(2)]
def pre_pk(a):
    put(a, qswaps())
    for t in range(4):
        r, m, q = SR + 4*t, SM + 4*t, ET + 4*(t & 1)
        unpack(a, q, q + 1, QR + 2*t); unpack(a, q + 2, q + 3, QR + 2*t + 1)
        for p in (0, 2): a(f"v_pk_fma_f32 {vr(r+p,2)}, {vr(q+p,2)}, {vr(r+p,2)}, {vr(m+p,2)}")
        for p in (0, 2): a(f"v_pk_mul_f32 {vr(m+p,2)}, {vr(q+p,2)}, v[252:253] op_sel_hi:[1,0]")
        for p in (0, 2): a(f"v_pk_fma_f32 {vr(r+p,2)}, {vr(r+p,2)}, v[250:251], v[250:251] op_sel:[0,0,1] op_sel_hi:[1,0,1]")
def pre_list():
    L = [sw(x) for x in qswaps()]
    for t in range(4):
        for i in range(4):
            r, m, q = SR + 4*t + i, SM + 4*t + i, ET + (i & 1)
            L += [f"v_lshlrev_b32 v{q}, 16, v{QR+2*t+(i>>1)}" if i % 2 == 0 else f"v_and_b32 v{q}, 0xffff0000, v{QR+2*t+(i>>1)}",
                  f"v_fma_f32 v{r}, v{q}, v{r}, v{m}", f"v_mul_f32 v{m}, v252, v{q}", f"v_fma_f32 v{r}, v{r}, v250, v251"]
    return L
def fin_pk(a, h, order=range(4)):
    done = set()
    for t in order:
        x = ACC + 4*(4*h + t)
        for p in (0, 2): a(f"v_pk_fma_f32 {vr(SR+4*t+p,2)}, {vr(SR+4*t+p,2)}, {vr(x+p,2)}, {vr(SM+4*t+p,2)}")
        for p in range(2): a(f"v_cvt_pk_bf16_f32 v{ET+2*t+p}, v{SR+4*t+2*p}, v{SR+4*t+2*p+1}")
        done.add(t)
        if t ^ 1 in done:
            p = t >> 1
            for k in range(2): a(f"v_permlane16_swap_b32 v{ET+4*p+k}, v{ET+4*p+2+k}")
            a(f"buffer_store_dwordx4 {vr(ET+4*p,4)}, v231, {WSR}, s68 offen offset:{2048*h+1024*p}{SC}", tag=f"a1st{h}")

def wp_setup(a):
    b = Asm(); wp_loads(b, S_CU, 0)
    for k, x in b.items:
        if x.kind != "vmem" and "m0" not in x.text and x.text != f"s_add_u32 s52, s52, {8*3072}": a(x.text)
    a("s_mov_b32 s56, s52\ns_mul_i32 s57, s3, 6144")
def wp_issue(a):
    for n in range(6):
        if n % 3 == 0: a(f"s_add_u32 m0, s57, {n*1024}")
        a(f"buffer_load_dwordx4 v{233+n%3}, s[40:43], s56 offen offset:{1024*(n%3)}{WPNT[0]} lds", tag="wp")
        if n == 2: a(f"s_add_u32 s56, s56, {8*3072}")
def entry(a):
    a(f"""
    s_load_dwordx16 s[4:19], s[0:1], 0
    s_load_dwordx8 s[20:27], s[0:1], 64
    s_load_dwordx4 s[28:31], s[0:1], 96
    s_load_dwordx2 s[32:33], s[0:1], 112
    s_cmp_ge_u32 s2, 256
    s_cbranch_scc1 L_end
    v_lshrrev_b32 v1, 6, v0
    s_lshr_b32 s51, s2, 3              ; slot
    s_mov_b32 s43, 0x20000
    v_readfirstlane_b32 s3, v1
    v_and_b32 v1, 63, v0
    s_and_b32 s50, s2, 7
    s_mov_b32 s47, s43
    s_sub_u32 s{S_PU}, s2, 160
    s_cbranch_scc0 L_e_prep
    """)
def code_pf(a):
    a(f"""
    s_getpc_b64 s[40:41]
    L_pc0:
    s_sub_u32 s52, s51, 20
    s_mov_b32 s42, L_code_end-L_pc0
    v_lshrrev_b32 v2, 2, v0
    s_lshl_b32 s52, s52, 13
    v_lshlrev_b32 v2, 7, v2
    """)
    a("buffer_load_dword v252, v2, s[40:43], s52 offen", nowait=True)
    a.reset()
def first_loads(a, ptrs, eload):
    PA = phases.PA
    a(f"""
    s_mul_i32 s52, s50, {2*128*1280}
    s_lshl_b32 s53, s51, 7
    s_add_u32 s52, s52, s53
    s_cmp_ge_u32 s51, 10
    s_cselect_b32 s53, {128*1280-1280}, 0
    s_add_u32 s52, s52, s53           ; tile byte offset
    v_lshrrev_b32 v3, 3, v1
    v_mul_u32_u24 v3, 1280, v3
    v_and_b32 v4, 7, v1
    v_lshl_add_u32 v3, v4, 4, v3      ; DMA lane offset
    s_mul_i32 s53, s3, {32*1280}
    s_add_u32 s53, s53, s52           ; wave soffset
    s_mul_i32 s54, s3, {4*GS}
    s_movk_i32 s55, {8*1280-GS}
    v_add_u32 v10, s55, v3
    v_add_u32 v11, s55, v10
    v_add_u32 v12, s55, v11
    s_add_u32 m0, s54, {PA + GS}
    s_mov_b32 s42, {S*D*2}
    s_mov_b32 s46, s42
    """)
    ptrs(a)
    a(f"s_mov_b64 s[40:41], s[{K}:{K+1}]\ns_mov_b64 s[44:45], s[{V}:{V+1}]")
    for n in range(4): a(f"buffer_load_dwordx4 v{9+n if n else 3}, s[40:43], s53 offen offset:{n*GS} nt lds", tag="kv")
    a(f"s_add_u32 m0, s54, {PA + 17*GS}\ns_sub_u32 s55, s52, {8*1280}")
    for n in range(4): a(f"buffer_load_dwordx4 v{9+n if n else 3}, s[44:47], s53 offen offset:{n*GS} nt lds", tag="kv")
    a(f"v_add_u32 v5, s55, v3\ns_cmp_eq_u32 s3, 0\ns_cbranch_scc0 L_nohalo\ns_mov_b32 m0, {PA}")
    a(f"buffer_load_dwordx4 v5, s[40:43], 0 offen nt lds", cond=True)
    a.label("L_nohalo")
    a(f"""
    s_cmp_ge_u32 s51, 10
    s_cselect_b32 s55, 10, 0
    s_sub_u32 s55, s51, s55
    s_lshl_b32 s55, s55, 1
    s_and_b32 s56, s3, 1
    s_add_u32 s55, s55, s56
    s_lshl_b32 s55, s55, 8
    v_lshl_add_u32 v8, v4, 5, s55
    global_load_dwordx4 v[48:51], v8, {sp(SHK)}
    global_load_dwordx4 v[52:55], v8, {sp(SHK)} offset:16
    """)
    eload(a, "kv")
def q_loads(a):
    a(f"s_add_u32 m0, s54, {phases.PA + 33*GS}\ns_mov_b64 s[44:45], s[{Q}:{Q+1}]")
    for n in range(4): a(f"buffer_load_dwordx4 v{9+n if n else 3}, s[44:47], s53 offen offset:{n*GS} nt lds", tag="q")
def first_rest(a, su):
    b = Asm(); phaseA_loads(b, su, lambda b: None, lambda b: b.comment("CUT"))
    k = [i for i, (t, x) in enumerate(b.items) if t == "raw" and "CUT" in x][0]
    a(f"s_lshr_b32 s50, s{su}, 4\ns_and_b32 s51, s{su}, 15")
    a.items += [x for x in b.items[k + 1:] if not (x[0] == "ins" and (x[1].mn.startswith("global_load") or x[1].text.startswith("v_lshlrev_b32 v8")))]
def mod_first(a, ptrs):
    a(f"""
    s_sub_u32 s52, s{S_PU}, 30
    s_sub_u32 s77, 79, s{S_PU}
    s_cmp_lt_u32 s52, 20
    s_cselect_b32 s77, s77, s{S_PU}     ; units sa, ca, ga, cb first (0..29, 49..40), then sb (39..30), gb
    v_lshrrev_b32 v8, 3, v0
    v_mul_u32_u24 v9, {20*7680}, v8
    v_and_b32 v8, 7, v0
    v_lshl_add_u32 v9, v8, 4, v9
    s_lshl_b32 s56, s77, 7
    s_movk_i32 s68, 7680
    s_mov_b32 s46, {640 * 3840 * 2}
    """)
    ptrs(a)
    a(f"s_mov_b64 s[44:45], s[{WMOD}:{WMOD+1}]")
    mod_cloads(a, 80)
def mod_loads(a, R, p0, p1):
    for p in range(p0, p1):
        a(f"buffer_load_dwordx4 {vr(R+10+4*p,4)}, v9, s[44:47], s56 offen nt")
        if p < 19: a(f"s_add_u32 s56, s56, s68")
def pre_dest(a, sh, which, v=240):
    a(f"""
    s_and_b32 s60, s2, 7
    s_lshl_b32 s60, s60, 9
    s_sub_u32 s61, {4096-512}, s60
    s_add_u32 s60, s60, {QT}
    v_lshl_add_u32 v{v}, s{sh}, 8, v0
    v_lshrrev_b32 v{v+1}, 2, v{v}
    v_mul_u32_u24 v{v+1}, {PT_}, v{v+1}
    v_and_b32 v{v}, 3, v{v}
    v_lshl_add_u32 v{v}, v{v}, 7, v{v+1}
    v_add_u32 v{v+1}, {320*PT_}, v{v}
    """)
    for k, c in enumerate(which):
        for h in range(2): a(f"buffer_load_dword v{v+2+2*k+h}, v{v+h}, {WSR}, s{61 if c == 'k' else 60} offen nt")
WDH0 = 81920
def wdh_loads(a, su, WDH):
    a(f"""
    s_lshr_b32 s52, s{su}, 1
    s_lshl_b32 s52, s52, 2
    s_add_u32 s52, s52, s3
    s_mul_i32 s52, s52, {8*1280}
    s_and_b32 s53, s{su}, 1
    s_mul_i32 s53, s53, 640
    s_add_u32 s52, s52, s53
    s_mul_i32 s53, s3, 5120
    """)
    for n in range(5):
        a(f"""
        v_add_u32 v5, {64*n}, v1
        v_mul_u32_u24 v6, 205, v5
        v_lshrrev_b32 v6, 13, v6
        v_mul_u32_u24 v6, 640, v6
        v_lshl_add_u32 v5, v5, 4, v6
        s_add_u32 m0, s53, {WDH + n*1024}
        """)
        a(f"buffer_load_dwordx4 v5, s[56:59], s52 offen nt lds", tag="wst")
def wdh_finish(a, su, WDH, R):
    a(f"""
    v_lshrrev_b32 v2, 4, v1           ; h
    v_bfe_u32 v3, v1, 2, 2            ; r
    v_lshl_add_u32 v3, v2, 3, v3
    v_mul_u32_u24 v3, 640, v3
    v_and_b32 v2, 3, v1
    v_lshl_add_u32 v2, v2, 3, v3
    s_mul_i32 s50, s3, 160
    s_add_u32 s50, s50, {WDH}
    v_add_u32 v2, s50, v2
    s_lshr_b32 s53, s{su}, 1
    s_mov_b32 s50, 0x15555556
    s_mul_hi_u32 s51, s53, s50
    s_mul_i32 s52, s51, 12
    s_sub_u32 s52, s53, s52           ; ks
    s_and_b32 s50, s{su}, 1
    s_lshl_b32 s50, s50, 2
    s_add_u32 s50, s50, s3
    s_lshl_b32 s50, s50, 2
    s_add_u32 s50, s50, s51
    s_mul_i32 s50, s50, 60
    s_mul_i32 s52, s52, 5
    s_add_u32 s50, s50, s52
    s_lshl_b32 s50, s50, 10
    s_add_u32 s50, s50, {WD}
    s_add_u32 s51, s50, 4096
    """)
    for n in range(5):
        for half in range(2): a(f"ds_read_b64_tr_b16 {vr(R+4*n+2*half,2)}, v2 offset:{32*n+half*4*640}")
    for n in range(5): a(f"buffer_store_dwordx4 {vr(R+4*n,4)}, v248, {WSR}, s{50+n//4} offen offset:{(n%4)*1024}{SC}", tag="wout")

halves.HACC = HACC = (56, 8)
halves.Q2H = Q2H = 56; halves.Q2NH = Q2NH = O("nh", 12); halves.Q2ACC = Q2ACC = (8, 28)
XE, XL, GB, PT, IC, XR = 204, 232, (48, 52, 124), 168, 168, 180
ACC2 = (8, 28, 104, 8)
XI = 81920
def xflags(v, late, t=2, sr=50):
    L = ["v_lshrrev_b32 v2, 1, v1", "v_lshlrev_b32 v2, 10, v2", "v_and_b32 v3, 1, v1", f"v_lshl_add_u32 v{v}, v3, 7, v2",
         f"s_lshl_b32 s50, s3, 8\ns_add_u32 s50, s50, {(FXL if late else FXE)-FLG}", f"v_add_u32 v{v}, s50, v{v}"]
    if late: L += [f"s_lshl_b32 s50, s{S_J}, 7\ns_add_u32 s50, s50, {FB_-FLG}", "v_mov_b32 v2, s50"]
    else: L += [f"s_add_u32 s50, s50, {19*1024}", "v_mov_b32 v2, s50"]
    L += [f"v_cmp_lt_u32 vcc, 39, v1\nv_cndmask_b32 v{v}, v{v}, v2, vcc", f"s_mov_b32 s17, {FLG}"]
    return [re.sub(r"\bs50\b", f"s{sr}", re.sub(r"\bv3\b", f"v{t+1}", re.sub(r"\bv2\b", f"v{t}", x))) for x in L]
WG3 = [int(x) for x in O("wg", "0,9,13,20").split(",")]
def wflags():
    L = [f"s_lshr_b32 s61, s{S_J}, 1\ns_lshl_b32 s61, s61, 7\ns_add_u32 s61, s61, {FW}"]
    for g, (lo, n) in enumerate((WG3[k], WG3[k+1] - WG3[k]) for k in range(3)):
        L += [f"v_min_u32 v{224+g}, {n-1}, v1", f"v_add_lshl_u32 v{224+g}, v{224+g}, {lo}, 10"]
    return L
def hflags(base, gbu=False):
    return [f"s_lshr_b32 s50, s{S_I2}, 1\ns_lshl_b32 s50, s50, 2", f"s_add_u32 s50, s50, s3\ns_lshl_b32 s50, s50, 9", f"s_add_u32 s50, s50, {base-FLG}",
            f"v_min_u32 v246, {13 if gbu else 3}, v1", "v_lshlrev_b32 v246, 7, v246"] + \
           ([f"v_mov_b32 v2, s50", f"v_mov_b32 v3, {FP2+50*128-FLG-4*128}", "v_cmp_lt_u32 vcc, 3, v1\nv_cndmask_b32 v2, v2, v3, vcc", "v_add_u32 v246, v246, v2"] if gbu else ["v_add_u32 v246, s50, v246"])
G2O = [(n & 1, n >> 1) for n in range(24)] + [(2 + n // 12, n % 12) for n in range(24)]
def h2_hload(n):
    sg, ks = G2O[n]
    return f"buffer_load_dwordx4 {vr(Q2H+4*(n%Q2NH),4)}, v{216+sg}, {WSR}, {['0','s4','s5'][ks//4]} offen offset:{(ks%4)*1024}{SC}"
def g2_setup(si2, sj2):
    return ["s_and_b32 s50, s3, 1\ns_lshr_b32 s51, s3, 1", "s_mul_i32 s52, s50, 20480\ns_mul_i32 s53, s3, 5120", "s_add_u32 s52, s52, s53",
         "v_add_u32 v220, s52, v248", "v_add_u32 v222, 40960, v220",
         "s_xor_b32 s52, s50, 1\ns_mul_i32 s52, s52, 20480", "s_add_u32 s52, s52, s53", "v_add_u32 v221, s52, v248", "v_add_u32 v223, 40960, v221",
         "s_mul_i32 s52, s51, 20480\ns_lshl_b32 s53, s50, 11", "s_add_u32 s52, s52, s53", "v_add_u32 v224, s52, v248",
         "s_mul_i32 s53, s51, 5120\ns_add_u32 s53, s53, 40960", "v_add_u32 v225, s53, v224",
         "s_xor_b32 s53, s51, 1\ns_mul_i32 s53, s53, 5120", "s_add_u32 s53, s53, 40960", "v_add_u32 v226, s53, v224",
         f"s_lshl_b32 s52, s{si2}, 1\ns_add_u32 s52, s52, s51", f"s_mul_i32 s12, s{sj2}, 320",
         f"s_add_u32 s12, s12, {MOD+5*2560}\ns_mul_i32 s13, s52, {16*1280}", f"s_mul_i32 s53, s{sj2}, 160\ns_add_u32 s13, s13, s53",
         f"s_lshl_b32 s53, s50, 6\ns_add_u32 s13, s13, s53", f"s_add_u32 s14, s13, {1024*1280}",
         f"s_mul_i32 s10, s{sj2}, 10\ns_add_u32 s10, s10, s3", f"s_mul_i32 s10, s10, {8*PT_}\ns_lshl_b32 s53, s{si2}, 6", f"s_add_u32 s10, s10, s53\ns_add_u32 s10, s10, {A1T}",
         f"s_lshl_b32 s11, s3, 10\ns_add_u32 s11, s11, {XI}",
         "v_lshrrev_b32 v2, 3, v1", f"v_mul_u32_u24 v229, {PT_}, v2", "v_bfe_u32 v2, v1, 2, 1", "v_lshl_add_u32 v229, v2, 11, v229", "v_and_b32 v2, 3, v1", "v_lshl_add_u32 v229, v2, 4, v229",
         "v_lshrrev_b32 v3, 2, v1", "v_lshlrev_b32 v231, 7, v3", "v_lshl_add_u32 v231, v2, 3, v231", f"s_lshl_b32 s53, s50, 12\ns_lshl_b32 s52, s51, 5", f"s_add_u32 s53, s53, s52\ns_add_u32 s53, s53, {XI}", "v_add_u32 v231, s53, v231",
         "v_and_b32 v2, 15, v1", "v_lshrrev_b32 v3, 4, v1",
         "v_mul_u32_u24 v2, 1280, v2", "v_lshl_add_u32 v228, v3, 3, v2", "v_and_b32 v227, 1, v3", "v_lshl_add_u32 v2, v227, 5, v2", "v_lshrrev_b32 v3, 1, v3", "v_lshl_add_u32 v227, v3, 4, v2"]
def g2_xdma():
    return [[f"s_add_u32 m0, s11, {4096*n}", (f"buffer_load_dwordx4 v229, {WSR}, s10 offen{SC} lds", "xi")] + ([f"s_add_u32 s10, s10, {32*PT_}"] if n < 2 else []) for n in range(3)]
def g2_gloads(): return [[f"buffer_load_dwordx4 {vr(GB[T],4)}, v230, {WSR}, s12 offen offset:{64*T}{SC}"] for T in range(3)] + \
                        [[f"buffer_load_dwordx4 {vr(IC+4*T,4)}, v230, {WSR}, s15 offen offset:{64*T}{SC}"] for T in range(3)]
GI = XI + 12288
def g2_gsetup(): return ["v_min_u32 v2, 23, v1", "v_lshlrev_b32 v244, 4, v2", f"v_mov_b32 v3, {ICB-(MOD+5*2560)-192}", "v_cmp_lt_u32 vcc, 11, v2\nv_cndmask_b32 v3, 0, v3, vcc",
                         "s_and_b32 s53, s3, 1\ns_lshl_b32 s53, s53, 7", "v_add3_u32 v244, v244, v3, s53", f"s_lshl_b32 s15, s3, 10\ns_add_u32 s15, s15, {GI}", "v_and_b32 v230, 48, v1", "v_add_u32 v230, s15, v230"]
def g2_gdma(): return ["s_mov_b32 m0, s15", small(f"buffer_load_dwordx4 v244, {WSR}, s12 offen{SC} lds", "gi")]
def g2_greads(): return [f"ds_read_b128 {vr(GB[T],4)}, v230 offset:{64*T}" for T in range(3)] + [f"ds_read_b128 {vr(IC+4*T,4)}, v230 offset:{192+64*T}" for T in range(3)]
SCR = 1024
def st_dma(): return [f"s_add_u32 m0, s63, {SCR}", small(f"buffer_load_dwordx4 v248, {WSR}, s{S_STL} offen{SC} lds", "st2")]
def st_reads(): return [f"ds_read_b128 {vr(HST+4*rt,4)}, v{HSO} offset:{SCR+256*rt}" for rt in range(4)]
def bi_dma(): return [f"s_add_u32 m0, s63, {SCR+4096}", small(f"buffer_load_dwordx4 v247, {WSR}, s{S_BI} offen{SC} lds", "bi")]
def bi_reads(): return [f"ds_read_b128 {vr(HCW+12*st+4*T,4)}, v247 offset:{SCR+4096+192*st+64*T}" for st in range(2) for T in range(3)]
WL = lambda tag: costed(lambda a: a.waitv(tag), "s", 1)
def g2_xreads(): return [f"ds_read_b64_tr_b16 {vr(XR+6*h+2*T,2)}, v231 offset:{2048*T+64*h}" for h in range(2) for T in range(3)]
def g2_xform():
    L = []
    for h, X in enumerate((XE, XL)):
        for i in range(12):
            r = XR + 6*h + i // 2
            L += [f"v_lshlrev_b32 v{X+i}, 16, v{r}" if i % 2 == 0 else f"v_and_b32 v{X+i}, 0xffff0000, v{r}", f"v_mul_f32 v{X+i}, v{X+i}, v{IC+i}"]
    return L
gb = lambda i: GB[i // 4] + i % 4

LJ = O("lj", 1); S_ = S
_h2_out = h2_out
def h2_out(R, O_, so): return [(x + " " + OPT["ost"].replace("_", " ") if isinstance(x, str) and x.startswith("buffer_store") and "ost" in OPT else x) for x in _h2_out(R, O_, so)]
GE = [int(x) for x in O("ge", "3,8").split(",") if x]
GLs = [int(x) for x in O("gl", "0,2,5").split(",")]
GATES = {}
for k, g in enumerate(GE): GATES[g] = f"a0_{(GE[k+1] if k + 1 < len(GE) else 20) - 1}"
for k, g in enumerate(GLs): GATES[20 + g] = f"a1_{(GLs[k+1] if k + 1 < len(GLs) else 20) - 1}"
LDONE = [0]; WDONE = [0]
G1B = lambda n: n % 12 in (3, 7, 11)
G1S = lambda n: n % 12 == 10
G1K = lambda n: n % 12 in (3, 7, 10, 11)
gate_of = lambda G, ks: max([x for x in G if x <= ks], default=0)
def smalls(sc, groups, p, step=1):
    for g in groups: p = sc.vm(g, p, p + 14, lambda n: G1K(n) and not sc.m[n])[1] + step
    return p
GBF = []
def preh(sc, h, p):
    L = ["v_min_u32 v245, 23, v1", "v_lshlrev_b32 v245, 7, v245", f"s_mul_i32 s56, s3, {49152 - 768}\ns_add_u32 s56, s56, s{S_H}"]
    if h: L.append(f"s_add_u32 s56, s56, {64*192*256}")
    q = sc.chain(L, p - 8, p - 1, keep=G1K)
    smalls(sc, [[small(f"buffer_load_dword v245, v245, {WSR}, s56 offen")]], q + 1)
pfn = [0]
def repf(sc, p):
    pfn[0] += 1; L = f"L_rp{pfn[0]}"
    def f(a):
        a(f"s_getpc_b64 s[96:97]"); a.label(L)
        a(f"s_sub_u32 s96, s96, {L}-L_pc0\ns_subb_u32 s97, s97, 0\ns_mov_b32 s98, L_code_end-L_pc0\ns_mov_b32 s99, 0x20000\ns_lshr_b32 s100, s2, 3\ns_lshl_b32 s100, s100, 11")
    q = sc.chain([costed(f, "s", 7), "v_lshrrev_b32 v245, 4, v0", "v_lshlrev_b32 v245, 7, v245"], p, p + 4)
    return sc.vm([small("buffer_load_dword v245, v245, s[96:99], s100 offen")], q + 1, q + 12)
_vsetup = h1_vsetup
def h1_vsetup(sj, sj2): return _vsetup(sj, sj2) + ["s_lshl_b32 s50, s3, 10", f"v_add_u32 v{HSO}, s50, v{HSO}"]
def passA(a, npre, head=None, wrest=None, extra=None):
    sc = h1_sched(0, GATES)
    LQ = O("lq", 160); LI = LQ - O("lql", 40)
    q = sc.chain(xflags(219, 1, 238, 55), LI - 30, LI - 2, keep=G1K)
    smalls(sc, [PI(219, 17, 240)], LI)
    p = sc.at(PC(219, 17, 240, "Lx"), LQ) + 1
    W0 = O("wa0", 110)
    q3 = sc.chain(["v_min_u32 v243, 11, v1", "v_lshlrev_b32 v243, 8, v243", f"s_mul_i32 s58, s3, 24\ns_lshr_b32 s57, s{S_J2}, 2", f"s_add_u32 s58, s58, s57\ns_lshl_b32 s58, s58, 7", f"s_add_u32 s58, s58, {FP3}"] + GBF, max(0, W0 - 56), W0 - 46, keep=G1K)
    q3 = smalls(sc, [PI(243, 58, 244)], q3 + 1)
    n = sc.at(PC(243, 58, 244), max(W0, q3 + 30)) + 1
    wl = groups_of(h2_wloads())
    pb = sc.chain(["v_min_u32 v247, 23, v1", "v_lshlrev_b32 v247, 4, v247"], LQ - 8, LQ, keep=G1K)
    pb = smalls(sc, [bi_dma()], max(pb + 1, O("lb", LQ + 4)))
    sc.chain(["v_and_b32 v247, 48, v1", "v_add_u32 v247, s63, v247", WL("bi")] + bi_reads(), pb + 50, pb + 62, keep=G1B)
    EA = O("ea", 30)
    if EA < 60: smalls(sc, [st_dma()], 240 + EA - 60)
    if O("ph0", 0): preh(sc, 0, O("ph0", 0))
    if O("rpa", 0): repf(sc, O("rpa", 0))
    lfree = extra(sc) if extra else (lambda ks: 0)
    S = [[(h1_dma(0, ks), 0, 12 * (gate_of(GE, ks) - 1) - 40 + ks / 100) for ks in range(npre, 20)],
         [(h1_dma(1, ks), max(p, lfree(ks)), 190 + 12 * (gate_of(GLs, ks) - 1) + ks / 100) for ks in range(20)], [(g, n, 300) for g in wl[:12]], wrest or []]
    pos = sc.streams(S, O("pa", 4.0), 0, 238, lambda n: G1B(n) or (n < O("pad", 0) and G1S(n)), wt=[1, 1, 1, O("ww", 1.3)])
    assert len(pos[0]) == len(S[0]) and len(pos[3]) == len(S[3]), [(len(x), len(y)) for x, y in zip(pos, S)]
    for ks, x in zip(range(npre, 20), pos[0]): assert x <= 12 * (gate_of(GE, ks) - 1), (ks, x)
    if wrest: print("   weights: slack", [int(y[2] - x) for x, y in zip(pos[3], wrest)][2::3], file=sys.stderr); assert all(x < y[2] + O("lead", 50) - 10 for x, y in zip(pos[3], wrest))
    assert len(pos[1]) >= (GLs[1] if len(GLs) > 1 else 20)
    LDONE[0] = len(pos[1]); WDONE[0] = len(pos[2])
    pre, rd = h1_st_reads(0)
    q = max(12 * (GE[-1] - 1) + 1 if GE else 1, O("sa", 20), sc.wdone if hasattr(sc, "wdone") else 0)
    q = sc.chain(rd, q, q + 4, 1, keep=G1B)
    q = sc.chain(h1_st_list(0, 0, TAG), q + 6, q + O("sl", 70), keep=G1K)
    print(f"pass A: early dma {pos[0]}, wd {WDONE[0]}, stats at {q}, late slots issued {LDONE[0]}, overflow {sc.over()}", file=sys.stderr)
    for ks in range(20): fstamp(sc, 12 * ks, f"a{ks}")
    if "gbar" in OPT:
        if head: head(a); head = None
        lab[0] += 1; L = f"L_gb{lab[0]}"
        a(f"""
        s_waitcnt vmcnt(0)
        s_barrier
        v_mov_b32 v254, 0
        v_mov_b32 v255, 1
        s_cmp_eq_u32 s3, 0
        s_cbranch_scc0 {L}
        s_mov_b64 exec, 1
        global_atomic_add v254, v255, {sp(DBG)} sc1
        s_mov_b64 exec, -1
        {L}:
        global_load_dword v255, v254, {sp(DBG)} sc1
        s_waitcnt vmcnt(0)
        v_cmp_ne_u32 vcc, 256, v255
        s_cbranch_vccz {L}x
        s_sleep 2
        s_branch {L}
        {L}x:
        """)
        stamp(a, "gb")
    a.waitv(f"a0_{(GE[0] if GE else 20) - 1}")
    a("s_waitcnt lgkmcnt(0)\ns_barrier")
    put(a, h1_reads(0))
    if head: head(a)
    h1_pass(a, 0, sc)

def rest(a, X):
    stamp(a, "pB")
    sc = h1_sched(1, GATES)
    wl = groups_of(h2_wloads())
    def stslow(h):
        def f(a):
            a.label(f"L_st{X}{h}_slow"); a.reset()
            put(a, st_dma()); a.waitv("st2"); put(a, st_reads()); put(a, h1_stcheck(TAG))
            a(f"v_cmp_ne_u32 vcc, 0, v3\ns_cbranch_vccz L_st{X}{h}_back\ns_cmp_eq_u32 s{BUDGET}, 0\ns_cbranch_scc1 L_st{X}{h}_back\ns_sub_u32 s{BUDGET}, s{BUDGET}, 1\ns_branch L_st{X}{h}_slow")
        slow2.append(f)
        def chk(a):
            a(f"v_cmp_ne_u32 vcc, 0, v3\ns_cbranch_vccnz L_st{X}{h}_slow"); a.label(f"L_st{X}{h}_back")
        return costed(chk, "v", 1)
    EA = O("ea", 30)
    if EA >= 60: smalls(sc, [st_dma()], EA - 60)
    p = sc.chain([WL("st2")] + st_reads(), max(0, EA - 16), max(4, EA - 11), keep=G1B)
    p = sc.chain(h1_stcheck(TAG) + [stslow(0)], p + 3, p + 10, keep=G1K)
    p = sc.force(p + 1, [costed(lambda a: (stamp(a, "eA"), h1_epi(a, 0), a(f"s_add_u32 s{S_STL}, s{S_STL}, {1024*16}\ns_lshl_b32 s76, s{S_I}, 4\ns_add_u32 s76, s76, s{S_J}")), "v", 2)])
    pf = sc.at(BAR("hst0", then=lambda a: wflag(a, 76, FHE), c=3), p + O("ph", 40))
    SB = O("sb", 228); HC = O("hc", 190)
    if O("ph1", 0): preh(sc, 1, O("ph1", 0))
    if O("rpb", 0): repf(sc, O("rpb", 0))
    smalls(sc, [st_dma()], SB - 56)
    smalls(sc, [PI(246, 17, 247)], HC - 36)
    q2 = sc.at(PC(246, 17, 247, "Hseen"), HC)
    S = [[(h1_dma(1, ks), 0, 12 * (gate_of(GLs, ks) - 1) - 40 + ks / 100) for ks in range(LDONE[0], 20)],
         [(wl[n], 12 * ((n - 12) // 3 + 1) if n >= 12 else 0, 200 + n) for n in range(WDONE[0], 60)],
         [([h2_hload(n)], q2 + 1, O("hd", 180) + 5 * n) for n in range(12)]]
    pos = sc.streams(S, O("pb", 4.0), 0, 238, lambda n: G1B(n) or (n >= O("pbd", 240) and G1S(n)))
    assert len(pos[0]) == len(S[0])
    for ks, x in zip(range(LDONE[0], 20), pos[0]): assert x <= 12 * (gate_of(GLs, ks) - 1), (ks, x)
    nw = WDONE[0] + len(pos[1]); nh = len(pos[2])
    g = max(k for k in GATES if k >= 20)
    pre, rd = h1_st_reads(1)
    q = sc.chain(pre, 0, 10, keep=G1K)
    q = max(q, 12 * (g - 21) + 1, p + 1)
    q = sc.chain(rd, q, q + 4, 1, keep=G1B)
    q = sc.chain(h1_st_list(1, 0, TAG), q + 6, q + O("sl", 70), keep=G1K)
    assert q + 20 < SB - 56, q
    q3 = sc.chain(h2_hsetup(S_I2) + hflags(FHE, True), q + 1, HC - 38, keep=G1K)
    assert q3 < HC - 36, q3
    q4 = sc.chain([WL("st2")] + st_reads(), SB - 6, SB - 1)
    sc.chain(h1_stcheck(TAG) + [stslow(1)], q4 + 3, 238)
    print(f"pass B: epilogue A at {p}, FHE at {pf}, stats B done {q}, wd {nw}, h {nh}, overflow {sc.over()}", file=sys.stderr)
    for ks in range(20): fstamp(sc, 12 * ks, f"b{ks}")
    h1_pass(a, 1, sc)
    stamp(a, "g1done")
    h1_epi(a, 1)
    for n in range(nh, 12): a(h2_hload(n))
    stamp(a, "g1epi")
    sc = Gaps(240)
    srd(a, 40, OUT, S_ * D * 2)
    PB1 = O("pb1", 55); PB0 = O("pb0", 20)
    sc.force(PB0, [BAR()])
    sc.force(PB1, [BAR("hst1", then=lambda a: wflag(a, 76, FHL), c=3)])
    LC = O("lc", 110)
    sc.vm(PI(246, 17, 247), LC - O("ll", 30))
    p = sc.at(PC(246, 17, 247, "Lseen"), LC) + 1
    QS = O("qs", 36)
    NBL = O("nbl", 33) if "noeb" not in OPT else 0
    hl = [n for n in range(Q2NH, 48) if not (24 + max(0, (117 - p) // 2) <= n < NBL)]
    S = [[([h2_hload(n)], max(5 * (n - Q2NH) + 5, (p if n < NBL or not NBL else 120) if n >= 24 else 0), 5 * n) for n in hl], [(g, max(QS, PB0) + 1, 60) for g in g2_xdma()],
         [(wl[n], 0, 10 * (n // 5) + n / 100) for n in range(nw, 60)]]
    pos = sc.streams(S, O("p2", 3.0), wt=None if "noeb" in OPT else [0.7, 1, 1])
    assert all(len(x) == len(y) for x, y in zip(pos, S)) and all(x < 5 * n for x, n in zip(pos[0], hl)) and all(x < 10 * (n // 5) for x, n in zip(pos[2], range(nw, 60))), pos
    wr = lambda sg: [f"ds_write_b128 v{220+sg}, {vr(ACC2[sg]+4*T,4)} offset:{T*1024}" for T in range(5)]
    q = sc.chain(g2_setup(S_I2, S_J2) + hflags(FHL) + g2_gsetup(), 0, QS - 1)
    pg = sc.vm(g2_gdma(), max(q, PB0) + 2, max(q, PB0) + 12)[0]
    q = sc.at(BAR("xi", "gi"), max(pos[1][-1], pg) + O("xw", 40))
    q = sc.chain(g2_xreads() + g2_greads(), q, q + 12)
    qx = sc.chain(g2_xform(), q + 2, min(q + 34, 116) if "noeb" not in OPT else q + 34)
    rdp = lambda dst, v, off: [f"ds_read_b128 {vr(dst+4*T,4)}, v{v} offset:{off+1024*T}" for T in range(3)]
    add = lambda x, y: [f"v_add_f32 v{x+i}, v{x+i}, v{y+i}" for i in range(12)]
    if "noeb" not in OPT:
        padd = lambda x, y: [f"v_pk_add_f32 {vr(x+i,2)}, {vr(x+i,2)}, {vr(y+i,2)}" for i in range(0, 12, 2)]
        sc.chain(wr(0), 116, 119)
        blk = [h2_hload(n) for n in range(24, NBL) if n not in hl] + wr(1) + ["s_waitcnt lgkmcnt(0)\ns_barrier"] + rdp(PT, 224, 0) + rdp(PT + 12, 224, 5120) + rdp(PT + 24, 224, 10240) + padd(PT, PT + 12) + rdp(PT + 12, 224, 15360) + padd(PT, PT + 24) + padd(PT, PT + 12)
        blk += [f"v_pk_fma_f32 {vr(XE+i,2)}, {vr(PT+i,2)}, {vr(gb(i),2)}, {vr(XE+i,2)}" for i in range(0, 12, 2)] + h2_out(XE, PT + 12, 13)
        assert qx < 119 and all(x < 119 for x, n in zip(pos[0], hl) if n < NBL), (qx, pos[0])
        q = sc.force(119, [costed(lambda a: put(a, blk), "m", 2)])
    else:
        q = sc.chain(wr(0) + wr(1), 118, 142, 2)
        q = sc.at("s_waitcnt lgkmcnt(0)\ns_barrier", max(q + O("g2d", 8), qx + 1))
        rdp = lambda dst, v, off: [f"ds_read_b128 {vr(dst+4*T,4)}, v{v} offset:{off+1024*T}" for T in range(3)]
        add = lambda x, y: [f"v_add_f32 v{x+i}, v{x+i}, v{y+i}" for i in range(12)]
        q = sc.chain(rdp(PT, 224, 0) + rdp(PT + 12, 224, 5120) + rdp(PT + 24, 224, 10240), q, q + 10)
        q = sc.chain(add(PT, PT + 12) + rdp(PT + 12, 224, 15360) + add(PT, PT + 24) + add(PT, PT + 12), q + 1, q + 26)
        q = sc.chain([f"v_fma_f32 v{XE+i}, v{PT+i}, v{gb(i)}, v{XE+i}" for i in range(12)] + h2_out(XE, PT + 12, 13), q, q + 18)
    qe = q
    q = sc.chain(wr(2), 183, 195, 2)
    q = sc.at("s_waitcnt lgkmcnt(0)\ns_barrier", q + O("g2d", 8))
    q = sc.chain(rdp(PT, 225, 0) + rdp(PT + 24, 225, 10240), max(q, qe), max(q, qe) + 8) + 7
    tail = add(PT, PT + 24) + [f"v_fma_f32 v{XL+i}, v{PT+i}, v{gb(i)}, v{XL+i}" for i in range(12)]
    while tail and any(sc.extra(n, tail[0]) == 0 for n in range(q, 240)): q = sc.chain([tail.pop(0)], q, 239)
    print(f"gemm2: wd {pos[2]}, residual formed at {qx}, early rows stored at {qe}, left over {len(tail)}, overflow {sc.over()}", file=sys.stderr)
    TM = O("tm", 4)
    M = [(n, T) for n in range(48 - TM) for T in range(5)] + [(n, T) for T in range(5) for n in range(48 - TM, 48)]
    w3 = wr(3)
    if TM:
        for T in range(4): sc.force(min(239, 240 - 5 * TM + TM * (T + 1) + 2), [w3[T]])
        w3 = w3[4:]
    for g, (n, T) in enumerate(M):
        sg, ks = G2O[n]
        if g % 60 == 0: stamp(a, f"h{g // 60}")
        ac = ACC2[sg] + 4*T
        a(f"v_mfma_f32_16x16x32_bf16 {vr(ac,4)}, {wdreg(5*ks+T)}, {vr(Q2H+4*(n%Q2NH),4)}, {vr(ac,4) if ks else '0'}")
        sc.emit(a, g)
    stamp(a, "h4")
    put(a, tail)
    put(a, w3)
    a("s_waitcnt lgkmcnt(0)\ns_barrier")
    put(a, [f"ds_read_b128 {vr(PT+12*k+4*T,4)}, v226 offset:{10240*k+1024*T}" for k in range(2) for T in range(3)])
    for i in range(0, 12, 2): a(f"v_pk_add_f32 {vr(PT+i,2)}, {vr(PT+i,2)}, {vr(PT+12+i,2)}")
    for i in range(0, 12, 2): a(f"v_pk_fma_f32 {vr(XL+i,2)}, {vr(PT+i,2)}, {vr(gb(i),2)}, {vr(XL+i,2)}")
    put(a, h2_out(XL, PT, 14))
    if "xcct" in OPT and X == "c":
        a(f"""
        s_cmp_eq_u32 s2, 8
        s_cbranch_scc0 L_xt_x
        v_mov_b32 v2, 0
        global_load_dword v3, v2, {sp(DBG)} sc1
        s_getreg_b32 s50, hwreg(HW_REG_XCC_ID, 0, 4)
        s_add_u32 s50, s50, 1
        s_waitcnt vmcnt(0)
        v_readfirstlane_b32 s51, v3
        s_cmp_eq_u32 s50, s51
        s_cbranch_scc1 L_xt_x
        s_memrealtime s[52:53]
        L_xt:
        s_sleep 4
        s_memrealtime s[50:51]
        s_waitcnt lgkmcnt(0)
        s_sub_u32 s50, s50, s52
        s_cmp_lt_u32 s50, 2000
        s_cbranch_scc1 L_xt
        L_xt_x:
        """)
    if "enc" in OPT:
        a("s_waitcnt vmcnt(0)"); stamp(a, "end")
        if OPT.get("encp", "c") in (X, "all"):
            if "encabs" in OPT:
                lo, hi, mk, vl = OPT["encabs"].split(",")
                a(f"""
                v_mov_b32 v2, 0
                global_load_dword v4, v2, {sp(DBG)} sc1
                s_waitcnt vmcnt(0)
                v_readfirstlane_b32 s80, v4
                s_mov_b32 s78, s80
                s_cmp_ge_u32 s2, {lo}
                s_cbranch_scc0 L_enc_x{X}
                s_cmp_lt_u32 s2, {hi}
                s_cbranch_scc0 L_enc_x{X}
                s_and_b32 s50, s2, {mk}
                s_cmp_eq_u32 s50, {vl}
                s_cbranch_scc0 L_enc_x{X}
                """)
            k = 0; A_, B_ = [78 + 2 * SNAMES.index(x) for x in OPT["enc"].split(",")]
            a(f"s_waitcnt lgkmcnt(0)\ns_sub_u32 s52, s{B_}, s{A_}\ns_mul_i32 s52, s52, {O('encm', 5)}\ns_lshr_b32 s52, s52, {O('encs', 0)}\ns_min_u32 s52, s52, 15000\ns_add_u32 s52, s52, 3000")
            if "encw" in OPT: a(f"s_cmp_eq_u32 s2, {OPT['encw']}\ns_cbranch_scc0 L_enc_x{X}")
            a(f"""
            s_movk_i32 s53, 2000
            L_enc{X}:
            s_sub_u32 s53, s53, 1
            s_cbranch_scc1 L_enc_x{X}
            s_sleep 4
            s_memrealtime s[50:51]
            s_waitcnt lgkmcnt(0)
            s_sub_u32 s50, s50, s{78+2*k}
            s_cmp_lt_u32 s50, s52
            s_cbranch_scc1 L_enc{X}
            L_enc_x{X}:
            """)
    elif STAMPS:
        a("s_waitcnt vmcnt(0)")
        stamp(a, "end")
        a("s_waitcnt lgkmcnt(0)")
        a(f"s_lshl_b32 s50, s2, 2\ns_add_u32 s50, s50, s3\ns_lshl_b32 s50, s50, 6\ns_add_u32 s50, s50, {STAMP}\nv_mov_b32 v2, 0")
        for n in range(12): a(f"v_mov_b32 v{8+n}, s{78+2*n}")
        a("s_mov_b64 exec, 1")
        for n in range(3): a(f"buffer_store_dwordx4 v[{8+4*n}:{11+4*n}], v2, {WSR}, s50 offen offset:{16*n}")
        a("s_mov_b64 exec, -1")

    a("s_endpgm")

def body(a):
    PROT = sum(int(x) << (5 * k) for k, x in enumerate(O('prot', '1,1,4,4,7,7,10,10,13,13,16,16').split(',')))
    def eload(a, tag=None):
        WB0 = int(O("wsb", "0"), 16)
        srd(a, 36, WS, WS_BYTES - WB0)
        if WB0: a(f"s_add_u32 s36, s36, {hex(WB0)}\ns_addc_u32 s37, s37, 0")
        a(f"v_mov_b32 v2, 0\ns_mov_b32 s57, {EPOCH}\nbuffer_load_dword v246, v2, {WSR}, s57 offen sc1", tag=tag)
    def roles(a):
        a(f"""
    s_mov_b32 s{BUDGET}, {0 if "xnopoll" in OPT else 400000}
    s_and_b32 s50, s2, 7               ; xcd (speed only)
    s_lshr_b32 s51, s2, 3              ; slot
    s_lshr_b32 s60, s50, {4-LJ}         ; gemm1: 2^(5-LJ) row tiles x 2^LJ column tiles per xcd
    s_lshl_b32 s60, s60, {5-LJ}
    s_lshr_b32 s61, s51, {LJ}
    s_add_u32 s{S_I}, s60, s61
        """ + (f"""
    s_lshl_b32 s61, s61, 3              ; k rotation by row tile (speed only: spreads first touches of the weights)
    s_mov_b32 s62, {hex(sum(int(x) << (8*k) for k, x in enumerate(O("rot", "0,2,4,6,8,3,7,0").split(",")[:4])))}
    s_mov_b32 s63, {hex(sum(int(x) << (8*k) for k, x in enumerate(O("rot", "0,2,4,6,8,3,7,0").split(",")[4:])))}
    s_lshr_b64 s[62:63], s[62:63], s61
    s_and_b32 s{R1}, s62, 255
    s_lshr_b32 s62, s50, 2              ; the two groups of XCDs that share a column tile start half way apart
    s_mul_i32 s62, s62, {O("goff", 10)}
    s_add_u32 s{R1}, s{R1}, s62
    s_sub_u32 s62, s{R1}, 20
    s_min_u32 s{R1}, s{R1}, s62
        """ if LJ == 2 else f"""
    s_mul_i32 s{R1}, s61, {O("rm", 2)}      ; k rotation (speed only: spreads first touches of the weights)
    s_sub_u32 s59, s51, 20
    s_mul_i32 s59, s59, 5
    s_mov_b32 s62, {hex(PROT & 0xffffffff)}
    s_mov_b32 s63, {hex(PROT >> 32)}
    s_lshr_b64 s[62:63], s[62:63], s59
    s_and_b32 s62, s62, 31
    s_cmp_lt_u32 s61, 10
    s_cselect_b32 s{R1}, s{R1}, s62
        """) + f"""
    s_and_b32 s60, s50, {(1 << (4-LJ)) - 1}
    s_lshl_b32 s60, s60, {LJ}
    s_and_b32 s61, s51, {(1 << LJ) - 1}
    s_add_u32 s{S_J}, s60, s61
    s_and_b32 s{S_J2}, s51, 7
    s_lshr_b32 s61, s51, 3
    s_lshl_b32 s60, s50, 2
    s_add_u32 s{S_I2}, s60, s61
    s_mul_i32 s{S_CU}, s50, 20
    s_add_u32 s{S_CU}, s{S_CU}, s51
    s_lshl_b32 s60, s50, 1             ; phase-A unit 16g + j: j = 2*xcd + (slot >= 10), g = slot mod 10
    s_cmp_ge_u32 s51, 10
    s_addc_u32 s60, s60, 0
    s_cmp_ge_u32 s51, 10
    s_cselect_b32 s61, 10, 0
    s_sub_u32 s61, s51, s61
    s_lshl_b32 s61, s61, 4
    s_add_u32 s76, s60, s61
    s_lshl_b32 s58, s{S_CU}, 2
    s_add_u32 s58, s58, s3             ; channel of this wave
    v_lshlrev_b32 v248, 4, v1
        """)
    def ptrs(a):
        a("s_waitcnt lgkmcnt(0)")
        if "entry" not in OPT: stamp(a, "start")
        else: a.comment("stamp 0 start"); stamp(a, "pro")
    def gettag():
        a(f"""
        v_readfirstlane_b32 s{TAG}, v246
        s_mul_i32 s{TAG}, s{TAG}, 0x9E3779B1
        s_add_u32 s{TAG}, s{TAG}, 0x7F4A7C15
        """)
    QM, KM = O("qm", "first"), O("km", "mid")
    WV = 224
    def wdma(n, slot=None, V=WV, each=False, nt=False):
        L = wdir_dma(n, SL[n % 5] if slot is None else slot, V, each=each)
        return [((x[0].replace(" lds", " nt lds"), x[1]) if isinstance(x, tuple) and (nt or n < O("wnt", 2)) else x) for x in L]
    wrd = lambda n: wdir_reads2(n, SL[n % 5], WV)
    NB = O("nb", 2); N2 = O("n2", 0); NC = O("nc", 15)
    first_loads(a, ptrs, eload)
    stamp(a, "kviss")
    if QM == "first": q_loads(a)
    a("s_branch L_conv")
    a.label("L_e_prep"); a.reset()
    code_pf(a)
    a(f"s_cmp_ge_u32 s{S_PU}, 60\ns_cbranch_scc1 L_e_q")
    mod_first(a, ptrs)
    MF = O("mf", 12)
    mod_loads(a, 80, 0, MF)
    a("s_branch L_prep")
    mod_state = list(a.items)
    a.label("L_e_q"); a.reset()
    ST32 = "st32" in OPT
    a(f"""
    ; slots 28..31: two workgroups per xcd take the statistics of the rows whose q tiles that xcd transposes (speed only),
    ; the other two have no job: they start on the weights and publish cw / sw of their column tile
    """ + ("s_lshr_b32 s53, s50, 2\ns_xor_b32 s53, s53, s51\n" if LJ == 2 else "s_lshr_b32 s53, s51, 1\ns_lshl_b32 s51, s51, 1\n") + f"""
    s_and_b32 s53, s53, 1
    s_xor_b32 s76, s53, 1
    s_cmp_ge_u32 s{S_PU}, 64
    s_cselect_b32 s65, s76, 0
    s_cselect_b32 s53, s53, 0
    s_lshl_b32 s50, s50, 2
    """ + ("""
    s_and_b32 s51, s51, 2
    s_add_u32 s77, s50, s51
    s_add_u32 s69, s77, 1
    s_cmp_eq_u32 s53, 0
    """ if not ST32 else f"""
    s_lshr_b32 s51, s2, 3
    s_and_b32 s51, s51, 3
    s_add_u32 s77, s50, s51
    s_cmp_lt_u32 s{S_PU}, 64
    """))
    ptrs(a)
    a("s_cbranch_scc1 L_p_b")
    def sloads(a):
        if "qnt" not in OPT: phases.NT = ""
        st1_loads(a, 77, 16); ST32 or st1_loads(a, 69, 96)
        phases.NT = " nt"
    if "slate" not in OPT: sloads(a)
    a("s_branch L_p_s")
    a.label("L_conv"); a.reset()
    for t in ["kv"] * 8: a.items.append(("vm", t))
    a.items += [("vm", None, "v[48:51]"), ("vm", None, "v[52:55]"), ("vm", "kv", "v246")]
    for t in ["q"] * 4 * (QM == "first"): a.items.append(("vm", t))
    roles(a)
    if QM == "late": q_loads(a)
    first_rest(a, 76)
    if KM == "first": kload(a)
    a("v_mov_b32 v243, v3")
    PK, PQ, PH = O("prk", ""), O("prq", ""), O("prh", "")
    if PK == "r1": preT(a, KVT, True, 238)
    if PQ == "r1": preT(a, QT, False, 239)
    if PH == "r1": preH(a, 237)
    WM = O("wm", "mid")
    if PP:
        if "wpnt" not in OPT: WPNT[0] = " nt"
        put(a, wf_setup(S_J)); wp_setup(a)
    SU = O("su", "11111")
    blocks = [lambda a: wdir_setup2(a, S_J, WV), lambda a: kzero(a, 223), esetup, conv_addr, lambda a: put(a, h1_vsetup(S_J, S_J2) + xflags(219, 0)[:-1])]
    for f, e in zip(blocks, SU):
        if e == "1": f(a)
    a("v_mov_b32 v3, v243")
    if KM == "late": kload(a)
    if PP and WM == "late": wp_issue(a)
    if PK == "late": preT(a, KVT, True, 238, 8)
    if PQ == "late": preT(a, QT, False, 239, 8)
    for c in range(4): unpack(a, 104 + c, 108 + c, 48 + 2*c); unpack(a, 112 + c, 116 + c, 49 + 2*c)
    stamp(a, "setup")
    phaseA_read(a)
    stamp(a, "kvland")
    if PQ == "mid": preT(a, QT, False, 239)
    if KM == "mid": kload(a)
    if PP and WM == "mid": wp_issue(a)
    NM = O("nm", 0); assert NM <= min(2, NB)
    for n in range(NM): put(a, wdma(n))
    phaseA_compute(a, taps=False)
    stamp(a, "Acomp")
    if KM == "post": kload(a)
    if QM != "mid":
        a.waitv("q"); a("s_barrier")
        phaseA_q(a, 184)
    if PP and WM == "post": wp_issue(a)
    if "kcl" not in OPT: kcopies(a, 223)
    signal(a, 76, FA, gettag, tag="kvst")
    stamp(a, "Asig")
    if QM == "mid": phaseA_q(a, 184)
    if SU[0] == "0": blocks[0](a)
    if KM == "sig": kload(a)
    if PP:
        if WM == "post": a.waitv("wp"); a("s_barrier")
        wp_finish(a, S_CU, 128, 0)
    for n in range(NM, NB): put(a, wdma(n))
    for f, e in list(zip(blocks, SU))[1:]:
        if e == "0": f(a)
    if "kcl" in OPT: kcopies(a, 223)
    if "xcct" in OPT:
        a(f"s_cmp_eq_u32 s2, 0\ns_cbranch_scc0 L_xt0\ns_getreg_b32 s50, hwreg(HW_REG_XCC_ID, 0, 4)\ns_add_u32 s50, s50, 1\nv_mov_b32 v2, 0\nv_mov_b32 v3, s50")
        a(f"global_store_dword v2, v3, {sp(DBG)} sc1", cond=True); a.label("L_xt0")
    if "encabs" in OPT:
        a(f"s_cmp_eq_u32 s2, 1\ns_cbranch_scc0 L_ea0\nv_mov_b32 v2, 0\nv_mov_b32 v3, s78")
        a(f"global_store_dword v2, v3, {sp(DBG)} sc1", cond=True); a.label("L_ea0")
    SSH = "ssh" in OPT
    if SSH:
        assert KM in ("first", "late", "mid") and SU == "11111"
        a("s_mov_b32 s60, s35"); h1_ssetup(a, S_I, S_J); put(a, [f"s_mov_b32 s17, {FLG}"] + h2_wsetup(S_J2)); a(f"s_mov_b32 s60, {FP2+40*128}")
    conv_dfrag(a)
    a(f"v_mov_b32 v4, v{AA}\nv_mov_b32 v5, v{AF}")
    EP = "ep" in OPT and "pq" not in OPT
    if EP: poll_issue(a, 242, 59, 243)
    if NB: a.waitv(f"w{NB-1}")
    FWL = PP and "fwl" in OPT
    if PP and not FWL: a.waitv("wpst")
    a.waitv("qst"); a("s_barrier"); wflag(a, 76, FT)
    if PP and not FWL: wflag(a, S_CU, FW)
    stamp(a, "kcop")
    if "xf" not in OPT:
        for n in range(NB): put(a, wrd(n))
    PQ_ = "pq" in OPT
    if PQ_:
        a(f"""
        v_subrev_u32 v243, 16, v1
        v_lshlrev_b32 v243, 2, v243
        ds_bpermute_b32 v243, v243, v240
        s_sub_u32 s52, s69, s59
        v_cmp_lt_u32 vcc, 15, v1
        v_add_u32 v243, s52, v243
        v_cndmask_b32 v242, v242, v243, vcc
        """)
    if EP: poll_check(a, 242, 59, 243)
    else: poll(a, 242, 59)
    stamp(a, "kvseen")
    xload(a)
    if "xf" in OPT:
        for n in range(NB): put(a, wrd(n))
    if PQ_:
        a("s_barrier")
        for g in st1dma() + qloads(0): put(a, g)
    if FWL: a("s_barrier"); wflag(a, S_CU, FW)
    C2 = O("c2", 10); CL = O("cl", 40); PE = O("pe", 95); PF = O("pf", 45)
    nr = nd = NB
    if C2 - CL < 0 and not PQ_: poll_issue(a, 240, 69, 243)
    if NB + N2 > 5: a("s_waitcnt lgkmcnt(0)\ns_barrier")
    while nd < min(NC, nr + N2): put(a, wdma(nd)); nd += 1
    sc = c2_sched(); N = sc.N
    if C2 - CL >= 0 and not PQ_: sc.vm(PI(240, 69, 243), C2 - CL)
    p2 = (sc.at(BAR(f"l:wr{NB-1}"), 4) if NB else 0) if PQ_ else sc.at(costed(lambda a: (poll_check(a, 240, 69, 243), a.waitl(f"wr{NB-1}"), a("s_barrier"), stamp(a, "qseen")), "v", 2), C2)
    ml = f"buffer_load_dwordx2 v[{ET}:{ET+1}], v253, {WSR}, s55 offen sc1"
    sc.vm([small(ml)], PE - O("ml", 45))
    def mslow(a):
        a.label("L_m_slow"); a.reset()
        a(ml)
        a(f"v_cmp_ne_u32 vcc, s{TAG}, v{ET+1}\ns_cbranch_vccz L_m_back\ns_cmp_eq_u32 s{BUDGET}, 0\ns_cbranch_scc1 L_m_back\ns_sub_u32 s{BUDGET}, s{BUDGET}, 1\ns_sleep 1\ns_branch L_m_slow")
    slow2.append(mslow)
    def mcheck(a):
        a(f"v_cmp_ne_u32 vcc, s{TAG}, v{ET+1}\ns_cbranch_vccnz L_m_slow"); a.label("L_m_back")
        a(f"""
        v_mov_b32_dpp v252, v{ET} quad_perm:[3,3,3,3] row_mask:0xf bank_mask:0xf
        v_mul_f32_dpp v251, v{ET}, v252 quad_perm:[2,2,2,2] row_mask:0xf bank_mask:0xf
        v_mul_f32_dpp v250, v{ET}, v251 quad_perm:[1,1,1,1] row_mask:0xf bank_mask:0xf
        v_mul_f32_dpp v251, v{ET}, v251 quad_perm:[0,0,0,0] row_mask:0xf bank_mask:0xf
        """)
    sc.force(PE - 12, [BAR("st1")])
    sc.chain(streads(0), PE - 12, PE - 4, 1)
    sc.force(PE, [costed(lambda a: (mcheck(a), stamp(a, "e1"), pre_pk(a), fin_pk(a, 0), stamp(a, "e1done")), "v", 2)])
    sc.force(PE + PF, [BAR("a1st0", then=lambda a: (wflag(a, S_CU, FXE), stamp(a, "fxe")), c=3)])
    XC = O("xc", 250)
    sc.vm(PI(219, 17, 223), XC - O("xl", 30))
    XC = sc.at(PC(219, 17, 223, "xseen"), XC)
    pfp = sc.vm(PI(241, 60, 243), PE + 10)[0]
    sl = sc.chain(streads(1), PE + 2, PE + 14, 1)
    LEAD = O("lead", 50); W0 = O("w0", 84); W1 = O("w1", 270); bp = {}; sfree = [0] * 5; q = 0
    WG = O("wg", 1); rl = {}
    for n in range(nr, NC, WG):
        last = min(n + WG, NC) - 1
        p = max(q + 1, W0 + (W1 - W0) * (n - nr) // max(1, NC - 1 - nr))
        if PE - 13 <= p <= PE + 1: p = PE + 2
        b_ = sc.at(BAR(f"w{last}", f"l:wr{n-1}"), p, 2)
        q = sc.chain([x for m in range(n, last + 1) for x in wrd(m)], b_, b_ + 7 * (last - n + 1), 1)
        for m in range(n, last + 1): bp[m] = b_
        for m in range(max(nr, n - WG), n): sfree[m % 5] = b_; rl[m + 5] = b_ + 1
    pw = 0
    pw = sc.at(BAR(f"l:wr{NC-1}"), q + 4)
    for m in range(n, NC): sfree[m % 5] = pw
    pre5 = nr + 5; wf = groups_of(wf_loads())
    SW = [(wf[n], p2 + 1, N - O("wdl", 100) + 4 * n) for n in range(60)] if PP else [(g, max(p2 + 1, O("d0", 30)) if n < pre5 else rl[n], bp[n] - LEAD) for n in range(nd, NC) for g in groups_of(wdma(n, each=True))]
    erel = lambda ks: max([XC + 1] + [sfree[k] + 1 for k in range(5) if SL[k] < 4096 * (ks + 1) and 4096 * ks < SL[k] + WSLOT2])
    S = [SW, [(g, p2 + 1, PE - 70) for g in (st1dma() + qloads(0)) * (not PQ_)], [(g, PE + 1, PE + 20) for g in qloads(1)],
         [(h1_dma(0, ks), erel(ks), N - 60 + (12 * (gate_of(GE, ks) - 1) if ks >= GE[0] else 0) + ks / 100) for ks in range(O("npre", 15))]]
    pos = sc.streams(S, O("pc", 4.0), 0, N - 2, wt=[O("ww", 1.3), 1, 1, 1])
    assert all(len(x) == len(y) for x, y in list(zip(pos, S))[PP:3]), [(len(x), len(y)) for x, y in zip(pos, S)]
    assert PQ_ or pos[1][-1] < PE - 14
    log = [(n, bp[n], bp[n] - pos[0][3 * (n - nd) + 2]) for n in range(nd, NC)] if not PP else [(len(pos[0]), 0, 1)]; nwf = len(pos[0])
    assert all(x[2] > 0 for x in log), log
    npre = len(pos[3]); ql = pos[2][-1]
    b = Asm(); h1_ssetup(b, S_I, S_J); put(b, [f"s_mov_b32 s17, {FLG}"])
    SS = [re.sub(r"\bs50\b", "s53", re.sub(r"\bs35\b", "s52", re.sub(r"\bs62\b", "s16", x.text))) for k, x in b.items if k == "ins"]
    SS = SS[-1:] + SS[:-1] + [y for x in h2_wsetup(S_J2) for y in x.split("\n")]
    if not SSH: q = sc.chain(SS, 1, XC - 40, 1)
    pl = sc.chain(pre_list(), max(ql + 50, sl + 4), O("pld", 270))
    pi = sc.at(PC(241, 60, 243), pfp + 50)
    b = Asm(); h1_icb(b); IL = [x.text.replace("s50", "s56") for k, x in b.items if k == "ins"]
    pi = sc.chain(IL[:2] + [IL[2] + "\n" + IL[3]] + IL[4:6], pi + 1, pi + 8)
    for x in IL[6:]: pi = sc.vm([small(x)], pi + 1)[0]
    print(f"conv: weights {log} done {pw}; stats/q {pos[1]}; late pre {pl}; x seen {XC}; early {pos[3]}; overflow {sc.over()}", file=sys.stderr)
    for c in range(8): fstamp(sc, c2_start(1, c), f"c{c}")
    a.waitv("xdma")
    stamp(a, "cstart")
    for l in c2_loads(0, 0): a(l)
    seen = set()
    for n, (part, c, u, w, dterm) in enumerate(C2M):
        t = u + w; bb = c & 1
        A = vr(DFR, 4) if dterm else vr(AB[bb] + 4*u, 4)
        a(f"v_mfma_f32_16x16x32_bf16 {vr(ACC+4*t,4)}, {A}, {vr(FB[bb]+4*w,4)}, {vr(ACC + 4*t, 4) if t in seen else '0'}")
        seen.add(t)
        sc.emit(a, n)
    stamp(a, "cdone")
    order = sorted(range(4), key=lambda t: max(n for n, m in enumerate(C2M) if m[2] + m[3] == 4 + t))
    NP2 = max(npre, min(GE[0] if GE else 20, 15))
    for ks in range(npre, NP2): put(a, h1_dma(0, ks))
    V2 = 200; WB = 163840 - WSLOT2 * (20 - NC)
    tb = {n: O("t0", 90) + O("tp", 18) * (n - NC) for n in range(NC, 21)}
    wrest = [(g, 0, tb[n] - LEAD) for n in range(NC, 20) for g in groups_of(wdma(n, WB + WSLOT2 * (n - NC), V2, True))]
    if PP: wrest = [(wf[n], 0, 12 * (n // 3) - 60 + n / 100) for n in range(nwf, 60)]
    def conv_extra(sc, conv=True):
        q = 0; fr = {}
        for n in range(NC, 21):
            if NC == 20: break
            q = sc.at(BAR(*([f"w{n}"] if n < 20 else []), *([f"l:wr{n-1}"] if n > NC else [])), max(q + 1, tb[n]), 2); fr[n - 1] = q + 1
            if n < 20:
                q = sc.chain(wdir_reads2(n, WSLOT2 * (n - NC), V2), q, q + 10, 1, keep=G1B)
                assert q + 6 < 12 * n, (n, q)
        if conv: sc.at(BAR("a1st1", then=lambda a: wflag(a, S_CU, FXL), c=3), O("pl", 35))
        return lambda ks: max([0] + [fr[n] for n in range(NC, 20) if WB + WSLOT2 * (n - NC) < IMG + 4096 * (ks + 1) and IMG + 4096 * ks < WB + WSLOT2 * (n - NC + 1)])
    def head(a):
        fin_pk(a, 1, order)
        if NC < 20:
            for k in range(3): a(f"v_mov_b32 v{200+k}, v{WV+k}")
            for k in (3, 4): a(f"v_add_u32 v{200+k}, {WB}, v{WV+k}")
    passA(a, NP2, head, wrest, conv_extra)
    rest(a, 'c')
    V = 230; slot = lambda m: WLB + (m % 8) * WSLOT2
    def wpipe(a, n0, n1, mid=None, first=None, at=None, nt=False, hook=None):
        nd = min(n0 + 6, n1)
        wdir_dma = lambda n, sl, V: wdma(n, sl, V, nt=nt)
        for n in range(n0, nd): put(a, wdir_dma(n, slot(n), V))
        if mid: mid(a)
        for n in range(n0, n1, 2):
            last = min(n + 1, n1 - 1)
            a.waitv(f"w{last}")
            if n > n0: a.waitl(f"wr{n-1}")
            a("s_barrier")
            if first and n == n0: first(a)
            for m in range(n, last + 1): put(a, wdir_reads2(m, (m % 4) * WSLOT2, V + (5 if m % 8 >= 4 else 0)))
            for _ in range(2):
                if nd < n1:
                    put(a, wdir_dma(nd, slot(nd), V)); nd += 1
                    if at and nd == at[0]: at[1](a)
                    if hook: hook(a, nd)
        if at: a.waitv("wst")
        a("s_waitcnt lgkmcnt(0)\ns_barrier")
    NFN = O("nfn", 0)
    def wset(a):
        wdir_setup2(a, S_J, V)
        a(f"v_add_u32 v{V+3}, {WLB}, v{V+3}\nv_add_u32 v{V+4}, {WLB}, v{V+4}\nv_add_u32 v{V+8}, {4*WSLOT2}, v{V+3}\nv_add_u32 v{V+9}, {4*WSLOT2}, v{V+4}")
    assert not NFN
    a.label("L_prep"); a.reset()
    for p in range(5): a.items.append(("vm", None, vr(80 + 2*p, 2)))
    for p in range(MF): a.items.append(("vm", None, vr(90 + 4*p, 4)))
    eload(a)
    PD = O("pd", "")
    if PD:
        a(f"s_cmp_ge_u32 s{S_PU}, 40\ns_cbranch_scc0 L_nopd\ns_lshr_b32 s62, s2, 3\ns_sub_u32 s62, s62, 25")
        b = Asm(); pre_dest(b, 62, PD)
        for k, x in b.items: a(x.text, nowait=True)
        a.label("L_nopd"); a.reset()
        a("s_waitcnt vmcnt(%d)" % 0 if False else "s_nop 0")
        for p in range(5): a.items.append(("vm", None, vr(80 + 2*p, 2)))
        a.items.append(("vm", None, "v246"))
    roles(a)
    a("s_mov_b32 s76, 0")
    mod_silu(a, 80, 180)
    mod_loads(a, 80, MF, 20)
    stamp(a, "kvland")
    mod_finish(a, 77, 80, 180, 0)
    stamp(a, "Acomp")
    gettag()
    mod_finish2(a, 77, 80, 180, 0, TAG)
    a(f"s_add_u32 s77, s77, {(FP2-FQ)//128}\ns_branch L_p_w")
    a.label("L_p_b"); a.reset()
    eload(a)
    if PD:
        a(f"s_lshr_b32 s62, s2, {4 if LJ == 2 else 3}\ns_and_b32 s62, s62, 1\ns_add_u32 s62, s62, 3\ns_cmp_ge_u32 s{S_PU}, 64\ns_cselect_b32 s62, s62, 2")
        pre_dest(a, 62, PD)
    roles(a); gettag()
    a(f"s_mov_b32 s76, s65\ns_add_u32 s77, s{S_PU}, {(FY-FQ)//128}\ns_branch L_p_w")
    a.label("L_p_s"); a.reset()
    for p in range((20 if ST32 else 40) * ("slate" not in OPT)): a.items.append(("vm", None, vr(16 + 4*p, 4)))
    eload(a); roles(a)
    if "slate" in OPT: sloads(a)
    a("s_mov_b32 s76, s65")
    stamp(a, "kvland")
    st1_finish(a, 77, 16, 180); ST32 or st1_finish(a, 69, 96, 180)
    stamp(a, "Acomp")
    signal(a, 77, FQ, lambda: (gettag(), ST32 or wflag(a, 69, FQ, 2)))
    a.label("L_p_w"); a.reset()
    stamp(a, "Asig")
    srd(a, 56, WD_, 1536 * 640 * 2)
    WDH = WLB + 8 * WSLOT2
    if NFN:
        a(f"s_sub_u32 s50, s{S_PU}, 40\ns_cmp_lt_u32 s50, 40\ns_cbranch_scc1 L_p_w2")
        wset(a); wpipe(a, 0, NFN, None, lambda a: (wflag(a, 77, FQ, 2), wflag(a, S_PU, FY, 2)))
        a.label("L_p_w2"); a.reset()
    else: wset(a)
    def psetup(a):
        h1_ssetup(a, S_I, S_J)
        put(a, h1_vsetup(S_J, S_J2) + xflags(219, 0) + h2_wsetup(S_J2))
    first = lambda a: (wflag(a, 77, FQ, 2), wflag(a, S_PU, FY, 2))
    a(f"s_cmp_eq_u32 s76, 1\ns_cbranch_scc1 L_bias")
    wpipe(a, 0, NC, psetup, first, (min(NC, O("wdp", 15)), lambda a: wdh_loads(a, S_PU, WDH)))
    wdh_finish(a, S_PU, WDH, 16)
    stamp(a, "kcop")
    a("s_branch L_nobias")
    a.label("L_bias"); a.reset()
    def hook(a, nd):
        if nd == NC: a("s_mov_b32 s69, s64")
        if nd == 14: a(f"s_mov_b32 s66, {FP2+30*128}\nv_min_u32 v240, 19, v1\nv_lshlrev_b32 v240, 7, v240"); poll_issue(a, 240, 66, 241)
        if nd == 20: poll_check(a, 240, 66, 241); put(a, g1_table_load(WDH + 20480)); wdh_loads(a, S_PU, WDH)
    wpipe(a, 0, 20, psetup, first, hook=hook)
    stamp(a, "kcop")
    if NC < 20: a("s_mov_b32 s64, s69")
    g1_bias(a, 0, 20, 40, WDH + 20480)
    h1_biasstore(a)
    a.waitv("wst"); a("s_barrier")
    wdh_finish(a, S_PU, WDH, 16)
    a.label("L_nobias"); a.reset()
    a("s_waitcnt vmcnt(0)\ns_barrier")
    wflag(a, S_PU, FP3, 2)
    a(f"s_cmp_eq_u32 s76, 1\ns_cbranch_scc0 L_nobias2")
    wflag(a, S_J, FB_, 2)
    a.label("L_nobias2")
    a("s_cmp_eq_u32 s2, 223\ns_cbranch_scc0 L_p_x")
    a(f"""
    v_lshlrev_b32 v5, 7, v0
    v_add_u32 v6, {FY-FA-160*128}, v5
    v_cmp_lt_u32 vcc, 159, v0
    v_cndmask_b32 v5, v5, v6, vcc
    s_mov_b32 s52, {FA}
    """)
    poll(a, 5, 52)
    a("s_barrier")
    a(f"s_cmp_eq_u32 s3, 0\ns_cbranch_scc0 L_p_x\ns_mov_b32 s50, {EPOCH}\nv_mov_b32 v2, 0\nv_mov_b32 v3, s{TAG}\ns_mov_b64 exec, 1")
    a(f"buffer_store_dword v3, v2, {WSR}, s50 offen sc1", cond=True)
    a("s_mov_b64 exec, -1")
    a.label("L_p_x"); a.reset()
    stamp(a, "cdone")
    a(f"""
    v_min_u32 v2, 49, v1
    v_lshlrev_b32 v2, 7, v2
    v_add_u32 v2, {FP2-FLG}, v2
    v_cmp_lt_u32 vcc, 39, v1
    v_cndmask_b32 v219, v219, v2, vcc
    """)
    for k in range(3): a(f"v_mov_b32 v{200+k}, v{V+k}")
    for k in (3, 4): a(f"v_add_u32 v{200+k}, {WB-WLB}, v{V+k}")
    NPW = O("npw", 2)
    for n in range(NC, min(20, NC + NPW)): put(a, wdma(n, WB + WSLOT2 * (n - NC), V2))
    poll(a, 219, 17, 223)
    stamp(a, "xseen")
    NPP = O("npp", 12)
    for ks in range(NPP): put(a, h1_dma(0, ks))
    h1_icb(a)
    passA(a, NPP, None, wrest[3 * NPW:], lambda sc: conv_extra(sc, False))
    rest(a, 'p')

def build():
    name = NAME + "_kernel"
    a = Asm()
    a.raw(f".globl {name}\n.p2align 8\n.type {name},@function\n{name}:")
    if "entry" in OPT: a(f"{'s_memrealtime' if 'enc' in OPT else STI} s[78:79]")
    entry(a)
    body(a)
    a.label("L_end")
    a("s_endpgm")
    emit_slow(a)
    a.label("L_code_end")
    a.raw('.if L_code_end-L_pc0 > 98304\n.error "the code prefetch does not cover the kernel"\n.endif')
    hdr = open("cdna_kernels/" + NAME + ".s.ref").read().split("; Override")[0]
    txt = hdr + "; @launch grid=(256,1,1) block=(256,1,1) lds=163840\n"
    txt += '.amdgcn_target "amdgcn-amd-amdhsa--gfx950"\n.text\n' + a.finish()
    txt += f""".section .rodata,"a"
.p2align 6
.amdhsa_kernel {name}
  .amdhsa_next_free_vgpr 512
  .amdhsa_next_free_sgpr 102
  .amdhsa_accum_offset 256
  .amdhsa_group_segment_fixed_size 0
  .amdhsa_kernarg_size 120
  .amdhsa_user_sgpr_count 2
  .amdhsa_user_sgpr_kernarg_segment_ptr 1
  .amdhsa_system_sgpr_workgroup_id_x 1
.end_amdhsa_kernel
"""
    return txt
if __name__ == "__main__":
    out = [x for x in sys.argv[1:] if not x.startswith("--")][0]
    open(out, "w").write(build())
```
